```python
import torch

def _softmax(x, axis=-1):
    return torch.softmax(x, dim=axis)

def _gelu(x):
    return torch.nn.functional.gelu(x, approximate='tanh')

def _silu(x):
    return torch.nn.functional.silu(x)

def _sigmoid(x):
    return torch.sigmoid(x)

def _layernorm(x, axis=-1, eps=1e-05):
    m = x.mean(dim=axis, keepdim=True)
    v = x.var(dim=axis, keepdim=True, unbiased=False)
    return (x - m) / torch.sqrt(v + eps)

def _scatter_add(tgt, idx, src, axis=0):
    return tgt.clone().index_add_(axis, idx, src)

def _segment_sum(src, seg, n):
    out = torch.zeros((n,) + src.shape[1:], dtype=src.dtype)
    return out.index_add_(0, seg, src)

def _pad(x, pw):
    flat = tuple((v for pair in reversed(pw) for v in pair))
    return torch.nn.functional.pad(x, flat)
kernel_name = 'sequential_preLN__memory_aug_recurrent_mem_tr__swiglu_ffn__prompt'

def setup_inputs():

    _w = lambda a: (lambda t: t.to(torch.bfloat16) if t.is_floating_point() else t)(torch.as_tensor(a))

    def _A_setup():
        B, S, Dm = (1, 2048, 640)
        H, Dh = (32, 128)
        M, seg = (8, 32)
        seg = min(seg, S)
        S = S // seg * seg
        return {'x': _w((lambda *s: torch.randn(*s, dtype=torch.bfloat16) * 0.05)(B, S, Dm)), 'mem0': _w((lambda *s: torch.randn(*s, dtype=torch.bfloat16) * 0.2)(B, M, Dm)), 'Wq': _w((lambda *s: torch.randn(*s, dtype=torch.bfloat16) * 1.6)(Dm, H, Dh) * Dm ** (-0.5)), 'Wk': _w((lambda *s: torch.randn(*s, dtype=torch.bfloat16) * 1.6)(Dm, H, Dh) * Dm ** (-0.5)), 'Wv': _w((lambda *s: torch.randn(*s, dtype=torch.bfloat16) * 0.2)(Dm, H, Dh) * Dm ** (-0.5)), 'Wo': _w((lambda *s: torch.randn(*s, dtype=torch.bfloat16) * 0.2)(H, Dh, Dm) * (H * Dh) ** (-0.5)), 'seg_len': seg}
    _A_in = _A_setup()

    def _B_setup():
        B, S, D, F = (1, 2048, 640, 1728)
        return {'x': _w((lambda *s: torch.randn(*s, dtype=torch.bfloat16) * 0.05)(B, S, D)), 'w_gate': _w((lambda *s: torch.randn(*s, dtype=torch.bfloat16) * 0.05)(D, F)), 'w_up': _w((lambda *s: torch.randn(*s, dtype=torch.bfloat16) * 0.05)(D, F)), 'w_down': _w((lambda *s: torch.randn(*s, dtype=torch.bfloat16) * 0.05)(F, D))}
    _B_in = _B_setup()
    return {'A_x': _A_in['x'], 'A_mem0': _A_in['mem0'], 'A_Wq': _A_in['Wq'], 'A_Wk': _A_in['Wk'], 'A_Wv': _A_in['Wv'], 'A_Wo': _A_in['Wo'], 'A_seg_len': _A_in['seg_len'], 'B_x': _B_in['x'], 'B_w_gate': _B_in['w_gate'], 'B_w_up': _B_in['w_up'], 'B_w_down': _B_in['w_down']}

def reference(A_x, A_mem0, A_Wq, A_Wk, A_Wv, A_Wo, A_seg_len, B_x, B_w_gate, B_w_up, B_w_down):

    def _A_ref(x, mem0, Wq, Wk, Wv, Wo, seg_len):
        B, S, Dm = x.shape
        H, Dh = (Wq.shape[1], Wq.shape[2])
        M = mem0.shape[1]
        scale = Dh ** (-0.5)
        n_seg = S // seg_len
        L = M + seg_len
        idx = torch.arange(L)
        mask = (idx[:, None] < M) | (idx[:, None] >= idx[None, :])
        mem = mem0
        outs = []
        for s in range(n_seg):
            xs = x[:, s * seg_len:(s + 1) * seg_len, :].clone()
            h = torch.concatenate([mem, xs], axis=1)
            q = torch.einsum('btd,dhe->bhte', h, Wq)
            k = torch.einsum('btd,dhe->bhte', h, Wk)
            v = torch.einsum('btd,dhe->bhte', h, Wv)
            scores = torch.einsum('bhqe,bhke->bhqk', q, k) * scale
            scores = torch.where(mask[None, None], scores, -1000000000.0)
            p = _softmax(scores, axis=-1)
            o = torch.einsum('bhqk,bhke->bhqe', p, v)
            o = torch.einsum('bhte,hed->btd', o, Wo)
            mem = o[:, :M, :].clone()
            outs.append(o[:, M:, :])
        return torch.concatenate(outs, axis=1)

    def _B_ref(x, w_gate, w_up, w_down):
        g = _silu(x @ w_gate)
        u = x @ w_up
        return g * u @ w_down
    x = A_x
    h = x + _A_ref(_layernorm(x, axis=-1), A_mem0, A_Wq, A_Wk, A_Wv, A_Wo, A_seg_len)
    h2 = h + _B_ref(_layernorm(h, axis=-1), B_w_gate, B_w_up, B_w_down)
    return h2
```

```python
import re

TRANS = ('v_exp_f32', 'v_log_f32', 'v_rcp_f32', 'v_rsq_f32', 'v_sqrt_f32', 'v_sin_f32', 'v_cos_f32', 'v_rcp_iflag_f32')

def expand(op):
    op = op.strip()
    if op.startswith('-'):
        op = op[1:]
    m = re.fullmatch(r'abs\((.*)\)', op) or re.fullmatch(r'\|(.*)\|', op)
    if m:
        op = m.group(1)
    m = re.fullmatch(r'([vas])\[(\d+):(\d+)\]', op)
    if m:
        return [f'{m.group(1)}{i}' for i in range(int(m.group(2)), int(m.group(3)) + 1)]
    m = re.fullmatch(r'([vas])(\d+)', op)
    if m:
        return [op]
    if op in ('vcc', 'vcc_lo', 'vcc_hi'):
        return ['vcc']
    if op in ('exec', 'exec_lo', 'exec_hi'):
        return ['exec']
    if op == 'm0':
        return ['m0']
    if op == 'scc':
        return ['scc']
    return []

def split_ops(s):
    out = []; depth = 0; cur = ''
    for ch in s:
        if ch in '[(': depth += 1
        if ch in '])': depth -= 1
        if ch == ',' and depth == 0:
            out.append(cur.strip()); cur = ''
        else:
            cur += ch
    if cur.strip(): out.append(cur.strip())
    return out

class Ins:
    __slots__ = ('text', 'mn', 'kind', 'wr', 'rd', 'passes', 'srcc', 'ab', 'nop', 'label', 'target', 'dpp', 'storedata', 'wide')
    def __init__(self, text):
        self.text = text
        self.kind = 'other'; self.wr = []; self.rd = []; self.passes = 0; self.srcc = []; self.ab = []
        self.nop = 1; self.label = None; self.target = None; self.dpp = False; self.storedata = []; self.wide = False
        t = text.split(';')[0].strip()
        if not t:
            self.kind = 'blank'; self.nop = 0; self.mn = ''; return
        if t.endswith(':'):
            self.kind = 'label'; self.label = t[:-1]; self.nop = 0; self.mn = ''; return
        if t.startswith('.'):
            self.kind = 'directive'; self.nop = 0; self.mn = ''; return
        parts = t.split(None, 1)
        mn = parts[0]; self.mn = mn
        rest = parts[1] if len(parts) > 1 else ''
        ops = split_ops(rest)
        if ops:
            last = ops[-1].split()
            ops[-1] = last[0] if last else ''
            mods = last[1:]
        else:
            mods = []
        base = re.sub(r'_(e32|e64|dpp|sdwa)$', '', mn)
        if mn.startswith('v_mfma') or mn.startswith('v_smfmac'):
            self.kind = 'mfma'
            if '32x32' in mn: self.passes = 8
            elif '4x4x4' in mn: self.passes = 2
            else: self.passes = 4
            self.wr = expand(ops[0])
            self.ab = expand(ops[1]) + expand(ops[2])
            if mn.startswith('v_smfmac'):
                self.srcc = expand(ops[0]); self.ab += expand(ops[3])
            else:
                self.srcc = expand(ops[3])
            self.rd = self.ab + self.srcc
        elif mn.startswith('v_'):
            self.kind = 'trans' if base in TRANS else 'valu'
            self.dpp = mn.endswith('_dpp') or any(m.startswith(('row_', 'quad_perm', 'wave_', 'bank_mask')) for m in mods)
            if base.startswith('v_cmp'):
                self.wr = expand(ops[0]); self.rd = sum((expand(o) for o in ops[1:]), [])
                if base.startswith('v_cmpx'): self.wr += ['exec']
            elif base in ('v_readfirstlane_b32', 'v_readlane_b32'):
                self.wr = expand(ops[0]); self.rd = sum((expand(o) for o in ops[1:]), [])
            elif base in ('v_add_co_u32', 'v_sub_co_u32', 'v_addc_co_u32', 'v_subb_co_u32', 'v_subrev_co_u32'):
                self.wr = expand(ops[0]) + expand(ops[1]); self.rd = sum((expand(o) for o in ops[2:]), [])
            elif base in ('v_permlane32_swap_b32', 'v_permlane16_swap_b32', 'v_swap_b32'):
                self.wr = expand(ops[0]) + expand(ops[1]); self.rd = list(self.wr)
            else:
                self.wr = expand(ops[0]); self.rd = sum((expand(o) for o in ops[1:]), [])
                if base in ('v_fmac_f32', 'v_dot2c_f32_bf16', 'v_mac_f32', 'v_writelane_b32', 'v_pk_fmac_f16') or self.dpp:
                    self.rd += self.wr
                if base == 'v_cndmask_b32' and len(ops) == 3:
                    self.rd += ['vcc']
            self.rd += ['exec']
        elif mn.startswith(('buffer_', 'global_')):
            self.kind = 'vmem'
            is_lds = 'lds' in mods or (ops and ops[-1] == 'lds') or '_lds_' in mn
            if mn in ('buffer_wbl2', 'buffer_inv'):
                pass
            elif 'store' in mn:
                if mn.startswith('buffer_'):
                    self.storedata = expand(ops[0]); self.rd = sum((expand(o) for o in ops), [])
                else:
                    self.storedata = expand(ops[1]); self.rd = sum((expand(o) for o in ops), [])
                self.wide = ('x3' in mn or 'x4' in mn)
            elif 'atomic' in mn:
                ret = 'sc0' in mods
                if mn.startswith('buffer_'):
                    self.rd = sum((expand(o) for o in ops), [])
                    if ret: self.wr = expand(ops[0])
                else:
                    if ret:
                        self.wr = expand(ops[0]); self.rd = sum((expand(o) for o in ops[1:]), [])
                    else:
                        self.rd = sum((expand(o) for o in ops), [])
            else:
                if is_lds:
                    self.rd = sum((expand(o) for o in ops), []) + ['m0']
                else:
                    self.wr = expand(ops[0]); self.rd = sum((expand(o) for o in ops[1:]), [])
        elif mn.startswith('ds_'):
            self.kind = 'ds'
            if mn.startswith(('ds_read', 'ds_bpermute', 'ds_permute', 'ds_swizzle')):
                self.wr = expand(ops[0]); self.rd = sum((expand(o) for o in ops[1:]), [])
            else:
                self.rd = sum((expand(o) for o in ops), [])
                self.storedata = sum((expand(o) for o in ops[1:]), [])
        elif mn.startswith('s_'):
            self.kind = 'salu'
            if mn == 's_nop':
                self.nop = int(ops[0], 0) + 1
            elif mn.startswith(('s_cbranch', 's_branch')):
                self.kind = 'branch'; self.target = ops[0]
                if 'vcc' in mn: self.rd = ['vcc']
                if 'exec' in mn: self.rd = ['exec']
            elif mn.startswith(('s_cmp', 's_bitcmp', 's_waitcnt', 's_barrier', 's_sleep', 's_endpgm', 's_setprio', 's_sethalt', 's_setreg')):
                self.rd = sum((expand(o) for o in ops), [])
            elif mn.startswith(('s_load', 's_buffer_load', 's_memtime', 's_memrealtime', 's_getreg')):
                self.kind = 'smem'
                self.wr = expand(ops[0]); self.rd = sum((expand(o) for o in ops[1:]), [])
            else:
                self.wr = expand(ops[0]); self.rd = sum((expand(o) for o in ops[1:]), [])
                if 'saveexec' in mn: self.wr += ['exec']
        else:
            raise ValueError('unknown instruction: ' + text)

def isvg(r): return r[0] in 'va' and r[1:].isdigit()
def issg(r): return (r[0] == 's' and r[1:].isdigit()) or r == 'vcc'

def need_wait(prod, cons):
    w = 0
    pk, ck = prod.kind, cons.kind
    pw = set(prod.wr)
    if pk in ('valu', 'trans'):
        vw = {r for r in pw if isvg(r)}
        sw = {r for r in pw if issg(r)}
        if ck == 'mfma' and vw & set(cons.rd): w = max(w, 2)
        if ck in ('valu', 'trans'):
            if sw & set(cons.rd):
                w = max(w, 4 if cons.mn.startswith(('v_readlane', 'v_writelane')) and False else 2)
            if cons.mn.startswith(('v_readfirstlane', 'v_readlane')) and vw & set(cons.rd): w = max(w, 1)
            if cons.mn.startswith('v_permlane') and vw & set(cons.rd): w = max(w, 2)
            if cons.dpp and vw & set(cons.rd): w = max(w, 2)
            if pk == 'trans' and ck != 'trans' and vw & set(cons.rd): w = max(w, 1)
            if pk == 'trans' and ck == 'trans' and vw & set(cons.rd): w = max(w, 1)
            if 'exec' in pw:
                if cons.dpp: w = max(w, 5)
                if cons.mn.startswith(('v_readlane', 'v_readfirstlane', 'v_writelane', 'v_permlane')): w = max(w, 4)
        if ck == 'vmem' and sw & set(cons.rd): w = max(w, 5)
        if ck == 'mfma' and 'exec' in pw: w = max(w, 4)
        if ck in ('salu', 'branch', 'smem') and sw & set(cons.rd): w = max(w, 1)
    if pk == 'mfma':
        p = prod.passes
        tab_v = {2: 5, 4: 8, 8: 12, 16: 20}[p]
        tab_c = {2: 4, 4: 6, 8: 10, 16: 18}[p]
        tab_war = {2: 1, 4: 3, 8: 7, 16: 15}[p]
        if ck == 'mfma':
            if pw & set(cons.ab): w = max(w, tab_v)
            if pw & set(cons.srcc):
                if not (cons.srcc == prod.wr and cons.passes == prod.passes): w = max(w, tab_c)
                elif p == 2: w = max(w, 2)
            elif pw & set(cons.wr):
                w = max(w, tab_c)
        elif ck in ('valu', 'trans', 'vmem', 'ds'):
            if pw & (set(cons.rd) | set(cons.wr)): w = max(w, tab_v)
            if ck in ('valu', 'trans') and set(prod.srcc) & set(cons.wr): w = max(w, tab_war)
            if ck in ('vmem', 'ds') and set(prod.srcc) & set(cons.wr): w = max(w, tab_war)
    if pk == 'salu' and 'm0' in pw:
        if ck == 'vmem' and 'm0' in cons.rd: w = max(w, 1)
    if pk == 'salu' and 'exec' in pw and ck == 'mfma':
        w = max(w, 1)
    if pk == 'vmem' and prod.wide and prod.storedata:
        if set(prod.storedata) & set(cons.wr): w = max(w, 2 if ck in ('valu', 'trans') else 1)
    return w

MAXW = 20

class Asm:
    def __init__(self):
        self.lines = []
        self.uid = 0
    def __call__(self, s):
        for l in s.split('\n'):
            l = l.strip()
            if l: self.lines.append(l)
    def label(self, l): self.lines.append(l + ':')
    def newlabel(self, p='L'):
        self.uid += 1
        return f'{p}_{self.uid}'
    def comment(self, s): self.lines.append('; ' + s)

    def finish(self):
        ins = [Ins(l) for l in self.lines]
        labels = {i.label: n for n, i in enumerate(ins) if i.kind == 'label'}
        out = []
        def required_before(hist, c):
            need = 0; dist = 0
            for p in reversed(hist):
                if dist >= MAXW: break
                w = need_wait(p, c)
                if w > dist: need = max(need, w - dist)
                dist += p.nop
            return need
        hist = []
        pads = [0] * len(ins)
        for n, c in enumerate(ins):
            if c.kind in ('blank', 'directive', 'label'):
                continue
            need = required_before(hist, c)
            if need:
                pads[n] = need
                nopi = Ins(f's_nop {need - 1}')
                hist.append(nopi)
            hist.append(c)
            if c.kind == 'branch' and c.mn == 's_branch' or c.mn == 's_endpgm':
                pass
            if len(hist) > 40: hist = hist[-40:]
            if c.kind == 'branch' and c.target in labels:
                h2 = list(hist)
                t = labels[c.target]; extra = 0; dist = 0; k = t
                while k < len(ins) and dist < MAXW:
                    d = ins[k]
                    if d.kind not in ('blank', 'directive', 'label'):
                        need = required_before(h2, d)
                        pk = pads[k] if k < n else 0
                        if need > pk:
                            extra = max(extra, need - pk)
                        if pk: h2.append(Ins(f's_nop {pk - 1}')); dist += pk
                        h2.append(d); dist += d.nop
                        if d.kind == 'branch' and d.mn == 's_branch': break
                        if d.mn == 's_endpgm': break
                    k += 1
                if extra:
                    pads[n] = pads[n] + extra
            if c.mn == 's_branch' or c.mn == 's_endpgm':
                hist = []
        for n, c in enumerate(ins):
            if pads[n]:
                p = pads[n]
                while p > 0:
                    q = min(p, 16); out.append(f'  s_nop {q - 1}'); p -= q
            if c.kind == 'label': out.append(c.text)
            else: out.append('  ' + c.text)
        return '\n'.join(out) + '\n'
```

```python
import sys
sys.path.insert(0, 'gen')
from asmlib import Asm
import layout as L

HEADER = open(f'cdna_kernels/{L.NAME}.s.ref').read().split('; Override launch geometry')[0]

def kernel_desc(name, vgpr=512, sgpr=102, accum=256):
    return f'''.amdhsa_kernel {name}
  .amdhsa_next_free_vgpr {vgpr}
  .amdhsa_next_free_sgpr {sgpr}
  .amdhsa_accum_offset {accum}
  .amdhsa_group_segment_fixed_size 0
  .amdhsa_kernarg_size 112
  .amdhsa_user_sgpr_count 2
  .amdhsa_user_sgpr_kernarg_segment_ptr 1
  .amdhsa_system_sgpr_workgroup_id_x 1
.end_amdhsa_kernel
'''

def assemble(kernels, launches, path):
    out = [HEADER.rstrip('\n')]
    for (name, g, b, lds) in launches:
        out.append(f'; @launch kernel={name} grid=({g[0]},{g[1]},{g[2]}) block=({b[0]},{b[1]},{b[2]}) lds={lds}')
    out.append('.amdgcn_target "amdgcn-amd-amdhsa--gfx950"')
    out.append('.text')
    for name, fn, opt in kernels:
        a = Asm()
        a.uid = hash(name) % 1000 * 100000
        fn(a)
        out.append(f'.globl {name}\n.p2align 8\n.type {name},@function')
        out.append(a.finish())
    out.append('.section .rodata,"a"')
    for name, fn, opt in kernels:
        out.append('.p2align 6')
        out.append(kernel_desc(name, **opt))
    open(path, 'w').write('\n'.join(out))
```

```python
from asmlib import Asm
import layout as L
import struct

KVB = 0
AFR = 32768
QKX = 45056
WL  = 65536
GSLEEP = 3
LDS_BYTES = 163840
SPIN_MAX = 1 << 22
OSLEEP = 1
HSLEEP = 24
TRACE = 0x7000000
COARSE = True

S_WS = 4; S_T0 = 8; S_DBG = 12; S_T1 = 20; S_T2 = 24
sH = 16; sW = 17; sS = 18; sSpin = 19
sKVr = 32; sP1c = 33; sP1b = 34; sKVw = 35; sPubF = 36; sPubX = 37; sOwnO = 38
sMaskH = 40; sMaskLo = 42; sC = 44
sP1w = 45; sP1r = 46; sMr = 47; sMw = 48; sMz = 49; sTmp = 50; sTmp2 = 51; sTmp3 = 52; sOwn = 53; sKV = 54; sVMo = 55; sKMo = 56
sM2 = 57; sKsrc = 58; sVsrc = 59; sFast = 60; sThr = 61
sT = 64
W = f's[{S_WS}:{S_WS+3}]'
MH = f's[{sMaskH}:{sMaskH+1}]'; ML = f's[{sMaskLo}:{sMaskLo+1}]'
SM = 'v_smfmac_f32_16x16x64_bf16'
MF32 = 'v_mfma_f32_16x16x32_bf16'
MF16 = 'v_mfma_f32_16x16x16_bf16'

def f32bits(x): return struct.unpack('<I', struct.pack('<f', x))[0]
C_SCALE = (128 ** -0.5) * 1.4426950408889634

def srd(a, base, ka_off, nbytes):
    a(f's_load_dwordx2 s[{base}:{base+1}], s[0:1], {ka_off}')
    a(f's_mov_b32 s{base+2}, {nbytes}')
    a(f's_mov_b32 s{base+3}, 0x00020000')

def emit(a, ops):
    for x in ops:
        if isinstance(x, (list, tuple)): emit(a, x)
        else: a(x)

def load_chunks(a, chunks, vaddr, nslots=10):
    N = len(chunks); DEPTH = nslots - 1
    def issue(c):
        ch = chunks[c]; slot = (c % nslots) * 16384
        a(f's_mul_i32 s{sTmp}, s{sW}, {ch["istep"]*4}')
        a(f's_add_u32 s{sTmp}, s{sTmp}, s{ch["sbase"]}')
        a(f's_lshl_b32 s{sTmp2}, s{sW}, 12')
        for j in range(4):
            a(f's_add_u32 s{sTmp3}, s{sTmp}, {ch["soff"] + j*ch["istep"]}')
            a(f's_add_u32 m0, s{sTmp2}, {slot + j*1024}')
            a(f'buffer_load_dwordx4 v{ch["vofs"]}, s[{ch["srd"]}:{ch["srd"]+3}], s{sTmp3} offen lds')
    for c in range(min(DEPTH, N)): issue(c)
    for c in range(N):
        ch = chunks[c]; slot = (c % nslots) * 16384
        inflight = min(N, c + DEPTH) - (c + 1)
        a(f's_waitcnt vmcnt({4*inflight})')
        a('s_barrier')
        if c + DEPTH < N: issue(c + DEPTH)
        a(f'v_add_u32 v{vaddr}, {slot}, v{ch["vtr"]}')
        for o in range(2):
            dest = ch['dests'][o]
            kind, base = dest[0], int(dest[1:])
            for rho in range(4):
                imm = ch['rows'][rho] * 256 + ch['tcol'][o]
                a(f'ds_read_b64_tr_b16 {kind}[{base+2*rho}:{base+2*rho+1}], v{vaddr} offset:{imm}')
        a('s_waitcnt lgkmcnt(0)')

def spin_check(a, lbl_fail):
    a(f's_add_u32 s{sSpin}, s{sSpin}, 1')
    a(f's_cmp_gt_u32 s{sSpin}, {SPIN_MAX}')
    a(f's_cbranch_scc1 {lbl_fail}')

def maxchain(a, dst, regs, op='u32'):
    regs = list(regs)
    a(f'v_max3_{op} v{dst}, v{regs[0]}, v{regs[1]}, v{regs[2]}')
    regs = regs[3:]
    while len(regs) >= 2:
        a(f'v_max3_{op} v{dst}, v{dst}, v{regs[0]}, v{regs[1]}'); regs = regs[2:]
    if regs:
        a(f'v_max_{op} v{dst}, v{dst}, v{regs[0]}')

def gather_pre(a, sOffReg):
    a(f's_sub_u32 s{sTmp}, s{sW}, 2')
    a(f's_mul_i32 s{sTmp}, s{sTmp}, 5120')
    a(f's_add_u32 s{sTmp}, s{sTmp}, s{sOffReg}')
    a(f's_add_u32 s{sTmp2}, s{sTmp}, 4096')

def gather(a, fail):
    lp = a.newlabel('g5')
    a.label(lp)
    for i in range(4):
        a(f'buffer_load_dwordx4 v[{72+4*i}:{75+4*i}], v2, {W}, s{sTmp} offen offset:{i*1024} sc1')
    a(f'buffer_load_dwordx4 v[88:91], v2, {W}, s{sTmp2} offen sc1')
    spin_check(a, fail)
    for i in range(5):
        a(f's_waitcnt vmcnt({4-i})')
        a(f'ds_write_b128 v3, v[{72+4*i}:{75+4*i}] offset:{i*1024}')
        if i == 0:
            a(f'v_max3_u32 v92, v72, v73, v74'); a(f'v_max_u32 v92, v92, v75')
        else:
            a(f'v_max3_u32 v92, v92, v{72+4*i}, v{73+4*i}'); a(f'v_max3_u32 v92, v92, v{74+4*i}, v{75+4*i}')
    a('v_cmp_eq_u32 vcc, -1, v92')
    a(f's_cbranch_vccnz {lp}')

def mem0_frags(a):
    srd(a, S_T0, L.KA['mem0'], 10240)
    a('v_bfe_u32 v36, v0, 2, 2'); a('v_lshlrev_b32 v36, 1, v36'); a('v_and_b32 v37, 1, v0'); a('v_add_u32 v36, v36, v37')
    a('v_mul_u32_u24 v36, 1280, v36')
    a('v_lshrrev_b32 v37, 4, v0'); a('v_lshlrev_b32 v37, 5, v37'); a('v_add_u32 v36, v36, v37')
    a('v_bfe_u32 v37, v0, 1, 1'); a('v_lshlrev_b32 v37, 2, v37'); a('v_add_u32 v36, v36, v37')
    a(f's_lshl_b32 s{sTmp}, s{sW}, 7')
    a(f's_lshl_b32 s{sTmp3}, s{sW}, 10')
    a(f'v_add_u32 v38, s{sTmp3}, v4')
    a('s_waitcnt lgkmcnt(0)')
    for t in range(3):
        a(f's_add_u32 s{sTmp2}, s{sTmp}, {t*512}')
        for j in range(4):
            a(f'buffer_load_dword v{40+4*t+j}, v36, s[{S_T0}:{S_T0+3}], s{sTmp2} offen offset:{8*j}')
    a('s_waitcnt vmcnt(0)')
    for t in range(3):
        a(f'ds_write_b128 v38, v[{40+4*t}:{43+4*t}] offset:{t*4096}')
    a('s_waitcnt lgkmcnt(0)')

class Stamps:
    sel = 0; trace = False; tstep = 20
    def __init__(self, on): self.on = on
    def val(self, a, i, sreg):
        if not (self.on and self.trace): return
        lb = a.newlabel('tv')
        a(f's_cmp_lg_u32 s{sS}, {self.tstep + 1}'); a(f's_cbranch_scc1 {lb}')
        a(f's_mov_b32 s{sT+i}, s{sreg}')
        a.label(lb)
    def __call__(self, a, i):
        if not self.on: return
        if self.trace:
            a(f's_memrealtime s[{sT+14}:{sT+15}]')
            a('s_waitcnt lgkmcnt(0)')
            lb = a.newlabel('tr')
            a(f's_cmp_lg_u32 s{sS}, {self.tstep + (1 if (i in (8, 10, 11) and not getattr(self, "helper", False)) else 0)}'); a(f's_cbranch_scc1 {lb}')
            a(f's_mov_b32 s{sT+i}, s{sT+14}')
            a.label(lb)
            return
        a(f's_memtime s[{sT+14}:{sT+15}]')
        a('s_waitcnt lgkmcnt(0)')
        a(f's_sub_u32 s{sT+12}, s{sT+14}, s{sT+13}')
        a(f's_add_u32 s{sT+i}, s{sT+i}, s{sT+12}')
        a(f's_mov_b32 s{sT+13}, s{sT+14}')
    def dump(self, a, off):
        if not self.on: return
        if self.trace:
            a(f's_lshl_b32 s{sTmp}, s{sH}, 2'); a(f's_or_b32 s{sTmp}, s{sTmp}, s{sW}'); a(f's_lshl_b32 s{sTmp}, s{sTmp}, 6')
            a(f's_add_u32 s{sTmp}, s{sTmp}, {TRACE + off}')
            a('v_mov_b32 v36, 0')
            for i in range(12):
                a(f'v_mov_b32 v37, s{sT+i}')
                a(f'buffer_store_dword v37, v36, {W}, s{sTmp} offen offset:{4*i}')
            a('s_waitcnt vmcnt(0)')
        elif off == 0:
            sk = a.newlabel('tsk')
            a(f's_lshl_b32 s{sTmp}, s{sH}, 2'); a(f's_or_b32 s{sTmp}, s{sTmp}, s{sW}')
            a(f's_cmp_lg_u32 s{sTmp}, {self.sel}'); a(f's_cbranch_scc1 {sk}')
            a('v_mov_b32 v36, 0')
            for i in range(12):
                a(f'v_mov_b32 v37, s{sT+i}')
                a(f'buffer_store_dword v37, v36, s[{S_DBG}:{S_DBG+3}], 0 offen offset:{64+4*i}')
            a('s_waitcnt vmcnt(0)')
            a.label(sk)

def trbase(a, dst, wo):
    a('v_lshrrev_b32 v36, 4, v0'); a('v_bfe_u32 v37, v0, 2, 2')
    if not wo:
        a('v_lshlrev_b32 v38, 3, v36')
    else:
        a('v_and_b32 v38, 1, v36'); a('v_lshlrev_b32 v38, 5, v38')
        a('v_lshrrev_b32 v39, 1, v36'); a('v_lshlrev_b32 v39, 2, v39'); a('v_add_u32 v38, v38, v39')
    a('v_add_u32 v38, v38, v37'); a('v_lshlrev_b32 v38, 8, v38')
    a('v_and_b32 v39, 3, v0'); a('v_lshlrev_b32 v39, 3, v39')
    a(f'v_add_u32 v{dst}, v38, v39')
    a(f's_lshl_b32 s{sTmp}, s{sW}, {5 if wo else 6}')
    a(f'v_add_u32 v{dst}, s{sTmp}, v{dst}')

def rendezvous(a, is_main, fail):
    a('s_waitcnt vmcnt(0)')
    a('s_barrier')
    skip = a.newlabel('rz')
    a(f's_cmp_lg_u32 s{sW}, 0'); a(f's_cbranch_scc1 {skip}')
    a('s_mov_b64 s[62:63], exec'); a('s_mov_b64 exec, 1')
    a('v_mov_b32 v36, 0')
    if is_main:
        a(f's_getreg_b32 s{sTmp}, hwreg(HW_REG_XCC_ID)')
        a(f's_and_b32 s{sTmp}, s{sTmp}, 15'); a(f's_lshl_b32 s{sTmp}, 1, s{sTmp}')
        a(f'v_mov_b32 v37, s{sTmp}')
        a(f'buffer_atomic_or v37, v36, s[{S_DBG}:{S_DBG+3}], 0 offen offset:4')
        a('s_waitcnt vmcnt(0)')
    a('v_mov_b32 v37, 1')
    a(f'buffer_atomic_add v37, v36, s[{S_DBG}:{S_DBG+3}], 0 offen')
    a('s_mov_b64 exec, s[62:63]')
    a.label(skip)
    lp = a.newlabel('rzp')
    a('v_mov_b32 v36, 0')
    a.label(lp)
    a('s_sleep 2')
    a(f'buffer_load_dwordx2 v[38:39], v36, s[{S_DBG}:{S_DBG+3}], 0 offen sc1')
    spin_check(a, fail)
    a('s_waitcnt vmcnt(0)')
    a(f'v_readfirstlane_b32 s{sTmp}, v38')
    a(f's_cmp_lt_u32 s{sTmp}, 64'); a(f's_cbranch_scc1 {lp}')
    a(f'buffer_load_dwordx2 v[38:39], v36, s[{S_DBG}:{S_DBG+3}], 0 offen sc1')
    a('s_waitcnt vmcnt(0)')
    a(f'v_readfirstlane_b32 s{sTmp}, v39')
    a(f's_bcnt1_i32_b32 s{sTmp}, s{sTmp}')
    a(f's_cmp_eq_u32 s{sTmp}, 1')
    a(f's_cselect_b32 s{sFast}, 1, 0')

def emit_chain(a, timing=False, kname='chain_kernel'):
    fail = 'chain_fail'; end = 'chain_end'
    st = Stamps(timing)
    a.label(kname)
    a(f's_cmp_ge_u32 s2, 256'); a(f's_cbranch_scc1 {end}')
    a('s_and_b32 s3, s2, 7'); a(f's_lshr_b32 s{sH}, s2, 3')
    a('s_cmp_gt_u32 s3, 1'); a(f's_cbranch_scc1 {end}')
    srd(a, S_WS, L.KA['ws'], L.WS_BYTES)
    srd(a, S_DBG, L.KA['dbg'], 256)
    if COARSE: a('s_memrealtime s[96:97]')
    a(f'v_lshrrev_b32 v1, 6, v0'); a(f'v_readfirstlane_b32 s{sW}, v1'); a(f'v_and_b32 v0, 63, v0')
    a(f's_mov_b32 s{sMaskH}, 0xCCCCCCCC'); a(f's_mov_b32 s{sMaskH+1}, 0xCCCCCCCC')
    a(f's_mov_b32 s{sMaskLo}, -1'); a(f's_mov_b32 s{sMaskLo+1}, 0')
    a(f'v_mov_b32 v1, 0x4444'); a(f'v_mov_b32 v2, 0xEEEE')
    a(f'v_cndmask_b32 v1, v1, v2, {MH}')
    a(f'v_lshlrev_b32 v2, 4, v0')
    a(f's_mov_b32 s{sC}, {hex(f32bits(C_SCALE))}')
    a(f's_mov_b32 s{sThr}, {hex(f32bits(60.0))}')
    a(f's_mov_b32 s{sSpin}, 0')
    for i in range(14): a(f's_mov_b32 s{sT+i}, 0')
    a(f'v_add_u32 v4, {AFR}, v2')
    a('s_waitcnt lgkmcnt(0)')
    a('s_cmp_eq_u32 s3, 1'); a(f's_cbranch_scc1 chain_helper')
    emit_main(a, st, fail, end)
    emit_helper(a, st, fail, end)
    a.label(fail)
    a('v_mov_b32 v1, 0xdead'); a('v_mov_b32 v2, 252')
    a(f'buffer_store_dword v1, v2, s[{S_DBG}:{S_DBG+3}], 0 offen')
    a('s_waitcnt vmcnt(0)')
    a.label(end)
    a('s_endpgm')

def qk_home(m, t, kb):
    idx = m * 20 + kb * 2 + t
    if idx < 32: return ('a', idx * 8)
    return ('v', 128 + (idx - 32) * 8)
def rr(home, n=8): return f'{home[0]}[{home[1]}:{home[1]+n-1}]'
def wo_pair(cg, eb):
    if eb == 0 and cg < 4: return None
    if cg < 4: return cg
    return 4 + eb

def kv_dma_groups():
    g = []
    g.append([f's_mov_b32 m0, s{sKVw}', f'buffer_load_dwordx4 v10, {W}, s{sKsrc} offen lds'])
    g.append([f's_add_u32 s{sTmp2}, s{sKsrc}, 64', f's_add_u32 m0, s{sKVw}, 1024', f'buffer_load_dwordx4 v10, {W}, s{sTmp2} offen lds'])
    g.append([f's_add_u32 m0, s{sKVw}, 8192', f'buffer_load_dwordx4 v2, {W}, s{sVsrc} offen lds'])
    g.append([f's_add_u32 s{sTmp2}, s{sVsrc}, 1024', f's_add_u32 m0, s{sKVw}, {8192+1024}', f'buffer_load_dwordx4 v2, {W}, s{sTmp2} offen lds'])
    return g

def kv_advance(a):
    a(f's_add_u32 s{sKsrc}, s{sKsrc}, {32*8192}')
    a(f's_add_u32 s{sVsrc}, s{sVsrc}, {32*8192}')
    a(f's_xor_b32 s{sKVw}, s{sKVw}, 16384')

def interleave(a, mf, fill, start=0, per=1):
    fi = 0
    for i, m in enumerate(mf):
        emit(a, m if isinstance(m, list) else [m])
        if i >= start:
            for _ in range(per):
                if fi < len(fill):
                    g = fill[fi]; fi += 1
                    emit(a, g if isinstance(g, list) else [g])
    while fi < len(fill):
        g = fill[fi]; fi += 1
        emit(a, g if isinstance(g, list) else [g])

def half_add_ops(ra, rb):
    return [f'v_permlane32_swap_b32 v{ra+r}, v{rb+r}' for r in range(4)] + [f'v_add_f32 v{ra+r}, v{ra+r}, v{rb+r}' for r in range(4)]

def emit_main(a, st, fail, end):
    a.comment('======== MAIN ========')
    srd(a, S_T0, L.KA['Wq'], 640*4096*2)
    srd(a, S_T1, L.KA['Wk'], 640*4096*2)
    srd(a, S_T2, L.KA['Wo'], 640*4096*2)
    a('v_lshrrev_b32 v36, 4, v0'); a('v_and_b32 v37, 15, v0'); a('v_lshlrev_b32 v37, 4, v37')
    a('v_lshlrev_b32 v10, 13, v36'); a('v_add_u32 v10, v10, v37')
    a('v_mul_u32_u24 v11, 1280, v36'); a('v_add_u32 v11, v11, v37')
    trbase(a, 12, False)
    trbase(a, 13, True)
    a(f's_lshl_b32 s30, s{sH}, 8')
    a(f's_mul_i32 s31, s{sH}, {128*1280}')
    a('s_waitcnt lgkmcnt(0)')
    chunks = []
    for m, s_ in ((0, S_T0), (1, S_T1)):
        for kb in range(10):
            d = [qk_home(m, t, kb) for t in range(2)]
            chunks.append(dict(srd=s_, vofs=10, sbase=30, soff=64*kb*8192, istep=4*8192, vtr=12, rows=[0, 4, 32, 36], tcol=[0, 32],
                               dests=[f'{x[0]}{x[1]}' for x in d]))
    for eb in range(2):
        for cg in range(5):
            p = wo_pair(cg, eb)
            d = [f'v{192 + (cg*2+t)*8}' if p is None else f'v{20 + (p*2+t)*8}' for t in range(2)]
            chunks.append(dict(srd=S_T2, vofs=11, sbase=31, soff=64*eb*1280 + cg*256, istep=4*1280, vtr=13, rows=[0, 16, 8, 24], tcol=[0, 128], dests=d))
    load_chunks(a, chunks, 14)
    a('s_barrier')
    a(f's_mul_i32 s{sTmp}, s{sW}, {12*2048}'); a(f's_add_u32 s{sTmp}, s{sTmp}, {WL}')
    a(f'v_add_u32 v15, s{sTmp}, v2')
    for i in range(12):
        a(f'ds_write_b128 v15, v[{20+8*i}:{23+8*i}] offset:{i*2048}')
        a(f'ds_write_b128 v15, v[{24+8*i}:{27+8*i}] offset:{i*2048+1024}')
    a('s_waitcnt lgkmcnt(0)')
    a(f's_sub_u32 s{sTmp}, s{sW}, 2'); a(f's_mul_i32 s{sTmp}, s{sTmp}, 5120'); a(f'v_add_u32 v3, s{sTmp}, v4')
    a('v_and_b32 v36, 15, v0'); a('v_lshlrev_b32 v36, 5, v36'); a('v_lshrrev_b32 v37, 4, v0'); a('v_lshlrev_b32 v37, 3, v37'); a('v_add_u32 v36, v36, v37')
    a(f's_lshl_b32 s{sTmp}, s{sW}, 10'); a(f's_add_u32 s{sTmp}, s{sTmp}, {QKX}'); a(f'v_add_u32 v5, s{sTmp}, v36')
    a('v_lshrrev_b32 v36, 4, v0'); a('v_lshlrev_b32 v36, 3, v36'); a('v_bfe_u32 v37, v0, 2, 2'); a('v_add_u32 v36, v36, v37')
    a('v_lshlrev_b32 v36, 5, v36'); a('v_and_b32 v37, 3, v0'); a('v_lshlrev_b32 v37, 3, v37'); a('v_add_u32 v36, v36, v37')
    a(f'v_add_u32 v6, {QKX}, v36')
    a('v_lshrrev_b32 v36, 4, v0'); a('v_lshlrev_b32 v36, 15, v36'); a('v_and_b32 v37, 15, v0'); a('v_lshlrev_b32 v37, 4, v37'); a('v_add_u32 v7, v36, v37')
    a('v_bfe_u32 v36, v0, 4, 1'); a('v_lshlrev_b32 v36, 15, v36'); a('v_add_u32 v36, v36, v37'); a('v_lshrrev_b32 v37, 5, v0'); a('v_lshlrev_b32 v37, 3, v37'); a('v_add_u32 v13, v36, v37')
    a('v_and_b32 v36, 15, v0'); a('v_lshlrev_b32 v36, 4, v36'); a('v_lshrrev_b32 v37, 4, v0'); a('v_lshlrev_b32 v37, 2, v37')
    a('v_add_u32 v8, v36, v37')
    a('v_lshlrev_b32 v9, 3, v0')
    a('v_bfe_u32 v36, v0, 2, 1'); a('v_lshlrev_b32 v36, 4, v36'); a('v_bfe_u32 v37, v0, 3, 1'); a('v_lshlrev_b32 v37, 2, v37')
    a('v_add_u32 v36, v36, v37'); a('v_and_b32 v37, 3, v0'); a('v_add_u32 v36, v36, v37'); a('v_lshlrev_b32 v36, 13, v36')
    a('v_lshrrev_b32 v37, 4, v0'); a('v_lshlrev_b32 v37, 4, v37'); a('v_add_u32 v10, v36, v37')
    a('v_mov_b32 v12, -1'); a('v_mov_b32 v11, -2')
    a('v_bfe_u32 v36, v0, 2, 2'); a('v_lshlrev_b32 v36, 1, v36'); a('v_and_b32 v37, 1, v0'); a('v_add_u32 v36, v36, v37')
    for q in range(4):
        a(f'v_mov_b32 v{16+q}, 0'); a(f'v_mov_b32 v37, 0x3F80')
        a(f'v_cmp_eq_u32 vcc, {2*q}, v36'); a(f'v_cndmask_b32 v{16+q}, v{16+q}, v37, vcc')
        a(f'v_mov_b32 v37, 0x3F800000')
        a(f'v_cmp_eq_u32 vcc, {2*q+1}, v36'); a(f'v_cndmask_b32 v{16+q}, v{16+q}, v37, vcc')
    a(f'v_add_u32 v14, {KVB}, v2')
    a('v_mov_b32 v121, 0'); a('v_mov_b32 v122, 0')
    a(f's_mov_b32 s{sOwn}, -1')
    a(f's_cmp_eq_u32 s{sW}, 0'); a(f's_cselect_b32 s{sOwn}, s{sH}, s{sOwn}')
    a(f's_add_u32 s{sTmp}, s{sH}, 32'); a(f's_cmp_lt_u32 s{sTmp}, 40'); a(f's_cselect_b32 s{sTmp}, s{sTmp}, -1')
    a(f's_cmp_eq_u32 s{sW}, 1'); a(f's_cselect_b32 s{sOwn}, s{sTmp}, s{sOwn}')
    a(f's_cmp_eq_u32 s{sOwn}, -1'); a(f's_cselect_b32 s{sOwnO}, 96, s{sOwn}'); a(f's_lshl_b32 s{sOwnO}, s{sOwnO}, 8')
    a(f's_lshl_b32 s{sP1w}, s{sW}, 13'); a(f's_lshl_b32 s{sTmp}, s{sH}, 8')
    a(f's_add_u32 s{sP1w}, s{sP1w}, s{sTmp}'); a(f's_add_u32 s{sP1w}, s{sP1w}, {L.P1}')
    a(f's_add_u32 s{sP1r}, s{sP1w}, {L.P1SZ}')
    a(f's_add_u32 s{sP1b}, s{sTmp}, {L.P1}'); a(f's_add_u32 s{sP1c}, s{sP1b}, {L.P1SZ}')
    a('v_lshrrev_b32 v36, 4, v0'); a('v_lshlrev_b32 v36, 13, v36')
    a('v_and_b32 v37, 15, v0'); a('v_lshlrev_b32 v37, 4, v37'); a('v_add_u32 v36, v36, v37')
    a('v_mov_b64 v[40:41], -1'); a('v_mov_b64 v[42:43], -1')
    nr = a.newlabel('nr')
    a(f's_cmp_lt_u32 s{sW}, 2'); a(f's_cbranch_scc1 {nr}')
    a(f's_sub_u32 s{sTmp}, s{sW}, 2'); a(f's_mul_i32 s{sTmp}, s{sTmp}, {5*4*8192}')
    a(f's_add_u32 s{sP1b}, s{sP1b}, s{sTmp}'); a(f's_add_u32 s{sP1c}, s{sP1c}, s{sTmp}')
    for sl in (sP1b, sP1c):
        for i in range(5):
            a(f's_add_u32 s{sTmp}, s{sl}, {i*4*8192}')
            a(f'buffer_store_dwordx4 v[40:43], v36, {W}, s{sTmp} offen sc1')
    a.label(nr)
    for base in (L.MEMF, L.MEMF + L.MEMSZ, L.MEMX, L.MEMX + L.MEMSZ):
        a(f's_add_u32 s{sTmp2}, s{sOwnO}, {base}')
        a(f'buffer_store_dword v12, v8, {W}, s{sTmp2} offen sc1')
    a('s_barrier')
    mem0_frags(a)
    a(f's_lshl_b32 s{sKsrc}, s{sH}, 8'); a(f's_add_u32 s{sKsrc}, s{sKsrc}, {L.K}')
    a(f's_lshl_b32 s{sVsrc}, s{sH}, 13'); a(f's_add_u32 s{sVsrc}, s{sVsrc}, {L.VT}')
    a(f's_lshl_b32 s{sVMo}, s{sH}, 11'); a(f's_add_u32 s{sVMo}, s{sVMo}, {L.VM}')
    a(f's_lshl_b32 s{sKMo}, s{sH}, 12'); a(f's_add_u32 s{sKMo}, s{sKMo}, {L.KM}')
    a(f's_lshl_b32 s{sTmp}, s{sW}, 10'); a(f's_add_u32 s{sKMo}, s{sKMo}, s{sTmp}')
    a(f's_lshr_b32 s{sTmp}, s{sW}, 1'); a(f's_lshl_b32 s{sTmp}, s{sTmp}, 16')
    a(f's_and_b32 s{sTmp2}, s{sW}, 1'); a(f's_lshl_b32 s{sTmp2}, s{sTmp2}, 7')
    a(f's_add_u32 s{sTmp}, s{sTmp}, s{sTmp2}'); a(f's_add_u32 s{sKsrc}, s{sKsrc}, s{sTmp}')
    a(f's_lshl_b32 s{sTmp}, s{sW}, 11'); a(f's_add_u32 s{sVsrc}, s{sVsrc}, s{sTmp}')
    a(f's_mov_b32 s{sKV}, {KVB}'); a(f's_mov_b32 s{sKVr}, {KVB}'); a(f's_lshl_b32 s{sKVw}, s{sW}, 11')
    emit(a, kv_dma_groups())
    kv_advance(a)
    rendezvous(a, True, fail)
    a(f's_mov_b32 s{sS}, 0')
    a(f's_mov_b32 s{sMw}, {L.MEMSZ}'); a(f's_mov_b32 s{sMz}, 0')
    for r in range(20, 36, 2): a(f'v_mov_b64 v[{r}:{r+1}], 0')
    a('s_barrier')
    if st.on and not st.trace:
        a(f's_memtime s[{sT+14}:{sT+15}]'); a('s_waitcnt lgkmcnt(0)'); a(f's_mov_b32 s{sT+13}, s{sT+14}')
    if COARSE:
        a('s_memrealtime s[98:99]'); a('s_memtime s[92:93]'); a('s_waitcnt lgkmcnt(0)')
    a(f's_cmp_eq_u32 s{sFast}, 0'); a('s_cbranch_scc1 main_loop_safe')
    main_loop(a, True, st, fail)
    main_loop(a, False, st, fail)
    a.label('main_last')
    km_read(a); a('s_waitcnt lgkmcnt(0)'); km_write(a)
    st.dump(a, 0)
    if COARSE:
        sk = a.newlabel('csk')
        a('s_memrealtime s[100:101]'); a('s_memtime s[94:95]'); a('s_waitcnt lgkmcnt(0)')
        a(f's_or_b32 s{sTmp}, s{sH}, s{sW}'); a(f's_cmp_lg_u32 s{sTmp}, 0'); a(f's_cbranch_scc1 {sk}')
        a('v_mov_b32 v36, 0')
        a('s_sub_u32 s98, s98, s96'); a('s_sub_u32 s100, s100, s96'); a('s_sub_u32 s94, s94, s92')
        for i, r in enumerate((98, 100, 94)):
            a(f'v_mov_b32 v37, s{r}')
            a(f'buffer_store_dword v37, v36, s[{S_DBG}:{S_DBG+3}], 0 offen offset:{128+4*i}')
        a('s_waitcnt vmcnt(0)')
        a.label(sk)
    a(f's_branch {end}')

def km_read(a):
    a(f's_lshl_b32 s{sTmp3}, s{sW}, 10')
    a(f'v_add_u32 v127, s{sTmp3}, v6')
    a('ds_read_b64_tr_b16 v[32:33], v127 offset:4096')
    a(f'ds_read_b64_tr_b16 v[34:35], v127 offset:{4096+128}')
def km_write(a):
    a(f'buffer_store_dwordx4 v[32:35], v2, {W}, s{sKMo} offen sc1')

def advance(a):
    kv_advance(a)
    a('v_xor_b32 v14, 16384, v14')
    a(f's_add_u32 s{sS}, s{sS}, 1')
    for x, y in ((sP1w, sP1r), (sP1b, sP1c), (sMw, sMz)):
        a(f's_mov_b32 s{sTmp3}, s{x}'); a(f's_mov_b32 s{x}, s{y}'); a(f's_mov_b32 s{y}, s{sTmp3}')

def zero(lo, hi): return [f'v_mov_b64 v[{r}:{r+1}], 0' for r in range(lo, hi, 2)]

def main_loop(a, fast, st, fail):
    sc = '' if fast else 'sc1'
    tag = 'fast' if fast else 'safe'
    a.label(f'main_loop_{tag}')
    F = lambda kb: f'v[{72+4*kb}:{75+4*kb}]'
    for kb in range(10):
        a(f'ds_read_b128 {F(kb)}, v4 offset:{kb*1024}')
    def q1(lower):
        mf = []
        for kb in range(6):
            for t in range(2):
                ins = f'{SM} v[{20+4*t}:{23+4*t}], {F(kb)}, {rr(qk_home(0, t, kb))}, v1'
                mf.append([f's_waitcnt lgkmcnt({9-kb})', ins] if t == 0 else ins)
        dm = kv_dma_groups()
        if lower:
            st_ = lambda i: [f's_add_u32 s{sTmp}, s{sP1c}, {i*4*8192}', f'buffer_store_dwordx4 v[124:127], v36, {W}, s{sTmp} offen {sc}']
            fill = [['v_lshrrev_b32 v36, 4, v0', 'v_lshlrev_b32 v36, 13, v36'], ['v_and_b32 v37, 15, v0', 'v_lshlrev_b32 v37, 4, v37'],
                    ['v_add_u32 v36, v36, v37', 'v_mov_b64 v[124:125], -1'], ['v_mov_b64 v[126:127], -1'],
                    st_(0), dm[0], st_(1), dm[1], st_(2), dm[2], st_(3), dm[3] + st_(4)]
        else:
            fill = [[f's_add_u32 s{sTmp}, s{sOwnO}, s{sMw}', f's_add_u32 s{sTmp3}, s{sTmp}, {L.MEMF}'],
                    [f'buffer_store_dword v12, v8, {W}, s{sTmp3} offen {sc}'], dm[0],
                    [f's_add_u32 s{sTmp3}, s{sTmp}, {L.MEMX}', f'buffer_store_dword v12, v8, {W}, s{sTmp3} offen sc1'], dm[1], [], dm[2], [], dm[3]]
        interleave(a, mf, fill)
        fill2 = [f'ds_read_b128 v[{40+4*i}:{43+4*i}], v14 offset:{i*1024}' for i in range(8)]
        mf2 = []
        for kb in range(6, 10):
            for t in range(2):
                ins = f'{SM} v[{20+4*t}:{23+4*t}], {F(kb)}, {rr(qk_home(0, t, kb))}, v1'
                mf2.append([f's_waitcnt lgkmcnt({9-kb+2*(kb-6)})', ins] if t == 0 else ins)
        interleave(a, mf2, fill2)
    qa = a.newlabel('q1r'); qb = a.newlabel('q1e')
    a(f's_cmp_ge_u32 s{sW}, 2'); a(f's_cbranch_scc1 {qa}')
    q1(False); a(f's_branch {qb}')
    a.label(qa); q1(True); a.label(qb)
    st(a, 0)
    mf = [f'{SM} v[{28+4*t}:{31+4*t}], {F(kb)}, {rr(qk_home(1, t, kb))}, v1' for kb in range(10) for t in range(2)]
    fill = [[], [], [],
            ['v_add_f32 v20, v20, v22', 'v_add_f32 v21, v21, v23'], ['v_add_f32 v24, v24, v26', 'v_add_f32 v25, v25, v27'],
            ['v_cvt_pk_bf16_f32 v36, v20, v21', 'v_cvt_pk_bf16_f32 v37, v24, v25'],
            ['ds_write2_b32 v5, v36, v36 offset0:0 offset1:1', 'ds_write2_b32 v5, v37, v37 offset0:128 offset1:129'], [], [], [], [],
            ['s_waitcnt lgkmcnt(0)', 's_barrier']]
    fill += [[f'ds_read_b64_tr_b16 v[{72+4*kp}:{73+4*kp}], v6 offset:{kp*1024}', f'ds_read_b64_tr_b16 v[{74+4*kp}:{75+4*kp}], v6 offset:{kp*1024+128}'] for kp in range(4)]
    interleave(a, mf, fill)
    st(a, 1)
    mf = []
    for kp in range(4):
        c1 = '0' if kp == 0 else 'v[20:23]'; c2 = '0' if kp == 0 else 'v[24:27]'
        mf.append([f's_waitcnt lgkmcnt({6-2*kp})', f'{MF32} v[20:23], v[{40+4*kp}:{43+4*kp}], v[{72+4*kp}:{75+4*kp}], {c1}'])
        mf.append(f'{MF32} v[24:27], v[{56+4*kp}:{59+4*kp}], v[{72+4*kp}:{75+4*kp}], {c2}')
    a('v_add_u32 v39, 4096, v5')
    fill = [[], [], ['v_add_f32 v28, v28, v30', 'v_add_f32 v29, v29, v31'], ['v_add_f32 v32, v32, v34', 'v_add_f32 v33, v33, v35'],
            ['v_cvt_pk_bf16_f32 v36, v28, v29', 'v_cvt_pk_bf16_f32 v37, v32, v33'], [], [],
            ['ds_write2_b32 v39, v36, v36 offset0:0 offset1:1', 'ds_write2_b32 v39, v37, v37 offset0:128 offset1:129']]
    interleave(a, mf, fill)
    a('v_max3_f32 v124, v20, v21, v22'); a('v_max3_f32 v125, v23, v24, v25')
    a('s_waitcnt lgkmcnt(0)')
    a('s_barrier')
    a(f's_cmp_ge_u32 s{sS}, 63'); a('s_cbranch_scc1 main_last')
    for kp in range(4):
        for rho in range(2):
            a(f'ds_read_b64_tr_b16 v[{88+4*kp+2*rho}:{89+4*kp+2*rho}], v6 offset:{4096+kp*1024+rho*128}')
    a('v_max3_f32 v124, v124, v26, v27'); a('v_max_f32 v124, v124, v125')
    a('v_mov_b32 v125, v124')
    for et in range(0, 2): a(f'ds_read_b128 v[{40+4*et}:{43+4*et}], v14 offset:{8192+et*1024}')
    a('v_permlane32_swap_b32 v124, v125'); a('v_max_f32 v124, v124, v125')
    a('v_mov_b32 v125, v124')
    for et in range(2, 4): a(f'ds_read_b128 v[{40+4*et}:{43+4*et}], v14 offset:{8192+et*1024}')
    a('v_permlane16_swap_b32 v124, v125'); a('v_max_f32 v124, v124, v125')
    a(f'v_mul_f32 v124, s{sC}, v124')
    for et in range(4, 8): a(f'ds_read_b128 v[{40+4*et}:{43+4*et}], v14 offset:{8192+et*1024}')
    for p in range(4):
        a(f'buffer_load_dwordx2 v[{104+2*p}:{105+2*p}], v9, {W}, s{sVMo} offen offset:{p*512} sc1')
    st(a, 2)
    for r in range(20, 28): a(f'v_fma_f32 v{r}, v{r}, s{sC}, -v124')
    mfs = []
    for kp in range(4):
        c0 = '0' if kp == 0 else 'v[28:31]'
        mfs.append([f's_waitcnt lgkmcnt({8 + 6 - 2*kp})', f'{MF32} v[28:31], v[{88+4*kp}:{91+4*kp}], v[{72+4*kp}:{75+4*kp}], {c0}'])
    fill = [[f'v_exp_f32 v{r}, v{r}', f'v_exp_f32 v{r+1}, v{r+1}'] for r in range(20, 28, 2)]
    interleave(a, mfs, fill)
    a('v_cvt_pk_bf16_f32 v36, v20, v21'); a('v_cvt_pk_bf16_f32 v37, v22, v23')
    a('v_cvt_pk_bf16_f32 v38, v24, v25'); a('v_cvt_pk_bf16_f32 v39, v26, v27')
    st(a, 3)
    for p in range(4):
        a(f'buffer_load_dwordx2 v[{112+2*p}:{113+2*p}], v9, {W}, s{sVMo} offen offset:{p*512} sc1')
    mf = [[f's_waitcnt lgkmcnt({7-et})', f'{MF32} v[{72+4*et}:{75+4*et}], v[{40+4*et}:{43+4*et}], v[36:39], 0'] for et in range(8)]
    fill = [
        [f'v_fma_f32 v28, v28, s{sC}, -v124', f'v_fma_f32 v29, v29, s{sC}, -v124'],
        ['v_max_f32 v126, v28, v29', 'v_add_f32 v125, v20, v21'],
        [f'v_cmp_lt_f32 vcc, s{sThr}, v126', 'v_add_f32 v127, v22, v23'],
        ['v_add_f32 v125, v125, v24', 'v_add_f32 v127, v127, v25'],
        ['v_add_f32 v125, v125, v26', 'v_add_f32 v127, v127, v27'],
        ['v_add_f32 v125, v125, v127'],
    ]
    interleave(a, mf, fill)
    ok = a.newlabel('thr')
    a(f's_cbranch_vccz {ok}')
    a('v_max_f32 v126, 0, v126')
    a('v_mov_b32 v127, v126'); a('v_permlane32_swap_b32 v126, v127'); a('v_max_f32 v126, v126, v127')
    a('v_mov_b32 v127, v126'); a('v_permlane16_swap_b32 v126, v127'); a('v_max_f32 v126, v126, v127')
    for r in range(28, 30): a(f'v_sub_f32 v{r}, v{r}, v126')
    a('v_sub_f32 v126, 0, v126'); a('v_exp_f32 v126, v126'); a('v_mul_f32 v125, v125, v126')
    for r in range(72, 104): a(f'v_mul_f32 v{r}, v{r}, v126')
    a.label(ok)
    a('v_exp_f32 v28, v28'); a('v_exp_f32 v29, v29')
    km_read(a)
    a('v_cvt_pk_bf16_f32 v120, v28, v29'); a('v_cvt_pk_bf16_f32 v123, v28, v29')
    a('v_add_f32 v126, v28, v29'); a('v_add_f32 v125, v125, v126')
    st(a, 4)
    vp = a.newlabel('vmp'); vok = a.newlabel('vmok')
    a('s_waitcnt vmcnt(4)')
    maxchain(a, 126, range(104, 112))
    a('v_cmp_eq_u32 vcc, -1, v126'); a(f's_cbranch_vccz {vok}')
    a('s_waitcnt vmcnt(0)')
    for p in range(4): a(f'v_mov_b64 v[{104+2*p}:{105+2*p}], v[{112+2*p}:{113+2*p}]')
    a.label(vp)
    maxchain(a, 126, range(104, 112))
    a('v_cmp_eq_u32 vcc, -1, v126'); a(f's_cbranch_vccz {vok}')
    for p in range(4):
        a(f'buffer_load_dwordx2 v[{104+2*p}:{105+2*p}], v9, {W}, s{sVMo} offen offset:{p*512} sc1')
    spin_check(a, fail)
    a('s_waitcnt vmcnt(0)')
    a(f's_branch {vp}')
    a.label(vok)
    st(a, 5)
    mf = []
    for et in range(8):
        p = et >> 1; b = 'v[122:123]' if et & 1 else 'v[120:121]'
        mf.append(f'{MF16} v[{72+4*et}:{75+4*et}], v[{104+2*p}:{105+2*p}], {b}, v[{72+4*et}:{75+4*et}]')
    z = zero(20, 32)
    fill = [
        ['v_mov_b32 v126, v125', z[0]], [z[1], z[2]], ['v_permlane32_swap_b32 v125, v126', 'v_add_f32 v125, v125, v126'],
        ['v_mov_b32 v126, v125', z[3]], [z[4], z[5]], ['v_permlane16_swap_b32 v125, v126', 'v_add_f32 v125, v125, v126'],
        [], ['v_rcp_f32 v124, v125'],
    ]
    interleave(a, mf, fill)
    a('s_waitcnt vmcnt(0) lgkmcnt(0)')
    km_write(a)
    a(f's_add_u32 s{sKMo}, s{sKMo}, {32*4096}')
    a('v_mov_b32 v125, v124')
    wl = []
    for i in range(4):
        wl += [f'ds_read_b128 v[{40+8*i}:{43+8*i}], v15 offset:{i*2048}', f'ds_read_b128 v[{44+8*i}:{47+8*i}], v15 offset:{i*2048+1024}']
    emit(a, wl)
    for et in range(8):
        o = 72 + 4 * et
        t0 = 126 if et & 1 else 36
        a(f'v_cndmask_b32 v{t0}, v{o}, v{o+2}, {MH}')
        a(f'v_cndmask_b32 v{t0+1}, v{o+1}, v{o+3}, {MH}')
        a(f'v_pk_mul_f32 v[{t0}:{t0+1}], v[{t0}:{t0+1}], v[124:125]')
        a(f'v_cvt_pk_bf16_f32 v{112+et}, v{t0}, v{t0+1}')
        if et == 3: emit(a, zero(32, 36))
    a(f's_add_u32 s{sVMo}, s{sVMo}, {32*2048}')
    st(a, 6)
    def epi(cg):
        s_ = 20 + 8 * (cg & 1)
        d = (36 + 2 * (cg & 1)) if cg < 4 else 72
        ops = [f'v_add_f32 v{s_}, v{s_}, v{s_+2}', f'v_add_f32 v{s_+1}, v{s_+1}, v{s_+3}',
               f'v_add_f32 v{s_+4}, v{s_+4}, v{s_+6}', f'v_add_f32 v{s_+5}, v{s_+5}, v{s_+7}',
               f'v_cvt_pk_bf16_f32 v{d}, v{s_}, v{s_+1}', f'v_cvt_pk_bf16_f32 v{d+1}, v{s_+4}, v{s_+5}']
        if cg + 2 < 5: ops += zero(s_, s_ + 8)
        ops += [f'v_min_u32 v{d}, v{d}, v11', f'v_min_u32 v{d+1}, v{d+1}, v11']
        if cg in (1, 3):
            ops += [f's_add_u32 s{sTmp}, s{sP1w}, {(cg-1)*8*8192}',
                    'v_permlane16_swap_b32 v36, v37', 'v_permlane16_swap_b32 v38, v39',
                    'v_permlane32_swap_b32 v36, v38', 'v_permlane32_swap_b32 v37, v39',
                    f'buffer_store_dwordx4 v[36:39], v7, {W}, s{sTmp} offen {sc}']
        elif cg == 4:
            ops += [f's_add_u32 s{sTmp}, s{sP1w}, {cg*8*8192}', 'v_permlane16_swap_b32 v72, v73',
                    f'buffer_store_dwordx2 v[72:73], v13, {W}, s{sTmp} offen {sc}']
        return ops
    def pf(pair):
        sl = (pair & 1) * 2; ops = []
        for t in range(2):
            i = pair * 2 + t; b = 40 + 8 * (sl + t)
            ops += [f'ds_read_b128 v[{b}:{b+3}], v15 offset:{i*2048}', f'ds_read_b128 v[{b+4}:{b+7}], v15 offset:{i*2048+1024}']
        return ops
    for cg in range(5):
        s_ = 20 + 8 * (cg & 1)
        mfl = []
        for eb in range(2):
            p = wo_pair(cg, eb)
            A = 'v[112:115]' if eb == 0 else 'v[116:119]'
            for t in range(2):
                b = 192 + (cg*2+t)*8 if p is None else 40 + 8 * ((p & 1) * 2 + t)
                ins = f'{SM} v[{s_+4*t}:{s_+4*t+3}], {A}, v[{b}:{b+7}], v1'
                pre = [f's_waitcnt lgkmcnt({4 if p < 5 else 0})'] if (p is not None and t == 0) else []
                post = pf(p + 2) if (p is not None and t == 1 and p + 2 < 6) else []
                mfl.append(pre + [ins] + post)
        e = epi(cg - 1) if cg >= 1 else []
        n = len(e); q = (n + 3) // 4
        interleave(a, mfl, [[]] + [e[i*q:(i+1)*q] for i in range(4)] if cg >= 1 else [])
    emit(a, epi(4))
    st(a, 7)
    gat = a.newlabel('gat'); join = a.newlabel('join'); op = a.newlabel('ownp'); nown = a.newlabel('nown')
    a(f's_cmp_ge_u32 s{sW}, 2'); a(f's_cbranch_scc1 {gat}')
    a(f's_cmp_eq_u32 s{sOwn}, -1'); a(f's_cbranch_scc1 {nown}')
    a(f's_and_b32 s{sTmp}, s{sS}, 1'); a(f's_mul_i32 s{sTmp}, s{sTmp}, {L.P1SZ}')
    a(f's_lshl_b32 s{sTmp2}, s{sOwn}, 13'); a(f's_add_u32 s{sTmp}, s{sTmp}, s{sTmp2}')
    a(f's_add_u32 s{sTmp}, s{sTmp}, {L.P1}'); a(f's_add_u32 s{sTmp2}, s{sTmp}, 4096')
    a(f's_add_u32 s{sPubX}, s{sOwnO}, s{sMw}')
    a(f's_add_u32 s{sPubF}, s{sPubX}, {L.MEMF}'); a(f's_add_u32 s{sPubX}, s{sPubX}, {L.MEMX}')
    advance(a)
    if OSLEEP: a(f's_sleep {OSLEEP}')
    a.label(op)
    for m in range(8):
        so = sTmp if m < 4 else sTmp2
        a(f'buffer_load_dwordx4 v[{40+4*m}:{43+4*m}], v2, {W}, s{so} offen offset:{(m&3)*1024} sc1')
    spin_check(a, fail)
    for m in range(8):
        a(f's_waitcnt vmcnt({7-m})')
        c = '0' if m == 0 else 'v[20:23]'
        a(f'{MF32} v[20:23], v[{40+4*m}:{43+4*m}], v[16:19], {c}')
        if m == 0: a(f'v_max3_u32 v36, v40, v41, v42'); a('v_max_u32 v36, v36, v43')
        else:
            a(f'v_max3_u32 v36, v36, v{40+4*m}, v{41+4*m}'); a(f'v_max3_u32 v36, v36, v{42+4*m}, v{43+4*m}')
    a('v_cmp_eq_u32 vcc, -1, v36'); a(f's_cbranch_vccnz {op}')
    a(f'v_cndmask_b32 v24, v20, v22, {MH}'); a(f'v_cndmask_b32 v25, v21, v23, {MH}')
    a('v_cvt_pk_bf16_f32 v24, v24, v25'); a('v_min_u32 v24, v24, v11')
    a(f'buffer_store_dword v24, v8, {W}, s{sPubF} offen {sc}')
    st(a, 8)
    a('s_barrier')
    a('v_mov_b32 v36, v24')
    a(f'buffer_store_dword v36, v8, {W}, s{sPubX} offen sc1')
    emit(a, zero(20, 36))
    a(f's_branch {join}')
    a.label(nown)
    advance(a)
    st(a, 8)
    emit(a, zero(20, 36))
    a('s_barrier')
    a(f's_branch {join}')
    a.label(gat)
    a(f's_add_u32 s{sM2}, s{sMw}, {L.MEMF}')
    gather_pre(a, sM2)
    advance(a)
    emit(a, zero(20, 36))
    a('s_barrier')
    if GSLEEP: a(f's_sleep {GSLEEP}')
    st(a, 10); st.val(a, 2, sSpin)
    gather(a, fail)
    st.val(a, 3, sSpin); st(a, 11)
    a.label(join)
    a('s_waitcnt lgkmcnt(0)')
    a('s_barrier')
    st(a, 9)
    a(f's_branch main_loop_{tag}')

def emit_helper(a, st, fail, end):
    a.comment('======== HELPER ========')
    a.label('chain_helper')
    srd(a, S_T1, L.KA['Wv'], 640*4096*2)
    a('v_lshrrev_b32 v36, 4, v0'); a('v_and_b32 v37, 15, v0'); a('v_lshlrev_b32 v37, 4, v37')
    a('v_lshlrev_b32 v10, 13, v36'); a('v_add_u32 v10, v10, v37')
    trbase(a, 12, False)
    a(f's_lshl_b32 s30, s{sH}, 8')
    a('s_waitcnt lgkmcnt(0)')
    chunks = []
    for kb in range(10):
        chunks.append(dict(srd=S_T1, vofs=10, sbase=30, soff=64*kb*8192, istep=4*8192, vtr=12, rows=[0, 4, 32, 36], tcol=[0, 32],
                           dests=[f'a{(kb*2)*8}', f'a{(kb*2+1)*8}']))
    load_chunks(a, chunks, 14)
    a('s_barrier')
    a('v_mov_b64 v[12:13], -1'); a('v_mov_b64 v[14:15], -1'); a('v_mov_b32 v11, -2')
    a('v_lshlrev_b32 v9, 3, v0')
    a(f's_lshl_b32 s{sVMo}, s{sH}, 11'); a(f's_add_u32 s{sVMo}, s{sVMo}, {L.VM}')
    a(f's_lshl_b32 s{sTmp}, s{sW}, 16'); a(f's_add_u32 s{sTmp}, s{sTmp}, s{sVMo}')
    for i in range(16):
        a(f'buffer_store_dwordx4 v[12:15], v2, {W}, s{sTmp} offen sc1')
        a(f'buffer_store_dwordx4 v[12:15], v2, {W}, s{sTmp} offen offset:1024 sc1')
        if i < 15: a(f's_add_u32 s{sTmp}, s{sTmp}, {4*65536}')
    mem0_frags(a)
    a(f's_sub_u32 s{sTmp}, s{sW}, 2'); a(f's_mul_i32 s{sTmp}, s{sTmp}, 5120'); a(f'v_add_u32 v3, s{sTmp}, v4')
    rendezvous(a, False, fail)
    a(f's_lshl_b32 s{sTmp}, s{sW}, 9'); a(f's_add_u32 s{sVMo}, s{sVMo}, s{sTmp}')
    a(f's_mov_b32 s{sS}, 0')
    a(f's_mov_b32 s{sMr}, {L.MEMX + L.MEMSZ}')
    a('s_barrier')
    a.label('helper_loop')
    st(a, 0)
    for kb in range(10):
        a(f'ds_read_b128 v[{72+4*kb}:{75+4*kb}], v4 offset:{kb*1024}')
    for r in range(28, 36, 2): a(f'v_mov_b64 v[{r}:{r+1}], 0')
    for kb in range(10):
        a(f's_waitcnt lgkmcnt({9-kb})')
        for t in range(2):
            acc = 28 + t * 4; b = (kb*2+t)*8
            a(f'{SM} v[{acc}:{acc+3}], v[{72+4*kb}:{75+4*kb}], a[{b}:{b+7}], v1')
    a('v_add_f32 v28, v28, v30'); a('v_add_f32 v29, v29, v31'); a('v_add_f32 v32, v32, v34'); a('v_add_f32 v33, v33, v35')
    a('v_cvt_pk_bf16_f32 v44, v28, v29'); a('v_cvt_pk_bf16_f32 v45, v32, v33')
    a('v_min_u32 v44, v44, v11'); a('v_min_u32 v45, v45, v11')
    a(f'buffer_store_dwordx2 v[44:45], v9, {W}, s{sVMo} offen sc1')
    st(a, 1)
    a(f's_add_u32 s{sVMo}, s{sVMo}, {32*2048}')
    a(f's_cmp_ge_u32 s{sS}, 63'); a(f's_cbranch_scc1 helper_done')
    a('s_barrier')
    hj = a.newlabel('hj')
    a(f's_cmp_lt_u32 s{sW}, 2'); a(f's_cbranch_scc1 {hj}')
    gather_pre(a, sMr)
    if HSLEEP: a(f's_sleep {HSLEEP}')
    st(a, 2)
    gather(a, fail)
    st(a, 3)
    a.label(hj)
    a('s_waitcnt lgkmcnt(0)')
    a('s_barrier')
    a(f's_add_u32 s{sS}, s{sS}, 1')
    a(f's_xor_b32 s{sMr}, s{sMr}, {(L.MEMX) ^ (L.MEMX + L.MEMSZ)}')
    a('s_branch helper_loop')
    a.label('helper_done')
    st.dump(a, 8192)
    a(f's_branch {end}')
```

```python
from asmlib import Asm
import layout as L

MF = 'v_mfma_f32_32x32x16_bf16'

def srd(a, base, ka_off, nbytes, add=0):
    a(f's_load_dwordx2 s[{base}:{base+1}], s[0:1], {ka_off}')
    a(f's_mov_b32 s{base+2}, {nbytes}')
    a(f's_mov_b32 s{base+3}, 0x00020000')

class G:
    SA = 4
    SB = 8
    SB2 = 12
    SO = 16
    SX = 20
    sW = 24; sWM = 25; sWN = 26; sAoff = 27; sBoff = 28; sK = 29; sT0 = 30; sT1 = 31; sT2 = 32; sM0 = 33; sN0 = 34; sLdsA = 35; sLdsB = 36; sTile = 37
    vAe = 1; vAo = 2; vB = 3
    vRA = 4
    vRB = 16
    vT = 22
    FA = 32
    FB = 48
    ACC = 64
    STAGE = 32768
    ABYTES = 16384

def setup_lane_consts(a, lda, ldb, splitB=False):
    g = G
    a(f'v_lshrrev_b32 v{g.vT}, 6, v0'); a(f'v_readfirstlane_b32 s{g.sW}, v{g.vT}'); a('v_and_b32 v0, 63, v0')
    a(f's_lshr_b32 s{g.sWM}, s{g.sW}, 1'); a(f's_and_b32 s{g.sWN}, s{g.sW}, 1')
    t = g.vT
    a(f'v_lshrrev_b32 v{t}, 3, v0'); a(f's_mov_b32 s{g.sT0}, {lda}'); a(f'v_mul_lo_u32 v{t}, v{t}, s{g.sT0}')
    a(f'v_and_b32 v{t+1}, 7, v0'); a(f'v_lshrrev_b32 v{t+2}, 4, v0'); a(f'v_xor_b32 v{t+1}, v{t+1}, v{t+2}')
    a(f'v_lshlrev_b32 v{t+2}, 4, v{t+1}'); a(f'v_add_u32 v{g.vAe}, v{t}, v{t+2}')
    a(f'v_xor_b32 v{t+1}, 4, v{t+1}'); a(f'v_lshlrev_b32 v{t+2}, 4, v{t+1}'); a(f'v_add_u32 v{g.vAo}, v{t}, v{t+2}')
    if not splitB:
        a(f'v_lshrrev_b32 v{t}, 4, v0'); a(f's_mov_b32 s{g.sT0}, {ldb}'); a(f'v_mul_lo_u32 v{t+1}, v{t}, s{g.sT0}')
        a(f'v_bfe_u32 v{t+2}, v0, 2, 2'); a(f'v_xor_b32 v{t+2}, v{t+2}, v{t}'); a(f'v_lshlrev_b32 v{t+2}, 6, v{t+2}')
        a(f'v_add_u32 v{t+1}, v{t+1}, v{t+2}'); a(f'v_and_b32 v{t+2}, 3, v0'); a(f'v_lshlrev_b32 v{t+2}, 4, v{t+2}')
        a(f'v_add_u32 v{g.vB}, v{t+1}, v{t+2}')
    else:
        a(f'v_lshrrev_b32 v{t}, 3, v0'); a(f's_mov_b32 s{g.sT0}, {ldb}'); a(f'v_mul_lo_u32 v{t+1}, v{t}, s{g.sT0}')
        a(f'v_bfe_u32 v{t+2}, v0, 2, 1'); a(f'v_bfe_u32 v{t+3}, v0, 4, 1'); a(f'v_xor_b32 v{t+2}, v{t+2}, v{t+3}'); a(f'v_lshlrev_b32 v{t+2}, 6, v{t+2}')
        a(f'v_add_u32 v{t+1}, v{t+1}, v{t+2}'); a(f'v_and_b32 v{t+2}, 3, v0'); a(f'v_lshlrev_b32 v{t+2}, 4, v{t+2}')
        a(f'v_add_u32 v{g.vB}, v{t+1}, v{t+2}')
    a(f'v_and_b32 v{t}, 31, v0'); a(f's_lshl_b32 s{g.sT0}, s{g.sWM}, 6'); a(f'v_add_u32 v{t+1}, s{g.sT0}, v{t}'); a(f'v_lshlrev_b32 v{t+1}, 7, v{t+1}')
    a(f'v_bfe_u32 v{t+2}, v0, 1, 3'); a(f'v_lshrrev_b32 v{t+3}, 5, v0')
    for j in range(4):
        a(f'v_add_u32 v{t+4}, {2*j}, v{t+3}'); a(f'v_xor_b32 v{t+4}, v{t+4}, v{t+2}'); a(f'v_lshlrev_b32 v{t+4}, 4, v{t+4}')
        for st in range(3):
            a(f'v_add_u32 v{t+5}, v{t+1}, v{t+4}')
            a(f'v_add_u32 v{g.vRA + 4*st + j}, {st*g.STAGE}, v{t+5}')
    if not splitB:
        a(f'v_lshrrev_b32 v{t}, 5, v0'); a(f'v_lshlrev_b32 v{t}, 3, v{t}'); a(f'v_bfe_u32 v{t+1}, v0, 2, 2'); a(f'v_add_u32 v{t}, v{t}, v{t+1}')
        a(f'v_lshlrev_b32 v{t}, 8, v{t}')
        a(f'v_bfe_u32 v{t+2}, v0, 4, 1'); a(f'v_lshlrev_b32 v{t+2}, 5, v{t+2}'); a(f'v_add_u32 v{t}, v{t}, v{t+2}')
        a(f'v_and_b32 v{t+2}, 3, v0'); a(f'v_lshlrev_b32 v{t+2}, 3, v{t+2}'); a(f'v_add_u32 v{t}, v{t}, v{t+2}')
        a(f's_lshl_b32 s{g.sT0}, s{g.sWN}, 1')
        for ct in range(2):
            a(f's_add_u32 s{g.sT1}, s{g.sT0}, {ct}')
            a(f'v_xor_b32 v{t+2}, s{g.sT1}, v{t+1}'); a(f'v_lshlrev_b32 v{t+2}, 6, v{t+2}'); a(f'v_add_u32 v{t+2}, v{t}, v{t+2}')
            for st in range(3):
                a(f'v_add_u32 v{g.vRB + 2*st + ct}, {st*g.STAGE + g.ABYTES}, v{t+2}')
    else:
        a(f'v_lshrrev_b32 v{t}, 5, v0'); a(f'v_lshlrev_b32 v{t}, 3, v{t}'); a(f'v_bfe_u32 v{t+1}, v0, 2, 2'); a(f'v_add_u32 v{t}, v{t}, v{t+1}')
        a(f'v_lshlrev_b32 v{t}, 7, v{t}')
        a(f'v_bfe_u32 v{t+2}, v0, 4, 1'); a(f'v_lshlrev_b32 v{t+2}, 5, v{t+2}'); a(f'v_add_u32 v{t}, v{t}, v{t+2}')
        a(f'v_and_b32 v{t+2}, 3, v0'); a(f'v_lshlrev_b32 v{t+2}, 3, v{t+2}'); a(f'v_add_u32 v{t}, v{t}, v{t+2}')
        a(f'v_bfe_u32 v{t+1}, v0, 3, 1'); a(f'v_xor_b32 v{t+1}, s{g.sWN}, v{t+1}'); a(f'v_lshlrev_b32 v{t+1}, 6, v{t+1}'); a(f'v_add_u32 v{t}, v{t}, v{t+1}')
        for ct in range(2):
            for st in range(3):
                a(f'v_add_u32 v{g.vRB + 2*st + ct}, {st*g.STAGE + g.ABYTES + ct*8192}, v{t}')

def dma_ops(kreg_off_A, kreg_off_B, stage, lda, ldb, splitB):
    g = G; ops = []
    for ii in range(4):
        v = g.vAe if ii % 2 == 0 else g.vAo
        ops.append([f's_add_u32 s{g.sT0}, s{g.sAoff}, {ii*8*lda + kreg_off_A}',
                    f's_add_u32 m0, s{g.sLdsA}, {stage*g.STAGE + ii*1024}',
                    f'buffer_load_dwordx4 v{v}, s[{g.SA}:{g.SA+3}], s{g.sT0} offen lds'])
    for ii in range(4):
        if not splitB:
            ops.append([f's_add_u32 s{g.sT0}, s{g.sBoff}, {ii*4*ldb + kreg_off_B}',
                        f's_add_u32 m0, s{g.sLdsB}, {stage*g.STAGE + g.ABYTES + ii*1024}',
                        f'buffer_load_dwordx4 v{g.vB}, s[{g.SB}:{g.SB+3}], s{g.sT0} offen lds'])
        else:
            sr = g.SB if ii < 2 else g.SB2
            ops.append([f's_add_u32 s{g.sT0}, s{g.sBoff}, {(ii&1)*8*ldb + kreg_off_B}',
                        f's_add_u32 m0, s{g.sLdsB}, {stage*g.STAGE + g.ABYTES + (ii>>1)*8192 + (ii&1)*1024}',
                        f'buffer_load_dwordx4 v{g.vB}, s[{sr}:{sr+3}], s{g.sT0} offen lds'])
    return ops

def frag_reads(stage, j, fs):
    g = G; ops = []
    for rt in range(2):
        b = g.FA + fs*8 + rt*4
        ops.append(f'ds_read_b128 v[{b}:{b+3}], v{g.vRA + 4*stage + j} offset:{rt*4096}')
    return ops
def fragB_reads(stage, j, fs, splitB):
    g = G; ops = []
    rs = 128 if splitB else 256
    for ct in range(2):
        b = g.FB + fs*8 + ct*4
        for q in range(2):
            ops.append(f'ds_read_b64_tr_b16 v[{b+2*q}:{b+2*q+1}], v{g.vRB + 2*stage + ct} offset:{(16*j + 4*q)*rs}')
    return ops

def mainloop(a, nk, lda, ldb, orient, splitB=False):
    g = G
    kA = lambda k: k * 128
    kB = lambda k: k * 64 * ldb
    def emit(x):
        for o in x:
            if isinstance(o, list): emit(o)
            else: a(o)
    for k in range(min(2, nk)):
        emit(dma_ops(kA(k), kB(k), k % 3, lda, ldb, splitB))
    for r in range(g.ACC, g.ACC + 64, 2): a(f'v_mov_b64 v[{r}:{r+1}], 0')
    a(f's_waitcnt vmcnt({8 if nk > 1 else 0})')
    a('s_barrier')
    emit(frag_reads(0, 0, 0)); emit(fragB_reads(0, 0, 0, splitB))
    for k in range(nk):
        st = k % 3
        dm = dma_ops(kA(k+2), kB(k+2), (k+2) % 3, lda, ldb, splitB) if k + 2 < nk else []
        for j in range(4):
            fs = j & 1
            nxt = []
            if j < 3:
                nxt = frag_reads(st, j+1, fs ^ 1) + fragB_reads(st, j+1, fs ^ 1, splitB)
            pre = []
            if j == 3 and k + 1 < nk:
                nd = 8 if k + 2 < nk else 0
                pre = [f's_waitcnt vmcnt({nd}) lgkmcnt(0)', 's_barrier']
                nxt = frag_reads((k+1) % 3, 0, fs ^ 1) + fragB_reads((k+1) % 3, 0, fs ^ 1, splitB)
            if not pre: a('s_waitcnt lgkmcnt(0)')
            emit(pre)
            fill = list(nxt)
            if j in (0, 1, 2) and dm:
                take = 3 if j < 2 else 2
                for _ in range(take):
                    if dm: fill.append(dm.pop(0))
            mf = []
            for rt in range(2):
                for ct in range(2):
                    acc = g.ACC + (rt*2 + ct) * 16
                    A = f'v[{g.FA + fs*8 + rt*4}:{g.FA + fs*8 + rt*4 + 3}]'; B = f'v[{g.FB + fs*8 + ct*4}:{g.FB + fs*8 + ct*4 + 3}]'
                    if orient == 'N': mf.append(f'{MF} v[{acc}:{acc+15}], {A}, {B}, v[{acc}:{acc+15}]')
                    else: mf.append(f'{MF} v[{acc}:{acc+15}], {B}, {A}, v[{acc}:{acc+15}]')
            per = (len(fill) + 3) // 4
            for i, m in enumerate(mf):
                a(m)
                emit(fill[i*per:(i+1)*per])
        assert not dm
```

```python
from asmlib import Asm
import layout as L
import gemm as GM
from gemm import G, MF
import struct
def f32bits(x): return struct.unpack('<I', struct.pack('<f', x))[0]

def srd_ka(a, base, ka_off, nbytes):
    a(f's_load_dwordx2 s[{base}:{base+1}], s[0:1], {ka_off}')
    a(f's_mov_b32 s{base+2}, {nbytes}')
    a(f's_mov_b32 s{base+3}, 0x00020000')

def emit(a, ops):
    for x in ops:
        if isinstance(x, (list, tuple)): emit(a, x)
        else: a(x)

def row_reduce16(a, v, t):
    for sh in (8, 4, 2, 1):
        a(f'v_add_f32_dpp v{v}, v{v}, v{v} row_ror:{sh} row_mask:0xf bank_mask:0xf')

def ln_core(a, X, out_pack):
    a(f'v_add_f32 v2, v{X}, v{X+1}')
    for i in range(2, 40): a(f'v_add_f32 v2, v2, v{X+i}')
    row_reduce16(a, 2, 3)
    a(f'v_mul_f32 v2, {hex(f32bits(1.0/640))}, v2')
    for i in range(40): a(f'v_sub_f32 v{X+i}, v{X+i}, v2')
    a(f'v_mul_f32 v3, v{X}, v{X}')
    for i in range(1, 40): a(f'v_fmac_f32 v3, v{X+i}, v{X+i}')
    row_reduce16(a, 3, 4)
    a(f'v_mov_b32 v4, {hex(f32bits(1e-5))}')
    a(f'v_fmac_f32 v4, {hex(f32bits(1.0/640))}, v3') if False else None
    a(f'v_mul_f32 v3, {hex(f32bits(1.0/640))}, v3')
    a(f'v_add_f32 v3, v3, v4')
    a('v_rsq_f32 v3, v3')
    for i in range(40): a(f'v_mul_f32 v{X+i}, v{X+i}, v3')
    for i in range(20): a(f'v_cvt_pk_bf16_f32 v{out_pack+i}, v{X+2*i}, v{X+2*i+1}')

def unpack(a, src, dst, n):
    for i in range(n):
        a(f'v_lshlrev_b32 v{dst+2*i}, 16, v{src+i}')
        a(f'v_and_b32 v{dst+2*i+1}, 0xffff0000, v{src+i}')

def emit_ln1(a, name):
    a.label(name)
    end = name + '_end'
    a('s_cmp_ge_u32 s2, 128'); a(f's_cbranch_scc1 {end}')
    srd_ka(a, 4, L.KA['x'], 2048*640*2)
    srd_ka(a, 8, L.KA['ws'], L.WS_BYTES)
    a('v_lshrrev_b32 v1, 4, v0'); a('s_lshl_b32 s3, s2, 4'); a('v_add_u32 v1, s3, v1')
    a('v_mul_u32_u24 v1, 1280, v1'); a('v_and_b32 v5, 15, v0'); a('v_lshlrev_b32 v5, 4, v5'); a('v_add_u32 v1, v1, v5')
    a('s_waitcnt lgkmcnt(0)')
    for c in range(5): a(f'buffer_load_dwordx4 v[{8+4*c}:{11+4*c}], v1, s[4:7], 0 offen offset:{c*256}')
    a('s_waitcnt vmcnt(0)')
    unpack(a, 8, 32, 20)
    ln_core(a, 32, 8)
    a(f's_mov_b32 s12, {L.XN}')
    for c in range(5): a(f'buffer_store_dwordx4 v[{8+4*c}:{11+4*c}], v1, s[8:11], s12 offen offset:{c*256}')
    a.label(end)
    a('s_endpgm')

NSPLIT = 4
def emit_ln2(a, name):
    a.label(name)
    end = name + '_end'
    a('s_cmp_ge_u32 s2, 128'); a(f's_cbranch_scc1 {end}')
    srd_ka(a, 4, L.KA['x'], 2048*640*2)
    srd_ka(a, 8, L.KA['ws'], L.WS_BYTES)
    a('v_lshrrev_b32 v1, 4, v0'); a('s_lshl_b32 s3, s2, 4'); a('v_add_u32 v1, s3, v1')
    a('v_mul_u32_u24 v1, 1280, v1'); a('v_and_b32 v5, 15, v0'); a('v_lshlrev_b32 v5, 4, v5'); a('v_add_u32 v1, v1, v5')
    a('v_lshlrev_b32 v6, 1, v1')
    a('s_waitcnt lgkmcnt(0)')
    for c in range(5): a(f'buffer_load_dwordx4 v[{8+4*c}:{11+4*c}], v1, s[4:7], 0 offen offset:{c*256}')
    for sp in range(NSPLIT):
        a(f's_mov_b32 s12, {L.PART + sp*2048*640*4}')
        for c in range(5):
            b = 72 + sp*40 + c*8
            a(f'buffer_load_dwordx4 v[{b}:{b+3}], v6, s[8:11], s12 offen offset:{c*512}')
            a(f'buffer_load_dwordx4 v[{b+4}:{b+7}], v6, s[8:11], s12 offen offset:{c*512+16}')
    a(f's_waitcnt vmcnt({10*NSPLIT})')
    unpack(a, 8, 32, 20)
    for sp in range(NSPLIT):
        a(f's_waitcnt vmcnt({10*(NSPLIT-1-sp)})')
        for i in range(40): a(f'v_add_f32 v{32+i}, v{32+i}, v{72+sp*40+i}')
    a(f's_mov_b32 s12, {L.H}')
    for c in range(5):
        a(f'buffer_store_dwordx4 v[{32+8*c}:{35+8*c}], v6, s[8:11], s12 offen offset:{c*512}')
        a(f'buffer_store_dwordx4 v[{36+8*c}:{39+8*c}], v6, s[8:11], s12 offen offset:{c*512+16}')
    for i in range(40): a(f'v_mov_b32 v{72+i}, v{32+i}')
    ln_core(a, 72, 8)
    a(f's_mov_b32 s12, {L.HN}')
    for c in range(5): a(f'buffer_store_dwordx4 v[{8+4*c}:{11+4*c}], v1, s[8:11], s12 offen offset:{c*256}')
    a.label(end)
    a('s_endpgm')

def gemm_common(a, lda, ldb, splitB=False):
    g = G
    GM.setup_lane_consts(a, lda, ldb, splitB)
    a(f's_lshl_b32 s{g.sLdsA}, s{g.sW}, 12')
    a(f's_lshl_b32 s{g.sLdsB}, s{g.sW}, {11 if splitB else 12}')

def pack_T(a, acc, dst):
    for i in range(8): a(f'v_cvt_pk_bf16_f32 v{dst+i}, v{acc+2*i}, v{acc+2*i+1}')
    for k in (0, 4):
        a(f'v_permlane32_swap_b32 v{dst+k}, v{dst+k+2}'); a(f'v_permlane32_swap_b32 v{dst+k+1}, v{dst+k+3}')

def emit_qkv(a, name):
    g = G
    a.label(name)
    end = name + '_end'
    a('s_cmp_ge_u32 s2, 1536'); a(f's_cbranch_scc1 {end}')
    srd_ka(a, g.SA, L.KA['ws'], L.WS_BYTES)
    a('s_and_b32 s38, s2, 7'); a('s_lshr_b32 s39, s2, 3')
    a('s_mul_i32 s40, s39, 43691'); a('s_lshr_b32 s40, s40, 19')
    a('s_mul_i32 s41, s40, 12'); a('s_sub_u32 s41, s39, s41'); a('s_lshl_b32 s41, s41, 3'); a('s_add_u32 s41, s41, s38')
    a('s_lshr_b32 s42, s41, 5'); a('s_and_b32 s43, s41, 31')
    a('s_lshl_b32 s44, s42, 3'); a(f's_add_u32 s44, s44, {L.KA["Wq"]}')
    a(f's_load_dwordx2 s[{g.SB}:{g.SB+1}], s[0:1], s44')
    a(f's_mov_b32 s{g.SB+2}, {640*4096*2}'); a(f's_mov_b32 s{g.SB+3}, 0x00020000')
    gemm_common(a, 1280, 8192)
    a(f's_lshl_b32 s{g.sT0}, s40, 7'); a(f's_lshl_b32 s{g.sT1}, s{g.sW}, 5'); a(f's_add_u32 s{g.sT0}, s{g.sT0}, s{g.sT1}')
    a(f's_mul_i32 s{g.sAoff}, s{g.sT0}, 1280'); a(f's_add_u32 s{g.sAoff}, s{g.sAoff}, {L.XN}')
    a(f's_lshl_b32 s{g.sBoff}, s43, 8'); a(f's_lshl_b32 s{g.sT1}, s{g.sW}, 17'); a(f's_add_u32 s{g.sBoff}, s{g.sBoff}, s{g.sT1}')
    a('s_waitcnt lgkmcnt(0)')
    a('s_cmp_eq_u32 s42, 2'); a(f's_cbranch_scc1 {name}_v')
    GM.mainloop(a, 10, 1280, 8192, 'T')
    t = g.vT
    a(f'v_and_b32 v{t}, 31, v0'); a(f'v_lshlrev_b32 v{t}, 13, v{t}'); a(f'v_lshrrev_b32 v{t+1}, 5, v0'); a(f'v_lshlrev_b32 v{t+1}, 4, v{t+1}'); a(f'v_add_u32 v{t}, v{t}, v{t+1}')
    a(f's_lshl_b32 s45, s42, 24'); a(f's_add_u32 s45, s45, {L.Q}')
    a(f's_lshl_b32 s46, s40, 7'); a(f's_lshl_b32 s47, s{g.sWM}, 6'); a('s_add_u32 s46, s46, s47'); a('s_lshl_b32 s46, s46, 13'); a('s_add_u32 s45, s45, s46')
    a(f's_lshl_b32 s46, s43, 8'); a('s_add_u32 s45, s45, s46'); a(f's_lshl_b32 s46, s{g.sWN}, 7'); a('s_add_u32 s45, s45, s46')
    for rt in range(2):
        for ct in range(2):
            acc = g.ACC + (rt*2+ct)*16; dst = g.FA + ((rt*2+ct) & 1) * 8
            pack_T(a, acc, dst)
            a(f's_add_u32 s47, s45, {rt*32*8192 + ct*64}')
            a(f'buffer_store_dwordx4 v[{dst}:{dst+3}], v{t}, s[{g.SA}:{g.SA+3}], s47 offen')
            a(f'buffer_store_dwordx4 v[{dst+4}:{dst+7}], v{t}, s[{g.SA}:{g.SA+3}], s47 offen offset:32')
    a('s_endpgm')
    a.label(f'{name}_v')
    GM.mainloop(a, 10, 1280, 8192, 'N')
    a(f'v_bfe_u32 v{t}, v0, 4, 1'); a(f'v_lshlrev_b32 v{t}, 10, v{t}'); a(f'v_and_b32 v{t+1}, 15, v0'); a(f'v_lshlrev_b32 v{t+1}, 4, v{t+1}'); a(f'v_add_u32 v{t}, v{t}, v{t+1}')
    a(f'v_lshrrev_b32 v{t+1}, 5, v0'); a(f'v_lshlrev_b32 v{t+1}, 9, v{t+1}'); a(f'v_add_u32 v{t}, v{t}, v{t+1}')
    a(f's_lshl_b32 s45, s40, 2'); a(f's_lshl_b32 s46, s{g.sWM}, 1'); a('s_add_u32 s45, s45, s46'); a('s_lshl_b32 s45, s45, 18')
    a(f's_lshl_b32 s46, s43, 13'); a('s_add_u32 s45, s45, s46'); a(f's_lshl_b32 s46, s{g.sWN}, 12'); a('s_add_u32 s45, s45, s46'); a(f's_add_u32 s45, s45, {L.VT}')
    for rt in range(2):
        for ct in range(2):
            acc = g.ACC + (rt*2+ct)*16; dst = g.FA + ((rt*2+ct) & 1) * 8
            for i in range(8): a(f'v_cvt_pk_bf16_f32 v{dst+i}, v{acc+2*i}, v{acc+2*i+1}')
            a(f's_add_u32 s47, s45, {rt*262144 + ct*2048}')
            a(f'buffer_store_dwordx4 v[{dst}:{dst+3}], v{t}, s[{g.SA}:{g.SA+3}], s47 offen')
            a(f'buffer_store_dwordx4 v[{dst+4}:{dst+7}], v{t}, s[{g.SA}:{g.SA+3}], s47 offen offset:256')
    a.label(end)
    a('s_endpgm')

def emit_wo(a, name):
    g = G
    a.label(name); end = name + '_end'
    a(f's_cmp_ge_u32 s2, {16*5*NSPLIT}'); a(f's_cbranch_scc1 {end}')
    srd_ka(a, g.SA, L.KA['ws'], L.WS_BYTES)
    srd_ka(a, g.SB, L.KA['Wo'], 4096*640*2)
    a('s_and_b32 s42, s2, 3'); a('s_lshr_b32 s39, s2, 2')
    a('s_mul_i32 s40, s39, 52429'); a('s_lshr_b32 s40, s40, 18')
    a('s_mul_i32 s41, s40, 5'); a('s_sub_u32 s41, s39, s41')
    gemm_common(a, 8192, 1280)
    KS = 4096 // NSPLIT
    a(f's_lshl_b32 s{g.sT0}, s40, 7'); a(f's_lshl_b32 s{g.sT1}, s{g.sW}, 5'); a(f's_add_u32 s{g.sT0}, s{g.sT0}, s{g.sT1}')
    a(f's_lshl_b32 s{g.sAoff}, s{g.sT0}, 13'); a(f's_add_u32 s{g.sAoff}, s{g.sAoff}, {L.O}')
    a(f's_mul_i32 s{g.sT1}, s42, {KS*2}'); a(f's_add_u32 s{g.sAoff}, s{g.sAoff}, s{g.sT1}')
    a(f's_mul_i32 s{g.sBoff}, s42, {KS*1280}'); a(f's_lshl_b32 s{g.sT1}, s41, 8'); a(f's_add_u32 s{g.sBoff}, s{g.sBoff}, s{g.sT1}')
    a(f's_mul_i32 s{g.sT1}, s{g.sW}, {16*1280}'); a(f's_add_u32 s{g.sBoff}, s{g.sBoff}, s{g.sT1}')
    a('s_waitcnt lgkmcnt(0)')
    GM.mainloop(a, KS // 64, 8192, 1280, 'T')
    t = g.vT
    a(f'v_and_b32 v{t}, 31, v0'); a(f'v_mul_u32_u24 v{t}, 2560, v{t}'); a(f'v_lshrrev_b32 v{t+1}, 5, v0'); a(f'v_lshlrev_b32 v{t+1}, 4, v{t+1}'); a(f'v_add_u32 v{t}, v{t}, v{t+1}')
    a(f's_mul_i32 s45, s42, {2048*640*4}'); a(f's_add_u32 s45, s45, {L.PART}')
    a(f's_lshl_b32 s46, s40, 7'); a(f's_lshl_b32 s47, s{g.sWM}, 6'); a('s_add_u32 s46, s46, s47'); a('s_mul_i32 s46, s46, 2560'); a('s_add_u32 s45, s45, s46')
    a(f's_lshl_b32 s46, s41, 9'); a('s_add_u32 s45, s45, s46'); a(f's_lshl_b32 s46, s{g.sWN}, 8'); a('s_add_u32 s45, s45, s46')
    for rt in range(2):
        for ct in range(2):
            acc = g.ACC + (rt*2+ct)*16
            a(f's_add_u32 s47, s45, {rt*32*2560 + ct*128}')
            for q in range(4):
                a(f'buffer_store_dwordx4 v[{acc+4*q}:{acc+4*q+3}], v{t}, s[{g.SA}:{g.SA+3}], s47 offen offset:{q*32}')
    a.label(end)
    a('s_endpgm')

def emit_up(a, name):
    g = G
    a.label(name); end = name + '_end'
    a(f's_cmp_ge_u32 s2, {16*27}'); a(f's_cbranch_scc1 {end}')
    srd_ka(a, g.SA, L.KA['ws'], L.WS_BYTES)
    srd_ka(a, g.SB, L.KA['Wg'], 640*1728*2)
    srd_ka(a, g.SB2, L.KA['Wu'], 640*1728*2)
    a('s_mul_i32 s40, s2, 38837'); a('s_lshr_b32 s40, s40, 20')
    a('s_mul_i32 s41, s40, 27'); a('s_sub_u32 s41, s2, s41')
    gemm_common(a, 1280, 3456, splitB=True)
    a(f's_lshl_b32 s{g.sT0}, s40, 7'); a(f's_lshl_b32 s{g.sT1}, s{g.sW}, 5'); a(f's_add_u32 s{g.sT0}, s{g.sT0}, s{g.sT1}')
    a(f's_mul_i32 s{g.sAoff}, s{g.sT0}, 1280'); a(f's_add_u32 s{g.sAoff}, s{g.sAoff}, {L.HN}')
    a(f's_lshl_b32 s{g.sBoff}, s41, 7'); a(f's_mul_i32 s{g.sT1}, s{g.sW}, {16*3456}'); a(f's_add_u32 s{g.sBoff}, s{g.sBoff}, s{g.sT1}')
    a('s_waitcnt lgkmcnt(0)')
    GM.mainloop(a, 10, 1280, 3456, 'T', splitB=True)
    t = g.vT
    a(f'v_and_b32 v{t}, 31, v0'); a(f'v_mul_u32_u24 v{t}, 3456, v{t}'); a(f'v_lshrrev_b32 v{t+1}, 5, v0'); a(f'v_lshlrev_b32 v{t+1}, 4, v{t+1}'); a(f'v_add_u32 v{t}, v{t}, v{t+1}')
    a(f's_lshl_b32 s46, s40, 7'); a(f's_lshl_b32 s47, s{g.sWM}, 6'); a('s_add_u32 s46, s46, s47'); a('s_mul_i32 s45, s46, 3456'); a(f's_add_u32 s45, s45, {L.ACT}')
    a(f's_lshl_b32 s46, s41, 7'); a('s_add_u32 s45, s45, s46'); a(f's_lshl_b32 s46, s{g.sWN}, 6'); a('s_add_u32 s45, s45, s46')
    a(f's_mov_b32 s48, {hex(f32bits(-1.4426950408889634))}')
    for rt in range(2):
        ag = g.ACC + (rt*2)*16; au = g.ACC + (rt*2+1)*16
        for i in range(16):
            x = t + 2 + (i & 3)
            a(f'v_mul_f32 v{x}, s48, v{ag+i}'); a(f'v_exp_f32 v{x}, v{x}'); a(f'v_add_f32 v{x}, 1.0, v{x}'); a(f'v_rcp_f32 v{x}, v{x}')
            a(f'v_mul_f32 v{ag+i}, v{ag+i}, v{x}'); a(f'v_mul_f32 v{ag+i}, v{ag+i}, v{au+i}')
        dst = g.FA + rt*8
        pack_T(a, ag, dst)
        a(f's_add_u32 s47, s45, {rt*32*3456}')
        a(f'buffer_store_dwordx4 v[{dst}:{dst+3}], v{t}, s[{g.SA}:{g.SA+3}], s47 offen')
        a(f'buffer_store_dwordx4 v[{dst+4}:{dst+7}], v{t}, s[{g.SA}:{g.SA+3}], s47 offen offset:32')
    a.label(end)
    a('s_endpgm')

def emit_down(a, name):
    g = G
    a.label(name); end = name + '_end'
    a(f's_cmp_ge_u32 s2, 80'); a(f's_cbranch_scc1 {end}')
    srd_ka(a, g.SA, L.KA['ws'], L.WS_BYTES)
    srd_ka(a, g.SB, L.KA['Wd'], 1728*640*2)
    srd_ka(a, g.SO, L.KA['out'], 2048*640*2)
    a('s_mul_i32 s40, s2, 52429'); a('s_lshr_b32 s40, s40, 18'); a('s_mul_i32 s41, s40, 5'); a('s_sub_u32 s41, s2, s41')
    gemm_common(a, 3456, 1280)
    a(f's_lshl_b32 s{g.sT0}, s40, 7'); a(f's_lshl_b32 s{g.sT1}, s{g.sW}, 5'); a(f's_add_u32 s{g.sT0}, s{g.sT0}, s{g.sT1}')
    a(f's_mul_i32 s{g.sAoff}, s{g.sT0}, 3456'); a(f's_add_u32 s{g.sAoff}, s{g.sAoff}, {L.ACT}')
    a(f's_lshl_b32 s{g.sBoff}, s41, 8'); a(f's_mul_i32 s{g.sT1}, s{g.sW}, {16*1280}'); a(f's_add_u32 s{g.sBoff}, s{g.sBoff}, s{g.sT1}')
    a('s_waitcnt lgkmcnt(0)')
    GM.mainloop(a, 27, 3456, 1280, 'T')
    t = g.vT
    a(f'v_and_b32 v{t}, 31, v0'); a(f'v_mul_u32_u24 v{t+2}, 2560, v{t}'); a(f'v_lshrrev_b32 v{t+1}, 5, v0'); a(f'v_lshlrev_b32 v{t+3}, 4, v{t+1}'); a(f'v_add_u32 v{t+2}, v{t+2}, v{t+3}')
    a(f'v_mul_u32_u24 v{t}, 1280, v{t}'); a(f'v_add_u32 v{t}, v{t}, v{t+3}')
    a(f's_lshl_b32 s46, s40, 7'); a(f's_lshl_b32 s47, s{g.sWM}, 6'); a('s_add_u32 s46, s46, s47')
    a('s_mul_i32 s45, s46, 2560'); a(f's_add_u32 s45, s45, {L.H}'); a('s_lshl_b32 s47, s41, 9'); a('s_add_u32 s45, s45, s47'); a(f's_lshl_b32 s47, s{g.sWN}, 8'); a('s_add_u32 s45, s45, s47')
    a('s_mul_i32 s44, s46, 1280'); a('s_lshl_b32 s47, s41, 8'); a('s_add_u32 s44, s44, s47'); a(f's_lshl_b32 s47, s{g.sWN}, 7'); a('s_add_u32 s44, s44, s47')
    HB = 128
    for rt in range(2):
        for ct in range(2):
            hb = HB + (rt*2+ct)*16
            a(f's_add_u32 s47, s45, {rt*32*2560 + ct*128}')
            for q in range(4): a(f'buffer_load_dwordx4 v[{hb+4*q}:{hb+4*q+3}], v{t+2}, s[{g.SA}:{g.SA+3}], s47 offen offset:{q*32}')
    a('s_waitcnt vmcnt(0)')
    for rt in range(2):
        for ct in range(2):
            acc = g.ACC + (rt*2+ct)*16; hb = HB + (rt*2+ct)*16; dst = g.FA + ((rt*2+ct) & 1) * 8
            for i in range(16): a(f'v_add_f32 v{acc+i}, v{acc+i}, v{hb+i}')
            pack_T(a, acc, dst)
            a(f's_add_u32 s47, s44, {rt*32*1280 + ct*64}')
            a(f'buffer_store_dwordx4 v[{dst}:{dst+3}], v{t}, s[{g.SO}:{g.SO+3}], s47 offen')
            a(f'buffer_store_dwordx4 v[{dst+4}:{dst+7}], v{t}, s[{g.SO}:{g.SO+3}], s47 offen offset:32')
    a.label(end)
    a('s_endpgm')

MF32 = 'v_mfma_f32_16x16x32_bf16'; MF16 = 'v_mfma_f32_16x16x16_bf16'
C_SCALE = (128 ** -0.5) * 1.4426950408889634
def emit_attn(a, name):
    a.label(name); end = name + '_end'
    a('s_cmp_ge_u32 s2, 512'); a(f's_cbranch_scc1 {end}')
    srd_ka(a, 4, L.KA['ws'], L.WS_BYTES)
    Wd = 's[4:7]'
    a('v_lshrrev_b32 v1, 6, v0'); a('v_readfirstlane_b32 s8, v1'); a('v_and_b32 v0, 63, v0')
    a('s_lshl_b32 s9, s2, 2'); a('s_add_u32 s9, s9, s8'); a('s_lshr_b32 s10, s9, 5'); a('s_and_b32 s11, s9, 31')
    a('v_and_b32 v6, 15, v0'); a('v_lshlrev_b32 v1, 13, v6'); a('v_lshrrev_b32 v7, 4, v0'); a('v_lshlrev_b32 v8, 4, v7'); a('v_add_u32 v1, v1, v8')
    a('v_bfe_u32 v2, v0, 2, 1'); a('v_lshlrev_b32 v2, 4, v2'); a('v_bfe_u32 v9, v0, 3, 1'); a('v_lshlrev_b32 v9, 2, v9'); a('v_add_u32 v2, v2, v9')
    a('v_and_b32 v9, 3, v0'); a('v_add_u32 v2, v2, v9'); a('v_lshlrev_b32 v2, 13, v2'); a('v_add_u32 v2, v2, v8')
    a('v_lshlrev_b32 v3, 4, v0'); a('v_lshlrev_b32 v4, 3, v0')
    a('v_lshlrev_b32 v5, 13, v6'); a('v_bfe_u32 v9, v0, 4, 1'); a('v_lshlrev_b32 v9, 5, v9'); a('v_add_u32 v5, v5, v9'); a('v_lshrrev_b32 v9, 5, v0'); a('v_lshlrev_b32 v9, 4, v9'); a('v_add_u32 v5, v5, v9')
    a('v_and_b32 v9, 1, v7'); a('v_lshlrev_b32 v9, 4, v9'); a('v_lshrrev_b32 v10, 1, v7'); a('v_lshlrev_b32 v10, 2, v10'); a('v_add_u32 v9, v9, v10'); a('v_sub_u32 v10, v6, v9')
    a('s_lshl_b32 s12, s10, 18'); a('s_lshl_b32 s13, s11, 8'); a('s_add_u32 s12, s12, s13')
    a(f's_add_u32 s14, s12, {L.Q}'); a(f's_add_u32 s15, s12, {L.K}'); a(f's_add_u32 s16, s12, {L.O}')
    a('s_lshl_b32 s17, s10, 5'); a('s_add_u32 s17, s17, s11')
    a('s_lshl_b32 s18, s17, 12'); a(f's_add_u32 s18, s18, {L.KM}')
    a('s_lshl_b32 s19, s17, 13'); a(f's_add_u32 s19, s19, {L.VT}')
    a('s_lshl_b32 s20, s17, 11'); a(f's_add_u32 s20, s20, {L.VM}')
    a(f's_mov_b32 s21, {hex(f32bits(C_SCALE))}')
    a('s_waitcnt lgkmcnt(0)')
    QF = 16; KX = 48; KMf = 80; S = 96; VT = 120; VMf = 152; P = 160; O = 176
    for qt in range(2):
        a(f's_add_u32 s22, s14, {qt*16*8192}')
        for kp in range(4): a(f'buffer_load_dwordx4 v[{QF+(qt*4+kp)*4}:{QF+(qt*4+kp)*4+3}], v1, {Wd}, s22 offen offset:{kp*64}')
    for kt in range(2):
        a(f's_add_u32 s22, s15, {kt*8*8192}')
        for kp in range(4): a(f'buffer_load_dwordx4 v[{KX+(kt*4+kp)*4}:{KX+(kt*4+kp)*4+3}], v2, {Wd}, s22 offen offset:{kp*64}')
    for kp in range(4): a(f'buffer_load_dwordx4 v[{KMf+kp*4}:{KMf+kp*4+3}], v3, {Wd}, s18 offen offset:{kp*1024}')
    for et in range(8):
        a(f's_add_u32 s22, s19, {(et>>2)*4096}')
        a(f'buffer_load_dwordx4 v[{VT+et*4}:{VT+et*4+3}], v3, {Wd}, s22 offen offset:{(et&3)*1024}')
    for p in range(4): a(f'buffer_load_dwordx2 v[{VMf+2*p}:{VMf+2*p+1}], v4, {Wd}, s20 offen offset:{p*512}')
    a('s_waitcnt vmcnt(12)')
    Sreg = lambda kt, qt: S + (kt*2+qt)*4
    for kp in range(4):
        for qt in range(2):
            B = f'v[{QF+(qt*4+kp)*4}:{QF+(qt*4+kp)*4+3}]'
            for kt in range(3):
                A = f'v[{KMf+kp*4}:{KMf+kp*4+3}]' if kt == 0 else f'v[{KX+((kt-1)*4+kp)*4}:{KX+((kt-1)*4+kp)*4+3}]'
                d = Sreg(kt, qt); c = '0' if kp == 0 else f'v[{d}:{d+3}]'
                a(f'{MF32} v[{d}:{d+3}], {A}, {B}, {c}')
    a('v_mov_b32 v11, 0xff800000')
    for qt in range(2):
        for kt in (1, 2):
            for r in range(4):
                cst = 8*(kt-1) + r - 16*qt
                reg = Sreg(kt, qt) + r
                a(f'v_cmp_le_i32 vcc, {cst}, v10')
                a(f'v_cndmask_b32 v{reg}, v11, v{reg}, vcc')
        m = 12; t2 = 13
        s0 = Sreg(0, qt); s1 = Sreg(1, qt); s2 = Sreg(2, qt)
        a(f'v_max3_f32 v{m}, v{s0}, v{s0+1}, v{s1}'); a(f'v_max3_f32 v{m}, v{m}, v{s1+1}, v{s1+2}'); a(f'v_max3_f32 v{m}, v{m}, v{s1+3}, v{s2}')
        a(f'v_max3_f32 v{m}, v{m}, v{s2+1}, v{s2+2}'); a(f'v_max_f32 v{m}, v{m}, v{s2+3}')
        a(f'v_mov_b32 v{t2}, v{m}'); a(f'v_permlane32_swap_b32 v{m}, v{t2}'); a(f'v_max_f32 v{m}, v{m}, v{t2}')
        a(f'v_mov_b32 v{t2}, v{m}'); a(f'v_permlane16_swap_b32 v{m}, v{t2}'); a(f'v_max_f32 v{m}, v{m}, v{t2}')
        a(f'v_mul_f32 v{m}, s21, v{m}')
        vals = [s0, s0+1] + [s1+i for i in range(4)] + [s2+i for i in range(4)]
        for r in vals: a(f'v_fma_f32 v{r}, v{r}, s21, -v{m}')
        for r in vals: a(f'v_exp_f32 v{r}, v{r}')
        pb = P + qt*8
        a(f'v_cvt_pk_bf16_f32 v{pb}, v{s1}, v{s1+1}'); a(f'v_cvt_pk_bf16_f32 v{pb+1}, v{s1+2}, v{s1+3}')
        a(f'v_cvt_pk_bf16_f32 v{pb+2}, v{s2}, v{s2+1}'); a(f'v_cvt_pk_bf16_f32 v{pb+3}, v{s2+2}, v{s2+3}')
        a(f'v_cvt_pk_bf16_f32 v{pb+4}, v{s0}, v{s0+1}'); a(f'v_mov_b32 v{pb+5}, 0'); a(f'v_mov_b32 v{pb+6}, 0'); a(f'v_mov_b32 v{pb+7}, v{pb+4}')
        l = 14 + qt
        a(f'v_add_f32 v{l}, v{vals[0]}, v{vals[1]}')
        for r in vals[2:]: a(f'v_add_f32 v{l}, v{l}, v{r}')
        a(f'v_mov_b32 v{t2}, v{l}'); a(f'v_permlane32_swap_b32 v{l}, v{t2}'); a(f'v_add_f32 v{l}, v{l}, v{t2}')
        a(f'v_mov_b32 v{t2}, v{l}'); a(f'v_permlane16_swap_b32 v{l}, v{t2}'); a(f'v_add_f32 v{l}, v{l}, v{t2}')
        a(f'v_rcp_f32 v{l}, v{l}')
    a('s_waitcnt vmcnt(0)')
    Oreg = lambda et, qt: O + (qt*8+et)*4 if (qt*8+et) < 16 else None
    for qt in range(2):
        pb = P + qt*8
        for et in range(8):
            o = Oreg(et, qt)
            a(f'{MF32} v[{o}:{o+3}], v[{VT+et*4}:{VT+et*4+3}], v[{pb}:{pb+3}], 0')
        for et in range(8):
            o = Oreg(et, qt); p = et >> 1
            b = f'v[{pb+6}:{pb+7}]' if et & 1 else f'v[{pb+4}:{pb+5}]'
            a(f'{MF16} v[{o}:{o+3}], v[{VMf+2*p}:{VMf+2*p+1}], {b}, v[{o}:{o+3}]')
    for qt in range(2):
        l = 14 + qt
        a(f's_add_u32 s22, s16, {qt*16*8192}')
        for ep in range(4):
            e0 = Oreg(2*ep, qt); e1 = Oreg(2*ep+1, qt); d = QF + (ep & 1) * 4
            for r in range(4):
                a(f'v_mul_f32 v{e0+r}, v{e0+r}, v{l}'); a(f'v_mul_f32 v{e1+r}, v{e1+r}, v{l}')
            a(f'v_cvt_pk_bf16_f32 v{d}, v{e0}, v{e0+1}'); a(f'v_cvt_pk_bf16_f32 v{d+1}, v{e0+2}, v{e0+3}')
            a(f'v_cvt_pk_bf16_f32 v{d+2}, v{e1}, v{e1+1}'); a(f'v_cvt_pk_bf16_f32 v{d+3}, v{e1+2}, v{e1+3}')
            a(f'v_permlane16_swap_b32 v{d}, v{d+2}'); a(f'v_permlane16_swap_b32 v{d+1}, v{d+3}')
            a(f'buffer_store_dwordx4 v[{d}:{d+3}], v5, {Wd}, s22 offen offset:{ep*64}')
    a.label(end)
    a('s_endpgm')
```

```python
XN   = 0x0000000
Q    = 0x0400000
K    = 0x1400000
VT   = 0x2400000
O    = 0x3400000
KM   = 0x4400000
VM   = 0x4C00000
P1   = 0x5000000
P1SZ = 40 * 8192
MEMF = 0x5100000
MEMX = 0x5110000
MEMSZ = 10240
H    = 0x5200000
HN   = 0x5700000
ACT  = 0x5A00000
PART = 0x6100000
WS_BYTES = 268435456
NAME = 'sequential_preLN__memory_aug_recurrent_mem_tr__swiglu_ffn__prompt'
KA = dict(x=0, mem0=8, Wq=16, Wk=24, Wv=32, Wo=40, seg=48, Bx=56, Wg=64, Wu=72, Wd=80, out=88, dbg=96, ws=104)
```

```python
import sys
sys.path.insert(0, 'gen')
from build import *
import kernels as KN
import chain4 as chain
chain.COARSE = False
N = L.NAME
ks = [
 ('ln1_kernel', lambda a: KN.emit_ln1(a, 'ln1_kernel'), dict(vgpr=80, sgpr=32, accum=80)),
 ('qkv_kernel', lambda a: KN.emit_qkv(a, 'qkv_kernel'), dict(vgpr=128, sgpr=64, accum=128)),
 ('chain_kernel', lambda a: chain.emit_chain(a), {}),
 ('attn_kernel', lambda a: KN.emit_attn(a, 'attn_kernel'), dict(vgpr=240, sgpr=32, accum=240)),
 ('wo_kernel', lambda a: KN.emit_wo(a, 'wo_kernel'), dict(vgpr=128, sgpr=64, accum=128)),
 ('ln2_kernel', lambda a: KN.emit_ln2(a, 'ln2_kernel'), dict(vgpr=232, sgpr=32, accum=232)),
 ('up_kernel', lambda a: KN.emit_up(a, 'up_kernel'), dict(vgpr=128, sgpr=64, accum=128)),
 ('down_kernel', lambda a: KN.emit_down(a, 'down_kernel'), dict(vgpr=192, sgpr=64, accum=192)),
]
GL = 3 * 32768
launches = [
 ('ln1_kernel', (128,1,1), (256,1,1), 0),
 ('qkv_kernel', (1536,1,1), (256,1,1), GL),
 ('chain_kernel', (256,1,1), (256,1,1), chain.LDS_BYTES),
 ('attn_kernel', (512,1,1), (256,1,1), 0),
 ('wo_kernel', (320,1,1), (256,1,1), GL),
 ('ln2_kernel', (128,1,1), (256,1,1), 0),
 ('up_kernel', (432,1,1), (256,1,1), GL),
 ('down_kernel', (80,1,1), (256,1,1), GL),
]
out = sys.argv[1] if len(sys.argv) > 1 else f'cdna_kernels/{N}.s'
assemble(ks, launches, out)
```

```python
import sys
sys.path.insert(0, 'gen')
from asmlib import Asm
import layout as L

HEADER = open(f'cdna_kernels/{L.NAME}.s.ref').read().split('; Override launch geometry')[0]

def kernel_desc(name, vgpr=512, sgpr=102, accum=256):
    return f'''.amdhsa_kernel {name}
  .amdhsa_next_free_vgpr {vgpr}
  .amdhsa_next_free_sgpr {sgpr}
  .amdhsa_accum_offset {accum}
  .amdhsa_group_segment_fixed_size 0
  .amdhsa_kernarg_size 112
  .amdhsa_user_sgpr_count 2
  .amdhsa_user_sgpr_kernarg_segment_ptr 1
  .amdhsa_system_sgpr_workgroup_id_x 1
.end_amdhsa_kernel
'''

def assemble(kernels, launches, path):
    out = [HEADER.rstrip('\n')]
    if len(launches) == 1 and launches[0][0] == L.NAME + '_kernel':
        (name, g, b, lds) = launches[0]
        out.append(f'; @launch grid=({g[0]},{g[1]},{g[2]}) block=({b[0]},{b[1]},{b[2]}) lds={lds}')
    else:
      for (name, g, b, lds) in launches:
        out.append(f'; @launch kernel={name} grid=({g[0]},{g[1]},{g[2]}) block=({b[0]},{b[1]},{b[2]}) lds={lds}')
    out.append('.amdgcn_target "amdgcn-amd-amdhsa--gfx950"')
    out.append('.text')
    for name, fn, opt in kernels:
        a = Asm()
        a.uid = hash(name) % 1000 * 100000
        fn(a)
        out.append(f'.globl {name}\n.p2align 8\n.type {name},@function')
        out.append(a.finish())
    out.append('.section .rodata,"a"')
    for name, fn, opt in kernels:
        out.append('.p2align 6')
        out.append(kernel_desc(name, **opt))
    open(path, 'w').write('\n'.join(out))
```

```python
from asmlib import Asm
import layout as L
import struct

KVB = 0
AFR = 32768
QKX = 45056
WL  = 65536
GSLEEP = 3
LDS_BYTES = 163840
SPIN_MAX = 1 << 22
OSLEEP = 1
HSLEEP = 24
TRACE = L.TRACE
COARSE = True

S_WS = 4; S_T0 = 8; S_DBG = 12; S_T1 = 20; S_T2 = 24
sH = 16; sW = 17; sS = 18; sSpin = 19
sRdy = 39; sKVr = 32; sP1c = 33; sP1b = 34; sKVw = 35; sPubF = 36; sPubX = 37; sOwnO = 38
sMaskH = 40; sMaskLo = 42; sC = 44
sP1w = 45; sP1r = 46; sMr = 47; sMw = 48; sMz = 49; sTmp = 50; sTmp2 = 51; sTmp3 = 52; sOwn = 53; sKV = 54; sVMo = 55; sKMo = 56
sM2 = 57; sKsrc = 58; sVsrc = 59; sFast = 60; sThr = 61
sT = 64
W = f's[{S_WS}:{S_WS+3}]'
MH = f's[{sMaskH}:{sMaskH+1}]'; ML = f's[{sMaskLo}:{sMaskLo+1}]'
SM = 'v_smfmac_f32_16x16x64_bf16'
MF32 = 'v_mfma_f32_16x16x32_bf16'
MF16 = 'v_mfma_f32_16x16x16_bf16'

def f32bits(x): return struct.unpack('<I', struct.pack('<f', x))[0]
C_SCALE = (128 ** -0.5) * 1.4426950408889634

def srd(a, base, ka_off, nbytes):
    a(f's_load_dwordx2 s[{base}:{base+1}], s[0:1], {ka_off}')
    a(f's_mov_b32 s{base+2}, {nbytes}')
    a(f's_mov_b32 s{base+3}, 0x00020000')

def emit(a, ops):
    for x in ops:
        if isinstance(x, (list, tuple)): emit(a, x)
        else: a(x)

def load_chunks(a, chunks, vaddr, nslots=10):
    N = len(chunks); DEPTH = nslots - 1
    def issue(c):
        ch = chunks[c]; slot = (c % nslots) * 16384
        a(f's_mul_i32 s{sTmp}, s{sW}, {ch["istep"]*4}')
        a(f's_add_u32 s{sTmp}, s{sTmp}, s{ch["sbase"]}')
        a(f's_lshl_b32 s{sTmp2}, s{sW}, 12')
        for j in range(4):
            a(f's_add_u32 s{sTmp3}, s{sTmp}, {ch["soff"] + j*ch["istep"]}')
            a(f's_add_u32 m0, s{sTmp2}, {slot + j*1024}')
            a(f'buffer_load_dwordx4 v{ch["vofs"]}, s[{ch["srd"]}:{ch["srd"]+3}], s{sTmp3} offen lds')
    for c in range(min(DEPTH, N)): issue(c)
    for c in range(N):
        ch = chunks[c]; slot = (c % nslots) * 16384
        inflight = min(N, c + DEPTH) - (c + 1)
        a(f's_waitcnt vmcnt({4*inflight})')
        a('s_barrier')
        if c + DEPTH < N: issue(c + DEPTH)
        a(f'v_add_u32 v{vaddr}, {slot}, v{ch["vtr"]}')
        for o in range(2):
            dest = ch['dests'][o]
            kind, base = dest[0], int(dest[1:])
            for rho in range(4):
                imm = ch['rows'][rho] * 256 + ch['tcol'][o]
                a(f'ds_read_b64_tr_b16 {kind}[{base+2*rho}:{base+2*rho+1}], v{vaddr} offset:{imm}')
        a('s_waitcnt lgkmcnt(0)')

def spin_check(a, lbl_fail):
    a(f's_add_u32 s{sSpin}, s{sSpin}, 1')
    a(f's_cmp_gt_u32 s{sSpin}, {SPIN_MAX}')
    a(f's_cbranch_scc1 {lbl_fail}')

def maxchain(a, dst, regs, op='u32'):
    regs = list(regs)
    a(f'v_max3_{op} v{dst}, v{regs[0]}, v{regs[1]}, v{regs[2]}')
    regs = regs[3:]
    while len(regs) >= 2:
        a(f'v_max3_{op} v{dst}, v{dst}, v{regs[0]}, v{regs[1]}'); regs = regs[2:]
    if regs:
        a(f'v_max_{op} v{dst}, v{dst}, v{regs[0]}')

def gather_pre(a, sOffReg):
    a(f's_sub_u32 s{sTmp}, s{sW}, 2')
    a(f's_mul_i32 s{sTmp}, s{sTmp}, 5120')
    a(f's_add_u32 s{sTmp}, s{sTmp}, s{sOffReg}')
    a(f's_add_u32 s{sTmp2}, s{sTmp}, 4096')

def gather(a, fail):
    lp = a.newlabel('g5')
    a.label(lp)
    for i in range(4):
        a(f'buffer_load_dwordx4 v[{72+4*i}:{75+4*i}], v2, {W}, s{sTmp} offen offset:{i*1024} sc1')
    a(f'buffer_load_dwordx4 v[88:91], v2, {W}, s{sTmp2} offen sc1')
    spin_check(a, fail)
    for i in range(5):
        a(f's_waitcnt vmcnt({4-i})')
        a(f'ds_write_b128 v3, v[{72+4*i}:{75+4*i}] offset:{i*1024}')
        if i == 0:
            a(f'v_max3_u32 v92, v72, v73, v74'); a(f'v_max_u32 v92, v92, v75')
        else:
            a(f'v_max3_u32 v92, v92, v{72+4*i}, v{73+4*i}'); a(f'v_max3_u32 v92, v92, v{74+4*i}, v{75+4*i}')
    a('v_cmp_eq_u32 vcc, -1, v92')
    a(f's_cbranch_vccnz {lp}')

def mem0_frags(a):
    srd(a, S_T0, L.KA['mem0'], 10240)
    a('v_bfe_u32 v36, v0, 2, 2'); a('v_lshlrev_b32 v36, 1, v36'); a('v_and_b32 v37, 1, v0'); a('v_add_u32 v36, v36, v37')
    a('v_mul_u32_u24 v36, 1280, v36')
    a('v_lshrrev_b32 v37, 4, v0'); a('v_lshlrev_b32 v37, 5, v37'); a('v_add_u32 v36, v36, v37')
    a('v_bfe_u32 v37, v0, 1, 1'); a('v_lshlrev_b32 v37, 2, v37'); a('v_add_u32 v36, v36, v37')
    a(f's_lshl_b32 s{sTmp}, s{sW}, 7')
    a(f's_lshl_b32 s{sTmp3}, s{sW}, 10')
    a(f'v_add_u32 v38, s{sTmp3}, v4')
    a('s_waitcnt lgkmcnt(0)')
    for t in range(3):
        a(f's_add_u32 s{sTmp2}, s{sTmp}, {t*512}')
        for j in range(4):
            a(f'buffer_load_dword v{40+4*t+j}, v36, s[{S_T0}:{S_T0+3}], s{sTmp2} offen offset:{8*j}')
    a('s_waitcnt vmcnt(0)')
    for t in range(3):
        a(f'ds_write_b128 v38, v[{40+4*t}:{43+4*t}] offset:{t*4096}')
    a('s_waitcnt lgkmcnt(0)')

class Stamps:
    sel = 0; trace = False; tstep = 20
    def __init__(self, on): self.on = on
    def val(self, a, i, sreg):
        if not (self.on and self.trace): return
        lb = a.newlabel('tv')
        a(f's_cmp_lg_u32 s{sS}, {self.tstep + 1}'); a(f's_cbranch_scc1 {lb}')
        a(f's_mov_b32 s{sT+i}, s{sreg}')
        a.label(lb)
    def __call__(self, a, i):
        if not self.on: return
        if self.trace:
            a(f's_memrealtime s[{sT+14}:{sT+15}]')
            a('s_waitcnt lgkmcnt(0)')
            lb = a.newlabel('tr')
            a(f's_cmp_lg_u32 s{sS}, {self.tstep + (1 if (i in (8, 10, 11) and not getattr(self, "helper", False)) else 0)}'); a(f's_cbranch_scc1 {lb}')
            a(f's_mov_b32 s{sT+i}, s{sT+14}')
            a.label(lb)
            return
        a(f's_memtime s[{sT+14}:{sT+15}]')
        a('s_waitcnt lgkmcnt(0)')
        a(f's_sub_u32 s{sT+12}, s{sT+14}, s{sT+13}')
        a(f's_add_u32 s{sT+i}, s{sT+i}, s{sT+12}')
        a(f's_mov_b32 s{sT+13}, s{sT+14}')
    def dump(self, a, off):
        if not self.on: return
        if self.trace:
            a(f's_lshl_b32 s{sTmp}, s{sH}, 2'); a(f's_or_b32 s{sTmp}, s{sTmp}, s{sW}'); a(f's_lshl_b32 s{sTmp}, s{sTmp}, 6')
            a(f's_add_u32 s{sTmp}, s{sTmp}, {TRACE + off}')
            a('v_mov_b32 v36, 0')
            for i in range(12):
                a(f'v_mov_b32 v37, s{sT+i}')
                a(f'buffer_store_dword v37, v36, {W}, s{sTmp} offen offset:{4*i}')
            a('s_waitcnt vmcnt(0)')
        elif off == 0:
            sk = a.newlabel('tsk')
            a(f's_lshl_b32 s{sTmp}, s{sH}, 2'); a(f's_or_b32 s{sTmp}, s{sTmp}, s{sW}')
            a(f's_cmp_lg_u32 s{sTmp}, {self.sel}'); a(f's_cbranch_scc1 {sk}')
            a('v_mov_b32 v36, 0')
            for i in range(12):
                a(f'v_mov_b32 v37, s{sT+i}')
                a(f'buffer_store_dword v37, v36, s[{S_DBG}:{S_DBG+3}], 0 offen offset:{64+4*i}')
            a('s_waitcnt vmcnt(0)')
            a.label(sk)

def trbase(a, dst, wo):
    a('v_lshrrev_b32 v36, 4, v0'); a('v_bfe_u32 v37, v0, 2, 2')
    if not wo:
        a('v_lshlrev_b32 v38, 3, v36')
    else:
        a('v_and_b32 v38, 1, v36'); a('v_lshlrev_b32 v38, 5, v38')
        a('v_lshrrev_b32 v39, 1, v36'); a('v_lshlrev_b32 v39, 2, v39'); a('v_add_u32 v38, v38, v39')
    a('v_add_u32 v38, v38, v37'); a('v_lshlrev_b32 v38, 8, v38')
    a('v_and_b32 v39, 3, v0'); a('v_lshlrev_b32 v39, 3, v39')
    a(f'v_add_u32 v{dst}, v38, v39')
    a(f's_lshl_b32 s{sTmp}, s{sW}, {5 if wo else 6}')
    a(f'v_add_u32 v{dst}, s{sTmp}, v{dst}')

def rendezvous(a, is_main, fail):
    a('s_waitcnt vmcnt(0)')
    a('s_barrier')
    skip = a.newlabel('rz')
    a(f's_cmp_lg_u32 s{sW}, 0'); a(f's_cbranch_scc1 {skip}')
    a('s_mov_b64 s[62:63], exec'); a('s_mov_b64 exec, 1')
    a('v_mov_b32 v36, 0')
    if is_main:
        a(f's_getreg_b32 s{sTmp}, hwreg(HW_REG_XCC_ID)')
        a(f's_and_b32 s{sTmp}, s{sTmp}, 15'); a(f's_lshl_b32 s{sTmp}, 1, s{sTmp}')
        a(f'v_mov_b32 v37, s{sTmp}')
        a(f'buffer_atomic_or v37, v36, s[{S_DBG}:{S_DBG+3}], 0 offen offset:4')
        a('s_waitcnt vmcnt(0)')
    a('v_mov_b32 v37, 1')
    a(f'buffer_atomic_add v37, v36, s[{S_DBG}:{S_DBG+3}], 0 offen')
    a('s_mov_b64 exec, s[62:63]')
    a.label(skip)
    lp = a.newlabel('rzp')
    a('v_mov_b32 v36, 0')
    a.label(lp)
    a('s_sleep 2')
    a(f'buffer_load_dwordx2 v[38:39], v36, s[{S_DBG}:{S_DBG+3}], 0 offen sc1')
    spin_check(a, fail)
    a('s_waitcnt vmcnt(0)')
    a(f'v_readfirstlane_b32 s{sTmp}, v38')
    a(f's_cmp_lt_u32 s{sTmp}, 64'); a(f's_cbranch_scc1 {lp}')
    a(f'buffer_load_dwordx2 v[38:39], v36, s[{S_DBG}:{S_DBG+3}], 0 offen sc1')
    a('s_waitcnt vmcnt(0)')
    a(f'v_readfirstlane_b32 s{sTmp}, v39')
    a(f's_bcnt1_i32_b32 s{sTmp}, s{sTmp}')
    a(f's_cmp_eq_u32 s{sTmp}, 1')
    a(f's_cselect_b32 s{sFast}, 1, 0')

FUSED = False
def emit_chain_body(a, fail, end, st=None):
    st = st or Stamps(False)
    a(f's_lshr_b32 s{sH}, s2, 3')
    srd(a, S_WS, L.KA['ws'], L.WS_BYTES)
    srd(a, S_DBG, L.KA['dbg'], 256)
    if COARSE: a('s_memrealtime s[96:97]')
    a(f'v_lshrrev_b32 v1, 6, v0'); a(f'v_readfirstlane_b32 s{sW}, v1'); a(f'v_and_b32 v0, 63, v0')
    a(f's_mov_b32 s{sMaskH}, 0xCCCCCCCC'); a(f's_mov_b32 s{sMaskH+1}, 0xCCCCCCCC')
    a(f's_mov_b32 s{sMaskLo}, -1'); a(f's_mov_b32 s{sMaskLo+1}, 0')
    a(f'v_mov_b32 v1, 0x4444'); a(f'v_mov_b32 v2, 0xEEEE')
    a(f'v_cndmask_b32 v1, v1, v2, {MH}')
    a(f'v_lshlrev_b32 v2, 4, v0')
    a(f's_mov_b32 s{sC}, {hex(f32bits(C_SCALE))}')
    a(f's_mov_b32 s{sThr}, {hex(f32bits(60.0))}')
    a(f's_mov_b32 s{sSpin}, 0')
    for i in range(14): a(f's_mov_b32 s{sT+i}, 0')
    a(f'v_add_u32 v4, {AFR}, v2')
    a('s_waitcnt lgkmcnt(0)')
    a('s_cmp_eq_u32 s3, 1'); a(f's_cbranch_scc1 chain_helper')
    emit_main(a, st, fail, end)
    emit_helper(a, st, fail, end)

def emit_chain(a, timing=False, kname='chain_kernel'):
    fail = 'chain_fail'; end = 'chain_end'
    st = Stamps(timing)
    a.label(kname)
    a(f's_cmp_ge_u32 s2, 256'); a(f's_cbranch_scc1 {end}')
    a('s_and_b32 s3, s2, 7')
    a('s_cmp_gt_u32 s3, 1'); a(f's_cbranch_scc1 {end}')
    emit_chain_body(a, fail, end, st)
    a.label(fail)
    a('v_mov_b32 v1, 0xdead'); a('v_mov_b32 v2, 252')
    a(f'buffer_store_dword v1, v2, s[{S_DBG}:{S_DBG+3}], 0 offen')
    a('s_waitcnt vmcnt(0)')
    a.label(end)
    a('s_endpgm')

def qk_home(m, t, kb):
    idx = m * 20 + kb * 2 + t
    if idx < 32: return ('a', idx * 8)
    return ('v', 128 + (idx - 32) * 8)
def rr(home, n=8): return f'{home[0]}[{home[1]}:{home[1]+n-1}]'
def wo_pair(cg, eb):
    if eb == 0 and cg < 4: return None
    if cg < 4: return cg
    return 4 + eb

def kv_dma_groups():
    g = []
    g.append([f's_mov_b32 m0, s{sKVw}', f'buffer_load_dwordx4 v10, {W}, s{sKsrc} offen lds'])
    g.append([f's_add_u32 s{sTmp2}, s{sKsrc}, 64', f's_add_u32 m0, s{sKVw}, 1024', f'buffer_load_dwordx4 v10, {W}, s{sTmp2} offen lds'])
    g.append([f's_add_u32 m0, s{sKVw}, 8192', f'buffer_load_dwordx4 v2, {W}, s{sVsrc} offen lds'])
    g.append([f's_add_u32 s{sTmp2}, s{sVsrc}, 1024', f's_add_u32 m0, s{sKVw}, {8192+1024}', f'buffer_load_dwordx4 v2, {W}, s{sTmp2} offen lds'])
    return g

def kv_advance(a):
    a(f's_add_u32 s{sKsrc}, s{sKsrc}, {32*8192}')
    a(f's_add_u32 s{sVsrc}, s{sVsrc}, {32*8192}')
    a(f's_xor_b32 s{sKVw}, s{sKVw}, 16384')

def interleave(a, mf, fill, start=0, per=1):
    fi = 0
    for i, m in enumerate(mf):
        emit(a, m if isinstance(m, list) else [m])
        if i >= start:
            for _ in range(per):
                if fi < len(fill):
                    g = fill[fi]; fi += 1
                    emit(a, g if isinstance(g, list) else [g])
    while fi < len(fill):
        g = fill[fi]; fi += 1
        emit(a, g if isinstance(g, list) else [g])

def half_add_ops(ra, rb):
    return [f'v_permlane32_swap_b32 v{ra+r}, v{rb+r}' for r in range(4)] + [f'v_add_f32 v{ra+r}, v{ra+r}, v{rb+r}' for r in range(4)]

def emit_main(a, st, fail, end):
    a.comment('======== MAIN ========')
    srd(a, S_T0, L.KA['Wq'], 640*4096*2)
    srd(a, S_T1, L.KA['Wk'], 640*4096*2)
    srd(a, S_T2, L.KA['Wo'], 640*4096*2)
    a('v_lshrrev_b32 v36, 4, v0'); a('v_and_b32 v37, 15, v0'); a('v_lshlrev_b32 v37, 4, v37')
    a('v_lshlrev_b32 v10, 13, v36'); a('v_add_u32 v10, v10, v37')
    a('v_mul_u32_u24 v11, 1280, v36'); a('v_add_u32 v11, v11, v37')
    trbase(a, 12, False)
    trbase(a, 13, True)
    a(f's_lshl_b32 s30, s{sH}, 8')
    a(f's_mul_i32 s31, s{sH}, {128*1280}')
    a('s_waitcnt lgkmcnt(0)')
    if FUSED:
        a('v_mov_b64 v[20:21], -1'); a('v_mov_b64 v[22:23], -1')
        a(f's_lshl_b32 s{sTmp}, s{sH}, 12'); a(f's_lshl_b32 s{sTmp2}, s{sW}, 10'); a(f's_add_u32 s{sTmp}, s{sTmp}, s{sTmp2}'); a(f's_add_u32 s{sTmp}, s{sTmp}, {L.KM}')
        for i in range(64):
            a(f'buffer_store_dwordx4 v[20:23], v2, {W}, s{sTmp} offen sc1')
            if i < 63: a(f's_add_u32 s{sTmp}, s{sTmp}, {32*4096}')
        a('s_waitcnt vmcnt(0)')
    chunks = []
    for m, s_ in ((0, S_T0), (1, S_T1)):
        for kb in range(10):
            d = [qk_home(m, t, kb) for t in range(2)]
            chunks.append(dict(srd=s_, vofs=10, sbase=30, soff=64*kb*8192, istep=4*8192, vtr=12, rows=[0, 4, 32, 36], tcol=[0, 32],
                               dests=[f'{x[0]}{x[1]}' for x in d]))
    for eb in range(2):
        for cg in range(5):
            p = wo_pair(cg, eb)
            d = [f'v{192 + (cg*2+t)*8}' if p is None else f'v{20 + (p*2+t)*8}' for t in range(2)]
            chunks.append(dict(srd=S_T2, vofs=11, sbase=31, soff=64*eb*1280 + cg*256, istep=4*1280, vtr=13, rows=[0, 16, 8, 24], tcol=[0, 128], dests=d))
    load_chunks(a, chunks, 14)
    a('s_barrier')
    a(f's_mul_i32 s{sTmp}, s{sW}, {12*2048}'); a(f's_add_u32 s{sTmp}, s{sTmp}, {WL}')
    a(f'v_add_u32 v15, s{sTmp}, v2')
    for i in range(12):
        a(f'ds_write_b128 v15, v[{20+8*i}:{23+8*i}] offset:{i*2048}')
        a(f'ds_write_b128 v15, v[{24+8*i}:{27+8*i}] offset:{i*2048+1024}')
    a('s_waitcnt lgkmcnt(0)')
    a(f's_sub_u32 s{sTmp}, s{sW}, 2'); a(f's_mul_i32 s{sTmp}, s{sTmp}, 5120'); a(f'v_add_u32 v3, s{sTmp}, v4')
    a('v_and_b32 v36, 15, v0'); a('v_lshlrev_b32 v36, 5, v36'); a('v_lshrrev_b32 v37, 4, v0'); a('v_lshlrev_b32 v37, 3, v37'); a('v_add_u32 v36, v36, v37')
    a(f's_lshl_b32 s{sTmp}, s{sW}, 10'); a(f's_add_u32 s{sTmp}, s{sTmp}, {QKX}'); a(f'v_add_u32 v5, s{sTmp}, v36')
    a('v_lshrrev_b32 v36, 4, v0'); a('v_lshlrev_b32 v36, 3, v36'); a('v_bfe_u32 v37, v0, 2, 2'); a('v_add_u32 v36, v36, v37')
    a('v_lshlrev_b32 v36, 5, v36'); a('v_and_b32 v37, 3, v0'); a('v_lshlrev_b32 v37, 3, v37'); a('v_add_u32 v36, v36, v37')
    a(f'v_add_u32 v6, {QKX}, v36')
    a('v_lshrrev_b32 v36, 4, v0'); a('v_lshlrev_b32 v36, 15, v36'); a('v_and_b32 v37, 15, v0'); a('v_lshlrev_b32 v37, 4, v37'); a('v_add_u32 v7, v36, v37')
    a('v_bfe_u32 v36, v0, 4, 1'); a('v_lshlrev_b32 v36, 15, v36'); a('v_add_u32 v36, v36, v37'); a('v_lshrrev_b32 v37, 5, v0'); a('v_lshlrev_b32 v37, 3, v37'); a('v_add_u32 v13, v36, v37')
    a('v_and_b32 v36, 15, v0'); a('v_lshlrev_b32 v36, 4, v36'); a('v_lshrrev_b32 v37, 4, v0'); a('v_lshlrev_b32 v37, 2, v37')
    a('v_add_u32 v8, v36, v37')
    a('v_lshlrev_b32 v9, 3, v0')
    a('v_bfe_u32 v36, v0, 2, 1'); a('v_lshlrev_b32 v36, 4, v36'); a('v_bfe_u32 v37, v0, 3, 1'); a('v_lshlrev_b32 v37, 2, v37')
    a('v_add_u32 v36, v36, v37'); a('v_and_b32 v37, 3, v0'); a('v_add_u32 v36, v36, v37'); a('v_lshlrev_b32 v36, 13, v36')
    a('v_lshrrev_b32 v37, 4, v0'); a('v_lshlrev_b32 v37, 4, v37'); a('v_add_u32 v10, v36, v37')
    a('v_mov_b32 v12, -1'); a('v_mov_b32 v11, -2')
    a('v_bfe_u32 v36, v0, 2, 2'); a('v_lshlrev_b32 v36, 1, v36'); a('v_and_b32 v37, 1, v0'); a('v_add_u32 v36, v36, v37')
    for q in range(4):
        a(f'v_mov_b32 v{16+q}, 0'); a(f'v_mov_b32 v37, 0x3F80')
        a(f'v_cmp_eq_u32 vcc, {2*q}, v36'); a(f'v_cndmask_b32 v{16+q}, v{16+q}, v37, vcc')
        a(f'v_mov_b32 v37, 0x3F800000')
        a(f'v_cmp_eq_u32 vcc, {2*q+1}, v36'); a(f'v_cndmask_b32 v{16+q}, v{16+q}, v37, vcc')
    a(f'v_add_u32 v14, {KVB}, v2')
    a('v_mov_b32 v121, 0'); a('v_mov_b32 v122, 0')
    a(f's_mov_b32 s{sOwn}, -1')
    a(f's_cmp_eq_u32 s{sW}, 0'); a(f's_cselect_b32 s{sOwn}, s{sH}, s{sOwn}')
    a(f's_add_u32 s{sTmp}, s{sH}, 32'); a(f's_cmp_lt_u32 s{sTmp}, 40'); a(f's_cselect_b32 s{sTmp}, s{sTmp}, -1')
    a(f's_cmp_eq_u32 s{sW}, 1'); a(f's_cselect_b32 s{sOwn}, s{sTmp}, s{sOwn}')
    a(f's_cmp_eq_u32 s{sOwn}, -1'); a(f's_cselect_b32 s{sOwnO}, 96, s{sOwn}'); a(f's_lshl_b32 s{sOwnO}, s{sOwnO}, 8')
    a(f's_lshl_b32 s{sP1w}, s{sW}, 13'); a(f's_lshl_b32 s{sTmp}, s{sH}, 8')
    a(f's_add_u32 s{sP1w}, s{sP1w}, s{sTmp}'); a(f's_add_u32 s{sP1w}, s{sP1w}, {L.P1}')
    a(f's_add_u32 s{sP1r}, s{sP1w}, {L.P1SZ}')
    a(f's_add_u32 s{sP1b}, s{sTmp}, {L.P1}'); a(f's_add_u32 s{sP1c}, s{sP1b}, {L.P1SZ}')
    a('v_lshrrev_b32 v36, 4, v0'); a('v_lshlrev_b32 v36, 13, v36')
    a('v_and_b32 v37, 15, v0'); a('v_lshlrev_b32 v37, 4, v37'); a('v_add_u32 v36, v36, v37')
    a('v_mov_b64 v[40:41], -1'); a('v_mov_b64 v[42:43], -1')
    nr = a.newlabel('nr')
    a(f's_cmp_lt_u32 s{sW}, 2'); a(f's_cbranch_scc1 {nr}')
    a(f's_sub_u32 s{sTmp}, s{sW}, 2'); a(f's_mul_i32 s{sTmp}, s{sTmp}, {5*4*8192}')
    a(f's_add_u32 s{sP1b}, s{sP1b}, s{sTmp}'); a(f's_add_u32 s{sP1c}, s{sP1c}, s{sTmp}')
    for sl in (sP1b, sP1c):
        for i in range(5):
            a(f's_add_u32 s{sTmp}, s{sl}, {i*4*8192}')
            a(f'buffer_store_dwordx4 v[40:43], v36, {W}, s{sTmp} offen sc1')
    a.label(nr)
    for base in (L.MEMF, L.MEMF + L.MEMSZ, L.MEMX, L.MEMX + L.MEMSZ):
        a(f's_add_u32 s{sTmp2}, s{sOwnO}, {base}')
        a(f'buffer_store_dword v12, v8, {W}, s{sTmp2} offen sc1')
    a('s_barrier')
    mem0_frags(a)
    a(f's_lshl_b32 s{sKsrc}, s{sH}, 8'); a(f's_add_u32 s{sKsrc}, s{sKsrc}, {L.K}')
    a(f's_lshl_b32 s{sVsrc}, s{sH}, 13'); a(f's_add_u32 s{sVsrc}, s{sVsrc}, {L.VT}')
    a(f's_lshl_b32 s{sVMo}, s{sH}, 11'); a(f's_add_u32 s{sVMo}, s{sVMo}, {L.VM}')
    a(f's_lshl_b32 s{sKMo}, s{sH}, 12'); a(f's_add_u32 s{sKMo}, s{sKMo}, {L.KM}')
    a(f's_lshl_b32 s{sTmp}, s{sW}, 10'); a(f's_add_u32 s{sKMo}, s{sKMo}, s{sTmp}')
    a(f's_lshr_b32 s{sTmp}, s{sW}, 1'); a(f's_lshl_b32 s{sTmp}, s{sTmp}, 16')
    a(f's_and_b32 s{sTmp2}, s{sW}, 1'); a(f's_lshl_b32 s{sTmp2}, s{sTmp2}, 7')
    a(f's_add_u32 s{sTmp}, s{sTmp}, s{sTmp2}'); a(f's_add_u32 s{sKsrc}, s{sKsrc}, s{sTmp}')
    a(f's_lshl_b32 s{sTmp}, s{sW}, 11'); a(f's_add_u32 s{sVsrc}, s{sVsrc}, s{sTmp}')
    if FUSED:
        lp = a.newlabel('kvw'); lp2 = a.newlabel('kvw2')
        a('v_mov_b32 v36, 0')
        a.label(lp)
        a('s_sleep 8')
        a(f'buffer_load_dword v37, v36, s[{S_DBG}:{S_DBG+3}], 0 offen offset:12 sc1')
        spin_check(a, fail)
        a('s_waitcnt vmcnt(0)')
        a(f'v_readfirstlane_b32 s{sTmp}, v37'); a(f's_cmp_eq_u32 s{sTmp}, 0'); a(f's_cbranch_scc1 {lp}')
        a('v_mov_b32 v36, 0')
        a(f's_mov_b32 s{sTmp2}, {L.ctr(L.C_KV)}')
        a.label(lp2)
        a('s_sleep 8')
        a(f'buffer_load_dword v37, v36, {W}, s{sTmp2} offen sc1')
        spin_check(a, fail)
        a('s_waitcnt vmcnt(0)')
        a('v_cmp_gt_u32 vcc, 64, v37'); a(f's_cbranch_vccnz {lp2}')
        a(f's_mov_b32 s{sRdy}, 64')
    a(f's_mov_b32 s{sKV}, {KVB}'); a(f's_mov_b32 s{sKVr}, {KVB}'); a(f's_lshl_b32 s{sKVw}, s{sW}, 11')
    emit(a, kv_dma_groups())
    kv_advance(a)
    rendezvous(a, True, fail)
    a(f's_mov_b32 s{sS}, 0')
    a(f's_mov_b32 s{sMw}, {L.MEMSZ}'); a(f's_mov_b32 s{sMz}, 0')
    for r in range(20, 36, 2): a(f'v_mov_b64 v[{r}:{r+1}], 0')
    a('s_barrier')
    if st.on and not st.trace:
        a(f's_memtime s[{sT+14}:{sT+15}]'); a('s_waitcnt lgkmcnt(0)'); a(f's_mov_b32 s{sT+13}, s{sT+14}')
    if COARSE:
        a('s_memrealtime s[98:99]'); a('s_memtime s[92:93]'); a('s_waitcnt lgkmcnt(0)')
    a(f's_cmp_eq_u32 s{sFast}, 0'); a('s_cbranch_scc1 main_loop_safe')
    main_loop(a, True, st, fail)
    main_loop(a, False, st, fail)
    a.label('main_last')
    km_read(a); a('s_waitcnt lgkmcnt(0)'); km_write(a)
    st.dump(a, 0)
    if COARSE:
        sk = a.newlabel('csk')
        a('s_memrealtime s[100:101]'); a('s_memtime s[94:95]'); a('s_waitcnt lgkmcnt(0)')
        a(f's_or_b32 s{sTmp}, s{sH}, s{sW}'); a(f's_cmp_lg_u32 s{sTmp}, 0'); a(f's_cbranch_scc1 {sk}')
        a('v_mov_b32 v36, 0')
        a('s_sub_u32 s98, s98, s96'); a('s_sub_u32 s100, s100, s96'); a('s_sub_u32 s94, s94, s92')
        for i, r in enumerate((98, 100, 94)):
            a(f'v_mov_b32 v37, s{r}')
            a(f'buffer_store_dword v37, v36, s[{S_DBG}:{S_DBG+3}], 0 offen offset:{128+4*i}')
        a('s_waitcnt vmcnt(0)')
        a.label(sk)
    a(f's_branch {end}')

def km_read(a):
    a(f's_lshl_b32 s{sTmp3}, s{sW}, 10')
    a(f'v_add_u32 v127, s{sTmp3}, v6')
    a('ds_read_b64_tr_b16 v[32:33], v127 offset:4096')
    a(f'ds_read_b64_tr_b16 v[34:35], v127 offset:{4096+128}')
def km_write(a):
    if FUSED:
        for r in range(32, 36): a(f'v_min_u32 v{r}, v{r}, v11')
    a(f'buffer_store_dwordx4 v[32:35], v2, {W}, s{sKMo} offen sc1')

def advance(a):
    if FUSED:
        a(f'v_readfirstlane_b32 s{sRdy}, v12'); a('v_mov_b32 v12, -1')
    kv_advance(a)
    a('v_xor_b32 v14, 16384, v14')
    a(f's_add_u32 s{sS}, s{sS}, 1')
    for x, y in ((sP1w, sP1r), (sP1b, sP1c), (sMw, sMz)):
        a(f's_mov_b32 s{sTmp3}, s{x}'); a(f's_mov_b32 s{x}, s{y}'); a(f's_mov_b32 s{y}, s{sTmp3}')

def zero(lo, hi): return [f'v_mov_b64 v[{r}:{r+1}], 0' for r in range(lo, hi, 2)]

def main_loop(a, fast, st, fail):
    sc = '' if fast else 'sc1'
    tag = 'fast' if fast else 'safe'
    a.label(f'main_loop_{tag}')
    F = lambda kb: f'v[{72+4*kb}:{75+4*kb}]'
    for kb in range(10):
        a(f'ds_read_b128 {F(kb)}, v4 offset:{kb*1024}')
    if FUSED:
        rok = a.newlabel('rok'); rl = a.newlabel('rl')
        a(f's_cmp_ge_u32 s{sRdy}, 64'); a(f's_cbranch_scc1 {rok}')
        a(f's_add_u32 s{sTmp}, s{sS}, 1'); a(f's_lshr_b32 s{sTmp}, s{sTmp}, 2'); a(f's_min_u32 s{sTmp}, s{sTmp}, 15'); a(f's_lshl_b32 s{sTmp}, s{sTmp}, 7'); a(f's_add_u32 s{sTmp}, s{sTmp}, {L.ctr(L.C_KV)}')
        a.label(rl)
        a(f'buffer_load_dword v36, v121, {W}, s{sTmp} offen sc1')
        spin_check(a, fail)
        a('s_waitcnt vmcnt(0)')
        a(f'v_readfirstlane_b32 s{sRdy}, v36')
        a(f's_cmp_lt_u32 s{sRdy}, 64'); a(f's_cbranch_scc1 {rl}')
        a.label(rok)
    def q1(lower):
        mf = []
        for kb in range(6):
            for t in range(2):
                ins = f'{SM} v[{20+4*t}:{23+4*t}], {F(kb)}, {rr(qk_home(0, t, kb))}, v1'
                mf.append([f's_waitcnt lgkmcnt({9-kb})', ins] if t == 0 else ins)
        dm = kv_dma_groups()
        if lower:
            st_ = lambda i: [f's_add_u32 s{sTmp}, s{sP1c}, {i*4*8192}', f'buffer_store_dwordx4 v[124:127], v36, {W}, s{sTmp} offen {sc}']
            fill = [['v_lshrrev_b32 v36, 4, v0', 'v_lshlrev_b32 v36, 13, v36'], ['v_and_b32 v37, 15, v0', 'v_lshlrev_b32 v37, 4, v37'],
                    ['v_add_u32 v36, v36, v37', 'v_mov_b64 v[124:125], -1'], ['v_mov_b64 v[126:127], -1'],
                    st_(0), dm[0], st_(1), dm[1], st_(2), dm[2], st_(3), dm[3] + st_(4)]
        else:
            fill = [[f's_add_u32 s{sTmp}, s{sOwnO}, s{sMw}', f's_add_u32 s{sTmp3}, s{sTmp}, {L.MEMF}'],
                    [f'buffer_store_dword v12, v8, {W}, s{sTmp3} offen {sc}'], dm[0],
                    [f's_add_u32 s{sTmp3}, s{sTmp}, {L.MEMX}', f'buffer_store_dword v12, v8, {W}, s{sTmp3} offen sc1'], dm[1], [], dm[2], [], dm[3]]
        interleave(a, mf, fill)
        fill2 = [f'ds_read_b128 v[{40+4*i}:{43+4*i}], v14 offset:{i*1024}' for i in range(8)]
        mf2 = []
        for kb in range(6, 10):
            for t in range(2):
                ins = f'{SM} v[{20+4*t}:{23+4*t}], {F(kb)}, {rr(qk_home(0, t, kb))}, v1'
                mf2.append([f's_waitcnt lgkmcnt({9-kb+2*(kb-6)})', ins] if t == 0 else ins)
        interleave(a, mf2, fill2)
    qa = a.newlabel('q1r'); qb = a.newlabel('q1e')
    a(f's_cmp_ge_u32 s{sW}, 2'); a(f's_cbranch_scc1 {qa}')
    q1(False); a(f's_branch {qb}')
    a.label(qa); q1(True); a.label(qb)
    st(a, 0)
    mf = [f'{SM} v[{28+4*t}:{31+4*t}], {F(kb)}, {rr(qk_home(1, t, kb))}, v1' for kb in range(10) for t in range(2)]
    fill = [[], [], [],
            ['v_add_f32 v20, v20, v22', 'v_add_f32 v21, v21, v23'], ['v_add_f32 v24, v24, v26', 'v_add_f32 v25, v25, v27'],
            ['v_cvt_pk_bf16_f32 v36, v20, v21', 'v_cvt_pk_bf16_f32 v37, v24, v25'],
            ['ds_write2_b32 v5, v36, v36 offset0:0 offset1:1', 'ds_write2_b32 v5, v37, v37 offset0:128 offset1:129'], [], [], [], [],
            ['s_waitcnt lgkmcnt(0)', 's_barrier']]
    fill += [[f'ds_read_b64_tr_b16 v[{72+4*kp}:{73+4*kp}], v6 offset:{kp*1024}', f'ds_read_b64_tr_b16 v[{74+4*kp}:{75+4*kp}], v6 offset:{kp*1024+128}'] for kp in range(4)]
    interleave(a, mf, fill)
    st(a, 1)
    mf = []
    for kp in range(4):
        c1 = '0' if kp == 0 else 'v[20:23]'; c2 = '0' if kp == 0 else 'v[24:27]'
        mf.append([f's_waitcnt lgkmcnt({6-2*kp})', f'{MF32} v[20:23], v[{40+4*kp}:{43+4*kp}], v[{72+4*kp}:{75+4*kp}], {c1}'])
        mf.append(f'{MF32} v[24:27], v[{56+4*kp}:{59+4*kp}], v[{72+4*kp}:{75+4*kp}], {c2}')
    a('v_add_u32 v39, 4096, v5')
    fill = [[], [], ['v_add_f32 v28, v28, v30', 'v_add_f32 v29, v29, v31'], ['v_add_f32 v32, v32, v34', 'v_add_f32 v33, v33, v35'],
            ['v_cvt_pk_bf16_f32 v36, v28, v29', 'v_cvt_pk_bf16_f32 v37, v32, v33'], [], [],
            ['ds_write2_b32 v39, v36, v36 offset0:0 offset1:1', 'ds_write2_b32 v39, v37, v37 offset0:128 offset1:129']]
    interleave(a, mf, fill)
    a('v_max3_f32 v124, v20, v21, v22'); a('v_max3_f32 v125, v23, v24, v25')
    a('s_waitcnt lgkmcnt(0)')
    a('s_barrier')
    a(f's_cmp_ge_u32 s{sS}, 63'); a('s_cbranch_scc1 main_last')
    for kp in range(4):
        for rho in range(2):
            a(f'ds_read_b64_tr_b16 v[{88+4*kp+2*rho}:{89+4*kp+2*rho}], v6 offset:{4096+kp*1024+rho*128}')
    a('v_max3_f32 v124, v124, v26, v27'); a('v_max_f32 v124, v124, v125')
    a('v_mov_b32 v125, v124')
    for et in range(0, 2): a(f'ds_read_b128 v[{40+4*et}:{43+4*et}], v14 offset:{8192+et*1024}')
    a('v_permlane32_swap_b32 v124, v125'); a('v_max_f32 v124, v124, v125')
    a('v_mov_b32 v125, v124')
    for et in range(2, 4): a(f'ds_read_b128 v[{40+4*et}:{43+4*et}], v14 offset:{8192+et*1024}')
    a('v_permlane16_swap_b32 v124, v125'); a('v_max_f32 v124, v124, v125')
    a(f'v_mul_f32 v124, s{sC}, v124')
    for et in range(4, 8): a(f'ds_read_b128 v[{40+4*et}:{43+4*et}], v14 offset:{8192+et*1024}')
    if FUSED:
        a(f's_add_u32 s{sTmp}, s{sS}, 2'); a(f's_lshr_b32 s{sTmp}, s{sTmp}, 2'); a(f's_min_u32 s{sTmp}, s{sTmp}, 15'); a(f's_lshl_b32 s{sTmp}, s{sTmp}, 7'); a(f's_add_u32 s{sTmp}, s{sTmp}, {L.ctr(L.C_KV)}')
        a(f'buffer_load_dword v12, v121, {W}, s{sTmp} offen sc1')
    for p in range(4):
        a(f'buffer_load_dwordx2 v[{104+2*p}:{105+2*p}], v9, {W}, s{sVMo} offen offset:{p*512} sc1')
    st(a, 2)
    for r in range(20, 28): a(f'v_fma_f32 v{r}, v{r}, s{sC}, -v124')
    mfs = []
    for kp in range(4):
        c0 = '0' if kp == 0 else 'v[28:31]'
        mfs.append([f's_waitcnt lgkmcnt({8 + 6 - 2*kp})', f'{MF32} v[28:31], v[{88+4*kp}:{91+4*kp}], v[{72+4*kp}:{75+4*kp}], {c0}'])
    fill = [[f'v_exp_f32 v{r}, v{r}', f'v_exp_f32 v{r+1}, v{r+1}'] for r in range(20, 28, 2)]
    interleave(a, mfs, fill)
    a('v_cvt_pk_bf16_f32 v36, v20, v21'); a('v_cvt_pk_bf16_f32 v37, v22, v23')
    a('v_cvt_pk_bf16_f32 v38, v24, v25'); a('v_cvt_pk_bf16_f32 v39, v26, v27')
    st(a, 3)
    for p in range(4):
        a(f'buffer_load_dwordx2 v[{112+2*p}:{113+2*p}], v9, {W}, s{sVMo} offen offset:{p*512} sc1')
    mf = [[f's_waitcnt lgkmcnt({7-et})', f'{MF32} v[{72+4*et}:{75+4*et}], v[{40+4*et}:{43+4*et}], v[36:39], 0'] for et in range(8)]
    fill = [
        [f'v_fma_f32 v28, v28, s{sC}, -v124', f'v_fma_f32 v29, v29, s{sC}, -v124'],
        ['v_max_f32 v126, v28, v29', 'v_add_f32 v125, v20, v21'],
        [f'v_cmp_lt_f32 vcc, s{sThr}, v126', 'v_add_f32 v127, v22, v23'],
        ['v_add_f32 v125, v125, v24', 'v_add_f32 v127, v127, v25'],
        ['v_add_f32 v125, v125, v26', 'v_add_f32 v127, v127, v27'],
        ['v_add_f32 v125, v125, v127'],
    ]
    interleave(a, mf, fill)
    ok = a.newlabel('thr')
    a(f's_cbranch_vccz {ok}')
    a('v_max_f32 v126, 0, v126')
    a('v_mov_b32 v127, v126'); a('v_permlane32_swap_b32 v126, v127'); a('v_max_f32 v126, v126, v127')
    a('v_mov_b32 v127, v126'); a('v_permlane16_swap_b32 v126, v127'); a('v_max_f32 v126, v126, v127')
    for r in range(28, 30): a(f'v_sub_f32 v{r}, v{r}, v126')
    a('v_sub_f32 v126, 0, v126'); a('v_exp_f32 v126, v126'); a('v_mul_f32 v125, v125, v126')
    for r in range(72, 104): a(f'v_mul_f32 v{r}, v{r}, v126')
    a.label(ok)
    a('v_exp_f32 v28, v28'); a('v_exp_f32 v29, v29')
    km_read(a)
    a('v_cvt_pk_bf16_f32 v120, v28, v29'); a('v_cvt_pk_bf16_f32 v123, v28, v29')
    a('v_add_f32 v126, v28, v29'); a('v_add_f32 v125, v125, v126')
    st(a, 4)
    vp = a.newlabel('vmp'); vok = a.newlabel('vmok')
    a('s_waitcnt vmcnt(4)')
    maxchain(a, 126, range(104, 112))
    a('v_cmp_eq_u32 vcc, -1, v126'); a(f's_cbranch_vccz {vok}')
    a('s_waitcnt vmcnt(0)')
    for p in range(4): a(f'v_mov_b64 v[{104+2*p}:{105+2*p}], v[{112+2*p}:{113+2*p}]')
    a.label(vp)
    maxchain(a, 126, range(104, 112))
    a('v_cmp_eq_u32 vcc, -1, v126'); a(f's_cbranch_vccz {vok}')
    for p in range(4):
        a(f'buffer_load_dwordx2 v[{104+2*p}:{105+2*p}], v9, {W}, s{sVMo} offen offset:{p*512} sc1')
    spin_check(a, fail)
    a('s_waitcnt vmcnt(0)')
    a(f's_branch {vp}')
    a.label(vok)
    st(a, 5)
    mf = []
    for et in range(8):
        p = et >> 1; b = 'v[122:123]' if et & 1 else 'v[120:121]'
        mf.append(f'{MF16} v[{72+4*et}:{75+4*et}], v[{104+2*p}:{105+2*p}], {b}, v[{72+4*et}:{75+4*et}]')
    z = zero(20, 32)
    fill = [
        ['v_mov_b32 v126, v125', z[0]], [z[1], z[2]], ['v_permlane32_swap_b32 v125, v126', 'v_add_f32 v125, v125, v126'],
        ['v_mov_b32 v126, v125', z[3]], [z[4], z[5]], ['v_permlane16_swap_b32 v125, v126', 'v_add_f32 v125, v125, v126'],
        [], ['v_rcp_f32 v124, v125'],
    ]
    interleave(a, mf, fill)
    a('s_waitcnt vmcnt(0) lgkmcnt(0)')
    km_write(a)
    a(f's_add_u32 s{sKMo}, s{sKMo}, {32*4096}')
    a('v_mov_b32 v125, v124')
    wl = []
    for i in range(4):
        wl += [f'ds_read_b128 v[{40+8*i}:{43+8*i}], v15 offset:{i*2048}', f'ds_read_b128 v[{44+8*i}:{47+8*i}], v15 offset:{i*2048+1024}']
    emit(a, wl)
    for et in range(8):
        o = 72 + 4 * et
        t0 = 126 if et & 1 else 36
        a(f'v_cndmask_b32 v{t0}, v{o}, v{o+2}, {MH}')
        a(f'v_cndmask_b32 v{t0+1}, v{o+1}, v{o+3}, {MH}')
        a(f'v_pk_mul_f32 v[{t0}:{t0+1}], v[{t0}:{t0+1}], v[124:125]')
        a(f'v_cvt_pk_bf16_f32 v{112+et}, v{t0}, v{t0+1}')
        if et == 3: emit(a, zero(32, 36))
    a(f's_add_u32 s{sVMo}, s{sVMo}, {32*2048}')
    st(a, 6)
    def epi(cg):
        s_ = 20 + 8 * (cg & 1)
        d = (36 + 2 * (cg & 1)) if cg < 4 else 72
        ops = [f'v_add_f32 v{s_}, v{s_}, v{s_+2}', f'v_add_f32 v{s_+1}, v{s_+1}, v{s_+3}',
               f'v_add_f32 v{s_+4}, v{s_+4}, v{s_+6}', f'v_add_f32 v{s_+5}, v{s_+5}, v{s_+7}',
               f'v_cvt_pk_bf16_f32 v{d}, v{s_}, v{s_+1}', f'v_cvt_pk_bf16_f32 v{d+1}, v{s_+4}, v{s_+5}']
        if cg + 2 < 5: ops += zero(s_, s_ + 8)
        ops += [f'v_min_u32 v{d}, v{d}, v11', f'v_min_u32 v{d+1}, v{d+1}, v11']
        if cg in (1, 3):
            ops += [f's_add_u32 s{sTmp}, s{sP1w}, {(cg-1)*8*8192}',
                    'v_permlane16_swap_b32 v36, v37', 'v_permlane16_swap_b32 v38, v39',
                    'v_permlane32_swap_b32 v36, v38', 'v_permlane32_swap_b32 v37, v39',
                    f'buffer_store_dwordx4 v[36:39], v7, {W}, s{sTmp} offen {sc}']
        elif cg == 4:
            ops += [f's_add_u32 s{sTmp}, s{sP1w}, {cg*8*8192}', 'v_permlane16_swap_b32 v72, v73',
                    f'buffer_store_dwordx2 v[72:73], v13, {W}, s{sTmp} offen {sc}']
        return ops
    def pf(pair):
        sl = (pair & 1) * 2; ops = []
        for t in range(2):
            i = pair * 2 + t; b = 40 + 8 * (sl + t)
            ops += [f'ds_read_b128 v[{b}:{b+3}], v15 offset:{i*2048}', f'ds_read_b128 v[{b+4}:{b+7}], v15 offset:{i*2048+1024}']
        return ops
    for cg in range(5):
        s_ = 20 + 8 * (cg & 1)
        mfl = []
        for eb in range(2):
            p = wo_pair(cg, eb)
            A = 'v[112:115]' if eb == 0 else 'v[116:119]'
            for t in range(2):
                b = 192 + (cg*2+t)*8 if p is None else 40 + 8 * ((p & 1) * 2 + t)
                ins = f'{SM} v[{s_+4*t}:{s_+4*t+3}], {A}, v[{b}:{b+7}], v1'
                pre = [f's_waitcnt lgkmcnt({4 if p < 5 else 0})'] if (p is not None and t == 0) else []
                post = pf(p + 2) if (p is not None and t == 1 and p + 2 < 6) else []
                mfl.append(pre + [ins] + post)
        e = epi(cg - 1) if cg >= 1 else []
        n = len(e); q = (n + 3) // 4
        interleave(a, mfl, [[]] + [e[i*q:(i+1)*q] for i in range(4)] if cg >= 1 else [])
    emit(a, epi(4))
    st(a, 7)
    gat = a.newlabel('gat'); join = a.newlabel('join'); op = a.newlabel('ownp'); nown = a.newlabel('nown')
    a(f's_cmp_ge_u32 s{sW}, 2'); a(f's_cbranch_scc1 {gat}')
    a(f's_cmp_eq_u32 s{sOwn}, -1'); a(f's_cbranch_scc1 {nown}')
    a(f's_and_b32 s{sTmp}, s{sS}, 1'); a(f's_mul_i32 s{sTmp}, s{sTmp}, {L.P1SZ}')
    a(f's_lshl_b32 s{sTmp2}, s{sOwn}, 13'); a(f's_add_u32 s{sTmp}, s{sTmp}, s{sTmp2}')
    a(f's_add_u32 s{sTmp}, s{sTmp}, {L.P1}'); a(f's_add_u32 s{sTmp2}, s{sTmp}, 4096')
    a(f's_add_u32 s{sPubX}, s{sOwnO}, s{sMw}')
    a(f's_add_u32 s{sPubF}, s{sPubX}, {L.MEMF}'); a(f's_add_u32 s{sPubX}, s{sPubX}, {L.MEMX}')
    advance(a)
    if OSLEEP: a(f's_sleep {OSLEEP}')
    a.label(op)
    for m in range(8):
        so = sTmp if m < 4 else sTmp2
        a(f'buffer_load_dwordx4 v[{40+4*m}:{43+4*m}], v2, {W}, s{so} offen offset:{(m&3)*1024} sc1')
    spin_check(a, fail)
    for m in range(8):
        a(f's_waitcnt vmcnt({7-m})')
        c = '0' if m == 0 else 'v[20:23]'
        a(f'{MF32} v[20:23], v[{40+4*m}:{43+4*m}], v[16:19], {c}')
        if m == 0: a(f'v_max3_u32 v36, v40, v41, v42'); a('v_max_u32 v36, v36, v43')
        else:
            a(f'v_max3_u32 v36, v36, v{40+4*m}, v{41+4*m}'); a(f'v_max3_u32 v36, v36, v{42+4*m}, v{43+4*m}')
    a('v_cmp_eq_u32 vcc, -1, v36'); a(f's_cbranch_vccnz {op}')
    a(f'v_cndmask_b32 v24, v20, v22, {MH}'); a(f'v_cndmask_b32 v25, v21, v23, {MH}')
    a('v_cvt_pk_bf16_f32 v24, v24, v25'); a('v_min_u32 v24, v24, v11')
    a(f'buffer_store_dword v24, v8, {W}, s{sPubF} offen {sc}')
    st(a, 8)
    a('s_barrier')
    a('v_mov_b32 v36, v24')
    a(f'buffer_store_dword v36, v8, {W}, s{sPubX} offen sc1')
    emit(a, zero(20, 36))
    a(f's_branch {join}')
    a.label(nown)
    advance(a)
    st(a, 8)
    emit(a, zero(20, 36))
    a('s_barrier')
    a(f's_branch {join}')
    a.label(gat)
    a(f's_add_u32 s{sM2}, s{sMw}, {L.MEMF}')
    gather_pre(a, sM2)
    advance(a)
    emit(a, zero(20, 36))
    a('s_barrier')
    if GSLEEP: a(f's_sleep {GSLEEP}')
    st(a, 10); st.val(a, 2, sSpin)
    gather(a, fail)
    st.val(a, 3, sSpin); st(a, 11)
    a.label(join)
    a('s_waitcnt lgkmcnt(0)')
    a('s_barrier')
    st(a, 9)
    a(f's_branch main_loop_{tag}')

def emit_helper(a, st, fail, end):
    a.comment('======== HELPER ========')
    a.label('chain_helper')
    srd(a, S_T1, L.KA['Wv'], 640*4096*2)
    a('v_lshrrev_b32 v36, 4, v0'); a('v_and_b32 v37, 15, v0'); a('v_lshlrev_b32 v37, 4, v37')
    a('v_lshlrev_b32 v10, 13, v36'); a('v_add_u32 v10, v10, v37')
    trbase(a, 12, False)
    a(f's_lshl_b32 s30, s{sH}, 8')
    a('s_waitcnt lgkmcnt(0)')
    chunks = []
    for kb in range(10):
        chunks.append(dict(srd=S_T1, vofs=10, sbase=30, soff=64*kb*8192, istep=4*8192, vtr=12, rows=[0, 4, 32, 36], tcol=[0, 32],
                           dests=[f'a{(kb*2)*8}', f'a{(kb*2+1)*8}']))
    load_chunks(a, chunks, 14)
    a('s_barrier')
    a('v_mov_b64 v[12:13], -1'); a('v_mov_b64 v[14:15], -1'); a('v_mov_b32 v11, -2')
    a('v_lshlrev_b32 v9, 3, v0')
    a(f's_lshl_b32 s{sVMo}, s{sH}, 11'); a(f's_add_u32 s{sVMo}, s{sVMo}, {L.VM}')
    a(f's_lshl_b32 s{sTmp}, s{sW}, 16'); a(f's_add_u32 s{sTmp}, s{sTmp}, s{sVMo}')
    for i in range(16):
        a(f'buffer_store_dwordx4 v[12:15], v2, {W}, s{sTmp} offen sc1')
        a(f'buffer_store_dwordx4 v[12:15], v2, {W}, s{sTmp} offen offset:1024 sc1')
        if i < 15: a(f's_add_u32 s{sTmp}, s{sTmp}, {4*65536}')
    mem0_frags(a)
    a(f's_sub_u32 s{sTmp}, s{sW}, 2'); a(f's_mul_i32 s{sTmp}, s{sTmp}, 5120'); a(f'v_add_u32 v3, s{sTmp}, v4')
    rendezvous(a, False, fail)
    a(f's_lshl_b32 s{sTmp}, s{sW}, 9'); a(f's_add_u32 s{sVMo}, s{sVMo}, s{sTmp}')
    a(f's_mov_b32 s{sS}, 0')
    a(f's_mov_b32 s{sMr}, {L.MEMX + L.MEMSZ}')
    a('s_barrier')
    a.label('helper_loop')
    st(a, 0)
    for kb in range(10):
        a(f'ds_read_b128 v[{72+4*kb}:{75+4*kb}], v4 offset:{kb*1024}')
    for r in range(28, 36, 2): a(f'v_mov_b64 v[{r}:{r+1}], 0')
    for kb in range(10):
        a(f's_waitcnt lgkmcnt({9-kb})')
        for t in range(2):
            acc = 28 + t * 4; b = (kb*2+t)*8
            a(f'{SM} v[{acc}:{acc+3}], v[{72+4*kb}:{75+4*kb}], a[{b}:{b+7}], v1')
    a('v_add_f32 v28, v28, v30'); a('v_add_f32 v29, v29, v31'); a('v_add_f32 v32, v32, v34'); a('v_add_f32 v33, v33, v35')
    a('v_cvt_pk_bf16_f32 v44, v28, v29'); a('v_cvt_pk_bf16_f32 v45, v32, v33')
    a('v_min_u32 v44, v44, v11'); a('v_min_u32 v45, v45, v11')
    a(f'buffer_store_dwordx2 v[44:45], v9, {W}, s{sVMo} offen sc1')
    st(a, 1)
    a(f's_add_u32 s{sVMo}, s{sVMo}, {32*2048}')
    a(f's_cmp_ge_u32 s{sS}, 63'); a(f's_cbranch_scc1 helper_done')
    a('s_barrier')
    hj = a.newlabel('hj')
    a(f's_cmp_lt_u32 s{sW}, 2'); a(f's_cbranch_scc1 {hj}')
    gather_pre(a, sMr)
    if HSLEEP: a(f's_sleep {HSLEEP}')
    st(a, 2)
    gather(a, fail)
    st(a, 3)
    a.label(hj)
    a('s_waitcnt lgkmcnt(0)')
    a('s_barrier')
    a(f's_add_u32 s{sS}, s{sS}, 1')
    a(f's_xor_b32 s{sMr}, s{sMr}, {(L.MEMX) ^ (L.MEMX + L.MEMSZ)}')
    a('s_branch helper_loop')
    a.label('helper_done')
    st.dump(a, 8192)
    a(f's_branch {end}')
```

```python
from asmlib import Asm
import layout as L
import gemm as GM
from gemm import G, MF
import kernels as KN
from kernels import f32bits, pack_T, unpack, row_reduce16, MF32, MF16, C_SCALE
import chain4 as CH

sWI = 60; sJ = 61; sSpin = 63; sB = 38; sSub = 39
S_DBG = 84
WS = 's[4:7]'; DBG = f's[{S_DBG}:{S_DBG+3}]'
WOS = 8
DNS = 3
SPIN_MAX = 1 << 22
SC = 'sc1'

def emit(a, ops):
    for x in ops:
        if isinstance(x, (list, tuple)): emit(a, x)
        else: a(x)

def tid(a): a('v_mov_b32 v0, v254')

def signal(a, off_sreg=None, off_imm=None, dbg=False):
    a('s_waitcnt vmcnt(0)')
    a('s_barrier')
    sk = a.newlabel('sig')
    a('v_cmp_eq_u32 vcc, 0, v254')
    a('s_and_saveexec_b64 s[56:57], vcc')
    a(f's_cbranch_execz {sk}')
    a('v_mov_b32 v250, 1'); a('v_mov_b32 v251, 0')
    if dbg:
        a(f'buffer_atomic_add v250, v251, {DBG}, 0 offen offset:{off_imm}')
    else:
        a(f'buffer_atomic_add v250, v251, {WS}, s{off_sreg} offen')
    a.label(sk)
    a('s_mov_b64 exec, s[56:57]')

def wait_ctr(a, off_sreg, target, fail):
    lp = a.newlabel('wc'); ok = a.newlabel('wok')
    a('v_mov_b32 v251, 0')
    a.label(lp)
    a(f'buffer_load_dword v250, v251, {WS}, s{off_sreg} offen sc1')
    a('s_waitcnt vmcnt(0)')
    a('v_readfirstlane_b32 s56, v250')
    a(f's_cmp_ge_u32 s56, {target}'); a(f's_cbranch_scc1 {ok}')
    a(f's_add_u32 s{sSpin}, s{sSpin}, 1'); a(f's_cmp_gt_u32 s{sSpin}, {SPIN_MAX}'); a(f's_cbranch_scc1 {fail}')
    a('s_sleep 8')
    a(f's_branch {lp}')
    a.label(ok)

def ctr_addr(a, dst, kind, breg):
    a(f's_lshl_b32 s{dst}, s{breg}, 7'); a(f's_add_u32 s{dst}, s{dst}, {L.ctr(kind)}')

def gemm_common(a, lda, ldb, splitB=False):
    g = G
    tid(a)
    GM.setup_lane_consts(a, lda, ldb, splitB)
    a(f's_lshl_b32 s{g.sLdsA}, s{g.sW}, 12')
    a(f's_lshl_b32 s{g.sLdsB}, s{g.sW}, {11 if splitB else 12}')

def load_ptr(a, base, key, nbytes):
    a(f's_load_dwordx2 s[{base}:{base+1}], s[0:1], {L.KA[key]}')
    a(f's_mov_b32 s{base+2}, {nbytes}'); a(f's_mov_b32 s{base+3}, 0x00020000')


EPI = 98304
def epi_T_bf16(a, accs, ld, sbase, ncol_tiles=2):
    g = G; t = g.vT
    a(f'v_and_b32 v{t}, 31, v0'); a(f'v_lshlrev_b32 v{t+1}, 7, v{t}'); a(f'v_and_b32 v{t+2}, 7, v0'); a(f'v_lshrrev_b32 v{t+3}, 5, v0')
    a(f's_lshl_b32 s46, s{g.sW}, 13'); a(f's_add_u32 s46, s46, {EPI}'); a(f'v_add_u32 v{t+1}, s46, v{t+1}')
    for rt in range(2):
        for ct in range(2):
            dst = g.FA + ((rt*2+ct) & 1) * 8
            pack_T(a, accs[rt][ct], dst)
            for kk in range(2):
                c0 = 4*ct + 2*kk
                a(f'v_add_u32 v{t+4}, {c0}, v{t+3}'); a(f'v_xor_b32 v{t+4}, v{t+4}, v{t+2}'); a(f'v_lshlrev_b32 v{t+4}, 4, v{t+4}'); a(f'v_add_u32 v{t+4}, v{t+4}, v{t+1}')
                a(f'ds_write_b128 v{t+4}, v[{dst+4*kk}:{dst+4*kk+3}] offset:{rt*4096}')
    a(f'v_lshrrev_b32 v{t}, 3, v0'); a(f'v_and_b32 v{t+2}, 7, v0'); a(f'v_xor_b32 v{t+3}, v{t+2}, v{t}'); a(f'v_lshlrev_b32 v{t+3}, 4, v{t+3}')
    a(f'v_lshlrev_b32 v{t+4}, 7, v{t}'); a(f'v_add_u32 v{t+3}, v{t+3}, v{t+4}'); a(f'v_add_u32 v{t+3}, s46, v{t+3}')
    a(f's_mov_b32 s47, {ld}'); a(f'v_mul_lo_u32 v{t}, v{t}, s47'); a(f'v_lshlrev_b32 v{t+2}, 4, v{t+2}'); a(f'v_add_u32 v{t}, v{t}, v{t+2}')
    a('s_waitcnt lgkmcnt(0)')
    for i in range(8): a(f'ds_read_b128 v[{g.FA+4*i}:{g.FA+4*i+3}], v{t+3} offset:{i*1024}')
    for i in range(8):
        a(f's_waitcnt lgkmcnt({7-i})')
        a(f's_add_u32 s47, s{sbase}, {i*8*ld}')
        a(f'buffer_store_dwordx4 v[{g.FA+4*i}:{g.FA+4*i+3}], v{t}, {WS}, s47 offen {SC}')

def epi_T_f32(a, ld, sbase):
    g = G; t = g.vT
    a(f'v_and_b32 v{t}, 31, v0'); a(f'v_lshlrev_b32 v{t+1}, 8, v{t}'); a(f'v_and_b32 v{t+2}, 7, v0'); a(f'v_lshrrev_b32 v{t+3}, 5, v0')
    a(f's_lshl_b32 s46, s{g.sW}, 14'); a(f's_add_u32 s46, s46, {EPI}'); a(f'v_add_u32 v{t+1}, s46, v{t+1}')
    for ct in range(2):
        for q in range(4):
            c0 = 8*ct + 2*q
            a(f'v_add_u32 v{t+4}, {c0}, v{t+3}'); a(f'v_xor_b32 v{t+4}, v{t+4}, v{t+2}'); a(f'v_lshlrev_b32 v{t+4}, 4, v{t+4}'); a(f'v_add_u32 v{t+4}, v{t+4}, v{t+1}')
            for rt in range(2):
                acc = g.ACC + (rt*2+ct)*16 + 4*q
                a(f'ds_write_b128 v{t+4}, v[{acc}:{acc+3}] offset:{rt*8192}')
    a(f'v_lshrrev_b32 v{t}, 4, v0'); a(f'v_and_b32 v{t+2}, 15, v0')
    a(f'v_xor_b32 v{t+3}, v{t+2}, v{t}'); a(f'v_xor_b32 v{t+5}, 4, v{t+3}')
    a(f'v_lshlrev_b32 v{t+3}, 4, v{t+3}'); a(f'v_lshlrev_b32 v{t+5}, 4, v{t+5}'); a(f'v_lshlrev_b32 v{t+4}, 8, v{t}'); a(f'v_add_u32 v{t+4}, s46, v{t+4}')
    a(f'v_add_u32 v{t+3}, v{t+3}, v{t+4}'); a(f'v_add_u32 v{t+5}, v{t+5}, v{t+4}')
    a(f's_mov_b32 s47, {ld}'); a(f'v_mul_lo_u32 v{t}, v{t}, s47'); a(f'v_lshlrev_b32 v{t+2}, 4, v{t+2}'); a(f'v_add_u32 v{t}, v{t}, v{t+2}')
    a('s_waitcnt lgkmcnt(0)')
    for half in range(2):
        for i in range(8):
            ii = half*8 + i
            a(f'ds_read_b128 v[{g.ACC+4*ii}:{g.ACC+4*ii+3}], v{t+3 if ii % 2 == 0 else t+5} offset:{ii*1024}')
        for i in range(8):
            ii = half*8 + i
            a(f's_waitcnt lgkmcnt({7-i})')
            a(f's_add_u32 s47, s{sbase}, {ii*4*ld}')
            a(f'buffer_store_dwordx4 v[{g.ACC+4*ii}:{g.ACC+4*ii+3}], v{t}, {WS}, s47 offen {SC}')

def task_ln1(a):
    tid(a)
    load_ptr(a, 8, 'x', 2048*640*2)
    a('v_lshrrev_b32 v1, 4, v0'); a('s_lshl_b32 s41, s40, 4'); a('v_add_u32 v1, s41, v1')
    a('v_mul_u32_u24 v1, 1280, v1'); a('v_and_b32 v5, 15, v0'); a('v_lshlrev_b32 v5, 4, v5'); a('v_add_u32 v1, v1, v5')
    a('s_waitcnt lgkmcnt(0)')
    for c in range(5): a(f'buffer_load_dwordx4 v[{8+4*c}:{11+4*c}], v1, s[8:11], 0 offen offset:{c*256}')
    a('s_waitcnt vmcnt(0)')
    unpack(a, 8, 32, 20)
    KN.ln_core(a, 32, 8)
    a(f's_mov_b32 s41, {L.XN}')
    for c in range(5): a(f'buffer_store_dwordx4 v[{8+4*c}:{11+4*c}], v1, {WS}, s41 offen offset:{c*256} {SC}')

def task_qkv(a, matrix):
    g = G
    key = ('Wq', 'Wk', 'Wv')[matrix]
    a(f's_lshl_b32 s{g.sT0}, s40, 7'); a(f's_lshl_b32 s{g.sT1}, s{g.sW}, 5'); a(f's_add_u32 s{g.sT0}, s{g.sT0}, s{g.sT1}')
    a(f's_mul_i32 s{g.sAoff}, s{g.sT0}, 1280'); a(f's_add_u32 s{g.sAoff}, s{g.sAoff}, {L.XN}')
    a(f's_lshl_b32 s{g.sBoff}, s43, 8'); a(f's_lshl_b32 s{g.sT1}, s{g.sW}, 17'); a(f's_add_u32 s{g.sBoff}, s{g.sBoff}, s{g.sT1}')
    a('s_barrier')
    GM.mainloop(a, 10, 1280, 8192, 'N' if matrix == 2 else 'T')
    t = g.vT
    if matrix != 2:
        a(f's_mov_b32 s45, {L.Q if matrix == 0 else L.K}')
        a(f's_lshl_b32 s46, s40, 7'); a(f's_lshl_b32 s47, s{g.sWM}, 6'); a('s_add_u32 s46, s46, s47'); a('s_lshl_b32 s46, s46, 13'); a('s_add_u32 s45, s45, s46')
        a(f's_lshl_b32 s46, s43, 8'); a('s_add_u32 s45, s45, s46'); a(f's_lshl_b32 s46, s{g.sWN}, 7'); a('s_add_u32 s45, s45, s46')
        epi_T_bf16(a, [[g.ACC, g.ACC+16], [g.ACC+32, g.ACC+48]], 8192, 45)
    else:
        a(f'v_bfe_u32 v{t}, v0, 4, 1'); a(f'v_lshlrev_b32 v{t}, 10, v{t}'); a(f'v_and_b32 v{t+1}, 15, v0'); a(f'v_lshlrev_b32 v{t+1}, 4, v{t+1}'); a(f'v_add_u32 v{t}, v{t}, v{t+1}')
        a(f'v_lshrrev_b32 v{t+1}, 5, v0'); a(f'v_lshlrev_b32 v{t+1}, 9, v{t+1}'); a(f'v_add_u32 v{t}, v{t}, v{t+1}')
        a(f's_lshl_b32 s45, s40, 2'); a(f's_lshl_b32 s46, s{g.sWM}, 1'); a('s_add_u32 s45, s45, s46'); a('s_lshl_b32 s45, s45, 18')
        a(f's_lshl_b32 s46, s43, 13'); a('s_add_u32 s45, s45, s46'); a(f's_lshl_b32 s46, s{g.sWN}, 12'); a('s_add_u32 s45, s45, s46'); a(f's_add_u32 s45, s45, {L.VT}')
        for rt in range(2):
            for ct in range(2):
                acc = g.ACC + (rt*2+ct)*16; dst = g.FA + ((rt*2+ct) & 1) * 8
                for i in range(8): a(f'v_cvt_pk_bf16_f32 v{dst+i}, v{acc+2*i}, v{acc+2*i+1}')
                a(f's_add_u32 s47, s45, {rt*262144 + ct*2048}')
                a(f'buffer_store_dwordx4 v[{dst}:{dst+3}], v{t}, {WS}, s47 offen {SC}')
                a(f'buffer_store_dwordx4 v[{dst+4}:{dst+7}], v{t}, {WS}, s47 offen offset:256 {SC}')

def qkv_loop(a, name, matrix, start_reg, stride, kind, fail):
    lp = a.newlabel(name); done = a.newlabel(name + 'd')
    gemm_common(a, 1280, 8192)
    load_ptr(a, G.SB, ('Wq', 'Wk', 'Wv')[matrix], 640*4096*2)
    a('s_waitcnt lgkmcnt(0)')
    a(f's_mov_b32 s{sJ}, s{start_reg}')
    a.label(lp)
    a(f's_cmp_ge_u32 s{sJ}, 512'); a(f's_cbranch_scc1 {done}')
    a(f's_lshr_b32 s40, s{sJ}, 5'); a(f's_and_b32 s43, s{sJ}, 31')
    task_qkv(a, matrix)
    ctr_addr(a, 49, kind, 40)
    signal(a, off_sreg=49)
    a(f's_add_u32 s{sJ}, s{sJ}, {stride}')
    a(f's_branch {lp}')
    a.label(done)

def task_attn(a, fail):
    tid(a)
    ctr_addr(a, 49, L.C_Q, sB); wait_ctr(a, 49, 32, fail)
    Wd = WS
    a('v_lshrrev_b32 v1, 6, v0'); a('v_readfirstlane_b32 s8, v1'); a('v_and_b32 v0, 63, v0')
    a(f's_lshl_b32 s10, s{sB}, 2'); a(f's_lshr_b32 s9, s{sSub}, 3'); a('s_add_u32 s10, s10, s9')
    a(f's_and_b32 s11, s{sSub}, 7'); a('s_lshl_b32 s11, s11, 2'); a('s_add_u32 s11, s11, s8')
    a('v_and_b32 v6, 15, v0'); a('v_lshlrev_b32 v1, 13, v6'); a('v_lshrrev_b32 v7, 4, v0'); a('v_lshlrev_b32 v8, 4, v7'); a('v_add_u32 v1, v1, v8')
    a('v_bfe_u32 v2, v0, 2, 1'); a('v_lshlrev_b32 v2, 4, v2'); a('v_bfe_u32 v9, v0, 3, 1'); a('v_lshlrev_b32 v9, 2, v9'); a('v_add_u32 v2, v2, v9')
    a('v_and_b32 v9, 3, v0'); a('v_add_u32 v2, v2, v9'); a('v_lshlrev_b32 v2, 13, v2'); a('v_add_u32 v2, v2, v8')
    a('v_lshlrev_b32 v3, 4, v0'); a('v_lshlrev_b32 v4, 3, v0')
    a('v_lshlrev_b32 v5, 13, v6'); a('v_bfe_u32 v9, v0, 4, 1'); a('v_lshlrev_b32 v9, 5, v9'); a('v_add_u32 v5, v5, v9'); a('v_lshrrev_b32 v9, 5, v0'); a('v_lshlrev_b32 v9, 4, v9'); a('v_add_u32 v5, v5, v9')
    a('v_and_b32 v9, 1, v7'); a('v_lshlrev_b32 v9, 4, v9'); a('v_lshrrev_b32 v10, 1, v7'); a('v_lshlrev_b32 v10, 2, v10'); a('v_add_u32 v9, v9, v10'); a('v_sub_u32 v10, v6, v9')
    a('s_lshl_b32 s12, s10, 18'); a('s_lshl_b32 s13, s11, 8'); a('s_add_u32 s12, s12, s13')
    a(f's_add_u32 s14, s12, {L.Q}'); a(f's_add_u32 s15, s12, {L.K}'); a(f's_add_u32 s16, s12, {L.O}')
    a('s_lshl_b32 s17, s10, 5'); a('s_add_u32 s17, s17, s11')
    a('s_lshl_b32 s18, s17, 12'); a(f's_add_u32 s18, s18, {L.KM}')
    a('s_lshl_b32 s19, s17, 13'); a(f's_add_u32 s19, s19, {L.VT}')
    a('s_lshl_b32 s20, s17, 11'); a(f's_add_u32 s20, s20, {L.VM}')
    a(f's_mov_b32 s21, {hex(f32bits(C_SCALE))}')
    QF = 16; KX = 48; KMf = 80; S = 96; VT = 120; VMf = 152; P = 160; O = 176
    for qt in range(2):
        a(f's_add_u32 s22, s14, {qt*16*8192}')
        for kp in range(4): a(f'buffer_load_dwordx4 v[{QF+(qt*4+kp)*4}:{QF+(qt*4+kp)*4+3}], v1, {Wd}, s22 offen offset:{kp*64}')
    for kt in range(2):
        a(f's_add_u32 s22, s15, {kt*8*8192}')
        for kp in range(4): a(f'buffer_load_dwordx4 v[{KX+(kt*4+kp)*4}:{KX+(kt*4+kp)*4+3}], v2, {Wd}, s22 offen offset:{kp*64}')
    for et in range(8):
        a(f's_add_u32 s22, s19, {(et>>2)*4096}')
        a(f'buffer_load_dwordx4 v[{VT+et*4}:{VT+et*4+3}], v3, {Wd}, s22 offen offset:{(et&3)*1024}')
    lp = a.newlabel('atp'); ok = a.newlabel('atok')
    a.label(lp)
    for kp in range(4): a(f'buffer_load_dwordx4 v[{KMf+kp*4}:{KMf+kp*4+3}], v3, {Wd}, s18 offen offset:{kp*1024} sc1')
    for p in range(4): a(f'buffer_load_dwordx2 v[{VMf+2*p}:{VMf+2*p+1}], v4, {Wd}, s20 offen offset:{p*512} sc1')
    a('s_waitcnt vmcnt(0)')
    CH.maxchain(a, 11, list(range(KMf, KMf+16)) + list(range(VMf, VMf+8)))
    a('v_cmp_eq_u32 vcc, -1, v11'); a(f's_cbranch_vccz {ok}')
    a(f's_add_u32 s{sSpin}, s{sSpin}, 1'); a(f's_cmp_gt_u32 s{sSpin}, {SPIN_MAX}'); a(f's_cbranch_scc1 {fail}')
    a('s_sleep 16')
    a(f's_branch {lp}')
    a.label(ok)
    Sreg = lambda kt, qt: S + (kt*2+qt)*4
    for kp in range(4):
        for qt in range(2):
            B = f'v[{QF+(qt*4+kp)*4}:{QF+(qt*4+kp)*4+3}]'
            for kt in range(3):
                A = f'v[{KMf+kp*4}:{KMf+kp*4+3}]' if kt == 0 else f'v[{KX+((kt-1)*4+kp)*4}:{KX+((kt-1)*4+kp)*4+3}]'
                d = Sreg(kt, qt); c = '0' if kp == 0 else f'v[{d}:{d+3}]'
                a(f'{MF32} v[{d}:{d+3}], {A}, {B}, {c}')
    a('v_mov_b32 v11, 0xff800000')
    for qt in range(2):
        for kt in (1, 2):
            for r in range(4):
                cst = 8*(kt-1) + r - 16*qt
                reg = Sreg(kt, qt) + r
                a(f'v_cmp_le_i32 vcc, {cst}, v10')
                a(f'v_cndmask_b32 v{reg}, v11, v{reg}, vcc')
        m = 12; t2 = 13
        s0 = Sreg(0, qt); s1 = Sreg(1, qt); s2 = Sreg(2, qt)
        a(f'v_max3_f32 v{m}, v{s0}, v{s0+1}, v{s1}'); a(f'v_max3_f32 v{m}, v{m}, v{s1+1}, v{s1+2}'); a(f'v_max3_f32 v{m}, v{m}, v{s1+3}, v{s2}')
        a(f'v_max3_f32 v{m}, v{m}, v{s2+1}, v{s2+2}'); a(f'v_max_f32 v{m}, v{m}, v{s2+3}')
        a(f'v_mov_b32 v{t2}, v{m}'); a(f'v_permlane32_swap_b32 v{m}, v{t2}'); a(f'v_max_f32 v{m}, v{m}, v{t2}')
        a(f'v_mov_b32 v{t2}, v{m}'); a(f'v_permlane16_swap_b32 v{m}, v{t2}'); a(f'v_max_f32 v{m}, v{m}, v{t2}')
        a(f'v_mul_f32 v{m}, s21, v{m}')
        vals = [s0, s0+1] + [s1+i for i in range(4)] + [s2+i for i in range(4)]
        for r in vals: a(f'v_fma_f32 v{r}, v{r}, s21, -v{m}')
        for r in vals: a(f'v_exp_f32 v{r}, v{r}')
        pb = P + qt*8
        a(f'v_cvt_pk_bf16_f32 v{pb}, v{s1}, v{s1+1}'); a(f'v_cvt_pk_bf16_f32 v{pb+1}, v{s1+2}, v{s1+3}')
        a(f'v_cvt_pk_bf16_f32 v{pb+2}, v{s2}, v{s2+1}'); a(f'v_cvt_pk_bf16_f32 v{pb+3}, v{s2+2}, v{s2+3}')
        a(f'v_cvt_pk_bf16_f32 v{pb+4}, v{s0}, v{s0+1}'); a(f'v_mov_b32 v{pb+5}, 0'); a(f'v_mov_b32 v{pb+6}, 0'); a(f'v_mov_b32 v{pb+7}, v{pb+4}')
        l = 14 + qt
        a(f'v_add_f32 v{l}, v{vals[0]}, v{vals[1]}')
        for r in vals[2:]: a(f'v_add_f32 v{l}, v{l}, v{r}')
        a(f'v_mov_b32 v{t2}, v{l}'); a(f'v_permlane32_swap_b32 v{l}, v{t2}'); a(f'v_add_f32 v{l}, v{l}, v{t2}')
        a(f'v_mov_b32 v{t2}, v{l}'); a(f'v_permlane16_swap_b32 v{l}, v{t2}'); a(f'v_add_f32 v{l}, v{l}, v{t2}')
        a(f'v_rcp_f32 v{l}, v{l}')
    Oreg = lambda et, qt: O + (qt*8+et)*4
    for qt in range(2):
        pb = P + qt*8
        for et in range(8):
            o = Oreg(et, qt)
            a(f'{MF32} v[{o}:{o+3}], v[{VT+et*4}:{VT+et*4+3}], v[{pb}:{pb+3}], 0')
        for et in range(8):
            o = Oreg(et, qt); p = et >> 1
            b = f'v[{pb+6}:{pb+7}]' if et & 1 else f'v[{pb+4}:{pb+5}]'
            a(f'{MF16} v[{o}:{o+3}], v[{VMf+2*p}:{VMf+2*p+1}], {b}, v[{o}:{o+3}]')
    a('s_lshl_b32 s22, s8, 13'); a(f's_add_u32 s22, s22, {EPI}')
    a('v_lshlrev_b32 v1, 8, v6'); a('v_add_u32 v1, s22, v1')
    a('v_bfe_u32 v2, v0, 4, 1'); a('v_lshlrev_b32 v2, 1, v2'); a('v_lshrrev_b32 v3, 5, v0'); a('v_add_u32 v2, v2, v3')
    a('v_and_b32 v3, 7, v0')
    for qt in range(2):
        l = 14 + qt
        for ep in range(4):
            e0 = Oreg(2*ep, qt); e1 = Oreg(2*ep+1, qt); d = QF + (ep & 1) * 4
            for r in range(4):
                a(f'v_mul_f32 v{e0+r}, v{e0+r}, v{l}'); a(f'v_mul_f32 v{e1+r}, v{e1+r}, v{l}')
            a(f'v_cvt_pk_bf16_f32 v{d}, v{e0}, v{e0+1}'); a(f'v_cvt_pk_bf16_f32 v{d+1}, v{e0+2}, v{e0+3}')
            a(f'v_cvt_pk_bf16_f32 v{d+2}, v{e1}, v{e1+1}'); a(f'v_cvt_pk_bf16_f32 v{d+3}, v{e1+2}, v{e1+3}')
            a(f'v_permlane16_swap_b32 v{d}, v{d+2}'); a(f'v_permlane16_swap_b32 v{d+1}, v{d+3}')
            a(f'v_add_u32 v4, {4*ep}, v2'); a('v_xor_b32 v4, v4, v3'); a('v_lshlrev_b32 v4, 4, v4'); a('v_add_u32 v4, v4, v1')
            a(f'ds_write_b128 v4, v[{d}:{d+3}] offset:{qt*4096}')
    a('v_lshrrev_b32 v7, 4, v0'); a('v_xor_b32 v2, v6, v7'); a('v_xor_b32 v3, 4, v2')
    a('v_lshlrev_b32 v2, 4, v2'); a('v_lshlrev_b32 v3, 4, v3'); a('v_lshlrev_b32 v4, 8, v7'); a('v_add_u32 v4, s22, v4'); a('v_add_u32 v2, v2, v4'); a('v_add_u32 v3, v3, v4')
    a('v_lshlrev_b32 v5, 13, v7'); a('v_lshlrev_b32 v4, 4, v6'); a('v_add_u32 v5, v5, v4')
    a('s_waitcnt lgkmcnt(0)')
    for i in range(8): a(f'ds_read_b128 v[{KX+4*i}:{KX+4*i+3}], v{2 if i % 2 == 0 else 3} offset:{i*1024}')
    for i in range(8):
        a(f's_waitcnt lgkmcnt({7-i})')
        a(f's_add_u32 s22, s16, {i*4*8192}')
        a(f'buffer_store_dwordx4 v[{KX+4*i}:{KX+4*i+3}], v5, {Wd}, s22 offen {SC}')
    ctr_addr(a, 49, L.C_AT, sB); signal(a, off_sreg=49)

def part_store(a, base, ks_reg, m_reg, n_reg):
    g = G
    a(f's_mul_i32 s45, s{ks_reg}, {2048*640*4}'); a(f's_add_u32 s45, s45, {base}')
    a(f's_lshl_b32 s46, s{m_reg}, 7'); a(f's_lshl_b32 s47, s{g.sWM}, 6'); a('s_add_u32 s46, s46, s47'); a('s_mul_i32 s46, s46, 2560'); a('s_add_u32 s45, s45, s46')
    a(f's_lshl_b32 s46, s{n_reg}, 9'); a('s_add_u32 s45, s45, s46'); a(f's_lshl_b32 s46, s{g.sWN}, 8'); a('s_add_u32 s45, s45, s46')
    epi_T_f32(a, 2560, 45)

def task_wo(a, fail):
    g = G
    ctr_addr(a, 49, L.C_AT, sB); wait_ctr(a, 49, 32, fail)
    load_ptr(a, g.SB, 'Wo', 4096*640*2)
    a(f's_and_b32 s42, s{sSub}, {WOS-1}'); a(f's_lshr_b32 s41, s{sSub}, {WOS.bit_length()-1}')
    gemm_common(a, 8192, 1280)
    KS = 4096 // WOS
    a(f's_lshl_b32 s{g.sT0}, s{sB}, 7'); a(f's_lshl_b32 s{g.sT1}, s{g.sW}, 5'); a(f's_add_u32 s{g.sT0}, s{g.sT0}, s{g.sT1}')
    a(f's_lshl_b32 s{g.sAoff}, s{g.sT0}, 13'); a(f's_add_u32 s{g.sAoff}, s{g.sAoff}, {L.O}')
    a(f's_mul_i32 s{g.sT1}, s42, {KS*2}'); a(f's_add_u32 s{g.sAoff}, s{g.sAoff}, s{g.sT1}')
    a(f's_mul_i32 s{g.sBoff}, s42, {KS*1280}'); a(f's_lshl_b32 s{g.sT1}, s41, 8'); a(f's_add_u32 s{g.sBoff}, s{g.sBoff}, s{g.sT1}')
    a(f's_mul_i32 s{g.sT1}, s{g.sW}, {16*1280}'); a(f's_add_u32 s{g.sBoff}, s{g.sBoff}, s{g.sT1}')
    a('s_waitcnt lgkmcnt(0)')
    a('s_barrier')
    GM.mainloop(a, KS // 64, 8192, 1280, 'T')
    part_store(a, L.PART, 42, sB, 41)
    ctr_addr(a, 49, L.C_WO, sB); signal(a, off_sreg=49)

def rows16_setup(a):
    tid(a)
    a('v_lshrrev_b32 v1, 4, v0'); a(f's_lshl_b32 s41, s{sB}, 7'); a(f's_lshl_b32 s42, s{sSub}, 4'); a('s_add_u32 s41, s41, s42'); a('v_add_u32 v1, s41, v1')
    a('v_mul_u32_u24 v1, 1280, v1'); a('v_and_b32 v5, 15, v0'); a('v_lshlrev_b32 v5, 3, v5'); a('v_add_u32 v1, v1, v5')
    a('v_lshlrev_b32 v6, 1, v1')

def task_ln2(a, fail):
    ctr_addr(a, 49, L.C_WO, sB); wait_ctr(a, 49, 5*WOS, fail)
    load_ptr(a, 8, 'x', 2048*640*2)
    rows16_setup(a)
    a('s_waitcnt lgkmcnt(0)')
    X = 32
    for c in range(10): a(f'buffer_load_dwordx2 v[{8+2*c}:{9+2*c}], v1, s[8:11], 0 offen offset:{c*128}')
    PB = 72
    def ldp(sp, buf):
        a(f's_mov_b32 s41, {L.PART + sp*2048*640*4}')
        for c in range(10):
            b = PB + buf*40 + c*4
            a(f'buffer_load_dwordx4 v[{b}:{b+3}], v6, {WS}, s41 offen offset:{c*256}')
    for sp in range(4): ldp(sp, sp)
    a('s_waitcnt vmcnt(40)')
    unpack(a, 8, X, 20)
    for sp in range(WOS):
        nxt = min(WOS - 1 - sp, 3)
        a(f's_waitcnt vmcnt({10*nxt})')
        for i in range(40): a(f'v_add_f32 v{X+i}, v{X+i}, v{PB+(sp&3)*40+i}')
        if sp + 4 < WOS: ldp(sp + 4, sp & 3)
    a(f's_mov_b32 s41, {L.H}')
    for c in range(10): a(f'buffer_store_dwordx4 v[{X+4*c}:{X+4*c+3}], v6, {WS}, s41 offen offset:{c*256} {SC}')
    for i in range(40): a(f'v_mov_b32 v{PB+i}, v{X+i}')
    KN.ln_core(a, PB, 8)
    a(f's_mov_b32 s41, {L.HN}')
    for c in range(10): a(f'buffer_store_dwordx2 v[{8+2*c}:{9+2*c}], v1, {WS}, s41 offen offset:{c*128} {SC}')
    ctr_addr(a, 49, L.C_LN2, sB); signal(a, off_sreg=49)

def task_up(a, fail):
    g = G
    ctr_addr(a, 49, L.C_LN2, sB); wait_ctr(a, 49, 8, fail)
    load_ptr(a, g.SB, 'Wg', 640*1728*2); load_ptr(a, g.SB2, 'Wu', 640*1728*2)
    gemm_common(a, 1280, 3456, splitB=True)
    a(f's_lshl_b32 s{g.sT0}, s{sB}, 7'); a(f's_lshl_b32 s{g.sT1}, s{g.sW}, 5'); a(f's_add_u32 s{g.sT0}, s{g.sT0}, s{g.sT1}')
    a(f's_mul_i32 s{g.sAoff}, s{g.sT0}, 1280'); a(f's_add_u32 s{g.sAoff}, s{g.sAoff}, {L.HN}')
    a(f's_lshl_b32 s{g.sBoff}, s{sSub}, 7'); a(f's_mul_i32 s{g.sT1}, s{g.sW}, {16*3456}'); a(f's_add_u32 s{g.sBoff}, s{g.sBoff}, s{g.sT1}')
    a('s_waitcnt lgkmcnt(0)')
    a('s_barrier')
    GM.mainloop(a, 10, 1280, 3456, 'T', splitB=True)
    t = g.vT
    a(f's_mov_b32 s48, {hex(f32bits(-1.4426950408889634))}')
    a(f'v_and_b32 v{t}, 31, v0'); a(f's_lshl_b32 s46, s{g.sWM}, 6'); a(f'v_add_u32 v{t+1}, s46, v{t}'); a(f'v_lshlrev_b32 v{t+1}, 7, v{t+1}'); a(f'v_add_u32 v{t+1}, {EPI}, v{t+1}')
    a(f'v_and_b32 v{t+6}, 7, v0'); a(f'v_lshrrev_b32 v{t+7}, 5, v0'); a(f's_lshl_b32 s47, s{g.sWN}, 2'); a(f'v_add_u32 v{t+7}, s47, v{t+7}')
    for rt in range(2):
        ag = g.ACC + (rt*2)*16; au = g.ACC + (rt*2+1)*16
        for i in range(16):
            x = t + 2 + (i & 3)
            a(f'v_mul_f32 v{x}, s48, v{ag+i}'); a(f'v_exp_f32 v{x}, v{x}'); a(f'v_add_f32 v{x}, 1.0, v{x}'); a(f'v_rcp_f32 v{x}, v{x}')
            a(f'v_mul_f32 v{ag+i}, v{ag+i}, v{x}'); a(f'v_mul_f32 v{ag+i}, v{ag+i}, v{au+i}')
        dst = g.FA + rt*8
        pack_T(a, ag, dst)
        for kk in range(2):
            a(f'v_add_u32 v{t+8}, {2*kk}, v{t+7}'); a(f'v_xor_b32 v{t+8}, v{t+8}, v{t+6}'); a(f'v_lshlrev_b32 v{t+8}, 4, v{t+8}'); a(f'v_add_u32 v{t+8}, v{t+8}, v{t+1}')
            a(f'ds_write_b128 v{t+8}, v[{dst+4*kk}:{dst+4*kk+3}] offset:{rt*4096}')
    a('s_waitcnt lgkmcnt(0)'); a('s_barrier')
    a(f'v_lshrrev_b32 v{t}, 3, v0'); a(f'v_and_b32 v{t+2}, 7, v0'); a(f'v_xor_b32 v{t+3}, v{t+2}, v{t}'); a(f'v_lshlrev_b32 v{t+3}, 4, v{t+3}')
    a(f'v_lshlrev_b32 v{t+4}, 7, v{t}'); a(f'v_add_u32 v{t+3}, v{t+3}, v{t+4}'); a(f's_lshl_b32 s46, s{g.sW}, 12'); a(f's_add_u32 s46, s46, {EPI}'); a(f'v_add_u32 v{t+3}, s46, v{t+3}')
    a(f's_mov_b32 s47, 3456'); a(f'v_mul_lo_u32 v{t}, v{t}, s47'); a(f'v_lshlrev_b32 v{t+2}, 4, v{t+2}'); a(f'v_add_u32 v{t}, v{t}, v{t+2}')
    a(f's_lshl_b32 s46, s{sB}, 7'); a(f's_lshl_b32 s47, s{g.sW}, 5'); a('s_add_u32 s46, s46, s47'); a('s_mul_i32 s45, s46, 3456'); a(f's_add_u32 s45, s45, {L.ACT}')
    a(f's_lshl_b32 s46, s{sSub}, 7'); a('s_add_u32 s45, s45, s46')
    for i in range(4): a(f'ds_read_b128 v[{g.FA+4*i}:{g.FA+4*i+3}], v{t+3} offset:{i*1024}')
    for i in range(4):
        a(f's_waitcnt lgkmcnt({3-i})')
        a(f's_add_u32 s47, s45, {i*8*3456}')
        a(f'buffer_store_dwordx4 v[{g.FA+4*i}:{g.FA+4*i+3}], v{t}, {WS}, s47 offen {SC}')
    ctr_addr(a, 49, L.C_UP, sB); signal(a, off_sreg=49)

def task_down(a, fail):
    g = G
    ctr_addr(a, 49, L.C_UP, sB); wait_ctr(a, 49, 27, fail)
    load_ptr(a, g.SB, 'Wd', 1728*640*2)
    a(f's_mul_i32 s41, s{sSub}, 43691'); a('s_lshr_b32 s41, s41, 17'); a('s_mul_i32 s42, s41, 3'); a(f's_sub_u32 s42, s{sSub}, s42')
    gemm_common(a, 3456, 1280)
    KS = 1728 // DNS
    a(f's_lshl_b32 s{g.sT0}, s{sB}, 7'); a(f's_lshl_b32 s{g.sT1}, s{g.sW}, 5'); a(f's_add_u32 s{g.sT0}, s{g.sT0}, s{g.sT1}')
    a(f's_mul_i32 s{g.sAoff}, s{g.sT0}, 3456'); a(f's_add_u32 s{g.sAoff}, s{g.sAoff}, {L.ACT}')
    a(f's_mul_i32 s{g.sT1}, s42, {KS*2}'); a(f's_add_u32 s{g.sAoff}, s{g.sAoff}, s{g.sT1}')
    a(f's_mul_i32 s{g.sBoff}, s42, {KS*1280}'); a(f's_lshl_b32 s{g.sT1}, s41, 8'); a(f's_add_u32 s{g.sBoff}, s{g.sBoff}, s{g.sT1}')
    a(f's_mul_i32 s{g.sT1}, s{g.sW}, {16*1280}'); a(f's_add_u32 s{g.sBoff}, s{g.sBoff}, s{g.sT1}')
    a('s_waitcnt lgkmcnt(0)')
    a('s_barrier')
    GM.mainloop(a, KS // 64, 3456, 1280, 'T')
    part_store(a, L.PART2, 42, sB, 41)
    ctr_addr(a, 49, L.C_DN, sB); signal(a, off_sreg=49)

def task_fin(a, fail):
    ctr_addr(a, 49, L.C_DN, sB); wait_ctr(a, 49, 5*DNS, fail)
    load_ptr(a, 8, 'out', 2048*640*2)
    rows16_setup(a)
    X = 32; PB = 72
    a(f's_mov_b32 s41, {L.H}')
    for c in range(10): a(f'buffer_load_dwordx4 v[{X+4*c}:{X+4*c+3}], v6, {WS}, s41 offen offset:{c*256}')
    for sp in range(DNS):
        a(f's_mov_b32 s41, {L.PART2 + sp*2048*640*4}')
        for c in range(10):
            b = PB + sp*40 + c*4
            a(f'buffer_load_dwordx4 v[{b}:{b+3}], v6, {WS}, s41 offen offset:{c*256}')
    a('s_waitcnt vmcnt(0) lgkmcnt(0)')
    for sp in range(DNS):
        for i in range(40): a(f'v_add_f32 v{X+i}, v{X+i}, v{PB+sp*40+i}')
    for i in range(20): a(f'v_cvt_pk_bf16_f32 v{8+i}, v{X+2*i}, v{X+2*i+1}')
    for c in range(10): a(f'buffer_store_dwordx2 v[{8+2*c}:{9+2*c}], v1, s[8:11], 0 offen offset:{c*128}')

TASKS = [('attn', 32), ('wo', 5*WOS), ('ln2', 8), ('up', 27), ('down', 5*DNS), ('fin', 8)]
PERB = sum(n for _, n in TASKS)
ROLES = [('attn', 32, 1), ('wo', 40, 1), ('ln2', 8, 1), ('up', 27, 2), ('down', 15, 1), ('fin', 8, 1)]

WTRACE = False
def wstamp(a, i):
    if not WTRACE: return
    a('s_memrealtime s[58:59]'); a('s_waitcnt lgkmcnt(0)')
    a(f's_lshl_b32 s56, s{sWI}, 6'); a(f's_add_u32 s56, s56, {L.TRACE + 16384 + 4*i}')
    a('v_mov_b32 v250, s58'); a('v_mov_b32 v251, 0')
    a(f'buffer_store_dword v250, v251, {WS}, s56 offen')

def emit_worker(a, fail, end):
    a.label('worker')
    a('s_lshr_b32 s40, s2, 3'); a('s_mul_i32 s40, s40, 6'); a('s_and_b32 s41, s2, 7'); a('s_add_u32 s40, s40, s41'); a(f's_sub_u32 s{sWI}, s40, 2')
    a('v_mov_b32 v254, v0')
    load_ptr(a, 4, 'ws', L.WS_BYTES)
    load_ptr(a, S_DBG, 'dbg', 256)
    a(f's_mov_b32 s{sSpin}, 0')
    a('s_waitcnt lgkmcnt(0)')
    wstamp(a, 0)
    nz = a.newlabel('nz')
    a(f's_cmp_lg_u32 s{sWI}, 0'); a(f's_cbranch_scc1 {nz}')
    a('v_lshlrev_b32 v1, 4, v0'); a('v_mov_b64 v[4:5], 0'); a('v_mov_b64 v[6:7], 0')
    for i in range(4):
        a(f's_mov_b32 s41, {L.SYNC + i*4096}')
        a(f'buffer_store_dwordx4 v[4:7], v1, {WS}, s41 offen sc1')
    signal(a, off_imm=12, dbg=True)
    a.label(nz)
    nl = a.newlabel('nl')
    a(f's_cmp_ge_u32 s{sWI}, 128'); a(f's_cbranch_scc1 {nl}')
    a(f's_mov_b32 s40, s{sWI}')
    task_ln1(a)
    signal(a, off_imm=8, dbg=True)
    a.label(nl)
    lp = a.newlabel('l1w'); ok = a.newlabel('l1ok')
    a('v_mov_b32 v251, 0')
    a.label(lp)
    a(f'buffer_load_dwordx2 v[248:249], v251, {DBG}, 0 offen offset:8 sc1')
    a('s_waitcnt vmcnt(0)')
    a('v_readfirstlane_b32 s56, v248'); a('v_readfirstlane_b32 s57, v249')
    a('s_cmp_lt_u32 s56, 128'); a(f's_cbranch_scc1 {lp}_s')
    a('s_cmp_ge_u32 s57, 1'); a(f's_cbranch_scc1 {ok}')
    a.label(f'{lp}_s')
    a(f's_add_u32 s{sSpin}, s{sSpin}, 1'); a(f's_cmp_gt_u32 s{sSpin}, {SPIN_MAX}'); a(f's_cbranch_scc1 {fail}')
    a('s_sleep 4')
    a(f's_branch {lp}')
    a.label(ok)
    wstamp(a, 1)
    vv = a.newlabel('vt'); qq = a.newlabel('qt')
    a(f's_cmp_ge_u32 s{sWI}, 96'); a(f's_cbranch_scc1 {vv}')
    a(f's_mov_b32 s62, s{sWI}')
    qkv_loop(a, 'kl', 1, 62, 96, L.C_KV, fail)
    a(f's_branch {qq}')
    a.label(vv)
    a(f's_sub_u32 s62, s{sWI}, 96')
    qkv_loop(a, 'vl', 2, 62, 96, L.C_KV, fail)
    a.label(qq)
    wstamp(a, 2)
    qkv_loop(a, 'ql', 0, sWI, 192, L.C_Q, fail)
    wstamp(a, 3)
    lp = a.newlabel('rzw'); ok = a.newlabel('rzok')
    a('v_mov_b32 v251, 0')
    a.label(lp)
    a(f'buffer_load_dword v248, v251, {DBG}, 0 offen sc1')
    a('s_waitcnt vmcnt(0)')
    a('v_readfirstlane_b32 s56, v248')
    a('s_cmp_ge_u32 s56, 64'); a(f's_cbranch_scc1 {ok}')
    a(f's_add_u32 s{sSpin}, s{sSpin}, 1'); a(f's_cmp_gt_u32 s{sSpin}, {SPIN_MAX}'); a(f's_cbranch_scc1 {fail}')
    a('s_sleep 8')
    a(f's_branch {lp}')
    a.label(ok)
    fns = dict(attn=task_attn, wo=task_wo, ln2=task_ln2, up=task_up, down=task_down, fin=task_fin)
    a(f's_mov_b32 s{sSub}, s{sWI}')
    for name, n, copies in ROLES:
        sk = a.newlabel('rk')
        a(f's_cmp_ge_u32 s{sSub}, {n*copies}'); a(f's_cbranch_scc1 {sk}')
        a(f's_mov_b32 s{sB}, 0')
        for c in range(1, copies):
            a(f's_cmp_ge_u32 s{sSub}, {n}'); a(f's_cselect_b32 s56, {n}, 0'); a(f's_cselect_b32 s57, 1, 0')
            a(f's_sub_u32 s{sSub}, s{sSub}, s56'); a(f's_add_u32 s{sB}, s{sB}, s57')
        a(f's_mov_b32 s62, s{sSub}')
        lp = a.newlabel('rlp')
        a.label(lp)
        a(f's_mov_b32 s{sSub}, s62')
        fns[name](a, fail)
        a('s_barrier')
        a(f's_add_u32 s{sB}, s{sB}, {copies}')
        a(f's_cmp_lt_u32 s{sB}, 16'); a(f's_cbranch_scc1 {lp}')
        a('s_branch post_done')
        a.label(sk)
        a(f's_sub_u32 s{sSub}, s{sSub}, {n*copies}')
    a.label('post_done')
    wstamp(a, 4)
    a('s_endpgm')

def emit_fused(a, kname):
    fail = 'fz_fail'; end = 'fz_end'
    a.label(kname)
    a(f's_cmp_ge_u32 s2, 256'); a(f's_cbranch_scc1 {end}')
    a('s_and_b32 s3, s2, 7')
    a('s_cmp_gt_u32 s3, 1'); a('s_cbranch_scc1 worker')
    CH.emit_chain_body(a, fail, end)
    emit_worker(a, fail, end)
    a.label(fail)
    a(f's_load_dwordx2 s[8:9], s[0:1], {L.KA["dbg"]}'); a('s_mov_b32 s10, 256'); a('s_mov_b32 s11, 0x00020000')
    a('s_waitcnt lgkmcnt(0)')
    a('v_mov_b32 v1, 0xdead'); a('v_mov_b32 v2, 252')
    a(f'buffer_store_dword v1, v2, s[8:11], 0 offen')
    a('s_waitcnt vmcnt(0)')
    a.label(end)
    a('s_endpgm')
```

```python
XN   = 0x0000000
Q    = 0x0400000
K    = 0x1400000
VT   = 0x2400000
O    = 0x3400000
KM   = 0x4400000
VM   = 0x4C00000
P1   = 0x5000000
P1SZ = 40 * 8192
MEMF = 0x5100000
MEMX = 0x5110000
MEMSZ = 10240
H    = 0x5200000
HN   = 0x5700000
ACT  = 0x5A00000
PART = 0x6100000
WS_BYTES = 268435456
NAME = 'sequential_preLN__memory_aug_recurrent_mem_tr__swiglu_ffn__prompt'
KA = dict(x=0, mem0=8, Wq=16, Wk=24, Wv=32, Wo=40, seg=48, Bx=56, Wg=64, Wu=72, Wd=80, out=88, dbg=96, ws=104)
PART2 = 0x9000000
SYNC = 0x5120000
C_KV, C_Q, C_AT, C_WO, C_LN2, C_UP, C_DN = range(7)
def ctr(kind, b=0): return SYNC + (kind * 16 + b) * 128
TRACE = 0xF000000
```

```python
import sys
sys.path.insert(0, 'gen')
from build import *
import chain5 as chain
chain.COARSE = '-c' in sys.argv
chain.FUSED = True
import fused
for x in sys.argv:
    if x.startswith('-sel='):
        chain.Stamps.sel = int(x[5:]); fused.STAMP = True
fused.WTRACE = '-w' in sys.argv
N = L.NAME
kn = N + '_kernel'
out = [x for x in sys.argv[1:] if not x.startswith('-')]
out = out[0] if out else f'cdna_kernels/{N}.s'
assemble([(kn, lambda a: fused.emit_fused(a, kn), {})], [(kn, (256,1,1), (256,1,1), 163840)], out)
```

```python
from asmlib import Asm
import layout as L
import struct

KVB = 0
AFR = 32768
QKX = 45056
OFR = 53248
SEL = 55296
WL  = 65536
GSLEEP = int(__import__('os').environ.get('GSLEEP', 3))
LDS_BYTES = 163840
SPIN_MAX = 1 << 22
OSLEEP = int(__import__('os').environ.get('OSLEEP', 3))
HSLEEP = int(__import__('os').environ.get('HSLEEP', 24))
TRACE = L.TRACE
COARSE = True

S_WS = 4; S_T0 = 8; S_DBG = 12; S_T1 = 20; S_T2 = 24
sH = 16; sW = 17; sS = 18; sSpin = 19
sRdy = 39; sKVr = 32; sP1c = 33; sP1b = 34; sKVw = 35; sPubF = 36; sPubX = 37; sOwnO = 38
sMaskH = 40; sMaskLo = 42; sC = 44
sP1w = 45; sP1r = 46; sMr = 47; sMw = 48; sMz = 49; sTmp = 50; sTmp2 = 51; sTmp3 = 52; sOwn = 53; sKV = 54; sVMo = 55; sKMo = 56
sM2 = 57; sKsrc = 58; sVsrc = 59; sFast = 60; sThr = 61
sT = 64
W = f's[{S_WS}:{S_WS+3}]'
MH = f's[{sMaskH}:{sMaskH+1}]'; ML = f's[{sMaskLo}:{sMaskLo+1}]'
SM = 'v_smfmac_f32_16x16x64_bf16'
MF32 = 'v_mfma_f32_16x16x32_bf16'
MF16 = 'v_mfma_f32_16x16x16_bf16'

def f32bits(x): return struct.unpack('<I', struct.pack('<f', x))[0]
C_SCALE = (128 ** -0.5) * 1.4426950408889634

def srd(a, base, ka_off, nbytes):
    a(f's_load_dwordx2 s[{base}:{base+1}], s[0:1], {ka_off}')
    a(f's_mov_b32 s{base+2}, {nbytes}')
    a(f's_mov_b32 s{base+3}, 0x00020000')

def emit(a, ops):
    for x in ops:
        if isinstance(x, (list, tuple)): emit(a, x)
        else: a(x)

def load_chunks(a, chunks, vaddr, nslots=10):
    N = len(chunks); DEPTH = nslots - 1
    def issue(c):
        ch = chunks[c]; slot = (c % nslots) * 16384
        a(f's_mul_i32 s{sTmp}, s{sW}, {ch["istep"]*4}')
        a(f's_add_u32 s{sTmp}, s{sTmp}, s{ch["sbase"]}')
        a(f's_lshl_b32 s{sTmp2}, s{sW}, 12')
        for j in range(4):
            a(f's_add_u32 s{sTmp3}, s{sTmp}, {ch["soff"] + j*ch["istep"]}')
            a(f's_add_u32 m0, s{sTmp2}, {slot + j*1024}')
            a(f'buffer_load_dwordx4 v{ch["vofs"]}, s[{ch["srd"]}:{ch["srd"]+3}], s{sTmp3} offen lds')
    for c in range(min(DEPTH, N)): issue(c)
    for c in range(N):
        ch = chunks[c]; slot = (c % nslots) * 16384
        inflight = min(N, c + DEPTH) - (c + 1)
        a(f's_waitcnt vmcnt({4*inflight})')
        a('s_barrier')
        if c + DEPTH < N: issue(c + DEPTH)
        a(f'v_add_u32 v{vaddr}, {slot}, v{ch["vtr"]}')
        for o in range(2):
            dest = ch['dests'][o]
            kind, base = dest[0], int(dest[1:])
            for rho in range(4):
                imm = ch['rows'][rho] * 256 + ch['tcol'][o]
                a(f'ds_read_b64_tr_b16 {kind}[{base+2*rho}:{base+2*rho+1}], v{vaddr} offset:{imm}')
        a('s_waitcnt lgkmcnt(0)')

def spin_check(a, lbl_fail):
    a(f's_add_u32 s{sSpin}, s{sSpin}, 1')
    a(f's_cmp_gt_u32 s{sSpin}, {SPIN_MAX}')
    a(f's_cbranch_scc1 {lbl_fail}')

def maxchain(a, dst, regs, op='u32'):
    regs = list(regs)
    a(f'v_max3_{op} v{dst}, v{regs[0]}, v{regs[1]}, v{regs[2]}')
    regs = regs[3:]
    while len(regs) >= 2:
        a(f'v_max3_{op} v{dst}, v{dst}, v{regs[0]}, v{regs[1]}'); regs = regs[2:]
    if regs:
        a(f'v_max_{op} v{dst}, v{dst}, v{regs[0]}')

def gather_pre(a, sOffReg):
    a(f's_sub_u32 s{sTmp}, s{sW}, 2')
    a(f's_mul_i32 s{sTmp}, s{sTmp}, 5120')
    a(f's_add_u32 s{sTmp}, s{sTmp}, s{sOffReg}')
    a(f's_add_u32 s{sTmp2}, s{sTmp}, 4096')

def gather(a, fail, st=None, fl='sc1'):
    fine = st is not None and 'fine' in __import__('os').environ.get('EXP', '')
    lp = a.newlabel('g5')
    a.label(lp)
    for i in range(4):
        a(f'buffer_load_dwordx4 v[{72+4*i}:{75+4*i}], v2, {W}, s{sTmp} offen offset:{i*1024} {fl}')
    a(f'buffer_load_dwordx4 v[88:91], v2, {W}, s{sTmp2} offen {fl}')
    spin_check(a, fail)
    if fine: st(a, 1)
    for i in range(5):
        a(f's_waitcnt vmcnt({4-i})')
        if fine and i == 0: st(a, 2)
        if fine and i == 4: st(a, 3)
        a(f'ds_write_b128 v3, v[{72+4*i}:{75+4*i}] offset:{i*1024}')
        if i == 0:
            a(f'v_max3_u32 v92, v72, v73, v74'); a(f'v_max_u32 v92, v92, v75')
        else:
            a(f'v_max3_u32 v92, v92, v{72+4*i}, v{73+4*i}'); a(f'v_max3_u32 v92, v92, v{74+4*i}, v{75+4*i}')
    if fine: a(f's_add_u32 s{sT+4}, s{sT+4}, 63')
    a('v_cmp_eq_u32 vcc, -1, v92')
    a(f's_cbranch_vccnz {lp}')

def mem0_frags(a):
    srd(a, S_T0, L.KA['mem0'], 10240)
    a('v_bfe_u32 v36, v0, 2, 2'); a('v_lshlrev_b32 v36, 1, v36'); a('v_and_b32 v37, 1, v0'); a('v_add_u32 v36, v36, v37')
    a('v_mul_u32_u24 v36, 1280, v36')
    a('v_lshrrev_b32 v37, 4, v0'); a('v_lshlrev_b32 v37, 5, v37'); a('v_add_u32 v36, v36, v37')
    a('v_bfe_u32 v37, v0, 1, 1'); a('v_lshlrev_b32 v37, 2, v37'); a('v_add_u32 v36, v36, v37')
    a(f's_lshl_b32 s{sTmp}, s{sW}, 7')
    a(f's_lshl_b32 s{sTmp3}, s{sW}, 10')
    a(f'v_add_u32 v38, s{sTmp3}, v4')
    a('s_waitcnt lgkmcnt(0)')
    for t in range(3):
        a(f's_add_u32 s{sTmp2}, s{sTmp}, {t*512}')
        for j in range(4):
            a(f'buffer_load_dword v{40+4*t+j}, v36, s[{S_T0}:{S_T0+3}], s{sTmp2} offen offset:{8*j}')
    a('s_waitcnt vmcnt(0)')
    for t in range(3):
        a(f'ds_write_b128 v38, v[{40+4*t}:{43+4*t}] offset:{t*4096}')
    a('s_waitcnt lgkmcnt(0)')

class Stamps:
    sel = 0; trace = False; tstep = 20
    def __init__(self, on): self.on = on
    def val(self, a, i, sreg):
        if not (self.on and self.trace): return
        lb = a.newlabel('tv')
        a(f's_cmp_lg_u32 s{sS}, {self.tstep + 1}'); a(f's_cbranch_scc1 {lb}')
        a(f's_mov_b32 s{sT+i}, s{sreg}')
        a.label(lb)
    def __call__(self, a, i):
        if not self.on: return
        if self.trace:
            a(f's_memrealtime s[{sT+14}:{sT+15}]')
            a('s_waitcnt lgkmcnt(0)')
            lb = a.newlabel('tr')
            a(f's_cmp_lg_u32 s{sS}, {self.tstep + (1 if (i in (8, 10, 11) and not getattr(self, "helper", False)) else 0)}'); a(f's_cbranch_scc1 {lb}')
            a(f's_mov_b32 s{sT+i}, s{sT+14}')
            a.label(lb)
            return
        a(f's_memtime s[{sT+14}:{sT+15}]')
        a('s_waitcnt lgkmcnt(0)')
        a(f's_sub_u32 s{sT+12}, s{sT+14}, s{sT+13}')
        a(f's_add_u32 s{sT+i}, s{sT+i}, s{sT+12}')
        a(f's_mov_b32 s{sT+13}, s{sT+14}')
    def dump(self, a, off):
        if not self.on: return
        if self.trace:
            a(f's_lshl_b32 s{sTmp}, s{sH}, 2'); a(f's_or_b32 s{sTmp}, s{sTmp}, s{sW}'); a(f's_lshl_b32 s{sTmp}, s{sTmp}, 6')
            a(f's_add_u32 s{sTmp}, s{sTmp}, {TRACE + off}')
            a('v_mov_b32 v36, 0')
            for i in range(12):
                a(f'v_mov_b32 v37, s{sT+i}')
                a(f'buffer_store_dword v37, v36, {W}, s{sTmp} offen offset:{4*i}')
            a('s_waitcnt vmcnt(0)')
        elif off == 0:
            sk = a.newlabel('tsk')
            a(f's_lshl_b32 s{sTmp}, s{sH}, 2'); a(f's_or_b32 s{sTmp}, s{sTmp}, s{sW}')
            a(f's_cmp_lg_u32 s{sTmp}, {self.sel}'); a(f's_cbranch_scc1 {sk}')
            a('v_mov_b32 v36, 0')
            for i in range(12):
                a(f'v_mov_b32 v37, s{sT+i}')
                a(f'buffer_store_dword v37, v36, s[{S_DBG}:{S_DBG+3}], 0 offen offset:{64+4*i}')
            a('s_waitcnt vmcnt(0)')
            a.label(sk)

def trbase(a, dst, wo):
    a('v_lshrrev_b32 v36, 4, v0'); a('v_bfe_u32 v37, v0, 2, 2')
    if not wo:
        a('v_lshlrev_b32 v38, 3, v36')
    else:
        a('v_and_b32 v38, 1, v36'); a('v_lshlrev_b32 v38, 5, v38')
        a('v_lshrrev_b32 v39, 1, v36'); a('v_lshlrev_b32 v39, 2, v39'); a('v_add_u32 v38, v38, v39')
    a('v_add_u32 v38, v38, v37'); a('v_lshlrev_b32 v38, 8, v38')
    a('v_and_b32 v39, 3, v0'); a('v_lshlrev_b32 v39, 3, v39')
    a(f'v_add_u32 v{dst}, v38, v39')
    a(f's_lshl_b32 s{sTmp}, s{sW}, {5 if wo else 6}')
    a(f'v_add_u32 v{dst}, s{sTmp}, v{dst}')

def rendezvous(a, is_main, fail):
    a('s_waitcnt vmcnt(0)')
    a('s_barrier')
    skip = a.newlabel('rz')
    a(f's_cmp_lg_u32 s{sW}, 0'); a(f's_cbranch_scc1 {skip}')
    a('s_mov_b64 s[62:63], exec'); a('s_mov_b64 exec, 1')
    a('v_mov_b32 v36, 0')
    if is_main:
        a(f's_getreg_b32 s{sTmp}, hwreg(HW_REG_XCC_ID)')
        a(f's_and_b32 s{sTmp}, s{sTmp}, 15'); a(f's_lshl_b32 s{sTmp}, 1, s{sTmp}')
        a(f'v_mov_b32 v37, s{sTmp}')
        a(f'buffer_atomic_or v37, v36, s[{S_DBG}:{S_DBG+3}], 0 offen offset:4')
        a('s_waitcnt vmcnt(0)')
    a('v_mov_b32 v37, 1')
    a(f'buffer_atomic_add v37, v36, s[{S_DBG}:{S_DBG+3}], 0 offen')
    a('s_mov_b64 exec, s[62:63]')
    a.label(skip)
    lp = a.newlabel('rzp')
    a('v_mov_b32 v36, 0')
    a.label(lp)
    a('s_sleep 2')
    a(f'buffer_load_dwordx2 v[38:39], v36, s[{S_DBG}:{S_DBG+3}], 0 offen sc1')
    spin_check(a, fail)
    a('s_waitcnt vmcnt(0)')
    a(f'v_readfirstlane_b32 s{sTmp}, v38')
    a(f's_cmp_lt_u32 s{sTmp}, 64'); a(f's_cbranch_scc1 {lp}')
    if FUSED:
        lp3 = a.newlabel('rzi')
        a.label(lp3)
        a('s_sleep 2')
        a(f'buffer_load_dword v38, v36, s[{S_DBG}:{S_DBG+3}], 0 offen offset:16 sc1')
        spin_check(a, fail)
        a('s_waitcnt vmcnt(0)')
        a(f'v_readfirstlane_b32 s{sTmp}, v38')
        a(f's_cmp_lt_u32 s{sTmp}, 64'); a(f's_cbranch_scc1 {lp3}')
    a(f'buffer_load_dwordx2 v[38:39], v36, s[{S_DBG}:{S_DBG+3}], 0 offen sc1')
    a('s_waitcnt vmcnt(0)')
    a(f'v_readfirstlane_b32 s{sTmp}, v39')
    a(f's_bcnt1_i32_b32 s{sTmp}, s{sTmp}')
    a(f's_cmp_eq_u32 s{sTmp}, 1')
    a(f's_cselect_b32 s{sFast}, 1, 0')

FUSED = False
def emit_chain_body(a, fail, end, st=None):
    st = st or Stamps(False)
    a(f's_lshr_b32 s{sH}, s2, 3')
    srd(a, S_WS, L.KA['ws'], L.WS_BYTES)
    srd(a, S_DBG, L.KA['dbg'], 256)
    if COARSE: a('s_memrealtime s[96:97]')
    a(f'v_lshrrev_b32 v1, 6, v0'); a(f'v_readfirstlane_b32 s{sW}, v1'); a(f'v_and_b32 v0, 63, v0')
    a(f's_mov_b32 s{sMaskH}, 0xCCCCCCCC'); a(f's_mov_b32 s{sMaskH+1}, 0xCCCCCCCC')
    a(f's_mov_b32 s{sMaskLo}, -1'); a(f's_mov_b32 s{sMaskLo+1}, 0')
    a(f'v_mov_b32 v1, 0x4444'); a(f'v_mov_b32 v2, 0xEEEE')
    a(f'v_cndmask_b32 v1, v1, v2, {MH}')
    a(f'v_lshlrev_b32 v2, 4, v0')
    a(f's_mov_b32 s{sC}, {hex(f32bits(C_SCALE))}')
    a(f's_mov_b32 s{sThr}, {hex(f32bits(60.0))}')
    a(f's_mov_b32 s{sSpin}, 0')
    for i in range(14): a(f's_mov_b32 s{sT+i}, 0')
    a(f'v_add_u32 v4, {AFR}, v2')
    a('s_waitcnt lgkmcnt(0)')
    a('s_cmp_eq_u32 s3, 1'); a(f's_cbranch_scc1 chain_helper')
    emit_main(a, st, fail, end)
    emit_helper(a, st, fail, end)

def emit_chain(a, timing=False, kname='chain_kernel'):
    fail = 'chain_fail'; end = 'chain_end'
    st = Stamps(timing)
    a.label(kname)
    a(f's_cmp_ge_u32 s2, 256'); a(f's_cbranch_scc1 {end}')
    a('s_and_b32 s3, s2, 7')
    a('s_cmp_gt_u32 s3, 1'); a(f's_cbranch_scc1 {end}')
    emit_chain_body(a, fail, end, st)
    a.label(fail)
    a('v_mov_b32 v1, 0xdead'); a('v_mov_b32 v2, 252')
    a(f'buffer_store_dword v1, v2, s[{S_DBG}:{S_DBG+3}], 0 offen')
    a('s_waitcnt vmcnt(0)')
    a.label(end)
    a('s_endpgm')

def qk_home(m, t, kb):
    idx = m * 20 + kb * 2 + t
    if idx < 32: return ('a', idx * 8)
    return ('v', 128 + (idx - 32) * 8)
def rr(home, n=8): return f'{home[0]}[{home[1]}:{home[1]+n-1}]'
def wo_pair(cg, eb):
    if eb == 0 and cg < 4: return None
    if cg < 4: return cg
    return 4 + eb

def interleave(a, mf, fill, start=0, per=1):
    fi = 0
    for i, m in enumerate(mf):
        emit(a, m if isinstance(m, list) else [m])
        if i >= start:
            for _ in range(per):
                if fi < len(fill):
                    g = fill[fi]; fi += 1
                    emit(a, g if isinstance(g, list) else [g])
    while fi < len(fill):
        g = fill[fi]; fi += 1
        emit(a, g if isinstance(g, list) else [g])

def half_add_ops(ra, rb):
    return [f'v_permlane32_swap_b32 v{ra+r}, v{rb+r}' for r in range(4)] + [f'v_add_f32 v{ra+r}, v{ra+r}, v{rb+r}' for r in range(4)]


import os
EXP = os.environ.get('EXP', '')
sTch = 30
sTag = 49; sFlip = 34; sFlipO = 34; sMf = 33
sOwnP = 31
def zero(lo, hi): return [f'v_mov_b64 v[{r}:{r+1}], 0' for r in range(lo, hi, 2)]

def dma_w(a):
    a(f's_mov_b32 m0, s{sKVw}')
    a(f'buffer_load_dwordx4 v10, {W}, s{sKsrc} offen lds')
    a(f'buffer_load_dwordx4 v13, {W}, s{sKsrc} offen offset:1024 lds')
    a(f's_add_u32 m0, s{sKVw}, 8192')
    a(f'buffer_load_dwordx4 v2, {W}, s{sVsrc} offen lds')
    a(f'buffer_load_dwordx4 v2, {W}, s{sVsrc} offen offset:1024 lds')

def km_ops(land):
    return [f's_lshl_b32 s{sTmp3}, s{sW}, 10', f'v_add_u32 v{land+4}, s{sTmp3}, v6',
            f'ds_read_b64_tr_b16 v[{land}:{land+1}], v{land+4} offset:4096', f'ds_read_b64_tr_b16 v[{land+2}:{land+3}], v{land+4} offset:{4096+128}',
            's_waitcnt lgkmcnt(0)',
            f'buffer_store_dwordx4 v[{land}:{land+3}], v2, {W}, s{sKMo} offen sc1',
            f's_add_u32 s{sKMo}, s{sKMo}, {32*4096}']

def advance(a):
    if FUSED:
        a(f'v_readfirstlane_b32 s{sRdy}, v12'); a('v_mov_b32 v12, -1')
    a(f's_add_u32 s{sKsrc}, s{sKsrc}, {32*8192}'); a(f's_add_u32 s{sVsrc}, s{sVsrc}, {32*8192}');
    a(f's_xor_b32 s{sKVw}, s{sKVw}, 16384')
    a('v_xor_b32 v14, 16384, v14')
    a(f's_add_u32 s{sS}, s{sS}, 1')
    a(f's_add_u32 s{sVMo}, s{sVMo}, {32*2048}'); a(f's_add_u32 s{sKMo}, s{sKMo}, {32*4096}')
    a(f's_mov_b32 s{sTmp3}, s{sP1w}'); a(f's_mov_b32 s{sP1w}, s{sP1r}'); a(f's_mov_b32 s{sP1r}, s{sTmp3}')
    a(f's_add_u32 s{sMw}, s{sMw}, {L.MEMSZ}'); a(f's_xor_b32 s{sMf}, s{sMf}, {L.MEMSZ}')
    a(f's_bfe_u32 s{sTag}, s{sS}, {(1 << 16) | 1}'); a(f's_xor_b32 s{sFlip}, s{sTag}, 1')

def emit_main(a, st, fail, end):
    a.comment('======== MAIN ========')
    srd(a, S_T0, L.KA['Wq'], 640*4096*2)
    srd(a, S_T1, L.KA['Wk'], 640*4096*2)
    srd(a, S_T2, L.KA['Wo'], 640*4096*2)
    a('v_lshrrev_b32 v36, 4, v0'); a('v_and_b32 v37, 15, v0'); a('v_lshlrev_b32 v37, 4, v37')
    a('v_lshlrev_b32 v10, 13, v36'); a('v_add_u32 v10, v10, v37')
    a('v_mul_u32_u24 v11, 1280, v36'); a('v_add_u32 v11, v11, v37')
    trbase(a, 12, False)
    trbase(a, 13, True)
    a(f's_lshl_b32 s28, s{sH}, 8')
    a(f's_mul_i32 s29, s{sH}, {128*1280}')
    a('s_waitcnt lgkmcnt(0)')
    chunks = []
    for m, s_ in ((0, S_T0), (1, S_T1)):
        for kb in range(10):
            d = [qk_home(m, t, kb) for t in range(2)]
            chunks.append(dict(srd=s_, vofs=10, sbase=28, soff=64*kb*8192, istep=4*8192, vtr=12, rows=[0, 4, 32, 36], tcol=[0, 32],
                               dests=[f'{x[0]}{x[1]}' for x in d]))
    for eb in range(2):
        for cg in range(5):
            p = wo_pair(cg, eb)
            d = [f'v{192 + (cg*2+t)*8}' if p is None else f'v{20 + (p*2+t)*8}' for t in range(2)]
            chunks.append(dict(srd=S_T2, vofs=11, sbase=29, soff=64*eb*1280 + cg*256, istep=4*1280, vtr=13, rows=[0, 16, 8, 24], tcol=[0, 128], dests=d))
    load_chunks(a, chunks, 14)
    if COARSE: a('s_memrealtime s[90:91]')
    a('s_barrier')
    a(f's_mul_i32 s{sTmp}, s{sW}, {12*2048}'); a(f's_add_u32 s{sTmp}, s{sTmp}, {WL}')
    a(f'v_add_u32 v15, s{sTmp}, v2')
    for i in range(12):
        a(f'ds_write_b128 v15, v[{20+8*i}:{23+8*i}] offset:{i*2048}')
        a(f'ds_write_b128 v15, v[{24+8*i}:{27+8*i}] offset:{i*2048+1024}')
    a('s_waitcnt lgkmcnt(0)')
    a(f's_sub_u32 s{sTmp}, s{sW}, 2'); a(f's_mul_i32 s{sTmp}, s{sTmp}, 5120'); a(f'v_add_u32 v3, s{sTmp}, v4')
    a('v_and_b32 v36, 15, v0'); a('v_lshlrev_b32 v36, 5, v36'); a('v_lshrrev_b32 v37, 4, v0'); a('v_lshlrev_b32 v37, 3, v37'); a('v_add_u32 v36, v36, v37')
    a(f's_lshl_b32 s{sTmp}, s{sW}, 10'); a(f's_add_u32 s{sTmp}, s{sTmp}, {QKX}'); a(f'v_add_u32 v5, s{sTmp}, v36')
    a('v_lshrrev_b32 v36, 4, v0'); a('v_lshlrev_b32 v36, 3, v36'); a('v_bfe_u32 v37, v0, 2, 2'); a('v_add_u32 v36, v36, v37')
    a('v_lshlrev_b32 v36, 5, v36'); a('v_and_b32 v37, 3, v0'); a('v_lshlrev_b32 v37, 3, v37'); a('v_add_u32 v36, v36, v37')
    a(f'v_add_u32 v6, {QKX}, v36')
    a('v_lshrrev_b32 v36, 4, v0'); a('v_lshlrev_b32 v36, 13, v36'); a('v_and_b32 v37, 15, v0'); a('v_lshlrev_b32 v37, 4, v37'); a('v_add_u32 v7, v36, v37')
    a('v_bfe_u32 v36, v0, 2, 2'); a('v_lshlrev_b32 v36, 10, v36'); a('v_and_b32 v37, 3, v0'); a('v_lshlrev_b32 v37, 4, v37'); a('v_add_u32 v36, v36, v37')
    a('v_lshrrev_b32 v37, 4, v0'); a('v_lshlrev_b32 v37, 2, v37'); a('v_add_u32 v8, v36, v37')
    a('v_lshlrev_b32 v9, 3, v0')
    a(f's_lshr_b32 s{sTmp}, s{sW}, 1'); a(f's_lshl_b32 s{sTmp}, s{sTmp}, 10'); a(f's_and_b32 s{sTmp2}, s{sW}, 1'); a(f's_lshl_b32 s{sTmp2}, s{sTmp2}, 3')
    a(f's_add_u32 s{sTmp}, s{sTmp}, s{sTmp2}'); a(f's_add_u32 s{sTmp}, s{sTmp}, {OFR}'); a(f'v_add_u32 v11, s{sTmp}, v2')
    a('v_bfe_u32 v36, v0, 2, 1'); a('v_lshlrev_b32 v36, 4, v36'); a('v_bfe_u32 v37, v0, 3, 1'); a('v_lshlrev_b32 v37, 2, v37')
    a('v_add_u32 v36, v36, v37'); a('v_and_b32 v37, 3, v0'); a('v_add_u32 v36, v36, v37'); a('v_lshlrev_b32 v36, 13, v36')
    a('v_lshrrev_b32 v37, 4, v0'); a('v_lshlrev_b32 v37, 4, v37'); a('v_add_u32 v10, v36, v37')
    a('v_mov_b32 v12, -1')
    a('v_bfe_u32 v36, v0, 2, 2'); a('v_lshlrev_b32 v36, 1, v36'); a('v_and_b32 v37, 1, v0'); a('v_add_u32 v36, v36, v37')
    for q in range(4):
        a(f'v_mov_b32 v{16+q}, 0'); a(f'v_mov_b32 v37, 0x3F80')
        a(f'v_cmp_eq_u32 vcc, {2*q}, v36'); a(f'v_cndmask_b32 v{16+q}, v{16+q}, v37, vcc')
        a(f'v_mov_b32 v37, 0x3F800000')
        a(f'v_cmp_eq_u32 vcc, {2*q+1}, v36'); a(f'v_cndmask_b32 v{16+q}, v{16+q}, v37, vcc')
    a(f'v_add_u32 v13, {SEL}, v2')
    a('ds_write_b128 v13, v[16:19]')
    a('s_waitcnt lgkmcnt(0)')
    for q in range(4): a(f'v_mov_b32 v{16+q}, 0x3F803F80')
    a(f'v_add_u32 v14, {KVB}, v2')
    a('v_mov_b32 v121, 0'); a('v_mov_b32 v122, 0'); a(f'v_mov_b32 v124, s{sC}')
    a(f's_mov_b32 s{sOwn}, -1')
    a(f's_cmp_eq_u32 s{sW}, 0'); a(f's_cselect_b32 s{sOwn}, s{sH}, s{sOwn}')
    a(f's_add_u32 s{sTmp}, s{sH}, 32'); a(f's_cmp_lt_u32 s{sTmp}, 48'); a(f's_cselect_b32 s{sTmp}, s{sTmp}, -1')
    a(f's_cmp_eq_u32 s{sW}, 1'); a(f's_cselect_b32 s{sOwn}, s{sTmp}, s{sOwn}')
    a(f's_lshr_b32 s{sTmp}, s{sOwn}, 2'); a(f's_and_b32 s{sTmp}, s{sTmp}, 15'); a(f's_mul_i32 s{sTmp2}, s{sTmp}, 11'); a(f's_lshr_b32 s{sTmp2}, s{sTmp2}, 5')
    a(f's_mul_i32 s{sTmp3}, s{sTmp2}, 3'); a(f's_sub_u32 s{sTmp3}, s{sTmp}, s{sTmp3}')
    a(f's_lshl_b32 s{sOwnP}, s{sTmp3}, 12'); a(f's_lshl_b32 s{sTmp2}, s{sTmp2}, 8'); a(f's_add_u32 s{sOwnP}, s{sOwnP}, s{sTmp2}')
    a(f's_and_b32 s{sTmp}, s{sOwn}, 3'); a(f's_lshl_b32 s{sTmp}, s{sTmp}, 6'); a(f's_add_u32 s{sOwnP}, s{sOwnP}, s{sTmp}')
    a(f's_cmp_eq_u32 s{sOwn}, -1'); a(f's_cselect_b32 s{sOwnP}, 24576, s{sOwnP}')
    a(f's_mul_i32 s{sP1w}, s{sW}, {3*32768}'); a(f's_lshl_b32 s{sTmp}, s{sH}, 8')
    a(f's_add_u32 s{sP1w}, s{sP1w}, s{sTmp}'); a(f's_add_u32 s{sP1w}, s{sP1w}, {L.P1}')
    a(f's_add_u32 s{sP1r}, s{sP1w}, {L.P1SZ}')
    a('s_barrier')
    mem0_frags(a)
    a(f's_lshl_b32 s{sKsrc}, s{sH}, 8'); a(f's_add_u32 s{sKsrc}, s{sKsrc}, {L.K}')
    a(f's_lshl_b32 s{sVsrc}, s{sH}, 13'); a(f's_add_u32 s{sVsrc}, s{sVsrc}, {L.VT}')
    a(f's_lshl_b32 s{sVMo}, s{sH}, 11'); a(f's_add_u32 s{sVMo}, s{sVMo}, {L.VM}'); a(f's_lshl_b32 s{sTmp}, s{sW}, 9'); a(f's_add_u32 s{sVMo}, s{sVMo}, s{sTmp}')
    a(f's_lshl_b32 s{sKMo}, s{sH}, 12'); a(f's_add_u32 s{sKMo}, s{sKMo}, {L.KM}')
    a(f's_lshl_b32 s{sTmp}, s{sW}, 10'); a(f's_add_u32 s{sKMo}, s{sKMo}, s{sTmp}')
    if FUSED:
        lp = a.newlabel('kvw'); lp2 = a.newlabel('kvw2')
        a('v_mov_b32 v36, 0')
        a.label(lp)
        a('s_sleep 8')
        a(f'buffer_load_dword v37, v36, s[{S_DBG}:{S_DBG+3}], 0 offen offset:12 sc1')
        spin_check(a, fail)
        a('s_waitcnt vmcnt(0)')
        a(f'v_readfirstlane_b32 s{sTmp}, v37'); a(f's_cmp_eq_u32 s{sTmp}, 0'); a(f's_cbranch_scc1 {lp}')
        a(f's_mov_b32 s{sTmp2}, {L.ctr(L.C_KV)}')
        a.label(lp2)
        a('s_sleep 8')
        a(f'buffer_load_dword v37, v36, {W}, s{sTmp2} offen sc1')
        spin_check(a, fail)
        a('s_waitcnt vmcnt(0)')
        a('v_cmp_gt_u32 vcc, 64, v37'); a(f's_cbranch_vccnz {lp2}')
        a(f's_mov_b32 s{sRdy}, 64')
    a('v_subrev_u32 v13, 960, v10')
    a(f's_lshr_b32 s{sTmp}, s{sW}, 1'); a(f's_lshl_b32 s{sTmp}, s{sTmp}, 16')
    a(f's_and_b32 s{sTmp2}, s{sW}, 1'); a(f's_lshl_b32 s{sTmp2}, s{sTmp2}, 7')
    a(f's_add_u32 s{sTmp}, s{sTmp}, s{sTmp2}'); a(f's_add_u32 s{sKsrc}, s{sKsrc}, s{sTmp}')
    a(f's_lshl_b32 s{sTmp}, s{sW}, 11'); a(f's_add_u32 s{sVsrc}, s{sVsrc}, s{sTmp}')
    a(f's_add_u32 s{sKVw}, s{sTmp}, {KVB}')
    dma_w(a)
    a(f's_add_u32 s{sKsrc}, s{sKsrc}, {32*8192}'); a(f's_add_u32 s{sVsrc}, s{sVsrc}, {32*8192}'); a(f's_xor_b32 s{sKVw}, s{sKVw}, 16384')
    if COARSE: a('s_memrealtime s[88:89]'); a('s_waitcnt lgkmcnt(0)')
    rendezvous(a, True, fail)
    a(f's_mov_b32 s{sS}, 0')
    a(f's_mov_b32 s{sMw}, {L.MEMSZ}'); a(f's_mov_b32 s{sMf}, {L.MEMSZ}'); a(f's_mov_b32 s{sTag}, 0'); a(f's_mov_b32 s{sFlip}, 1')
    emit(a, zero(20, 36))
    a('s_barrier')
    if st.on and not st.trace:
        a(f's_memtime s[{sT+14}:{sT+15}]'); a('s_waitcnt lgkmcnt(0)'); a(f's_mov_b32 s{sT+13}, s{sT+14}')
    if COARSE:
        a('s_memrealtime s[98:99]'); a('s_memtime s[92:93]'); a('s_waitcnt lgkmcnt(0)')
    a(f's_cmp_eq_u32 s{sFast}, 0'); a('s_cbranch_scc1 main_loop_safe')
    main_loop(a, True, st, fail)
    main_loop(a, False, st, fail)
    a.label('main_last')
    a(f's_lshl_b32 s{sKMo}, s{sH}, 12'); a(f's_add_u32 s{sKMo}, s{sKMo}, {L.KM + 63*32*4096}'); a(f's_lshl_b32 s{sTmp}, s{sW}, 10'); a(f's_add_u32 s{sKMo}, s{sKMo}, s{sTmp}')
    emit(a, km_ops(40))
    st.dump(a, 0)
    if COARSE:
        sk = a.newlabel('csk')
        a('s_memrealtime s[100:101]'); a('s_memtime s[94:95]'); a('s_waitcnt lgkmcnt(0)')
        a(f's_or_b32 s{sTmp}, s{sH}, s{sW}'); a(f's_cmp_lg_u32 s{sTmp}, 0'); a(f's_cbranch_scc1 {sk}')
        a('v_mov_b32 v36, 0')
        a('s_sub_u32 s98, s98, s96'); a('s_sub_u32 s100, s100, s96'); a('s_sub_u32 s94, s94, s92')
        a('s_sub_u32 s90, s90, s96'); a('s_sub_u32 s88, s88, s96')
        for i, r in enumerate((98, 100, 94, 90, 88)):
            a(f'v_mov_b32 v37, s{r}')
            a(f'buffer_store_dword v37, v36, s[{S_DBG}:{S_DBG+3}], 0 offen offset:{128+4*i}')
        a('s_waitcnt vmcnt(0)')
        a.label(sk)
    a(f's_branch {end}')

def main_loop(a, fast, st, fail):
    sc = '' if fast else 'sc1'
    tag = 'fast' if fast else 'safe'
    a.label(f'main_loop_{tag}')
    F = lambda kb: f'v[{72+4*kb}:{75+4*kb}]'
    if 'skel' in EXP:
        a(f's_cmp_ge_u32 s{sS}, 63'); a('s_cbranch_scc1 main_last')
        a(f's_sleep {int(os.environ.get("CSLEEP", 8))}')
        emit(a, zero(28, 40))
        st(a, 0)
        for qq in range(3):
            a(f'v_and_or_b32 v{28+4*qq}, v{28+4*qq}, -2, s{sTag}')
            a(f's_add_u32 s{sTmp}, s{sP1w}, {qq*32768}'); a(f'buffer_store_dwordx4 v[{28+4*qq}:{31+4*qq}], v7, {W}, s{sTmp} offen {sc}')
        a(f's_branch skel_{tag}')
    for kb in range(10):
        a(f'ds_read_b128 {F(kb)}, v4 offset:{kb*1024}')
    if FUSED:
        rok = a.newlabel('rok'); rl = a.newlabel('rl')
        a(f's_cmp_ge_u32 s{sRdy}, 64'); a(f's_cbranch_scc1 {rok}')
        a(f's_add_u32 s{sTmp}, s{sS}, 1'); a(f's_lshr_b32 s{sTmp}, s{sTmp}, 2'); a(f's_min_u32 s{sTmp}, s{sTmp}, 15'); a(f's_lshl_b32 s{sTmp}, s{sTmp}, 7'); a(f's_add_u32 s{sTmp}, s{sTmp}, {L.ctr(L.C_KV)}')
        a.label(rl)
        a(f'buffer_load_dword v36, v121, {W}, s{sTmp} offen sc1')
        spin_check(a, fail)
        a('s_waitcnt vmcnt(0)')
        a(f'v_readfirstlane_b32 s{sRdy}, v36')
        a(f's_cmp_lt_u32 s{sRdy}, 64'); a(f's_cbranch_scc1 {rl}')
        a.label(rok)
    if 'nodma' not in EXP: dma_w(a)
    mf = []
    for kb in range(10):
        for t in range(2):
            ins = f'{SM} v[{20+4*t}:{23+4*t}], {F(kb)}, {rr(qk_home(0, t, kb))}, v1'
            nk = max(0, 2*(kb-6)) if kb >= 6 else 0
            mf.append([f's_waitcnt lgkmcnt({9-kb+nk})', ins] if t == 0 else ins)
    fill = [[]]*12 + [f'ds_read_b128 v[{40+4*i}:{43+4*i}], v14 offset:{i*1024}' for i in range(8)]
    interleave(a, mf, fill)
    st(a, 0)
    mf = [f'{SM} v[{28+4*t}:{31+4*t}], {F(kb)}, {rr(qk_home(1, t, kb))}, v1' for kb in range(10) for t in range(2)]
    fill = [[], [], 'v_add_f32 v20, v20, v22', 'v_add_f32 v21, v21, v23', 'v_add_f32 v24, v24, v26', 'v_add_f32 v25, v25, v27',
            'v_cvt_pk_bf16_f32 v36, v20, v21', 'v_cvt_pk_bf16_f32 v37, v24, v25',
            'ds_write2_b32 v5, v36, v36 offset0:0 offset1:1', 'ds_write2_b32 v5, v37, v37 offset0:128 offset1:129', 'v_add_u32 v39, 4096, v5', [],
            ['s_waitcnt lgkmcnt(0)', 's_barrier']]
    fill += [[f'ds_read_b64_tr_b16 v[{72+4*kp}:{73+4*kp}], v6 offset:{kp*1024}', f'ds_read_b64_tr_b16 v[{74+4*kp}:{75+4*kp}], v6 offset:{kp*1024+128}'] for kp in range(4)]
    interleave(a, mf, fill)
    st(a, 1)
    mf = []
    for kp in range(4):
        c1 = '0' if kp == 0 else 'v[20:23]'; c2 = '0' if kp == 0 else 'v[24:27]'
        mf.append([f's_waitcnt lgkmcnt({6-2*kp})', f'{MF32} v[20:23], v[{40+4*kp}:{43+4*kp}], v[{72+4*kp}:{75+4*kp}], {c1}'])
        mf.append(f'{MF32} v[24:27], v[{56+4*kp}:{59+4*kp}], v[{72+4*kp}:{75+4*kp}], {c2}')
    fill = [[], ['v_add_f32 v28, v28, v30', 'v_add_f32 v29, v29, v31'], ['v_add_f32 v32, v32, v34', 'v_add_f32 v33, v33, v35'],
            ['v_cvt_pk_bf16_f32 v36, v28, v29', 'v_cvt_pk_bf16_f32 v37, v32, v33'], [], [], [],
            ['ds_write2_b32 v39, v36, v36 offset0:0 offset1:1', 'ds_write2_b32 v39, v37, v37 offset0:128 offset1:129']]
    interleave(a, mf, fill)
    a(f's_lshl_b32 s{sTmp}, s{sW}, 11'); a(f'v_add_u32 v127, s{sTmp}, v14')
    a('v_max3_f32 v126, v20, v21, v22'); a('v_max3_f32 v125, v23, v24, v25')
    a('s_waitcnt lgkmcnt(0)')
    a('s_barrier')
    a(f's_cmp_ge_u32 s{sS}, 63'); a('s_cbranch_scc1 main_last')
    for kp in range(4):
        for rho in range(2):
            a(f'ds_read_b64_tr_b16 v[{88+4*kp+2*rho}:{89+4*kp+2*rho}], v6 offset:{4096+kp*1024+rho*128}')
    a('ds_read_b128 v[104:107], v127 offset:8192'); a('ds_read_b128 v[108:111], v127 offset:9216')
    a(f'buffer_load_dwordx2 v[112:113], v9, {W}, s{sVMo} offen sc1')
    a('v_max3_f32 v126, v126, v26, v27'); a('v_max_f32 v126, v126, v125')
    a('v_mov_b32 v125, v126')
    if FUSED:
        a(f's_add_u32 s{sTmp}, s{sS}, 2'); a(f's_lshr_b32 s{sTmp}, s{sTmp}, 2'); a(f's_min_u32 s{sTmp}, s{sTmp}, 15'); a(f's_lshl_b32 s{sTmp}, s{sTmp}, 7'); a(f's_add_u32 s{sTmp}, s{sTmp}, {L.ctr(L.C_KV)}')
    else:
        a('s_nop 0')
    a('v_permlane32_swap_b32 v126, v125'); a('v_max_f32 v126, v126, v125')
    a('v_mov_b32 v125, v126')
    if FUSED: a(f'buffer_load_dword v12, v121, {W}, s{sTmp} offen sc1')
    a('v_permlane16_swap_b32 v126, v125'); a('v_max_f32 v126, v126, v125')
    a('v_mul_f32 v127, v124, v126'); a('v_sub_f32 v127, 0, v127')
    st(a, 2)
    wl = []
    for i in range(4):
        wl += [f'ds_read_b128 v[{40+8*i}:{43+8*i}], v15 offset:{i*2048}', f'ds_read_b128 v[{44+8*i}:{47+8*i}], v15 offset:{i*2048+1024}']
    for r in range(20, 28): a(f'v_fma_f32 v{r}, v{r}, v124, v127')
    mfs = []
    for kp in range(4):
        c0 = '0' if kp == 0 else 'v[28:31]'
        mfs.append([f's_waitcnt lgkmcnt({2 + 6 - 2*kp})', f'{MF32} v[28:31], v[{88+4*kp}:{91+4*kp}], v[{72+4*kp}:{75+4*kp}], {c0}'])
    fill = [[f'v_exp_f32 v{r}, v{r}', f'v_exp_f32 v{r+1}, v{r+1}'] for r in range(20, 28, 2)]
    interleave(a, mfs, fill)
    a(f'buffer_load_dwordx2 v[114:115], v9, {W}, s{sVMo} offen sc1')
    a('v_cvt_pk_bf16_f32 v116, v20, v21'); a('v_cvt_pk_bf16_f32 v117, v22, v23')
    a('v_cvt_pk_bf16_f32 v118, v24, v25'); a('v_cvt_pk_bf16_f32 v119, v26, v27')
    a('v_fma_f32 v28, v28, v124, v127'); a('v_fma_f32 v29, v29, v124, v127')
    st(a, 3)
    a('s_waitcnt lgkmcnt(0)')
    a(f'{MF32} v[32:35], v[104:107], v[116:119], 0')
    a('v_max_f32 v126, v28, v29')
    a(f'{MF32} v[36:39], v[108:111], v[116:119], 0')
    a(f'v_cmp_lt_f32 vcc, s{sThr}, v126')
    a(f'{MF32} v[20:23], v[16:19], v[116:119], 0')
    emit(a, wl[:4])
    ok = a.newlabel('thr')
    a(f's_cbranch_vccz {ok}')
    a('v_max_f32 v126, 0, v126')
    a('v_mov_b32 v125, v126'); a('v_permlane32_swap_b32 v126, v125'); a('v_max_f32 v126, v126, v125')
    a('v_mov_b32 v125, v126'); a('v_permlane16_swap_b32 v126, v125'); a('v_max_f32 v126, v126, v125')
    for r in range(28, 30): a(f'v_sub_f32 v{r}, v{r}, v126')
    a('v_sub_f32 v126, 0, v126'); a('v_exp_f32 v126, v126')
    for r in list(range(32, 40)) + list(range(20, 24)): a(f'v_mul_f32 v{r}, v{r}, v126')
    a.label(ok)
    a('v_exp_f32 v28, v28'); a('v_exp_f32 v29, v29')
    emit(a, wl[4:])
    a('v_cvt_pk_bf16_f32 v120, v28, v29'); a('v_cvt_pk_bf16_f32 v123, v28, v29')
    a(f'{MF16} v[20:23], v[16:17], v[120:121], v[20:23]')
    if 'nokm' not in EXP:
        a(f's_lshl_b32 s{sTmp3}, s{sW}, 10'); a(f'v_add_u32 v125, s{sTmp3}, v6')
        a('ds_read_b64_tr_b16 v[116:117], v125 offset:4096'); a(f'ds_read_b64_tr_b16 v[118:119], v125 offset:{4096+128}')
    emit(a, zero(72, 88))
    st(a, 4)
    vp = a.newlabel('vmp'); vok = a.newlabel('vmok')
    nyoung = 2 if FUSED else 1
    a('s_waitcnt vmcnt(1)')
    a('v_max_u32 v126, v112, v113')
    a('v_cmp_eq_u32 vcc, -1, v126'); a(f's_cbranch_vccz {vok}')
    a('s_waitcnt vmcnt(0)')
    a('v_mov_b64 v[112:113], v[114:115]')
    a.label(vp)
    a('v_max_u32 v126, v112, v113')
    a('v_cmp_eq_u32 vcc, -1, v126'); a(f's_cbranch_vccz {vok}')
    a(f'buffer_load_dwordx2 v[112:113], v9, {W}, s{sVMo} offen sc1')
    spin_check(a, fail)
    a('s_waitcnt vmcnt(0)')
    a(f's_branch {vp}')
    a.label(vok)
    st(a, 5)
    a(f'{MF16} v[32:35], v[112:113], v[120:121], v[32:35]')
    a(f'{MF16} v[36:39], v[112:113], v[122:123], v[36:39]')
    a('v_rcp_f32 v126, v20')
    a('v_mov_b32 v127, v126')
    for t, o in ((0, 32), (1, 36)):
        a(f'v_cndmask_b32 v{24+2*t}, v{o}, v{o+2}, {MH}')
        a(f'v_cndmask_b32 v{25+2*t}, v{o+1}, v{o+3}, {MH}')
        a(f'v_pk_mul_f32 v[{24+2*t}:{25+2*t}], v[{24+2*t}:{25+2*t}], v[126:127]')
        a(f'v_cvt_pk_bf16_f32 v{28+t}, v{24+2*t}, v{25+2*t}')
    a('ds_write_b64 v11, v[28:29]')
    if 'nokm' not in EXP:
        a('s_waitcnt lgkmcnt(1)')
        a(f'buffer_store_dwordx4 v[116:119], v2, {W}, s{sKMo} offen sc1')
    emit(a, zero(88, 98))
    a('s_waitcnt lgkmcnt(0)')
    a('s_barrier')
    a(f'v_add_u32 v127, {OFR}, v2')
    a('ds_read_b128 v[20:23], v127'); a('ds_read_b128 v[24:27], v127 offset:1024')
    emit(a, zero(98, 112))
    emit(a, zero(38, 40))
    st(a, 6)
    def epi(cg):
        ops = []
        for t in range(2):
            ac = 72 + 4*(cg*2+t); d = 28 + 4*(cg >> 1) + 2*(cg & 1) + t
            ops += [f'v_add_f32 v{ac}, v{ac}, v{ac+2}', f'v_add_f32 v{ac+1}, v{ac+1}, v{ac+3}', f'v_cvt_pk_bf16_f32 v{d}, v{ac}, v{ac+1}']
        if cg in (1, 3, 4):
            qq = cg >> 1; d = 28 + 4*qq
            ops += [f'v_and_or_b32 v{d}, v{d}, -2, s{sTag}', [f's_add_u32 s{sTmp}, s{sP1w}, {qq*32768}', f'buffer_store_dwordx4 v[{d}:{d+3}], v7, {W}, s{sTmp} offen {sc}']]
        return ops
    def pf(pair):
        sl = (pair & 1) * 2; ops = []
        for t in range(2):
            i = pair * 2 + t; b = 40 + 8 * (sl + t)
            ops += [f'ds_read_b128 v[{b}:{b+3}], v15 offset:{i*2048}', f'ds_read_b128 v[{b+4}:{b+7}], v15 offset:{i*2048+1024}']
        return ops
    a('s_waitcnt lgkmcnt(0)')
    pend = []
    n = 0
    for cg in range(5):
        for eb in range(2):
            p = wo_pair(cg, eb)
            A = 'v[20:23]' if eb == 0 else 'v[24:27]'
            for t in range(2):
                ac = 72 + 4*(cg*2+t)
                b = 192 + (cg*2+t)*8 if p is None else 40 + 8 * ((p & 1) * 2 + t)
                if p is not None and t == 0 and p >= 2:
                    a(f's_waitcnt lgkmcnt({4 if p < 5 else 0})')
                a(f'{SM} v[{ac}:{ac+3}], {A}, v[{b}:{b+7}], v1')
                n += 1
                if p is not None and t == 1 and p + 2 < 6:
                    emit(a, pf(p + 2))
                k = 0
                while pend and pend[0][0] <= n and k < (1 if (p is not None and t == 1 and p + 2 < 6) else 2):
                    emit(a, [pend.pop(0)[1]]); k += 1
        pend += [(n + 3, op_) for op_ in epi(cg)]
    emit(a, [x[1] for x in pend])
    if 'skel' in EXP: a.label(f'skel_{tag}')
    st(a, 7)
    gat = a.newlabel('gat'); join = a.newlabel('join'); op = a.newlabel('ownp'); nown = a.newlabel('nown'); post = a.newlabel('post')
    a(f's_cmp_ge_u32 s{sW}, 2'); a(f's_cbranch_scc1 {gat}')
    a(f's_cmp_eq_u32 s{sOwn}, -1'); a(f's_cbranch_scc1 {nown}')
    a(f'v_add_u32 v127, {SEL}, v2'); a('ds_read_b128 v[36:39], v127')
    a(f's_and_b32 s{sTmp}, s{sS}, 1'); a(f's_mul_i32 s{sTmp}, s{sTmp}, {L.P1SZ}')
    a(f's_lshl_b32 s{sTmp2}, s{sOwn}, 13'); a(f's_add_u32 s{sTmp}, s{sTmp}, s{sTmp2}')
    a(f's_add_u32 s{sTmp}, s{sTmp}, {L.P1}'); a(f's_add_u32 s{sTmp2}, s{sTmp}, 4096')
    a(f's_add_u32 s{sPubX}, s{sOwnP}, s{sMw}'); a(f's_add_u32 s{sPubX}, s{sPubX}, {L.MEMX}')
    a(f's_add_u32 s{sPubF}, s{sOwnP}, s{sMf}'); a(f's_add_u32 s{sPubF}, s{sPubF}, {L.MEMF}')
    if OSLEEP: a(f's_sleep {OSLEEP}')
    a('s_waitcnt lgkmcnt(0)')
    a.label(op)
    for m in range(8):
        so = sTmp if m < 4 else sTmp2
        a(f'buffer_load_dwordx4 v[{40+4*m}:{43+4*m}], v2, {W}, s{so} offen offset:{(m&3)*1024} ' + ('nt' if ('ntld' in EXP and fast) else 'sc1'))
    spin_check(a, fail)
    if 'fine' in EXP: st(a, 1)
    for m in range(8):
        a(f's_waitcnt vmcnt({7-m})')
        if 'fine' in EXP and m == 0: st(a, 2)
        if 'fine' in EXP and m == 7: st(a, 3)
        c = '0' if m == 0 else 'v[20:23]'
        a(f'{MF32} v[20:23], v[{40+4*m}:{43+4*m}], v[36:39], {c}')
        if m == 0: a(f'v_xor_b32 v28, s{sFlipO}, v40')
        else: a(f'v_bitop3_b32 v28, v28, v{40+4*m}, s{sFlipO} bitop3:0x60')
    if 'fine' in EXP: a(f's_add_u32 s{sT+4}, s{sT+4}, 63')
    a('v_and_b32 v28, 1, v28')
    a('v_cmp_eq_u32 vcc, 0, v28')
    if 'noown' not in EXP: a(f's_cbranch_vccnz {op}')
    a(f'v_cndmask_b32 v24, v20, v22, {MH}'); a(f'v_cndmask_b32 v25, v21, v23, {MH}')
    a('v_cvt_pk_bf16_f32 v24, v24, v25')
    if 'pub16' in EXP:
        a('v_mov_b32 v25, v24'); a('v_mov_b32 v26, v24'); a('v_mov_b32 v27, v24')
        a('s_mov_b64 exec, 0xffff')
        a(f'buffer_store_dwordx4 v[24:27], v8, {W}, s{sPubF} offen {sc}')
        a('s_mov_b64 exec, -1')
    else:
        a(f'buffer_store_dword v24, v8, {W}, s{sPubF} offen {sc}')
    st(a, 8)
    a('s_barrier')
    if 'atomx' in EXP: a(f'buffer_atomic_and v24, v8, {W}, s{sPubX} offen')
    elif 'x16' in EXP:
        a('v_mov_b32 v25, v24'); a('v_mov_b32 v26, v24'); a('v_mov_b32 v27, v24')
        a('s_mov_b64 exec, 0xffff')
        a(f'buffer_store_dwordx4 v[24:27], v8, {W}, s{sPubX} offen sc1')
        a('s_mov_b64 exec, -1')
    elif 'nomemx' not in EXP: a(f'buffer_store_dword v24, v8, {W}, s{sPubX} offen sc1')
    a(f's_xor_b32 s{sTmp}, s{sMf}, {L.MEMSZ}'); a(f's_add_u32 s{sTmp}, s{sTmp}, s{sOwnP}'); a(f's_add_u32 s{sTmp}, s{sTmp}, {L.MEMF}')
    a('v_mov_b32 v25, -1')
    a(f'buffer_store_dword v25, v8, {W}, s{sTmp} offen {sc}')
    a(f's_branch {post}')
    a.label(nown)
    st(a, 8)
    a('s_barrier')
    a.label(post)
    advance(a)
    emit(a, zero(20, 36))
    a(f's_branch {join}')
    a.label(gat)
    a(f's_add_u32 s{sM2}, s{sMf}, {L.MEMF}')
    advance(a)
    gather_pre(a, sM2)
    emit(a, zero(20, 36))
    a('s_barrier')
    if GSLEEP: a(f's_sleep {GSLEEP}')
    st(a, 10); st.val(a, 2, sSpin)
    LF = ('nt' if ('ntld' in EXP and fast) else 'sc1')
    if 'nogather' not in EXP: gather(a, fail, st, LF)
    st.val(a, 3, sSpin); st(a, 11)
    a.label(join)
    a('s_waitcnt lgkmcnt(0)')
    a('s_barrier')
    st(a, 9)
    a(f's_branch main_loop_{tag}')

def emit_helper(a, st, fail, end):
    a.comment('======== HELPER ========')
    a.label('chain_helper')
    srd(a, S_T1, L.KA['Wv'], 640*4096*2)
    a('v_lshrrev_b32 v36, 4, v0'); a('v_and_b32 v37, 15, v0'); a('v_lshlrev_b32 v37, 4, v37')
    a('v_lshlrev_b32 v10, 13, v36'); a('v_add_u32 v10, v10, v37')
    trbase(a, 12, False)
    a(f's_lshl_b32 s30, s{sH}, 8')
    a('s_waitcnt lgkmcnt(0)')
    chunks = []
    for kb in range(10):
        chunks.append(dict(srd=S_T1, vofs=10, sbase=30, soff=64*kb*8192, istep=4*8192, vtr=12, rows=[0, 4, 32, 36], tcol=[0, 32],
                           dests=[f'a{(kb*2)*8}', f'a{(kb*2+1)*8}']))
    load_chunks(a, chunks, 14)
    a('s_barrier')
    a('v_mov_b64 v[12:13], -1'); a('v_mov_b64 v[14:15], -1')
    a('v_lshlrev_b32 v9, 3, v0')
    a(f's_lshl_b32 s{sVMo}, s{sH}, 11'); a(f's_add_u32 s{sVMo}, s{sVMo}, {L.VM}')
    if not FUSED:
        def fill(base, total):
            per = total // 32
            n = per // 4096
            a(f's_mul_i32 s{sTmp}, s{sH}, {per}'); a(f's_lshl_b32 s{sTmp2}, s{sW}, 10'); a(f's_add_u32 s{sTmp}, s{sTmp}, s{sTmp2}'); a(f's_add_u32 s{sTmp}, s{sTmp}, {base}')
            for i in range(n):
                a(f'buffer_store_dwordx4 v[12:15], v2, {W}, s{sTmp} offen sc1')
                if i < n - 1: a(f's_add_u32 s{sTmp}, s{sTmp}, 4096')
        fill(L.VM, 64 * 32 * 2048)
        fill(L.P1, 2 * L.P1SZ)
        fill(L.MEMX, 64 * L.MEMSZ)
        fill(L.MEMF, 131072)
    mem0_frags(a)
    a(f's_sub_u32 s{sTmp}, s{sW}, 2'); a(f's_mul_i32 s{sTmp}, s{sTmp}, 5120'); a(f'v_add_u32 v3, s{sTmp}, v4')
    rendezvous(a, False, fail)
    a(f's_lshl_b32 s{sTmp}, s{sW}, 9'); a(f's_add_u32 s{sVMo}, s{sVMo}, s{sTmp}')
    a(f's_mov_b32 s{sS}, 0')
    a(f's_mov_b32 s{sMr}, {L.MEMX + L.MEMSZ}')
    emit(a, zero(28, 36))
    a('s_barrier')
    if 'skel' in EXP: a(f's_branch {end}')
    a.label('helper_loop')
    st(a, 0)
    for kb in range(10):
        a(f'ds_read_b128 v[{72+4*kb}:{75+4*kb}], v4 offset:{kb*1024}')
    for kb in range(10):
        a(f's_waitcnt lgkmcnt({9-kb})')
        for t in range(2):
            acc = 28 + t * 4; b = (kb*2+t)*8
            a(f'{SM} v[{acc}:{acc+3}], v[{72+4*kb}:{75+4*kb}], a[{b}:{b+7}], v1')
    a('v_add_f32 v28, v28, v30'); a('v_add_f32 v29, v29, v31'); a('v_cvt_pk_bf16_f32 v44, v28, v29')
    a('v_add_f32 v32, v32, v34'); a('v_add_f32 v33, v33, v35'); a('v_cvt_pk_bf16_f32 v45, v32, v33')
    a(f'buffer_store_dwordx2 v[44:45], v9, {W}, s{sVMo} offen sc1')
    st(a, 1)
    a(f's_add_u32 s{sVMo}, s{sVMo}, {32*2048}')
    a(f's_cmp_ge_u32 s{sS}, 63'); a(f's_cbranch_scc1 helper_done')
    emit(a, zero(28, 36))
    a('s_barrier')
    hj = a.newlabel('hj')
    a(f's_cmp_lt_u32 s{sW}, 2'); a(f's_cbranch_scc1 {hj}')
    gather_pre(a, sMr)
    if HSLEEP: a(f's_sleep {HSLEEP}')
    st(a, 2)
    gather(a, fail)
    st(a, 3)
    a.label(hj)
    a('s_waitcnt lgkmcnt(0)')
    a('s_barrier')
    a(f's_add_u32 s{sS}, s{sS}, 1')
    a(f's_add_u32 s{sMr}, s{sMr}, {L.MEMSZ}')
    a('s_branch helper_loop')
    a.label('helper_done')
    st.dump(a, 8192)
    a(f's_branch {end}')
```

```python
from asmlib import Asm
import layout as L
import gemm as GM
from gemm import G, MF
import kernels as KN
from kernels import f32bits, pack_T, unpack, row_reduce16, MF32, MF16, C_SCALE
import chain5 as CH

sWI = 60; sJ = 61; sSpin = 63; sB = 38; sSub = 39
S_DBG = 84
WS = 's[4:7]'; DBG = f's[{S_DBG}:{S_DBG+3}]'
WOS = 8
DNS = 3
SPIN_MAX = 1 << 22
SC = 'sc1'

def emit(a, ops):
    for x in ops:
        if isinstance(x, (list, tuple)): emit(a, x)
        else: a(x)

def tid(a): a('v_mov_b32 v0, v254')

def signal(a, off_sreg=None, off_imm=None, dbg=False):
    a('s_waitcnt vmcnt(0)')
    a('s_barrier')
    sk = a.newlabel('sig')
    a('v_cmp_eq_u32 vcc, 0, v254')
    a('s_and_saveexec_b64 s[56:57], vcc')
    a(f's_cbranch_execz {sk}')
    a('v_mov_b32 v250, 1'); a('v_mov_b32 v251, 0')
    if dbg:
        a(f'buffer_atomic_add v250, v251, {DBG}, 0 offen offset:{off_imm}')
    else:
        a(f'buffer_atomic_add v250, v251, {WS}, s{off_sreg} offen')
    a.label(sk)
    a('s_mov_b64 exec, s[56:57]')

def wait_ctr(a, off_sreg, target, fail):
    lp = a.newlabel('wc'); ok = a.newlabel('wok')
    a('v_mov_b32 v251, 0')
    a.label(lp)
    a(f'buffer_load_dword v250, v251, {WS}, s{off_sreg} offen sc1')
    a('s_waitcnt vmcnt(0)')
    a('v_readfirstlane_b32 s56, v250')
    a(f's_cmp_ge_u32 s56, {target}'); a(f's_cbranch_scc1 {ok}')
    a(f's_add_u32 s{sSpin}, s{sSpin}, 1'); a(f's_cmp_gt_u32 s{sSpin}, {SPIN_MAX}'); a(f's_cbranch_scc1 {fail}')
    a('s_sleep 3')
    a(f's_branch {lp}')
    a.label(ok)

def ctr_addr(a, dst, kind, breg):
    a(f's_lshl_b32 s{dst}, s{breg}, 7'); a(f's_add_u32 s{dst}, s{dst}, {L.ctr(kind)}')

def gemm_common(a, lda, ldb, splitB=False):
    g = G
    tid(a)
    GM.setup_lane_consts(a, lda, ldb, splitB)
    a(f's_lshl_b32 s{g.sLdsA}, s{g.sW}, 12')
    a(f's_lshl_b32 s{g.sLdsB}, s{g.sW}, {11 if splitB else 12}')

def load_ptr(a, base, key, nbytes):
    a(f's_load_dwordx2 s[{base}:{base+1}], s[0:1], {L.KA[key]}')
    a(f's_mov_b32 s{base+2}, {nbytes}'); a(f's_mov_b32 s{base+3}, 0x00020000')


EPI = 98304
def epi_T_bf16(a, accs, ld, sbase, ncol_tiles=2):
    g = G; t = g.vT
    a(f'v_and_b32 v{t}, 31, v0'); a(f'v_lshlrev_b32 v{t+1}, 7, v{t}'); a(f'v_and_b32 v{t+2}, 7, v0'); a(f'v_lshrrev_b32 v{t+3}, 5, v0')
    a(f's_lshl_b32 s46, s{g.sW}, 13'); a(f's_add_u32 s46, s46, {EPI}'); a(f'v_add_u32 v{t+1}, s46, v{t+1}')
    for rt in range(2):
        for ct in range(2):
            dst = g.FA + ((rt*2+ct) & 1) * 8
            pack_T(a, accs[rt][ct], dst)
            for kk in range(2):
                c0 = 4*ct + 2*kk
                a(f'v_add_u32 v{t+4}, {c0}, v{t+3}'); a(f'v_xor_b32 v{t+4}, v{t+4}, v{t+2}'); a(f'v_lshlrev_b32 v{t+4}, 4, v{t+4}'); a(f'v_add_u32 v{t+4}, v{t+4}, v{t+1}')
                a(f'ds_write_b128 v{t+4}, v[{dst+4*kk}:{dst+4*kk+3}] offset:{rt*4096}')
    a(f'v_lshrrev_b32 v{t}, 3, v0'); a(f'v_and_b32 v{t+2}, 7, v0'); a(f'v_xor_b32 v{t+3}, v{t+2}, v{t}'); a(f'v_lshlrev_b32 v{t+3}, 4, v{t+3}')
    a(f'v_lshlrev_b32 v{t+4}, 7, v{t}'); a(f'v_add_u32 v{t+3}, v{t+3}, v{t+4}'); a(f'v_add_u32 v{t+3}, s46, v{t+3}')
    a(f's_mov_b32 s47, {ld}'); a(f'v_mul_lo_u32 v{t}, v{t}, s47'); a(f'v_lshlrev_b32 v{t+2}, 4, v{t+2}'); a(f'v_add_u32 v{t}, v{t}, v{t+2}')
    a('s_waitcnt lgkmcnt(0)')
    for i in range(8): a(f'ds_read_b128 v[{g.FA+4*i}:{g.FA+4*i+3}], v{t+3} offset:{i*1024}')
    for i in range(8):
        a(f's_waitcnt lgkmcnt({7-i})')
        a(f's_add_u32 s47, s{sbase}, {i*8*ld}')
        a(f'buffer_store_dwordx4 v[{g.FA+4*i}:{g.FA+4*i+3}], v{t}, {WS}, s47 offen {SC}')

def epi_T_f32(a, ld, sbase):
    g = G; t = g.vT
    a(f'v_and_b32 v{t}, 31, v0'); a(f'v_lshlrev_b32 v{t+1}, 8, v{t}'); a(f'v_and_b32 v{t+2}, 7, v0'); a(f'v_lshrrev_b32 v{t+3}, 5, v0')
    a(f's_lshl_b32 s46, s{g.sW}, 14'); a(f's_add_u32 s46, s46, {EPI}'); a(f'v_add_u32 v{t+1}, s46, v{t+1}')
    for ct in range(2):
        for q in range(4):
            c0 = 8*ct + 2*q
            a(f'v_add_u32 v{t+4}, {c0}, v{t+3}'); a(f'v_xor_b32 v{t+4}, v{t+4}, v{t+2}'); a(f'v_lshlrev_b32 v{t+4}, 4, v{t+4}'); a(f'v_add_u32 v{t+4}, v{t+4}, v{t+1}')
            for rt in range(2):
                acc = g.ACC + (rt*2+ct)*16 + 4*q
                a(f'ds_write_b128 v{t+4}, v[{acc}:{acc+3}] offset:{rt*8192}')
    a(f'v_lshrrev_b32 v{t}, 4, v0'); a(f'v_and_b32 v{t+2}, 15, v0')
    a(f'v_xor_b32 v{t+3}, v{t+2}, v{t}'); a(f'v_xor_b32 v{t+5}, 4, v{t+3}')
    a(f'v_lshlrev_b32 v{t+3}, 4, v{t+3}'); a(f'v_lshlrev_b32 v{t+5}, 4, v{t+5}'); a(f'v_lshlrev_b32 v{t+4}, 8, v{t}'); a(f'v_add_u32 v{t+4}, s46, v{t+4}')
    a(f'v_add_u32 v{t+3}, v{t+3}, v{t+4}'); a(f'v_add_u32 v{t+5}, v{t+5}, v{t+4}')
    a(f's_mov_b32 s47, {ld}'); a(f'v_mul_lo_u32 v{t}, v{t}, s47'); a(f'v_lshlrev_b32 v{t+2}, 4, v{t+2}'); a(f'v_add_u32 v{t}, v{t}, v{t+2}')
    a('s_waitcnt lgkmcnt(0)')
    for half in range(2):
        for i in range(8):
            ii = half*8 + i
            a(f'ds_read_b128 v[{g.ACC+4*ii}:{g.ACC+4*ii+3}], v{t+3 if ii % 2 == 0 else t+5} offset:{ii*1024}')
        for i in range(8):
            ii = half*8 + i
            a(f's_waitcnt lgkmcnt({7-i})')
            a(f's_add_u32 s47, s{sbase}, {ii*4*ld}')
            a(f'buffer_store_dwordx4 v[{g.ACC+4*ii}:{g.ACC+4*ii+3}], v{t}, {WS}, s47 offen {SC}')

def task_ln1(a):
    tid(a)
    load_ptr(a, 8, 'x', 2048*640*2)
    a('v_lshrrev_b32 v1, 4, v0'); a('s_lshl_b32 s41, s40, 4'); a('v_add_u32 v1, s41, v1')
    a('v_mul_u32_u24 v1, 1280, v1'); a('v_and_b32 v5, 15, v0'); a('v_lshlrev_b32 v5, 4, v5'); a('v_add_u32 v1, v1, v5')
    a('s_waitcnt lgkmcnt(0)')
    for c in range(5): a(f'buffer_load_dwordx4 v[{8+4*c}:{11+4*c}], v1, s[8:11], 0 offen offset:{c*256}')
    a('s_waitcnt vmcnt(0)')
    unpack(a, 8, 32, 20)
    KN.ln_core(a, 32, 8)
    a(f's_mov_b32 s41, {L.XN}')
    for c in range(5): a(f'buffer_store_dwordx4 v[{8+4*c}:{11+4*c}], v1, {WS}, s41 offen offset:{c*256} {SC}')

def task_qkv(a, matrix):
    g = G
    key = ('Wq', 'Wk', 'Wv')[matrix]
    a(f's_lshl_b32 s{g.sT0}, s40, 7'); a(f's_lshl_b32 s{g.sT1}, s{g.sW}, 5'); a(f's_add_u32 s{g.sT0}, s{g.sT0}, s{g.sT1}')
    a(f's_mul_i32 s{g.sAoff}, s{g.sT0}, 1280'); a(f's_add_u32 s{g.sAoff}, s{g.sAoff}, {L.XN}')
    a(f's_lshl_b32 s{g.sBoff}, s43, 8'); a(f's_lshl_b32 s{g.sT1}, s{g.sW}, 17'); a(f's_add_u32 s{g.sBoff}, s{g.sBoff}, s{g.sT1}')
    a('s_barrier')
    GM.mainloop(a, 10, 1280, 8192, 'N' if matrix == 2 else 'T')
    t = g.vT
    if matrix != 2:
        a(f's_mov_b32 s45, {L.Q if matrix == 0 else L.K}')
        a(f's_lshl_b32 s46, s40, 7'); a(f's_lshl_b32 s47, s{g.sWM}, 6'); a('s_add_u32 s46, s46, s47'); a('s_lshl_b32 s46, s46, 13'); a('s_add_u32 s45, s45, s46')
        a(f's_lshl_b32 s46, s43, 8'); a('s_add_u32 s45, s45, s46'); a(f's_lshl_b32 s46, s{g.sWN}, 7'); a('s_add_u32 s45, s45, s46')
        epi_T_bf16(a, [[g.ACC, g.ACC+16], [g.ACC+32, g.ACC+48]], 8192, 45)
    else:
        a(f'v_bfe_u32 v{t}, v0, 4, 1'); a(f'v_lshlrev_b32 v{t}, 10, v{t}'); a(f'v_and_b32 v{t+1}, 15, v0'); a(f'v_lshlrev_b32 v{t+1}, 4, v{t+1}'); a(f'v_add_u32 v{t}, v{t}, v{t+1}')
        a(f'v_lshrrev_b32 v{t+1}, 5, v0'); a(f'v_lshlrev_b32 v{t+1}, 9, v{t+1}'); a(f'v_add_u32 v{t}, v{t}, v{t+1}')
        a(f's_lshl_b32 s45, s40, 2'); a(f's_lshl_b32 s46, s{g.sWM}, 1'); a('s_add_u32 s45, s45, s46'); a('s_lshl_b32 s45, s45, 18')
        a(f's_lshl_b32 s46, s43, 13'); a('s_add_u32 s45, s45, s46'); a(f's_lshl_b32 s46, s{g.sWN}, 12'); a('s_add_u32 s45, s45, s46'); a(f's_add_u32 s45, s45, {L.VT}')
        for rt in range(2):
            for ct in range(2):
                acc = g.ACC + (rt*2+ct)*16; dst = g.FA + ((rt*2+ct) & 1) * 8
                for i in range(8): a(f'v_cvt_pk_bf16_f32 v{dst+i}, v{acc+2*i}, v{acc+2*i+1}')
                a(f's_add_u32 s47, s45, {rt*262144 + ct*2048}')
                a(f'buffer_store_dwordx4 v[{dst}:{dst+3}], v{t}, {WS}, s47 offen {SC}')
                a(f'buffer_store_dwordx4 v[{dst+4}:{dst+7}], v{t}, {WS}, s47 offen offset:256 {SC}')

def qkv_loop(a, name, matrix, start_reg, stride, kind, fail):
    lp = a.newlabel(name); done = a.newlabel(name + 'd')
    gemm_common(a, 1280, 8192)
    load_ptr(a, G.SB, ('Wq', 'Wk', 'Wv')[matrix], 640*4096*2)
    a('s_waitcnt lgkmcnt(0)')
    a(f's_mov_b32 s{sJ}, s{start_reg}')
    a.label(lp)
    a(f's_cmp_ge_u32 s{sJ}, 512'); a(f's_cbranch_scc1 {done}')
    a(f's_lshr_b32 s40, s{sJ}, 5'); a(f's_and_b32 s43, s{sJ}, 31')
    if True:
        wl = a.newlabel('l1b'); wk = a.newlabel('l1bok')
        a('s_lshl_b32 s49, s40, 2'); a('s_add_u32 s49, s49, 128'); a('v_mov_b32 v251, 0')
        a.label(wl)
        a(f'buffer_load_dword v250, v251, {DBG}, s49 offen sc1')
        a('s_waitcnt vmcnt(0)')
        a('v_readfirstlane_b32 s56, v250')
        a(f's_cmp_ge_u32 s56, 8'); a(f's_cbranch_scc1 {wk}')
        a(f's_add_u32 s{sSpin}, s{sSpin}, 1'); a(f's_cmp_gt_u32 s{sSpin}, {SPIN_MAX}'); a(f's_cbranch_scc1 {fail}')
        a('s_sleep 3')
        a(f's_branch {wl}')
        a.label(wk)
    task_qkv(a, matrix)
    ctr_addr(a, 49, kind, 40)
    signal(a, off_sreg=49)
    a(f's_add_u32 s{sJ}, s{sJ}, {stride}')
    a(f's_branch {lp}')
    a.label(done)

def task_attn(a, fail):
    tid(a)
    ctr_addr(a, 49, L.C_Q, sB); wait_ctr(a, 49, 32, fail)
    Wd = WS
    a('v_lshrrev_b32 v1, 6, v0'); a('v_readfirstlane_b32 s8, v1'); a('v_and_b32 v0, 63, v0')
    a(f's_lshl_b32 s10, s{sB}, 2'); a(f's_lshr_b32 s9, s{sSub}, 3'); a('s_add_u32 s10, s10, s9')
    a(f's_and_b32 s11, s{sSub}, 7'); a('s_lshl_b32 s11, s11, 2'); a('s_add_u32 s11, s11, s8')
    a('v_and_b32 v6, 15, v0'); a('v_lshlrev_b32 v1, 13, v6'); a('v_lshrrev_b32 v7, 4, v0'); a('v_lshlrev_b32 v8, 4, v7'); a('v_add_u32 v1, v1, v8')
    a('v_bfe_u32 v2, v0, 2, 1'); a('v_lshlrev_b32 v2, 4, v2'); a('v_bfe_u32 v9, v0, 3, 1'); a('v_lshlrev_b32 v9, 2, v9'); a('v_add_u32 v2, v2, v9')
    a('v_and_b32 v9, 3, v0'); a('v_add_u32 v2, v2, v9'); a('v_lshlrev_b32 v2, 13, v2'); a('v_add_u32 v2, v2, v8')
    a('v_lshlrev_b32 v3, 4, v0'); a('v_lshlrev_b32 v4, 3, v0')
    a('v_lshlrev_b32 v5, 13, v6'); a('v_bfe_u32 v9, v0, 4, 1'); a('v_lshlrev_b32 v9, 5, v9'); a('v_add_u32 v5, v5, v9'); a('v_lshrrev_b32 v9, 5, v0'); a('v_lshlrev_b32 v9, 4, v9'); a('v_add_u32 v5, v5, v9')
    a('v_and_b32 v9, 1, v7'); a('v_lshlrev_b32 v9, 4, v9'); a('v_lshrrev_b32 v10, 1, v7'); a('v_lshlrev_b32 v10, 2, v10'); a('v_add_u32 v9, v9, v10'); a('v_sub_u32 v10, v6, v9')
    a('s_lshl_b32 s12, s10, 18'); a('s_lshl_b32 s13, s11, 8'); a('s_add_u32 s12, s12, s13')
    a(f's_add_u32 s14, s12, {L.Q}'); a(f's_add_u32 s15, s12, {L.K}'); a(f's_add_u32 s16, s12, {L.O}')
    a('s_lshl_b32 s17, s10, 5'); a('s_add_u32 s17, s17, s11')
    a('s_lshl_b32 s18, s17, 12'); a(f's_add_u32 s18, s18, {L.KM}')
    a('s_lshl_b32 s19, s17, 13'); a(f's_add_u32 s19, s19, {L.VT}')
    a('s_lshl_b32 s20, s17, 11'); a(f's_add_u32 s20, s20, {L.VM}')
    a(f's_mov_b32 s21, {hex(f32bits(C_SCALE))}')
    QF = 16; KX = 48; KMf = 80; S = 96; VT = 120; VMf = 152; P = 160; O = 176
    for qt in range(2):
        a(f's_add_u32 s22, s14, {qt*16*8192}')
        for kp in range(4): a(f'buffer_load_dwordx4 v[{QF+(qt*4+kp)*4}:{QF+(qt*4+kp)*4+3}], v1, {Wd}, s22 offen offset:{kp*64}')
    for kt in range(2):
        a(f's_add_u32 s22, s15, {kt*8*8192}')
        for kp in range(4): a(f'buffer_load_dwordx4 v[{KX+(kt*4+kp)*4}:{KX+(kt*4+kp)*4+3}], v2, {Wd}, s22 offen offset:{kp*64}')
    for et in range(8):
        a(f's_add_u32 s22, s19, {(et>>2)*4096}')
        a(f'buffer_load_dwordx4 v[{VT+et*4}:{VT+et*4+3}], v3, {Wd}, s22 offen offset:{(et&3)*1024}')
    lp = a.newlabel('atp'); ok = a.newlabel('atok')
    a.label(lp)
    for kp in range(4): a(f'buffer_load_dwordx4 v[{KMf+kp*4}:{KMf+kp*4+3}], v3, {Wd}, s18 offen offset:{kp*1024} sc1')
    for p in range(4): a(f'buffer_load_dwordx2 v[{VMf+2*p}:{VMf+2*p+1}], v4, {Wd}, s20 offen offset:{p*512} sc1')
    a('s_waitcnt vmcnt(0)')
    CH.maxchain(a, 11, list(range(KMf, KMf+16)) + list(range(VMf, VMf+8)))
    a('v_cmp_eq_u32 vcc, -1, v11'); a(f's_cbranch_vccz {ok}')
    a(f's_add_u32 s{sSpin}, s{sSpin}, 1'); a(f's_cmp_gt_u32 s{sSpin}, {SPIN_MAX}'); a(f's_cbranch_scc1 {fail}')
    a('s_sleep 4')
    a(f's_branch {lp}')
    a.label(ok)
    Sreg = lambda kt, qt: S + (kt*2+qt)*4
    for kp in range(4):
        for qt in range(2):
            B = f'v[{QF+(qt*4+kp)*4}:{QF+(qt*4+kp)*4+3}]'
            for kt in range(3):
                A = f'v[{KMf+kp*4}:{KMf+kp*4+3}]' if kt == 0 else f'v[{KX+((kt-1)*4+kp)*4}:{KX+((kt-1)*4+kp)*4+3}]'
                d = Sreg(kt, qt); c = '0' if kp == 0 else f'v[{d}:{d+3}]'
                a(f'{MF32} v[{d}:{d+3}], {A}, {B}, {c}')
    a('v_mov_b32 v11, 0xff800000')
    for qt in range(2):
        for kt in (1, 2):
            for r in range(4):
                cst = 8*(kt-1) + r - 16*qt
                reg = Sreg(kt, qt) + r
                a(f'v_cmp_le_i32 vcc, {cst}, v10')
                a(f'v_cndmask_b32 v{reg}, v11, v{reg}, vcc')
        m = 12; t2 = 13
        s0 = Sreg(0, qt); s1 = Sreg(1, qt); s2 = Sreg(2, qt)
        a(f'v_max3_f32 v{m}, v{s0}, v{s0+1}, v{s1}'); a(f'v_max3_f32 v{m}, v{m}, v{s1+1}, v{s1+2}'); a(f'v_max3_f32 v{m}, v{m}, v{s1+3}, v{s2}')
        a(f'v_max3_f32 v{m}, v{m}, v{s2+1}, v{s2+2}'); a(f'v_max_f32 v{m}, v{m}, v{s2+3}')
        a(f'v_mov_b32 v{t2}, v{m}'); a(f'v_permlane32_swap_b32 v{m}, v{t2}'); a(f'v_max_f32 v{m}, v{m}, v{t2}')
        a(f'v_mov_b32 v{t2}, v{m}'); a(f'v_permlane16_swap_b32 v{m}, v{t2}'); a(f'v_max_f32 v{m}, v{m}, v{t2}')
        a(f'v_mul_f32 v{m}, s21, v{m}')
        vals = [s0, s0+1] + [s1+i for i in range(4)] + [s2+i for i in range(4)]
        for r in vals: a(f'v_fma_f32 v{r}, v{r}, s21, -v{m}')
        for r in vals: a(f'v_exp_f32 v{r}, v{r}')
        pb = P + qt*8
        a(f'v_cvt_pk_bf16_f32 v{pb}, v{s1}, v{s1+1}'); a(f'v_cvt_pk_bf16_f32 v{pb+1}, v{s1+2}, v{s1+3}')
        a(f'v_cvt_pk_bf16_f32 v{pb+2}, v{s2}, v{s2+1}'); a(f'v_cvt_pk_bf16_f32 v{pb+3}, v{s2+2}, v{s2+3}')
        a(f'v_cvt_pk_bf16_f32 v{pb+4}, v{s0}, v{s0+1}'); a(f'v_mov_b32 v{pb+5}, 0'); a(f'v_mov_b32 v{pb+6}, 0'); a(f'v_mov_b32 v{pb+7}, v{pb+4}')
        l = 14 + qt
        a(f'v_add_f32 v{l}, v{vals[0]}, v{vals[1]}')
        for r in vals[2:]: a(f'v_add_f32 v{l}, v{l}, v{r}')
        a(f'v_mov_b32 v{t2}, v{l}'); a(f'v_permlane32_swap_b32 v{l}, v{t2}'); a(f'v_add_f32 v{l}, v{l}, v{t2}')
        a(f'v_mov_b32 v{t2}, v{l}'); a(f'v_permlane16_swap_b32 v{l}, v{t2}'); a(f'v_add_f32 v{l}, v{l}, v{t2}')
        a(f'v_rcp_f32 v{l}, v{l}')
    Oreg = lambda et, qt: O + (qt*8+et)*4
    for qt in range(2):
        pb = P + qt*8
        for et in range(8):
            o = Oreg(et, qt)
            a(f'{MF32} v[{o}:{o+3}], v[{VT+et*4}:{VT+et*4+3}], v[{pb}:{pb+3}], 0')
        for et in range(8):
            o = Oreg(et, qt); p = et >> 1
            b = f'v[{pb+6}:{pb+7}]' if et & 1 else f'v[{pb+4}:{pb+5}]'
            a(f'{MF16} v[{o}:{o+3}], v[{VMf+2*p}:{VMf+2*p+1}], {b}, v[{o}:{o+3}]')
    a('s_lshl_b32 s22, s8, 13'); a(f's_add_u32 s22, s22, {EPI}')
    a('v_lshlrev_b32 v1, 8, v6'); a('v_add_u32 v1, s22, v1')
    a('v_bfe_u32 v2, v0, 4, 1'); a('v_lshlrev_b32 v2, 1, v2'); a('v_lshrrev_b32 v3, 5, v0'); a('v_add_u32 v2, v2, v3')
    a('v_and_b32 v3, 7, v0')
    for qt in range(2):
        l = 14 + qt
        for ep in range(4):
            e0 = Oreg(2*ep, qt); e1 = Oreg(2*ep+1, qt); d = QF + (ep & 1) * 4
            for r in range(4):
                a(f'v_mul_f32 v{e0+r}, v{e0+r}, v{l}'); a(f'v_mul_f32 v{e1+r}, v{e1+r}, v{l}')
            a(f'v_cvt_pk_bf16_f32 v{d}, v{e0}, v{e0+1}'); a(f'v_cvt_pk_bf16_f32 v{d+1}, v{e0+2}, v{e0+3}')
            a(f'v_cvt_pk_bf16_f32 v{d+2}, v{e1}, v{e1+1}'); a(f'v_cvt_pk_bf16_f32 v{d+3}, v{e1+2}, v{e1+3}')
            a(f'v_permlane16_swap_b32 v{d}, v{d+2}'); a(f'v_permlane16_swap_b32 v{d+1}, v{d+3}')
            a(f'v_add_u32 v4, {4*ep}, v2'); a('v_xor_b32 v4, v4, v3'); a('v_lshlrev_b32 v4, 4, v4'); a('v_add_u32 v4, v4, v1')
            a(f'ds_write_b128 v4, v[{d}:{d+3}] offset:{qt*4096}')
    a('v_lshrrev_b32 v7, 4, v0'); a('v_xor_b32 v2, v6, v7'); a('v_xor_b32 v3, 4, v2')
    a('v_lshlrev_b32 v2, 4, v2'); a('v_lshlrev_b32 v3, 4, v3'); a('v_lshlrev_b32 v4, 8, v7'); a('v_add_u32 v4, s22, v4'); a('v_add_u32 v2, v2, v4'); a('v_add_u32 v3, v3, v4')
    a('v_lshlrev_b32 v5, 13, v7'); a('v_lshlrev_b32 v4, 4, v6'); a('v_add_u32 v5, v5, v4')
    a('s_waitcnt lgkmcnt(0)')
    for i in range(8): a(f'ds_read_b128 v[{KX+4*i}:{KX+4*i+3}], v{2 if i % 2 == 0 else 3} offset:{i*1024}')
    for i in range(8):
        a(f's_waitcnt lgkmcnt({7-i})')
        a(f's_add_u32 s22, s16, {i*4*8192}')
        a(f'buffer_store_dwordx4 v[{KX+4*i}:{KX+4*i+3}], v5, {Wd}, s22 offen {SC}')
    ctr_addr(a, 49, L.C_AT, sB); signal(a, off_sreg=49)

def part_store(a, base, ks_reg, m_reg, n_reg):
    g = G
    a(f's_mul_i32 s45, s{ks_reg}, {2048*640*4}'); a(f's_add_u32 s45, s45, {base}')
    a(f's_lshl_b32 s46, s{m_reg}, 7'); a(f's_lshl_b32 s47, s{g.sWM}, 6'); a('s_add_u32 s46, s46, s47'); a('s_mul_i32 s46, s46, 2560'); a('s_add_u32 s45, s45, s46')
    a(f's_lshl_b32 s46, s{n_reg}, 9'); a('s_add_u32 s45, s45, s46'); a(f's_lshl_b32 s46, s{g.sWN}, 8'); a('s_add_u32 s45, s45, s46')
    epi_T_f32(a, 2560, 45)

def task_wo(a, fail):
    g = G
    ctr_addr(a, 49, L.C_AT, sB); wait_ctr(a, 49, 32, fail)
    load_ptr(a, g.SB, 'Wo', 4096*640*2)
    a(f's_and_b32 s42, s{sSub}, {WOS-1}'); a(f's_lshr_b32 s41, s{sSub}, {WOS.bit_length()-1}')
    gemm_common(a, 8192, 1280)
    KS = 4096 // WOS
    a(f's_lshl_b32 s{g.sT0}, s{sB}, 7'); a(f's_lshl_b32 s{g.sT1}, s{g.sW}, 5'); a(f's_add_u32 s{g.sT0}, s{g.sT0}, s{g.sT1}')
    a(f's_lshl_b32 s{g.sAoff}, s{g.sT0}, 13'); a(f's_add_u32 s{g.sAoff}, s{g.sAoff}, {L.O}')
    a(f's_mul_i32 s{g.sT1}, s42, {KS*2}'); a(f's_add_u32 s{g.sAoff}, s{g.sAoff}, s{g.sT1}')
    a(f's_mul_i32 s{g.sBoff}, s42, {KS*1280}'); a(f's_lshl_b32 s{g.sT1}, s41, 8'); a(f's_add_u32 s{g.sBoff}, s{g.sBoff}, s{g.sT1}')
    a(f's_mul_i32 s{g.sT1}, s{g.sW}, {16*1280}'); a(f's_add_u32 s{g.sBoff}, s{g.sBoff}, s{g.sT1}')
    a('s_waitcnt lgkmcnt(0)')
    a('s_barrier')
    GM.mainloop(a, KS // 64, 8192, 1280, 'T')
    part_store(a, L.PART, 42, sB, 41)
    ctr_addr(a, 49, L.C_WO, sB); signal(a, off_sreg=49)

def rows16_setup(a):
    tid(a)
    a('v_lshrrev_b32 v1, 6, v0'); a('v_and_b32 v0, 63, v0')
    a(f's_lshl_b32 s41, s{sB}, 7'); a(f's_lshl_b32 s42, s{sSub}, 2'); a('s_add_u32 s41, s41, s42'); a('v_add_u32 v1, s41, v1')
    a('v_mul_u32_u24 v1, 1280, v1'); a('v_lshlrev_b32 v5, 2, v0'); a('v_add_u32 v1, v1, v5')
    a('v_lshlrev_b32 v6, 1, v1')

def wave_reduce(a, v, t):
    for sh in (8, 4, 2, 1):
        a(f'v_add_f32_dpp v{v}, v{v}, v{v} row_ror:{sh} row_mask:0xf bank_mask:0xf')
    a(f'v_mov_b32 v{t}, v{v}'); a(f'v_permlane16_swap_b32 v{v}, v{t}'); a(f'v_add_f32 v{v}, v{v}, v{t}')
    a(f'v_mov_b32 v{t}, v{v}'); a(f'v_permlane32_swap_b32 v{v}, v{t}'); a(f'v_add_f32 v{v}, v{v}, v{t}')

def ln_row(a, X, out_pack):
    a(f'v_add_f32 v2, v{X}, v{X+1}')
    for i in range(2, 10): a(f'v_add_f32 v2, v2, v{X+i}')
    wave_reduce(a, 2, 3)
    a(f'v_mul_f32 v2, {hex(f32bits(1.0/640))}, v2')
    for i in range(10): a(f'v_sub_f32 v{X+i}, v{X+i}, v2')
    a(f'v_mul_f32 v3, v{X}, v{X}')
    for i in range(1, 10): a(f'v_fmac_f32 v3, v{X+i}, v{X+i}')
    wave_reduce(a, 3, 4)
    a(f'v_mov_b32 v4, {hex(f32bits(1e-5))}')
    a(f'v_mul_f32 v3, {hex(f32bits(1.0/640))}, v3'); a('v_add_f32 v3, v3, v4'); a('v_rsq_f32 v3, v3')
    for i in range(10): a(f'v_mul_f32 v{X+i}, v{X+i}, v3')
    for i in range(5): a(f'v_cvt_pk_bf16_f32 v{out_pack+i}, v{X+2*i}, v{X+2*i+1}')

def task_ln2(a, fail):
    ctr_addr(a, 49, L.C_WO, sB); wait_ctr(a, 49, 5*WOS, fail)
    load_ptr(a, 8, 'x', 2048*640*2)
    rows16_setup(a)
    a('s_waitcnt lgkmcnt(0)')
    X = 32; PB = 48
    for c in range(5): a(f'buffer_load_dword v{8+c}, v1, s[8:11], 0 offen offset:{c*256}')
    for sp in range(WOS):
        a(f's_mov_b32 s41, {L.PART + sp*2048*640*4}')
        for c in range(5):
            b = PB + sp*10 + c*2
            a(f'buffer_load_dwordx2 v[{b}:{b+1}], v6, {WS}, s41 offen offset:{c*512}')
    a(f's_waitcnt vmcnt({5*WOS})')
    unpack(a, 8, X, 5)
    for sp in range(WOS):
        a(f's_waitcnt vmcnt({5*(WOS-1-sp)})')
        for i in range(10): a(f'v_add_f32 v{X+i}, v{X+i}, v{PB+sp*10+i}')
    a(f's_mov_b32 s41, {L.H}')
    for c in range(5): a(f'buffer_store_dwordx2 v[{X+2*c}:{X+2*c+1}], v6, {WS}, s41 offen offset:{c*512} {SC}')
    for i in range(10): a(f'v_mov_b32 v{PB+i}, v{X+i}')
    ln_row(a, PB, 8)
    a(f's_mov_b32 s41, {L.HN}')
    for c in range(5): a(f'buffer_store_dword v{8+c}, v1, {WS}, s41 offen offset:{c*256} {SC}')
    ctr_addr(a, 49, L.C_LN2, sB); signal(a, off_sreg=49)

def task_up(a, fail):
    g = G
    ctr_addr(a, 49, L.C_LN2, sB); wait_ctr(a, 49, 32, fail)
    load_ptr(a, g.SB, 'Wg', 640*1728*2); load_ptr(a, g.SB2, 'Wu', 640*1728*2)
    gemm_common(a, 1280, 3456, splitB=True)
    a(f's_lshl_b32 s{g.sT0}, s{sB}, 7'); a(f's_lshl_b32 s{g.sT1}, s{g.sW}, 5'); a(f's_add_u32 s{g.sT0}, s{g.sT0}, s{g.sT1}')
    a(f's_mul_i32 s{g.sAoff}, s{g.sT0}, 1280'); a(f's_add_u32 s{g.sAoff}, s{g.sAoff}, {L.HN}')
    a(f's_lshl_b32 s{g.sBoff}, s{sSub}, 7'); a(f's_mul_i32 s{g.sT1}, s{g.sW}, {16*3456}'); a(f's_add_u32 s{g.sBoff}, s{g.sBoff}, s{g.sT1}')
    a('s_waitcnt lgkmcnt(0)')
    a('s_barrier')
    GM.mainloop(a, 10, 1280, 3456, 'T', splitB=True)
    t = g.vT
    a(f's_mov_b32 s48, {hex(f32bits(-1.4426950408889634))}')
    a(f'v_and_b32 v{t}, 31, v0'); a(f's_lshl_b32 s46, s{g.sWM}, 6'); a(f'v_add_u32 v{t+1}, s46, v{t}'); a(f'v_lshlrev_b32 v{t+1}, 7, v{t+1}'); a(f'v_add_u32 v{t+1}, {EPI}, v{t+1}')
    a(f'v_and_b32 v{t+6}, 7, v0'); a(f'v_lshrrev_b32 v{t+7}, 5, v0'); a(f's_lshl_b32 s47, s{g.sWN}, 2'); a(f'v_add_u32 v{t+7}, s47, v{t+7}')
    for rt in range(2):
        ag = g.ACC + (rt*2)*16; au = g.ACC + (rt*2+1)*16
        for i in range(16):
            x = t + 2 + (i & 3)
            a(f'v_mul_f32 v{x}, s48, v{ag+i}'); a(f'v_exp_f32 v{x}, v{x}'); a(f'v_add_f32 v{x}, 1.0, v{x}'); a(f'v_rcp_f32 v{x}, v{x}')
            a(f'v_mul_f32 v{ag+i}, v{ag+i}, v{x}'); a(f'v_mul_f32 v{ag+i}, v{ag+i}, v{au+i}')
        dst = g.FA + rt*8
        pack_T(a, ag, dst)
        for kk in range(2):
            a(f'v_add_u32 v{t+8}, {2*kk}, v{t+7}'); a(f'v_xor_b32 v{t+8}, v{t+8}, v{t+6}'); a(f'v_lshlrev_b32 v{t+8}, 4, v{t+8}'); a(f'v_add_u32 v{t+8}, v{t+8}, v{t+1}')
            a(f'ds_write_b128 v{t+8}, v[{dst+4*kk}:{dst+4*kk+3}] offset:{rt*4096}')
    a('s_waitcnt lgkmcnt(0)'); a('s_barrier')
    a(f'v_lshrrev_b32 v{t}, 3, v0'); a(f'v_and_b32 v{t+2}, 7, v0'); a(f'v_xor_b32 v{t+3}, v{t+2}, v{t}'); a(f'v_lshlrev_b32 v{t+3}, 4, v{t+3}')
    a(f'v_lshlrev_b32 v{t+4}, 7, v{t}'); a(f'v_add_u32 v{t+3}, v{t+3}, v{t+4}'); a(f's_lshl_b32 s46, s{g.sW}, 12'); a(f's_add_u32 s46, s46, {EPI}'); a(f'v_add_u32 v{t+3}, s46, v{t+3}')
    a(f's_mov_b32 s47, 3456'); a(f'v_mul_lo_u32 v{t}, v{t}, s47'); a(f'v_lshlrev_b32 v{t+2}, 4, v{t+2}'); a(f'v_add_u32 v{t}, v{t}, v{t+2}')
    a(f's_lshl_b32 s46, s{sB}, 7'); a(f's_lshl_b32 s47, s{g.sW}, 5'); a('s_add_u32 s46, s46, s47'); a('s_mul_i32 s45, s46, 3456'); a(f's_add_u32 s45, s45, {L.ACT}')
    a(f's_lshl_b32 s46, s{sSub}, 7'); a('s_add_u32 s45, s45, s46')
    for i in range(4): a(f'ds_read_b128 v[{g.FA+4*i}:{g.FA+4*i+3}], v{t+3} offset:{i*1024}')
    for i in range(4):
        a(f's_waitcnt lgkmcnt({3-i})')
        a(f's_add_u32 s47, s45, {i*8*3456}')
        a(f'buffer_store_dwordx4 v[{g.FA+4*i}:{g.FA+4*i+3}], v{t}, {WS}, s47 offen {SC}')
    ctr_addr(a, 49, L.C_UP, sB); signal(a, off_sreg=49)

def task_down(a, fail):
    g = G
    ctr_addr(a, 49, L.C_UP, sB); wait_ctr(a, 49, 27, fail)
    load_ptr(a, g.SB, 'Wd', 1728*640*2)
    a(f's_mul_i32 s41, s{sSub}, 43691'); a('s_lshr_b32 s41, s41, 17'); a('s_mul_i32 s42, s41, 3'); a(f's_sub_u32 s42, s{sSub}, s42')
    gemm_common(a, 3456, 1280)
    KS = 1728 // DNS
    a(f's_lshl_b32 s{g.sT0}, s{sB}, 7'); a(f's_lshl_b32 s{g.sT1}, s{g.sW}, 5'); a(f's_add_u32 s{g.sT0}, s{g.sT0}, s{g.sT1}')
    a(f's_mul_i32 s{g.sAoff}, s{g.sT0}, 3456'); a(f's_add_u32 s{g.sAoff}, s{g.sAoff}, {L.ACT}')
    a(f's_mul_i32 s{g.sT1}, s42, {KS*2}'); a(f's_add_u32 s{g.sAoff}, s{g.sAoff}, s{g.sT1}')
    a(f's_mul_i32 s{g.sBoff}, s42, {KS*1280}'); a(f's_lshl_b32 s{g.sT1}, s41, 8'); a(f's_add_u32 s{g.sBoff}, s{g.sBoff}, s{g.sT1}')
    a(f's_mul_i32 s{g.sT1}, s{g.sW}, {16*1280}'); a(f's_add_u32 s{g.sBoff}, s{g.sBoff}, s{g.sT1}')
    a('s_waitcnt lgkmcnt(0)')
    a('s_barrier')
    GM.mainloop(a, KS // 64, 3456, 1280, 'T')
    part_store(a, L.PART2, 42, sB, 41)
    ctr_addr(a, 49, L.C_DN, sB); signal(a, off_sreg=49)

def task_fin(a, fail):
    ctr_addr(a, 49, L.C_DN, sB); wait_ctr(a, 49, 5*DNS, fail)
    load_ptr(a, 8, 'out', 2048*640*2)
    rows16_setup(a)
    X = 32; PB = 48
    a(f's_mov_b32 s41, {L.H}')
    for c in range(5): a(f'buffer_load_dwordx2 v[{X+2*c}:{X+2*c+1}], v6, {WS}, s41 offen offset:{c*512}')
    for sp in range(DNS):
        a(f's_mov_b32 s41, {L.PART2 + sp*2048*640*4}')
        for c in range(5):
            b = PB + sp*10 + c*2
            a(f'buffer_load_dwordx2 v[{b}:{b+1}], v6, {WS}, s41 offen offset:{c*512}')
    a('s_waitcnt vmcnt(0) lgkmcnt(0)')
    for sp in range(DNS):
        for i in range(10): a(f'v_add_f32 v{X+i}, v{X+i}, v{PB+sp*10+i}')
    for i in range(5): a(f'v_cvt_pk_bf16_f32 v{8+i}, v{X+2*i}, v{X+2*i+1}')
    for c in range(5): a(f'buffer_store_dword v{8+c}, v1, s[8:11], 0 offen offset:{c*256}')

TASKS = [('attn', 32), ('wo', 5*WOS), ('ln2', 8), ('up', 27), ('down', 5*DNS), ('fin', 8)]
PERB = sum(n for _, n in TASKS)
ROLES = [('attn', 32, 1), ('wo', 40, 1), ('ln2', 32, 1), ('up', 27, 1), ('down', 15, 1), ('fin', 32, 1)]

WTRACE = False
def wstamp(a, i):
    if not WTRACE: return
    a('s_memrealtime s[58:59]'); a('s_waitcnt lgkmcnt(0)')
    a(f's_lshl_b32 s56, s{sWI}, 6'); a(f's_add_u32 s56, s56, {L.TRACE + 16384 + 4*i}')
    a('v_mov_b32 v250, s58'); a('v_mov_b32 v251, 0')
    a(f'buffer_store_dword v250, v251, {WS}, s56 offen')

def emit_worker(a, fail, end):
    a.label('worker')
    a('s_lshr_b32 s40, s2, 3'); a('s_mul_i32 s40, s40, 6'); a('s_and_b32 s41, s2, 7'); a('s_add_u32 s40, s40, s41'); a(f's_sub_u32 s{sWI}, s40, 2')
    a('v_mov_b32 v254, v0')
    load_ptr(a, 4, 'ws', L.WS_BYTES)
    load_ptr(a, S_DBG, 'dbg', 256)
    a(f's_mov_b32 s{sSpin}, 0')
    a('s_waitcnt lgkmcnt(0)')
    wstamp(a, 0)
    nz = a.newlabel('nz')
    a(f's_cmp_lg_u32 s{sWI}, 0'); a(f's_cbranch_scc1 {nz}')
    a('v_lshlrev_b32 v1, 4, v0'); a('v_mov_b64 v[4:5], 0'); a('v_mov_b64 v[6:7], 0')
    for i in range(4):
        a(f's_mov_b32 s41, {L.SYNC + i*4096}')
        a(f'buffer_store_dwordx4 v[4:7], v1, {WS}, s41 offen sc1')
    signal(a, off_imm=12, dbg=True)
    a.label(nz)
    nl = a.newlabel('nl'); nf = a.newlabel('nf')
    a(f's_cmp_ge_u32 s{sWI}, 128'); a(f's_cbranch_scc1 {nl}')
    a(f's_mov_b32 s40, s{sWI}')
    task_ln1(a)
    a('s_waitcnt vmcnt(0)'); a('s_barrier')
    sk = a.newlabel('l1s')
    a('v_cmp_eq_u32 vcc, 0, v254'); a('s_and_saveexec_b64 s[56:57], vcc'); a(f's_cbranch_execz {sk}')
    a(f's_lshr_b32 s41, s{sWI}, 3'); a('s_lshl_b32 s41, s41, 2'); a('s_add_u32 s41, s41, 128')
    a('v_mov_b32 v250, 1'); a('v_mov_b32 v251, 0')
    a(f'buffer_atomic_add v250, v251, {DBG}, s41 offen')
    a.label(sk)
    a('s_mov_b64 exec, s[56:57]')
    a(f's_branch {nf}')
    a.label(nl)
    a('v_lshlrev_b32 v1, 4, v254'); a('v_mov_b64 v[4:5], -1'); a('v_mov_b64 v[6:7], -1')
    for base, total in ((L.P1, 2*L.P1SZ), (L.MEMF, 2*L.MEMSZ), (L.MEMX, 64*L.MEMSZ), (L.VM, 64*32*2048), (L.KM, 64*32*4096)):
        nchunk = total // 4096
        lp_ = a.newlabel('fl'); dn_ = a.newlabel('fd')
        a(f's_sub_u32 s40, s{sWI}, 128')
        a.label(lp_)
        a(f's_cmp_ge_u32 s40, {nchunk}'); a(f's_cbranch_scc1 {dn_}')
        a('s_lshl_b32 s41, s40, 12'); a(f's_add_u32 s41, s41, {base}')
        a(f'buffer_store_dwordx4 v[4:7], v1, {WS}, s41 offen sc1')
        a('s_add_u32 s40, s40, 64'); a(f's_branch {lp_}')
        a.label(dn_)
    signal(a, off_imm=16, dbg=True)
    a.label(nf)
    lp = a.newlabel('l1w'); ok = a.newlabel('l1ok')
    a('v_mov_b32 v251, 0')
    a.label(lp)
    a(f'buffer_load_dword v248, v251, {DBG}, 0 offen offset:12 sc1')
    a('s_waitcnt vmcnt(0)')
    a('v_readfirstlane_b32 s57, v248')
    a('s_cmp_ge_u32 s57, 1'); a(f's_cbranch_scc1 {ok}')
    a(f's_add_u32 s{sSpin}, s{sSpin}, 1'); a(f's_cmp_gt_u32 s{sSpin}, {SPIN_MAX}'); a(f's_cbranch_scc1 {fail}')
    a('s_sleep 4')
    a(f's_branch {lp}')
    a.label(ok)
    wstamp(a, 1)
    vv = a.newlabel('vt'); qq = a.newlabel('qt')
    a(f's_cmp_ge_u32 s{sWI}, 96'); a(f's_cbranch_scc1 {vv}')
    a(f's_mov_b32 s62, s{sWI}')
    qkv_loop(a, 'kl', 1, 62, 96, L.C_KV, fail)
    a(f's_branch {qq}')
    a.label(vv)
    a(f's_sub_u32 s62, s{sWI}, 96')
    qkv_loop(a, 'vl', 2, 62, 96, L.C_KV, fail)
    a.label(qq)
    wstamp(a, 2)
    qkv_loop(a, 'ql', 0, sWI, 192, L.C_Q, fail)
    wstamp(a, 3)
    lp = a.newlabel('rzw'); ok = a.newlabel('rzok')
    a('v_mov_b32 v251, 0')
    a.label(lp)
    a(f'buffer_load_dword v248, v251, {DBG}, 0 offen sc1')
    a('s_waitcnt vmcnt(0)')
    a('v_readfirstlane_b32 s56, v248')
    a('s_cmp_ge_u32 s56, 64'); a(f's_cbranch_scc1 {ok}')
    a(f's_add_u32 s{sSpin}, s{sSpin}, 1'); a(f's_cmp_gt_u32 s{sSpin}, {SPIN_MAX}'); a(f's_cbranch_scc1 {fail}')
    a('s_sleep 8')
    a(f's_branch {lp}')
    a.label(ok)
    fns = dict(attn=task_attn, wo=task_wo, ln2=task_ln2, up=task_up, down=task_down, fin=task_fin)
    a(f's_mov_b32 s{sSub}, s{sWI}')
    for name, n, copies in ROLES:
        sk = a.newlabel('rk')
        a(f's_cmp_ge_u32 s{sSub}, {n*copies}'); a(f's_cbranch_scc1 {sk}')
        a(f's_mov_b32 s{sB}, 0')
        for c in range(1, copies):
            a(f's_cmp_ge_u32 s{sSub}, {n}'); a(f's_cselect_b32 s56, {n}, 0'); a(f's_cselect_b32 s57, 1, 0')
            a(f's_sub_u32 s{sSub}, s{sSub}, s56'); a(f's_add_u32 s{sB}, s{sB}, s57')
        a(f's_mov_b32 s62, s{sSub}')
        lp = a.newlabel('rlp')
        a.label(lp)
        a(f's_mov_b32 s{sSub}, s62')
        fns[name](a, fail)
        a('s_barrier')
        a(f's_add_u32 s{sB}, s{sB}, {copies}')
        a(f's_cmp_lt_u32 s{sB}, 16'); a(f's_cbranch_scc1 {lp}')
        a('s_branch post_done')
        a.label(sk)
        a(f's_sub_u32 s{sSub}, s{sSub}, {n*copies}')
    a.label('post_done')
    wstamp(a, 4)
    a('s_endpgm')

def emit_fused(a, kname):
    fail = 'fz_fail'; end = 'fz_end'
    a.label(kname)
    a(f's_cmp_ge_u32 s2, 256'); a(f's_cbranch_scc1 {end}')
    a('s_and_b32 s3, s2, 7')
    a('s_cmp_gt_u32 s3, 1'); a('s_cbranch_scc1 worker')
    CH.emit_chain_body(a, fail, end)
    emit_worker(a, fail, end)
    a.label(fail)
    a(f's_load_dwordx2 s[8:9], s[0:1], {L.KA["dbg"]}'); a('s_mov_b32 s10, 256'); a('s_mov_b32 s11, 0x00020000')
    a('s_waitcnt lgkmcnt(0)')
    a('v_mov_b32 v1, 0xdead'); a('v_mov_b32 v2, 252')
    a(f'buffer_store_dword v1, v2, s[8:11], 0 offen')
    a('s_waitcnt vmcnt(0)')
    a.label(end)
    a('s_endpgm')
```

```python
XN   = 0x0000000
Q    = 0x0400000
K    = 0x1400000
VT   = 0x2400000
O    = 0x3400000
KM   = 0x4400000
VM   = 0x4C00000
P1   = 0x5000000
P1SZ = 48 * 8192
MEMF = 0xA000000
MEMX = 0xA100000
MEMSZ = 12288
H    = 0x5200000
HN   = 0x5700000
ACT  = 0x5A00000
PART = 0x6100000
WS_BYTES = 268435456
NAME = 'sequential_preLN__memory_aug_recurrent_mem_tr__swiglu_ffn__prompt'
KA = dict(x=0, mem0=8, Wq=16, Wk=24, Wv=32, Wo=40, seg=48, Bx=56, Wg=64, Wu=72, Wd=80, out=88, dbg=96, ws=104)
PART2 = 0x9000000
SYNC = 0x5120000
C_KV, C_Q, C_AT, C_WO, C_LN2, C_UP, C_DN = range(7)
def ctr(kind, b=0): return SYNC + (kind * 32 + b) * 128
NBLK = 32
TRACE = 0xF000000
PROG = SYNC + 7 * 32 * 128
```

```python
from asmlib import Asm
import layout as L
import struct

KVB = 0
AFR = 32768
QKX = 45056
OFR = 53248
SEL = 55296
WL  = 65536
GSLEEP = int(__import__('os').environ.get('GSLEEP', 3))
LDS_BYTES = 163840
SPIN_MAX = 1 << 22
OSLEEP = int(__import__('os').environ.get('OSLEEP', 3))
HSLEEP = int(__import__('os').environ.get('HSLEEP', 24))
TRACE = L.TRACE
COARSE = True

S_WS = 4; S_T0 = 8; S_DBG = 12; S_T1 = 20; S_T2 = 24
sH = 16; sW = 17; sS = 18; sSpin = 19
sRdy = 39; sKVr = 32; sP1c = 33; sP1b = 34; sKVw = 35; sPubF = 36; sPubX = 37; sOwnO = 38
sMaskH = 40; sMaskLo = 42; sC = 44
sP1w = 45; sP1r = 46; sMr = 47; sMw = 48; sMz = 49; sTmp = 50; sTmp2 = 51; sTmp3 = 52; sOwn = 53; sKV = 54; sVMo = 55; sKMo = 56
sM2 = 57; sKsrc = 58; sVsrc = 59; sFast = 60; sThr = 61
sT = 64
W = f's[{S_WS}:{S_WS+3}]'
MH = f's[{sMaskH}:{sMaskH+1}]'; ML = f's[{sMaskLo}:{sMaskLo+1}]'
SM = 'v_smfmac_f32_16x16x64_bf16'
MF32 = 'v_mfma_f32_16x16x32_bf16'
MF16 = 'v_mfma_f32_16x16x16_bf16'

def f32bits(x): return struct.unpack('<I', struct.pack('<f', x))[0]
C_SCALE = (128 ** -0.5) * 1.4426950408889634

def srd(a, base, ka_off, nbytes):
    a(f's_load_dwordx2 s[{base}:{base+1}], s[0:1], {ka_off}')
    a(f's_mov_b32 s{base+2}, {nbytes}')
    a(f's_mov_b32 s{base+3}, 0x00020000')

def emit(a, ops):
    for x in ops:
        if isinstance(x, (list, tuple)): emit(a, x)
        else: a(x)

def load_chunks(a, chunks, vaddr, nslots=10):
    N = len(chunks); DEPTH = nslots - 1
    def issue(c):
        ch = chunks[c]; slot = (c % nslots) * 16384
        a(f's_mul_i32 s{sTmp}, s{sW}, {ch["istep"]*4}')
        a(f's_add_u32 s{sTmp}, s{sTmp}, s{ch["sbase"]}')
        a(f's_lshl_b32 s{sTmp2}, s{sW}, 12')
        for j in range(4):
            a(f's_add_u32 s{sTmp3}, s{sTmp}, {ch["soff"] + j*ch["istep"]}')
            a(f's_add_u32 m0, s{sTmp2}, {slot + j*1024}')
            a(f'buffer_load_dwordx4 v{ch["vofs"]}, s[{ch["srd"]}:{ch["srd"]+3}], s{sTmp3} offen lds')
    for c in range(min(DEPTH, N)): issue(c)
    for c in range(N):
        ch = chunks[c]; slot = (c % nslots) * 16384
        inflight = min(N, c + DEPTH) - (c + 1)
        a(f's_waitcnt vmcnt({4*inflight})')
        a('s_barrier')
        if c + DEPTH < N: issue(c + DEPTH)
        a(f'v_add_u32 v{vaddr}, {slot}, v{ch["vtr"]}')
        for o in range(2):
            dest = ch['dests'][o]
            kind, base = dest[0], int(dest[1:])
            for rho in range(4):
                imm = ch['rows'][rho] * 256 + ch['tcol'][o]
                a(f'ds_read_b64_tr_b16 {kind}[{base+2*rho}:{base+2*rho+1}], v{vaddr} offset:{imm}')
        a('s_waitcnt lgkmcnt(0)')

def spin_check(a, lbl_fail):
    a(f's_add_u32 s{sSpin}, s{sSpin}, 1')
    a(f's_cmp_gt_u32 s{sSpin}, {SPIN_MAX}')
    a(f's_cbranch_scc1 {lbl_fail}')

def maxchain(a, dst, regs, op='u32'):
    regs = list(regs)
    a(f'v_max3_{op} v{dst}, v{regs[0]}, v{regs[1]}, v{regs[2]}')
    regs = regs[3:]
    while len(regs) >= 2:
        a(f'v_max3_{op} v{dst}, v{dst}, v{regs[0]}, v{regs[1]}'); regs = regs[2:]
    if regs:
        a(f'v_max_{op} v{dst}, v{dst}, v{regs[0]}')

def gather_pre(a, sOffReg):
    a(f's_sub_u32 s{sTmp}, s{sW}, 2')
    a(f's_mul_i32 s{sTmp}, s{sTmp}, 5120')
    a(f's_add_u32 s{sTmp}, s{sTmp}, s{sOffReg}')
    a(f's_add_u32 s{sTmp2}, s{sTmp}, 4096')

def gather(a, fail, st=None, fl='sc1'):
    fine = st is not None and 'fine' in __import__('os').environ.get('EXP', '')
    lp = a.newlabel('g5')
    a.label(lp)
    for i in range(4):
        a(f'buffer_load_dwordx4 v[{72+4*i}:{75+4*i}], v2, {W}, s{sTmp} offen offset:{i*1024} {fl}')
    a(f'buffer_load_dwordx4 v[88:91], v2, {W}, s{sTmp2} offen {fl}')
    spin_check(a, fail)
    if fine: st(a, 1)
    for i in range(5):
        a(f's_waitcnt vmcnt({4-i})')
        if fine and i == 0: st(a, 2)
        if fine and i == 4: st(a, 3)
        a(f'ds_write_b128 v3, v[{72+4*i}:{75+4*i}] offset:{i*1024}')
        if i == 0:
            a(f'v_max3_u32 v92, v72, v73, v74'); a(f'v_max_u32 v92, v92, v75')
        else:
            a(f'v_max3_u32 v92, v92, v{72+4*i}, v{73+4*i}'); a(f'v_max3_u32 v92, v92, v{74+4*i}, v{75+4*i}')
    if fine: a(f's_add_u32 s{sT+4}, s{sT+4}, 63')
    a('v_cmp_eq_u32 vcc, -1, v92')
    a(f's_cbranch_vccnz {lp}')

def gather2(a, fail, fl='sc1', stag=2, res=None):
    def issue(b):
        for i in range(4):
            a(f'buffer_load_dwordx4 v[{b+4*i}:{b+3+4*i}], v2, {W}, s{sTmp} offen offset:{i*1024} {fl}')
        a(f'buffer_load_dwordx4 v[{b+16}:{b+19}], v2, {W}, s{sTmp2} offen {fl}')
    def consume(b, younger):
        for i in range(5):
            a(f's_waitcnt vmcnt({4-i+younger})')
            a(f'ds_write_b128 v3, v[{b+4*i}:{b+3+4*i}] offset:{i*1024}')
            if i == 0:
                a(f'v_max3_u32 v92, v{b}, v{b+1}, v{b+2}'); a(f'v_max_u32 v92, v92, v{b+3}')
            else:
                a(f'v_max3_u32 v92, v92, v{b+4*i}, v{b+1+4*i}'); a(f'v_max3_u32 v92, v92, v{b+2+4*i}, v{b+3+4*i}')
        a('v_cmp_eq_u32 vcc, -1, v92')
    lp = a.newlabel('g2'); done = a.newlabel('g2d')
    if res is not None: a(f's_mov_b32 s{res}, 0')
    issue(72)
    a(f's_sleep {stag}')
    a.label(lp)
    issue(40)
    spin_check(a, fail)
    consume(72, 5)
    a(f's_cbranch_vccz {done}')
    if res is not None: a(f's_add_u32 s{res}, s{res}, 1')
    issue(72)
    consume(40, 5)
    a(f's_cbranch_vccz {done}')
    if res is not None: a(f's_add_u32 s{res}, s{res}, 1')
    a(f's_branch {lp}')
    a.label(done)

def mem0_frags(a):
    srd(a, S_T0, L.KA['mem0'], 10240)
    a('v_bfe_u32 v36, v0, 2, 2'); a('v_lshlrev_b32 v36, 1, v36'); a('v_and_b32 v37, 1, v0'); a('v_add_u32 v36, v36, v37')
    a('v_mul_u32_u24 v36, 1280, v36')
    a('v_lshrrev_b32 v37, 4, v0'); a('v_lshlrev_b32 v37, 5, v37'); a('v_add_u32 v36, v36, v37')
    a('v_bfe_u32 v37, v0, 1, 1'); a('v_lshlrev_b32 v37, 2, v37'); a('v_add_u32 v36, v36, v37')
    a(f's_lshl_b32 s{sTmp}, s{sW}, 7')
    a(f's_lshl_b32 s{sTmp3}, s{sW}, 10')
    a(f'v_add_u32 v38, s{sTmp3}, v4')
    a('s_waitcnt lgkmcnt(0)')
    for t in range(3):
        a(f's_add_u32 s{sTmp2}, s{sTmp}, {t*512}')
        for j in range(4):
            a(f'buffer_load_dword v{40+4*t+j}, v36, s[{S_T0}:{S_T0+3}], s{sTmp2} offen offset:{8*j}')
    a('s_waitcnt vmcnt(0)')
    for t in range(3):
        a(f'ds_write_b128 v38, v[{40+4*t}:{43+4*t}] offset:{t*4096}')
    a('s_waitcnt lgkmcnt(0)')

class Stamps:
    sel = 0; trace = False; tstep = 20
    def __init__(self, on): self.on = on
    def val(self, a, i, sreg):
        if not (self.on and self.trace): return
        lb = a.newlabel('tv')
        a(f's_cmp_lg_u32 s{sS}, {self.tstep + 1}'); a(f's_cbranch_scc1 {lb}')
        a(f's_mov_b32 s{sT+i}, s{sreg}')
        a.label(lb)
    def __call__(self, a, i):
        if not self.on: return
        if self.trace:
            a(f's_memrealtime s[{sT+14}:{sT+15}]')
            a('s_waitcnt lgkmcnt(0)')
            lb = a.newlabel('tr')
            a(f's_cmp_lg_u32 s{sS}, {self.tstep + (1 if (i in (10, 11) and not getattr(self, "helper", False)) else 0)}'); a(f's_cbranch_scc1 {lb}')
            a(f's_mov_b32 s{sT+i}, s{sT+14}')
            a.label(lb)
            return
        a(f's_memtime s[{sT+14}:{sT+15}]')
        a('s_waitcnt lgkmcnt(0)')
        a(f's_sub_u32 s{sT+12}, s{sT+14}, s{sT+13}')
        a(f's_add_u32 s{sT+i}, s{sT+i}, s{sT+12}')
        a(f's_mov_b32 s{sT+13}, s{sT+14}')
    def dump(self, a, off):
        if not self.on: return
        if self.trace:
            a(f's_lshl_b32 s{sTmp}, s{sH}, 2'); a(f's_or_b32 s{sTmp}, s{sTmp}, s{sW}'); a(f's_lshl_b32 s{sTmp}, s{sTmp}, 6')
            a(f's_add_u32 s{sTmp}, s{sTmp}, {TRACE + off}')
            a('v_mov_b32 v36, 0')
            for i in range(12):
                a(f'v_mov_b32 v37, s{sT+i}')
                a(f'buffer_store_dword v37, v36, {W}, s{sTmp} offen offset:{4*i}')
            a('s_waitcnt vmcnt(0)')
        elif off == 0:
            sk = a.newlabel('tsk')
            a(f's_lshl_b32 s{sTmp}, s{sH}, 2'); a(f's_or_b32 s{sTmp}, s{sTmp}, s{sW}')
            a(f's_cmp_lg_u32 s{sTmp}, {self.sel}'); a(f's_cbranch_scc1 {sk}')
            a('v_mov_b32 v36, 0')
            for i in range(12):
                a(f'v_mov_b32 v37, s{sT+i}')
                a(f'buffer_store_dword v37, v36, s[{S_DBG}:{S_DBG+3}], 0 offen offset:{64+4*i}')
            a('s_waitcnt vmcnt(0)')
            a.label(sk)

def trbase(a, dst, wo):
    a('v_lshrrev_b32 v36, 4, v0'); a('v_bfe_u32 v37, v0, 2, 2')
    if not wo:
        a('v_lshlrev_b32 v38, 3, v36')
    else:
        a('v_and_b32 v38, 1, v36'); a('v_lshlrev_b32 v38, 5, v38')
        a('v_lshrrev_b32 v39, 1, v36'); a('v_lshlrev_b32 v39, 2, v39'); a('v_add_u32 v38, v38, v39')
    a('v_add_u32 v38, v38, v37'); a('v_lshlrev_b32 v38, 8, v38')
    a('v_and_b32 v39, 3, v0'); a('v_lshlrev_b32 v39, 3, v39')
    a(f'v_add_u32 v{dst}, v38, v39')
    a(f's_lshl_b32 s{sTmp}, s{sW}, {5 if wo else 6}')
    a(f'v_add_u32 v{dst}, s{sTmp}, v{dst}')

def xcc_or(a):
    skip = a.newlabel('xo')
    a(f's_cmp_lg_u32 s{sW}, 0'); a(f's_cbranch_scc1 {skip}')
    a('s_mov_b64 s[62:63], exec'); a('s_mov_b64 exec, 1')
    a('v_mov_b32 v36, 0')
    a(f's_getreg_b32 s{sTmp}, hwreg(HW_REG_XCC_ID)')
    a(f's_and_b32 s{sTmp}, s{sTmp}, 15'); a(f's_lshl_b32 s{sTmp}, 1, s{sTmp}')
    a(f'v_mov_b32 v37, s{sTmp}')
    a(f'buffer_atomic_or v37, v36, s[{S_DBG}:{S_DBG+3}], 0 offen offset:4')
    a('s_waitcnt vmcnt(0)')
    a('s_mov_b64 exec, s[62:63]')
    a.label(skip)

def rendezvous(a, is_main, fail):
    a('s_waitcnt vmcnt(0)')
    a('s_barrier')
    skip = a.newlabel('rz'); lp = a.newlabel('rzp')
    a(f's_cmp_lg_u32 s{sW}, 0'); a(f's_cbranch_scc1 {skip}')
    a('s_mov_b64 s[62:63], exec'); a('s_mov_b64 exec, 1')
    a('v_mov_b32 v36, 0'); a('v_mov_b32 v37, 1')
    a(f'buffer_atomic_add v37, v36, s[{S_DBG}:{S_DBG+3}], 0 offen')
    a.label(lp)
    a(f'buffer_load_dwordx2 v[38:39], v36, s[{S_DBG}:{S_DBG+3}], 0 offen sc1')
    a(f'buffer_load_dword v40, v36, s[{S_DBG}:{S_DBG+3}], 0 offen offset:16 sc1')
    spin_check(a, fail)
    a('s_waitcnt vmcnt(0)')
    a(f'v_readfirstlane_b32 s{sTmp}, v38'); a(f'v_readfirstlane_b32 s{sTmp2}, v40')
    a(f's_cmp_lt_u32 s{sTmp}, 64'); a(f's_cbranch_scc1 {lp}')
    if FUSED:
        a(f's_cmp_lt_u32 s{sTmp2}, 64'); a(f's_cbranch_scc1 {lp}')
    a(f'v_mov_b32 v36, {QKX}')
    a('ds_write_b32 v36, v39')
    a('s_waitcnt lgkmcnt(0)')
    a('s_mov_b64 exec, s[62:63]')
    a.label(skip)
    a('s_barrier')
    a(f'v_mov_b32 v36, {QKX}')
    a('ds_read_b32 v39, v36')
    a('s_waitcnt lgkmcnt(0)')
    a(f'v_readfirstlane_b32 s{sTmp}, v39')
    a(f's_bcnt1_i32_b32 s{sTmp}, s{sTmp}')
    a(f's_cmp_eq_u32 s{sTmp}, 1')
    a(f's_cselect_b32 s{sFast}, 1, 0')

FUSED = False
def emit_chain_body(a, fail, end, st=None):
    st = st or Stamps(False)
    srd(a, S_WS, L.KA['ws'], L.WS_BYTES)
    srd(a, S_DBG, L.KA['dbg'], 256)
    if COARSE: a('s_memrealtime s[96:97]')
    a(f'v_lshrrev_b32 v1, 6, v0'); a(f'v_readfirstlane_b32 s{sW}, v1'); a(f'v_and_b32 v0, 63, v0')
    a(f's_mov_b32 s{sMaskH}, 0xCCCCCCCC'); a(f's_mov_b32 s{sMaskH+1}, 0xCCCCCCCC')
    a(f's_mov_b32 s{sMaskLo}, -1'); a(f's_mov_b32 s{sMaskLo+1}, 0')
    a(f'v_mov_b32 v1, 0x4444'); a(f'v_mov_b32 v2, 0xEEEE')
    a(f'v_cndmask_b32 v1, v1, v2, {MH}')
    a(f'v_lshlrev_b32 v2, 4, v0')
    a(f's_mov_b32 s{sC}, {hex(f32bits(C_SCALE))}')
    a(f's_mov_b32 s{sThr}, {hex(f32bits(60.0))}')
    a(f's_mov_b32 s{sSpin}, 0')
    for i in range(14): a(f's_mov_b32 s{sT+i}, 0')
    a(f'v_add_u32 v4, {AFR}, v2')
    a('s_waitcnt lgkmcnt(0)')
    a('s_cmp_eq_u32 s3, 1'); a(f's_cbranch_scc1 chain_helper')
    emit_main(a, st, fail, end)
    emit_helper(a, st, fail, end)

def decode_role(a, worker_label):
    a('s_and_b32 s3, s2, 7')
    a(f's_lshr_b32 s{sH}, s2, 3')
    a(f's_mul_i32 s60, s{sH}, 6'); a('s_add_u32 s60, s60, s3'); a('s_sub_u32 s60, s60, 2')
    a('s_cmp_gt_u32 s3, 1'); a(f's_cbranch_scc1 {worker_label}')

def emit_chain(a, timing=False, kname='chain_kernel'):
    fail = 'chain_fail'; end = 'chain_end'
    st = Stamps(timing)
    a.label(kname)
    a(f's_cmp_ge_u32 s2, 256'); a(f's_cbranch_scc1 {end}')
    decode_role(a, end)
    emit_chain_body(a, fail, end, st)
    a.label(fail)
    a('v_mov_b32 v1, 0xdead'); a('v_mov_b32 v2, 252')
    a(f'buffer_store_dword v1, v2, s[{S_DBG}:{S_DBG+3}], 0 offen')
    a('s_waitcnt vmcnt(0)')
    a.label(end)
    a('s_endpgm')

def qk_home(m, t, kb):
    idx = m * 20 + kb * 2 + t
    if idx < 32: return ('a', idx * 8)
    return ('v', 128 + (idx - 32) * 8)
def rr(home, n=8): return f'{home[0]}[{home[1]}:{home[1]+n-1}]'
def wo_pair(cg, eb):
    if eb == 0 and cg < 4: return None
    if cg < 4: return cg
    return 4 + eb

def interleave(a, mf, fill, start=0, per=1):
    fi = 0
    for i, m in enumerate(mf):
        emit(a, m if isinstance(m, list) else [m])
        if i >= start:
            for _ in range(per):
                if fi < len(fill):
                    g = fill[fi]; fi += 1
                    emit(a, g if isinstance(g, list) else [g])
    while fi < len(fill):
        g = fill[fi]; fi += 1
        emit(a, g if isinstance(g, list) else [g])

def half_add_ops(ra, rb):
    return [f'v_permlane32_swap_b32 v{ra+r}, v{rb+r}' for r in range(4)] + [f'v_add_f32 v{ra+r}, v{ra+r}, v{rb+r}' for r in range(4)]


import os
EXP = os.environ.get('EXP', '')
sTch = 30
sTag = 49; sFlip = 34; sFlipO = 34; sMf = 33; sHs = 36; sHs0 = 37
ADAPT = os.environ.get('ADAPT', '1') == '1'
ADUP = int(os.environ.get('ADUP', 12))
HAB = int(os.environ.get('HAB', 0))
HDN = int(os.environ.get('HDN', 2))
sOwnP = 31
def zero(lo, hi): return [f'v_mov_b64 v[{r}:{r+1}], 0' for r in range(lo, hi, 2)]

def dma_w(a):
    a(f's_mov_b32 m0, s{sKVw}')
    a(f'buffer_load_dwordx4 v10, {W}, s{sKsrc} offen lds')
    a(f'buffer_load_dwordx4 v13, {W}, s{sKsrc} offen offset:1024 lds')
    a(f's_add_u32 m0, s{sKVw}, 8192')
    a(f'buffer_load_dwordx4 v2, {W}, s{sVsrc} offen lds')
    a(f'buffer_load_dwordx4 v2, {W}, s{sVsrc} offen offset:1024 lds')

def km_ops(land):
    return [f's_lshl_b32 s{sTmp3}, s{sW}, 10', f'v_add_u32 v{land+4}, s{sTmp3}, v6',
            f'ds_read_b64_tr_b16 v[{land}:{land+1}], v{land+4} offset:4096', f'ds_read_b64_tr_b16 v[{land+2}:{land+3}], v{land+4} offset:{4096+128}',
            's_waitcnt lgkmcnt(0)',
            f'buffer_store_dwordx4 v[{land}:{land+3}], v2, {W}, s{sKMo} offen sc1',
            f's_add_u32 s{sKMo}, s{sKMo}, {32*4096}']

def advance(a):
    if FUSED:
        a(f'v_readfirstlane_b32 s{sRdy}, v12'); a('v_mov_b32 v12, -1')
    a(f's_add_u32 s{sKsrc}, s{sKsrc}, {32*8192}'); a(f's_add_u32 s{sVsrc}, s{sVsrc}, {32*8192}');
    a(f's_xor_b32 s{sKVw}, s{sKVw}, 16384')
    a('v_xor_b32 v14, 16384, v14')
    a(f's_add_u32 s{sS}, s{sS}, 1')
    a(f's_add_u32 s{sVMo}, s{sVMo}, {32*2048}'); a(f's_add_u32 s{sKMo}, s{sKMo}, {32*4096}')
    a(f's_mov_b32 s{sTmp3}, s{sP1w}'); a(f's_mov_b32 s{sP1w}, s{sP1r}'); a(f's_mov_b32 s{sP1r}, s{sTmp3}')
    a(f's_add_u32 s{sMw}, s{sMw}, {L.MEMSZ}'); a(f's_xor_b32 s{sMf}, s{sMf}, {L.MEMSZ}')
    a(f's_bfe_u32 s{sTag}, s{sS}, {(1 << 16) | 1}'); a(f's_xor_b32 s{sFlip}, s{sTag}, 1')

def emit_main(a, st, fail, end):
    a.comment('======== MAIN ========')
    srd(a, S_T0, L.KA['Wq'], 640*4096*2)
    srd(a, S_T1, L.KA['Wk'], 640*4096*2)
    srd(a, S_T2, L.KA['Wo'], 640*4096*2)
    xcc_or(a)
    a('v_lshrrev_b32 v36, 4, v0'); a('v_and_b32 v37, 15, v0'); a('v_lshlrev_b32 v37, 4, v37')
    a('v_lshlrev_b32 v10, 13, v36'); a('v_add_u32 v10, v10, v37')
    a('v_mul_u32_u24 v11, 1280, v36'); a('v_add_u32 v11, v11, v37')
    trbase(a, 12, False)
    trbase(a, 13, True)
    a(f's_lshl_b32 s28, s{sH}, 8')
    a(f's_mul_i32 s29, s{sH}, {128*1280}')
    a('s_waitcnt lgkmcnt(0)')
    chunks = []
    for m, s_ in ((0, S_T0), (1, S_T1)):
        for kb in range(10):
            d = [qk_home(m, t, kb) for t in range(2)]
            chunks.append(dict(srd=s_, vofs=10, sbase=28, soff=64*kb*8192, istep=4*8192, vtr=12, rows=[0, 4, 32, 36], tcol=[0, 32],
                               dests=[f'{x[0]}{x[1]}' for x in d]))
    for eb in range(2):
        for cg in range(5):
            p = wo_pair(cg, eb)
            d = [f'v{192 + (cg*2+t)*8}' if p is None else f'v{20 + (p*2+t)*8}' for t in range(2)]
            chunks.append(dict(srd=S_T2, vofs=11, sbase=29, soff=64*eb*1280 + cg*256, istep=4*1280, vtr=13, rows=[0, 16, 8, 24], tcol=[0, 128], dests=d))
    load_chunks(a, chunks, 14)
    if COARSE: a('s_memrealtime s[90:91]')
    a('s_barrier')
    a(f's_mul_i32 s{sTmp}, s{sW}, {12*2048}'); a(f's_add_u32 s{sTmp}, s{sTmp}, {WL}')
    a(f'v_add_u32 v15, s{sTmp}, v2')
    for i in range(12):
        a(f'ds_write_b128 v15, v[{20+8*i}:{23+8*i}] offset:{i*2048}')
        a(f'ds_write_b128 v15, v[{24+8*i}:{27+8*i}] offset:{i*2048+1024}')
    a('s_waitcnt lgkmcnt(0)')
    a(f's_sub_u32 s{sTmp}, s{sW}, 2'); a(f's_mul_i32 s{sTmp}, s{sTmp}, 5120'); a(f'v_add_u32 v3, s{sTmp}, v4')
    a('v_and_b32 v36, 15, v0'); a('v_lshlrev_b32 v36, 5, v36'); a('v_lshrrev_b32 v37, 4, v0'); a('v_lshlrev_b32 v37, 3, v37'); a('v_add_u32 v36, v36, v37')
    a(f's_lshl_b32 s{sTmp}, s{sW}, 10'); a(f's_add_u32 s{sTmp}, s{sTmp}, {QKX}'); a(f'v_add_u32 v5, s{sTmp}, v36')
    a('v_lshrrev_b32 v36, 4, v0'); a('v_lshlrev_b32 v36, 3, v36'); a('v_bfe_u32 v37, v0, 2, 2'); a('v_add_u32 v36, v36, v37')
    a('v_lshlrev_b32 v36, 5, v36'); a('v_and_b32 v37, 3, v0'); a('v_lshlrev_b32 v37, 3, v37'); a('v_add_u32 v36, v36, v37')
    a(f'v_add_u32 v6, {QKX}, v36')
    a('v_lshrrev_b32 v36, 4, v0'); a('v_lshlrev_b32 v36, 13, v36'); a('v_and_b32 v37, 15, v0'); a('v_lshlrev_b32 v37, 4, v37'); a('v_add_u32 v7, v36, v37')
    a('v_bfe_u32 v36, v0, 2, 2'); a('v_lshlrev_b32 v36, 10, v36'); a('v_and_b32 v37, 3, v0'); a('v_lshlrev_b32 v37, 4, v37'); a('v_add_u32 v36, v36, v37')
    a('v_lshrrev_b32 v37, 4, v0'); a('v_lshlrev_b32 v37, 2, v37'); a('v_add_u32 v8, v36, v37')
    a('v_lshlrev_b32 v9, 3, v0')
    a(f's_lshr_b32 s{sTmp}, s{sW}, 1'); a(f's_lshl_b32 s{sTmp}, s{sTmp}, 10'); a(f's_and_b32 s{sTmp2}, s{sW}, 1'); a(f's_lshl_b32 s{sTmp2}, s{sTmp2}, 3')
    a(f's_add_u32 s{sTmp}, s{sTmp}, s{sTmp2}'); a(f's_add_u32 s{sTmp}, s{sTmp}, {OFR}'); a(f'v_add_u32 v11, s{sTmp}, v2')
    a('v_bfe_u32 v36, v0, 2, 1'); a('v_lshlrev_b32 v36, 4, v36'); a('v_bfe_u32 v37, v0, 3, 1'); a('v_lshlrev_b32 v37, 2, v37')
    a('v_add_u32 v36, v36, v37'); a('v_and_b32 v37, 3, v0'); a('v_add_u32 v36, v36, v37'); a('v_lshlrev_b32 v36, 13, v36')
    a('v_lshrrev_b32 v37, 4, v0'); a('v_lshlrev_b32 v37, 4, v37'); a('v_add_u32 v10, v36, v37')
    a('v_mov_b32 v12, -1')
    a('v_bfe_u32 v36, v0, 2, 2'); a('v_lshlrev_b32 v36, 1, v36'); a('v_and_b32 v37, 1, v0'); a('v_add_u32 v36, v36, v37')
    for q in range(4):
        a(f'v_mov_b32 v{16+q}, 0'); a(f'v_mov_b32 v37, 0x3F80')
        a(f'v_cmp_eq_u32 vcc, {2*q}, v36'); a(f'v_cndmask_b32 v{16+q}, v{16+q}, v37, vcc')
        a(f'v_mov_b32 v37, 0x3F800000')
        a(f'v_cmp_eq_u32 vcc, {2*q+1}, v36'); a(f'v_cndmask_b32 v{16+q}, v{16+q}, v37, vcc')
    a(f'v_add_u32 v13, {SEL}, v2')
    a('ds_write_b128 v13, v[16:19]')
    a('s_waitcnt lgkmcnt(0)')
    for q in range(4): a(f'v_mov_b32 v{16+q}, 0x3F803F80')
    a(f'v_add_u32 v14, {KVB}, v2')
    a('v_mov_b32 v121, 0'); a('v_mov_b32 v122, 0'); a(f'v_mov_b32 v124, s{sC}')
    a(f's_mov_b32 s{sOwn}, -1')
    a(f's_cmp_eq_u32 s{sW}, 0'); a(f's_cselect_b32 s{sOwn}, s{sH}, s{sOwn}')
    a(f's_add_u32 s{sTmp}, s{sH}, 32'); a(f's_cmp_lt_u32 s{sTmp}, 48'); a(f's_cselect_b32 s{sTmp}, s{sTmp}, -1')
    a(f's_cmp_eq_u32 s{sW}, 1'); a(f's_cselect_b32 s{sOwn}, s{sTmp}, s{sOwn}')
    a(f's_lshr_b32 s{sTmp}, s{sOwn}, 2'); a(f's_and_b32 s{sTmp}, s{sTmp}, 15'); a(f's_mul_i32 s{sTmp2}, s{sTmp}, 11'); a(f's_lshr_b32 s{sTmp2}, s{sTmp2}, 5')
    a(f's_mul_i32 s{sTmp3}, s{sTmp2}, 3'); a(f's_sub_u32 s{sTmp3}, s{sTmp}, s{sTmp3}')
    a(f's_lshl_b32 s{sOwnP}, s{sTmp3}, 12'); a(f's_lshl_b32 s{sTmp2}, s{sTmp2}, 8'); a(f's_add_u32 s{sOwnP}, s{sOwnP}, s{sTmp2}')
    a(f's_and_b32 s{sTmp}, s{sOwn}, 3'); a(f's_lshl_b32 s{sTmp}, s{sTmp}, 6'); a(f's_add_u32 s{sOwnP}, s{sOwnP}, s{sTmp}')
    a(f's_cmp_eq_u32 s{sOwn}, -1'); a(f's_cselect_b32 s{sOwnP}, 24576, s{sOwnP}')
    a(f's_mul_i32 s{sP1w}, s{sW}, {3*32768}'); a(f's_lshl_b32 s{sTmp}, s{sH}, 8')
    a(f's_add_u32 s{sP1w}, s{sP1w}, s{sTmp}'); a(f's_add_u32 s{sP1w}, s{sP1w}, {L.P1}')
    a(f's_add_u32 s{sP1r}, s{sP1w}, {L.P1SZ}')
    a('s_barrier')
    mem0_frags(a)
    a(f's_lshl_b32 s{sKsrc}, s{sH}, 8'); a(f's_add_u32 s{sKsrc}, s{sKsrc}, {L.K}')
    a(f's_lshl_b32 s{sVsrc}, s{sH}, 13'); a(f's_add_u32 s{sVsrc}, s{sVsrc}, {L.VT}')
    a(f's_lshl_b32 s{sVMo}, s{sH}, 11'); a(f's_add_u32 s{sVMo}, s{sVMo}, {L.VM}'); a(f's_lshl_b32 s{sTmp}, s{sW}, 9'); a(f's_add_u32 s{sVMo}, s{sVMo}, s{sTmp}')
    a(f's_lshl_b32 s{sKMo}, s{sH}, 12'); a(f's_add_u32 s{sKMo}, s{sKMo}, {L.KM}')
    a(f's_lshl_b32 s{sTmp}, s{sW}, 10'); a(f's_add_u32 s{sKMo}, s{sKMo}, s{sTmp}')
    if FUSED:
        lp = a.newlabel('kvw'); lp2 = a.newlabel('kvw2')
        a('v_mov_b32 v36, 0')
        a.label(lp)
        a('s_sleep 2')
        a(f'buffer_load_dword v37, v36, s[{S_DBG}:{S_DBG+3}], 0 offen offset:12 sc1')
        spin_check(a, fail)
        a('s_waitcnt vmcnt(0)')
        a(f'v_readfirstlane_b32 s{sTmp}, v37'); a(f's_cmp_eq_u32 s{sTmp}, 0'); a(f's_cbranch_scc1 {lp}')
        a(f's_mov_b32 s{sTmp2}, {L.ctr(L.C_KV)}')
        a.label(lp2)
        a('s_sleep 2')
        a(f'buffer_load_dword v37, v36, {W}, s{sTmp2} offen sc1')
        spin_check(a, fail)
        a('s_waitcnt vmcnt(0)')
        a('v_cmp_gt_u32 vcc, 64, v37'); a(f's_cbranch_vccnz {lp2}')
        a(f's_mov_b32 s{sRdy}, 64')
    a('v_subrev_u32 v13, 960, v10')
    a(f's_lshr_b32 s{sTmp}, s{sW}, 1'); a(f's_lshl_b32 s{sTmp}, s{sTmp}, 16')
    a(f's_and_b32 s{sTmp2}, s{sW}, 1'); a(f's_lshl_b32 s{sTmp2}, s{sTmp2}, 7')
    a(f's_add_u32 s{sTmp}, s{sTmp}, s{sTmp2}'); a(f's_add_u32 s{sKsrc}, s{sKsrc}, s{sTmp}')
    a(f's_lshl_b32 s{sTmp}, s{sW}, 11'); a(f's_add_u32 s{sVsrc}, s{sVsrc}, s{sTmp}')
    a(f's_add_u32 s{sKVw}, s{sTmp}, {KVB}')
    dma_w(a)
    a(f's_add_u32 s{sKsrc}, s{sKsrc}, {32*8192}'); a(f's_add_u32 s{sVsrc}, s{sVsrc}, {32*8192}'); a(f's_xor_b32 s{sKVw}, s{sKVw}, 16384')
    if COARSE: a('s_memrealtime s[88:89]'); a('s_waitcnt lgkmcnt(0)')
    rendezvous(a, True, fail)
    a(f's_mov_b32 s{sS}, 0')
    a(f's_mov_b32 s{sMw}, {L.MEMSZ}'); a(f's_mov_b32 s{sMf}, {L.MEMSZ}'); a(f's_mov_b32 s{sTag}, 0'); a(f's_mov_b32 s{sFlip}, 1')
    emit(a, zero(20, 36))
    a('s_barrier')
    if st.on and not st.trace:
        a(f's_memtime s[{sT+14}:{sT+15}]'); a('s_waitcnt lgkmcnt(0)'); a(f's_mov_b32 s{sT+13}, s{sT+14}')
    if COARSE:
        a('s_memrealtime s[98:99]'); a('s_memtime s[92:93]'); a('s_waitcnt lgkmcnt(0)')
    a(f's_cmp_eq_u32 s{sFast}, 0'); a('s_cbranch_scc1 main_loop_safe')
    main_loop(a, True, st, fail)
    main_loop(a, False, st, fail)
    a.label('main_last')
    a(f's_lshl_b32 s{sKMo}, s{sH}, 12'); a(f's_add_u32 s{sKMo}, s{sKMo}, {L.KM + 63*32*4096}'); a(f's_lshl_b32 s{sTmp}, s{sW}, 10'); a(f's_add_u32 s{sKMo}, s{sKMo}, s{sTmp}')
    emit(a, km_ops(40))
    st.dump(a, 0)
    if COARSE:
        sk = a.newlabel('csk')
        a('s_memrealtime s[100:101]'); a('s_memtime s[94:95]'); a('s_waitcnt lgkmcnt(0)')
        sk0 = a.newlabel('csk0')
        a(f's_cmp_lg_u32 s{sW}, 0'); a(f's_cbranch_scc1 {sk0}')
        a('v_mov_b32 v36, 0'); a(f's_lshl_b32 s{sTmp}, s{sH}, 5'); a(f's_add_u32 s{sTmp}, s{sTmp}, {TRACE + 32768}')
        for i, r in enumerate((96, 90, 88, 98, 100)):
            a(f'v_mov_b32 v37, s{r}')
            a(f'buffer_store_dword v37, v36, {W}, s{sTmp} offen offset:{4*i}')
        a.label(sk0)
        a(f's_or_b32 s{sTmp}, s{sH}, s{sW}'); a(f's_cmp_lg_u32 s{sTmp}, 0'); a(f's_cbranch_scc1 {sk}')
        a('v_mov_b32 v36, 0')
        a('s_sub_u32 s98, s98, s96'); a('s_sub_u32 s100, s100, s96'); a('s_sub_u32 s94, s94, s92')
        a('s_sub_u32 s90, s90, s96'); a('s_sub_u32 s88, s88, s96')
        for i, r in enumerate((98, 100, 94, 90, 88)):
            a(f'v_mov_b32 v37, s{r}')
            a(f'buffer_store_dword v37, v36, s[{S_DBG}:{S_DBG+3}], 0 offen offset:{128+4*i}')
        a('s_waitcnt vmcnt(0)')
        a.label(sk)
    a(f's_branch {end}')

def main_loop(a, fast, st, fail):
    sc = ('nt' if 'ntst' in EXP else '') if fast else 'sc1'
    tag = 'fast' if fast else 'safe'
    a.label(f'main_loop_{tag}')
    F = lambda kb: f'v[{72+4*kb}:{75+4*kb}]'
    if 'skel' in EXP:
        a(f's_cmp_ge_u32 s{sS}, 63'); a('s_cbranch_scc1 main_last')
        a(f's_sleep {int(os.environ.get("CSLEEP", 8))}')
        emit(a, zero(28, 40))
        st(a, 0)
        for qq in range(3):
            a(f'v_and_or_b32 v{28+4*qq}, v{28+4*qq}, -2, s{sTag}')
            a(f's_add_u32 s{sTmp}, s{sP1w}, {qq*32768}'); a(f'buffer_store_dwordx4 v[{28+4*qq}:{31+4*qq}], v7, {W}, s{sTmp} offen {sc}')
        a(f's_branch skel_{tag}')
    for kb in range(10):
        a(f'ds_read_b128 {F(kb)}, v4 offset:{kb*1024}')
    if FUSED:
        rok = a.newlabel('rok'); rl = a.newlabel('rl')
        a(f's_cmp_ge_u32 s{sRdy}, 64'); a(f's_cbranch_scc1 {rok}')
        a(f's_add_u32 s{sTmp}, s{sS}, 1'); a(f's_lshr_b32 s{sTmp}, s{sTmp}, 2'); a(f's_min_u32 s{sTmp}, s{sTmp}, 15'); a(f's_lshl_b32 s{sTmp}, s{sTmp}, 7'); a(f's_add_u32 s{sTmp}, s{sTmp}, {L.ctr(L.C_KV)}')
        a.label(rl)
        a(f'buffer_load_dword v36, v121, {W}, s{sTmp} offen sc1')
        spin_check(a, fail)
        a('s_waitcnt vmcnt(0)')
        a(f'v_readfirstlane_b32 s{sRdy}, v36')
        a(f's_cmp_lt_u32 s{sRdy}, 64'); a(f's_cbranch_scc1 {rl}')
        a.label(rok)
    if 'nodma' not in EXP: dma_w(a)
    mf = []
    for kb in range(10):
        for t in range(2):
            ins = f'{SM} v[{20+4*t}:{23+4*t}], {F(kb)}, {rr(qk_home(0, t, kb))}, v1'
            nk = max(0, 2*(kb-6)) if kb >= 6 else 0
            mf.append([f's_waitcnt lgkmcnt({9-kb+nk})', ins] if t == 0 else ins)
    fill = [[]]*11 + [['s_waitcnt vmcnt(4)'] if 'ab' in EXP else []] + [f'ds_read_b128 v[{40+4*i}:{43+4*i}], v14 offset:{i*1024}' for i in range(8)]
    interleave(a, mf, fill)
    st(a, 0)
    mf = [f'{SM} v[{28+4*t}:{31+4*t}], {F(kb)}, {rr(qk_home(1, t, kb))}, v1' for kb in range(10) for t in range(2)]
    fill = [[], [], 'v_add_f32 v20, v20, v22', 'v_add_f32 v21, v21, v23', 'v_add_f32 v24, v24, v26', 'v_add_f32 v25, v25, v27',
            'v_cvt_pk_bf16_f32 v36, v20, v21', 'v_cvt_pk_bf16_f32 v37, v24, v25',
            'ds_write2_b32 v5, v36, v36 offset0:0 offset1:1', 'ds_write2_b32 v5, v37, v37 offset0:128 offset1:129', 'v_add_u32 v39, 4096, v5', [],
            ['s_waitcnt lgkmcnt(0)', 's_barrier']]
    fill += [[f'ds_read_b64_tr_b16 v[{72+4*kp}:{73+4*kp}], v6 offset:{kp*1024}', f'ds_read_b64_tr_b16 v[{74+4*kp}:{75+4*kp}], v6 offset:{kp*1024+128}'] for kp in range(4)]
    interleave(a, mf, fill)
    st(a, 1)
    mf = []
    for kp in range(4):
        c1 = '0' if kp == 0 else 'v[20:23]'; c2 = '0' if kp == 0 else 'v[24:27]'
        mf.append([f's_waitcnt lgkmcnt({6-2*kp})', f'{MF32} v[20:23], v[{40+4*kp}:{43+4*kp}], v[{72+4*kp}:{75+4*kp}], {c1}'])
        mf.append(f'{MF32} v[24:27], v[{56+4*kp}:{59+4*kp}], v[{72+4*kp}:{75+4*kp}], {c2}')
    fill = [[], ['v_add_f32 v28, v28, v30', 'v_add_f32 v29, v29, v31'], ['v_add_f32 v32, v32, v34', 'v_add_f32 v33, v33, v35'],
            ['v_cvt_pk_bf16_f32 v36, v28, v29', 'v_cvt_pk_bf16_f32 v37, v32, v33'], [], [], [],
            ['ds_write2_b32 v39, v36, v36 offset0:0 offset1:1', 'ds_write2_b32 v39, v37, v37 offset0:128 offset1:129']]
    interleave(a, mf, fill)
    a(f's_lshl_b32 s{sTmp}, s{sW}, 11'); a(f'v_add_u32 v127, s{sTmp}, v14')
    a('v_max3_f32 v126, v20, v21, v22'); a('v_max3_f32 v125, v23, v24, v25')
    a('s_waitcnt lgkmcnt(0)')
    a('s_barrier')
    a(f's_cmp_ge_u32 s{sS}, 63'); a('s_cbranch_scc1 main_last')
    for kp in range(4):
        for rho in range(2):
            a(f'ds_read_b64_tr_b16 v[{88+4*kp+2*rho}:{89+4*kp+2*rho}], v6 offset:{4096+kp*1024+rho*128}')
    a('ds_read_b128 v[104:107], v127 offset:8192'); a('ds_read_b128 v[108:111], v127 offset:9216')
    a(f'buffer_load_dwordx2 v[112:113], v9, {W}, s{sVMo} offen sc1')
    a('v_max3_f32 v126, v126, v26, v27'); a('v_max_f32 v126, v126, v125')
    a('v_mov_b32 v125, v126')
    if FUSED:
        a(f's_add_u32 s{sTmp}, s{sS}, 2'); a(f's_lshr_b32 s{sTmp}, s{sTmp}, 2'); a(f's_min_u32 s{sTmp}, s{sTmp}, 15'); a(f's_lshl_b32 s{sTmp}, s{sTmp}, 7'); a(f's_add_u32 s{sTmp}, s{sTmp}, {L.ctr(L.C_KV)}')
    else:
        a('s_nop 0')
    a('v_permlane32_swap_b32 v126, v125'); a('v_max_f32 v126, v126, v125')
    a('v_mov_b32 v125, v126')
    if FUSED: a(f'buffer_load_dword v12, v121, {W}, s{sTmp} offen sc1')
    a('v_permlane16_swap_b32 v126, v125'); a('v_max_f32 v126, v126, v125')
    a('v_mul_f32 v127, v124, v126'); a('v_sub_f32 v127, 0, v127')
    st(a, 2)
    wl = []
    for i in range(4):
        wl += [f'ds_read_b128 v[{40+8*i}:{43+8*i}], v15 offset:{i*2048}', f'ds_read_b128 v[{44+8*i}:{47+8*i}], v15 offset:{i*2048+1024}']
    for r in range(20, 28): a(f'v_fma_f32 v{r}, v{r}, v124, v127')
    mfs = []
    for kp in range(4):
        c0 = '0' if kp == 0 else 'v[28:31]'
        mfs.append([f's_waitcnt lgkmcnt({2 + 6 - 2*kp})', f'{MF32} v[28:31], v[{88+4*kp}:{91+4*kp}], v[{72+4*kp}:{75+4*kp}], {c0}'])
    fill = [[f'v_exp_f32 v{r}, v{r}', f'v_exp_f32 v{r+1}, v{r+1}'] for r in range(20, 28, 2)]
    interleave(a, mfs, fill)
    a(f'buffer_load_dwordx2 v[114:115], v9, {W}, s{sVMo} offen sc1')
    a('v_cvt_pk_bf16_f32 v116, v20, v21'); a('v_cvt_pk_bf16_f32 v117, v22, v23')
    a('v_cvt_pk_bf16_f32 v118, v24, v25'); a('v_cvt_pk_bf16_f32 v119, v26, v27')
    a('v_fma_f32 v28, v28, v124, v127'); a('v_fma_f32 v29, v29, v124, v127')
    st(a, 3)
    a('s_waitcnt lgkmcnt(0)')
    a(f'{MF32} v[32:35], v[104:107], v[116:119], 0')
    a('v_max_f32 v126, v28, v29')
    a(f'{MF32} v[36:39], v[108:111], v[116:119], 0')
    a(f'v_cmp_lt_f32 vcc, s{sThr}, v126')
    a(f'{MF32} v[20:23], v[16:19], v[116:119], 0')
    emit(a, wl[:4])
    ok = a.newlabel('thr')
    a(f's_cbranch_vccz {ok}')
    a('v_max_f32 v126, 0, v126')
    a('v_mov_b32 v125, v126'); a('v_permlane32_swap_b32 v126, v125'); a('v_max_f32 v126, v126, v125')
    a('v_mov_b32 v125, v126'); a('v_permlane16_swap_b32 v126, v125'); a('v_max_f32 v126, v126, v125')
    for r in range(28, 30): a(f'v_sub_f32 v{r}, v{r}, v126')
    a('v_sub_f32 v126, 0, v126'); a('v_exp_f32 v126, v126')
    for r in list(range(32, 40)) + list(range(20, 24)): a(f'v_mul_f32 v{r}, v{r}, v126')
    a.label(ok)
    a('v_exp_f32 v28, v28'); a('v_exp_f32 v29, v29')
    emit(a, wl[4:])
    a('v_cvt_pk_bf16_f32 v120, v28, v29'); a('v_cvt_pk_bf16_f32 v123, v28, v29')
    a(f'{MF16} v[20:23], v[16:17], v[120:121], v[20:23]')
    if 'nokm' not in EXP:
        a(f's_lshl_b32 s{sTmp3}, s{sW}, 10'); a(f'v_add_u32 v125, s{sTmp3}, v6')
        a('ds_read_b64_tr_b16 v[116:117], v125 offset:4096'); a(f'ds_read_b64_tr_b16 v[118:119], v125 offset:{4096+128}')
    emit(a, zero(72, 88))
    st(a, 4)
    vp = a.newlabel('vmp'); vok = a.newlabel('vmok')
    nyoung = 2 if FUSED else 1
    a('s_waitcnt vmcnt(1)')
    a('v_max_u32 v126, v112, v113')
    a('v_cmp_eq_u32 vcc, -1, v126'); a(f's_cbranch_vccz {vok}')
    a('s_waitcnt vmcnt(0)')
    a('v_mov_b64 v[112:113], v[114:115]')
    a.label(vp)
    a('v_max_u32 v126, v112, v113')
    a('v_cmp_eq_u32 vcc, -1, v126'); a(f's_cbranch_vccz {vok}')
    a(f'buffer_load_dwordx2 v[112:113], v9, {W}, s{sVMo} offen sc1')
    spin_check(a, fail)
    a('s_waitcnt vmcnt(0)')
    a(f's_branch {vp}')
    a.label(vok)
    st(a, 5)
    a(f'{MF16} v[32:35], v[112:113], v[120:121], v[32:35]')
    a(f'{MF16} v[36:39], v[112:113], v[122:123], v[36:39]')
    a('v_rcp_f32 v126, v20')
    a('v_mov_b32 v127, v126')
    for t, o in ((0, 32), (1, 36)):
        a(f'v_cndmask_b32 v{24+2*t}, v{o}, v{o+2}, {MH}')
        a(f'v_cndmask_b32 v{25+2*t}, v{o+1}, v{o+3}, {MH}')
        a(f'v_pk_mul_f32 v[{24+2*t}:{25+2*t}], v[{24+2*t}:{25+2*t}], v[126:127]')
        a(f'v_cvt_pk_bf16_f32 v{28+t}, v{24+2*t}, v{25+2*t}')
    a('ds_write_b64 v11, v[28:29]')
    if 'nokm' not in EXP:
        a('s_waitcnt lgkmcnt(1)')
        a(f'buffer_store_dwordx4 v[116:119], v2, {W}, s{sKMo} offen sc1')
    emit(a, zero(88, 98))
    a('s_waitcnt lgkmcnt(0)')
    a('s_barrier')
    a(f'v_add_u32 v127, {OFR}, v2')
    a('ds_read_b128 v[20:23], v127'); a('ds_read_b128 v[24:27], v127 offset:1024')
    emit(a, zero(98, 112))
    emit(a, zero(38, 40))
    st(a, 6)
    def epi(cg):
        ops = []
        for t in range(2):
            ac = 72 + 4*(cg*2+t); d = 28 + 4*(cg >> 1) + 2*(cg & 1) + t
            ops += [f'v_add_f32 v{ac}, v{ac}, v{ac+2}', f'v_add_f32 v{ac+1}, v{ac+1}, v{ac+3}', f'v_cvt_pk_bf16_f32 v{d}, v{ac}, v{ac+1}']
        if cg in (1, 3, 4):
            qq = cg >> 1; d = 28 + 4*qq
            ops += [f'v_and_or_b32 v{d}, v{d}, -2, s{sTag}', [f's_add_u32 s{sTmp}, s{sP1w}, {qq*32768}', f'buffer_store_dwordx4 v[{d}:{d+3}], v7, {W}, s{sTmp} offen {sc}']]
        return ops
    def pf(pair):
        sl = (pair & 1) * 2; ops = []
        for t in range(2):
            i = pair * 2 + t; b = 40 + 8 * (sl + t)
            ops += [f'ds_read_b128 v[{b}:{b+3}], v15 offset:{i*2048}', f'ds_read_b128 v[{b+4}:{b+7}], v15 offset:{i*2048+1024}']
        return ops
    a('s_waitcnt lgkmcnt(0)')
    pend = []
    n = 0
    for cg in range(5):
        for eb in range(2):
            p = wo_pair(cg, eb)
            A = 'v[20:23]' if eb == 0 else 'v[24:27]'
            for t in range(2):
                ac = 72 + 4*(cg*2+t)
                b = 192 + (cg*2+t)*8 if p is None else 40 + 8 * ((p & 1) * 2 + t)
                if p is not None and t == 0 and p >= 2:
                    a(f's_waitcnt lgkmcnt({4 if p < 5 else 0})')
                a(f'{SM} v[{ac}:{ac+3}], {A}, v[{b}:{b+7}], v1')
                n += 1
                if p is not None and t == 1 and p + 2 < 6:
                    emit(a, pf(p + 2))
                k = 0
                while pend and pend[0][0] <= n and k < (1 if (p is not None and t == 1 and p + 2 < 6) else 2):
                    emit(a, [pend.pop(0)[1]]); k += 1
        pend += [(n + 3, op_) for op_ in epi(cg)]
    emit(a, [x[1] for x in pend])
    if 'skel' in EXP: a.label(f'skel_{tag}')
    st(a, 7)
    gat = a.newlabel('gat'); join = a.newlabel('join'); op = a.newlabel('ownp'); nown = a.newlabel('nown'); post = a.newlabel('post')
    a(f's_cmp_ge_u32 s{sW}, 2'); a(f's_cbranch_scc1 {gat}')
    a(f's_cmp_eq_u32 s{sOwn}, -1'); a(f's_cbranch_scc1 {nown}')
    a(f'v_add_u32 v127, {SEL}, v2'); a('ds_read_b128 v[36:39], v127')
    a(f's_and_b32 s{sTmp}, s{sS}, 1'); a(f's_mul_i32 s{sTmp}, s{sTmp}, {L.P1SZ}')
    a(f's_lshl_b32 s{sTmp2}, s{sOwn}, 13'); a(f's_add_u32 s{sTmp}, s{sTmp}, s{sTmp2}')
    a(f's_add_u32 s{sTmp}, s{sTmp}, {L.P1}'); a(f's_add_u32 s{sTmp2}, s{sTmp}, 4096')
    a(f's_add_u32 s{sPubX}, s{sOwnP}, s{sMw}'); a(f's_add_u32 s{sPubX}, s{sPubX}, {L.MEMX}')
    a(f's_add_u32 s{sPubF}, s{sOwnP}, s{sMf}'); a(f's_add_u32 s{sPubF}, s{sPubF}, {L.MEMF}')
    if OSLEEP: a(f's_sleep {OSLEEP}')
    a('s_waitcnt lgkmcnt(0)')
    OL = 'nt' if ('ntld' in EXP and fast) else 'sc1'
    def oissue(b):
        for m in range(8):
            so = sTmp if m < 4 else sTmp2
            a(f'buffer_load_dwordx4 v[{b+4*m}:{b+3+4*m}], v2, {W}, s{so} offen offset:{(m&3)*1024} {OL}')
    def oconsume(b, younger):
        for m in range(8):
            a(f's_waitcnt vmcnt({7-m+younger})')
            if 'fine' in EXP and m == 0: st(a, 2)
            if 'fine' in EXP and m == 7: st(a, 3)
            c = '0' if m == 0 else 'v[20:23]'
            a(f'{MF32} v[20:23], v[{b+4*m}:{b+3+4*m}], v[36:39], {c}')
            if m == 0: a(f'v_xor_b32 v28, s{sFlipO}, v{b}')
            else: a(f'v_bitop3_b32 v28, v28, v{b+4*m}, s{sFlipO} bitop3:0x60')
        a('v_and_b32 v28, 1, v28')
        a('v_cmp_eq_u32 vcc, 0, v28')
    if 'ab' in EXP:
        od = a.newlabel('od')
        oissue(40)
        a(f's_sleep {int(os.environ.get("STAG", 2))}')
        a.label(op)
        oissue(72)
        spin_check(a, fail)
        oconsume(40, 8)
        a(f's_cbranch_vccz {od}')
        oissue(40)
        oconsume(72, 8)
        a(f's_cbranch_vccnz {op}')
        a.label(od)
    else:
        a.label(op)
        oissue(40)
        spin_check(a, fail)
        if 'fine' in EXP: st(a, 1)
        oconsume(40, 0)
        if 'fine' in EXP: a(f's_add_u32 s{sT+4}, s{sT+4}, 63')
        if 'noown' not in EXP: a(f's_cbranch_vccnz {op}')
    a(f'v_cndmask_b32 v24, v20, v22, {MH}'); a(f'v_cndmask_b32 v25, v21, v23, {MH}')
    a('v_cvt_pk_bf16_f32 v24, v24, v25')
    if 'pub16' in EXP:
        a('v_mov_b32 v25, v24'); a('v_mov_b32 v26, v24'); a('v_mov_b32 v27, v24')
        a('s_mov_b64 exec, 0xffff')
        a(f'buffer_store_dwordx4 v[24:27], v8, {W}, s{sPubF} offen {sc}')
        a('s_mov_b64 exec, -1')
    else:
        a(f'buffer_store_dword v24, v8, {W}, s{sPubF} offen {sc}')
    st(a, 8)
    a('s_barrier')
    XD = int(os.environ.get('XDELAY', 0))
    if XD: a(f's_sleep {XD}')
    if 'atomx' in EXP: a(f'buffer_atomic_and v24, v8, {W}, s{sPubX} offen')
    elif 'x16' in EXP:
        a('v_mov_b32 v25, v24'); a('v_mov_b32 v26, v24'); a('v_mov_b32 v27, v24')
        a('s_mov_b64 exec, 0xffff')
        a(f'buffer_store_dwordx4 v[24:27], v8, {W}, s{sPubX} offen sc1')
        a('s_mov_b64 exec, -1')
    elif 'nomemx' not in EXP: a(f'buffer_store_dword v24, v8, {W}, s{sPubX} offen sc1')
    a(f's_xor_b32 s{sTmp}, s{sMf}, {L.MEMSZ}'); a(f's_add_u32 s{sTmp}, s{sTmp}, s{sOwnP}'); a(f's_add_u32 s{sTmp}, s{sTmp}, {L.MEMF}')
    a('v_mov_b32 v25, -1')
    a(f'buffer_store_dword v25, v8, {W}, s{sTmp} offen {sc}')
    a(f's_branch {post}')
    a.label(nown)
    st(a, 8)
    a('s_barrier')
    a.label(post)
    advance(a)
    emit(a, zero(20, 36))
    if 'ab' in EXP: a('s_waitcnt vmcnt(2)')
    a(f's_branch {join}')
    a.label(gat)
    a(f's_add_u32 s{sM2}, s{sMf}, {L.MEMF}')
    advance(a)
    gather_pre(a, sM2)
    emit(a, zero(20, 36))
    a('s_barrier')
    if GSLEEP: a(f's_sleep {GSLEEP}')
    st(a, 10); st.val(a, 2, sSpin)
    LF = ('nt' if ('ntld' in EXP and fast) else 'sc1')
    if 'nogather' not in EXP:
        if 'ab' in EXP: gather2(a, fail, LF, int(os.environ.get('STAG', 2)))
        else: gather(a, fail, st, LF)
    st.val(a, 3, sSpin); st(a, 11)
    a.label(join)
    a('s_waitcnt lgkmcnt(0)')
    a('s_barrier')
    st(a, 9)
    a(f's_branch main_loop_{tag}')

def emit_helper(a, st, fail, end):
    a.comment('======== HELPER ========')
    a.label('chain_helper')
    srd(a, S_T1, L.KA['Wv'], 640*4096*2)
    a('v_lshrrev_b32 v36, 4, v0'); a('v_and_b32 v37, 15, v0'); a('v_lshlrev_b32 v37, 4, v37')
    a('v_lshlrev_b32 v10, 13, v36'); a('v_add_u32 v10, v10, v37')
    trbase(a, 12, False)
    a(f's_lshl_b32 s30, s{sH}, 8')
    a('s_waitcnt lgkmcnt(0)')
    chunks = []
    for kb in range(10):
        chunks.append(dict(srd=S_T1, vofs=10, sbase=30, soff=64*kb*8192, istep=4*8192, vtr=12, rows=[0, 4, 32, 36], tcol=[0, 32],
                           dests=[f'a{(kb*2)*8}', f'a{(kb*2+1)*8}']))
    load_chunks(a, chunks, 14)
    a('s_barrier')
    a('v_mov_b64 v[12:13], -1'); a('v_mov_b64 v[14:15], -1')
    a('v_lshlrev_b32 v9, 3, v0')
    a(f's_lshl_b32 s{sVMo}, s{sH}, 11'); a(f's_add_u32 s{sVMo}, s{sVMo}, {L.VM}')
    if not FUSED:
        def fill(base, total):
            per = total // 32
            n = per // 4096
            a(f's_mul_i32 s{sTmp}, s{sH}, {per}'); a(f's_lshl_b32 s{sTmp2}, s{sW}, 10'); a(f's_add_u32 s{sTmp}, s{sTmp}, s{sTmp2}'); a(f's_add_u32 s{sTmp}, s{sTmp}, {base}')
            for i in range(n):
                a(f'buffer_store_dwordx4 v[12:15], v2, {W}, s{sTmp} offen sc1')
                if i < n - 1: a(f's_add_u32 s{sTmp}, s{sTmp}, 4096')
        fill(L.VM, 64 * 32 * 2048)
        fill(L.P1, 2 * L.P1SZ)
        fill(L.MEMX, 64 * L.MEMSZ)
        fill(L.MEMF, 131072)
    mem0_frags(a)
    a(f's_sub_u32 s{sTmp}, s{sW}, 2'); a(f's_mul_i32 s{sTmp}, s{sTmp}, 5120'); a(f'v_add_u32 v3, s{sTmp}, v4')
    if COARSE:
        a('s_memrealtime s[90:91]'); a('s_waitcnt lgkmcnt(0)')
        a('v_mov_b32 v36, 0'); a(f's_lshl_b32 s{sTmp}, s{sH}, 5'); a(f's_add_u32 s{sTmp}, s{sTmp}, {TRACE + 32768 + 1024}')
        a('v_mov_b32 v37, s96'); a(f'buffer_store_dword v37, v36, {W}, s{sTmp} offen'); a('v_mov_b32 v37, s90'); a(f'buffer_store_dword v37, v36, {W}, s{sTmp} offen offset:4')
    rendezvous(a, False, fail)
    a(f's_lshl_b32 s{sTmp}, s{sW}, 9'); a(f's_add_u32 s{sVMo}, s{sVMo}, s{sTmp}')
    a(f's_mov_b32 s{sS}, 0')
    a(f's_mov_b32 s{sMr}, {L.MEMX + L.MEMSZ}')
    a(f's_mov_b32 s{sHs}, {int(os.environ.get("HS0", 160))}')
    emit(a, zero(28, 36))
    a('s_barrier')
    if 'skel' in EXP: a(f's_branch {end}')
    a.label('helper_loop')
    st(a, 0)
    for kb in range(10):
        a(f'ds_read_b128 v[{72+4*kb}:{75+4*kb}], v4 offset:{kb*1024}')
    for kb in range(10):
        a(f's_waitcnt lgkmcnt({9-kb})')
        for t in range(2):
            acc = 28 + t * 4; b = (kb*2+t)*8
            a(f'{SM} v[{acc}:{acc+3}], v[{72+4*kb}:{75+4*kb}], a[{b}:{b+7}], v1')
    a('v_add_f32 v28, v28, v30'); a('v_add_f32 v29, v29, v31'); a('v_cvt_pk_bf16_f32 v44, v28, v29')
    a('v_add_f32 v32, v32, v34'); a('v_add_f32 v33, v33, v35'); a('v_cvt_pk_bf16_f32 v45, v32, v33')
    a(f'buffer_store_dwordx2 v[44:45], v9, {W}, s{sVMo} offen sc1')
    st(a, 1)
    a(f's_add_u32 s{sVMo}, s{sVMo}, {32*2048}')
    a(f's_cmp_ge_u32 s{sS}, 63'); a(f's_cbranch_scc1 helper_done')
    emit(a, zero(28, 36))
    a('s_barrier')
    hj = a.newlabel('hj')
    a(f's_cmp_lt_u32 s{sW}, 2'); a(f's_cbranch_scc1 {hj}')
    gather_pre(a, sMr)
    if ADAPT:
        sl = a.newlabel('hsl'); se = a.newlabel('hse')
        a(f's_lshr_b32 s{sTmp3}, s{sHs}, 2')
        a.label(sl)
        a(f's_cmp_eq_u32 s{sTmp3}, 0'); a(f's_cbranch_scc1 {se}')
        a('s_sleep 1')
        a(f's_sub_u32 s{sTmp3}, s{sTmp3}, 1'); a(f's_branch {sl}')
        a.label(se)
        a(f's_mov_b32 s{sHs0}, s{sSpin}')
    elif HSLEEP: a(f's_sleep {HSLEEP}')
    st(a, 2)
    if ADAPT and HAB:
        gather2(a, fail, 'sc1', HAB, res=sHs0)
        a(f's_cmp_eq_u32 s{sHs0}, 0'); a(f's_cselect_b32 s{sTmp3}, {HDN}, 0'); a(f's_max_u32 s{sHs}, s{sHs}, {HDN}'); a(f's_sub_u32 s{sHs}, s{sHs}, s{sTmp3}')
        a(f's_cmp_ge_u32 s{sHs0}, 2'); a(f's_cselect_b32 s{sTmp3}, {ADUP}, 0'); a(f's_add_u32 s{sHs}, s{sHs}, s{sTmp3}'); a(f's_min_u32 s{sHs}, s{sHs}, 600')
    else:
        gather(a, fail)
    st(a, 3)
    if ADAPT and not HAB:
        a(f's_sub_u32 s{sTmp3}, s{sSpin}, s{sHs0}')
        a(f's_cmp_gt_u32 s{sTmp3}, 1')
        a(f's_cselect_b32 s{sTmp3}, {ADUP + 1}, 0')
        a(f's_add_u32 s{sHs}, s{sHs}, s{sTmp3}')
        a(f's_max_u32 s{sHs}, s{sHs}, 1'); a(f's_sub_u32 s{sHs}, s{sHs}, 1'); a(f's_min_u32 s{sHs}, s{sHs}, 600')
    a.label(hj)
    a('s_waitcnt lgkmcnt(0)')
    a('s_barrier')
    a(f's_add_u32 s{sS}, s{sS}, 1')
    a(f's_add_u32 s{sMr}, s{sMr}, {L.MEMSZ}')
    a('s_branch helper_loop')
    a.label('helper_done')
    st.dump(a, 8192)
    a(f's_branch {end}')
```

```python
from asmlib import Asm
import layout as L
import gemm as GM
from gemm import G, MF
import kernels as KN
from kernels import f32bits, pack_T, unpack, row_reduce16, MF32, MF16, C_SCALE
import chain5 as CH

sWI = 60; sJ = 61; sSpin = 63; sB = 38; sSub = 39
S_DBG = 84
WS = 's[4:7]'; DBG = f's[{S_DBG}:{S_DBG+3}]'
WOS = 8
DNS = 3
SPIN_MAX = 1 << 22
SC = 'sc1'
STAMP = False

def emit(a, ops):
    for x in ops:
        if isinstance(x, (list, tuple)): emit(a, x)
        else: a(x)

def tid(a): a('v_mov_b32 v0, v254')

def signal(a, off_sreg=None, off_imm=None, dbg=False):
    a('s_waitcnt vmcnt(0)')
    a('s_barrier')
    sk = a.newlabel('sig')
    a('v_cmp_eq_u32 vcc, 0, v254')
    a('s_and_saveexec_b64 s[56:57], vcc')
    a(f's_cbranch_execz {sk}')
    a('v_mov_b32 v250, 1'); a('v_mov_b32 v251, 0')
    if dbg:
        a(f'buffer_atomic_add v250, v251, {DBG}, 0 offen offset:{off_imm}')
    else:
        a(f'buffer_atomic_add v250, v251, {WS}, s{off_sreg} offen')
    a.label(sk)
    a('s_mov_b64 exec, s[56:57]')

def nap(a):
    sh = a.newlabel('nap'); e = a.newlabel('nape')
    a(f's_cmp_ge_u32 s{sB}, 15'); a(f's_cbranch_scc1 {sh}')
    a('s_sleep 24'); a(f's_branch {e}')
    a.label(sh); a('s_sleep 2')
    a.label(e)

def wait_ctr(a, off_sreg, target, fail):
    lp = a.newlabel('wc'); ok = a.newlabel('wok')
    a('v_readfirstlane_b32 s56, v254')
    a(f's_cmp_ge_u32 s56, 64'); a(f's_cbranch_scc1 {ok}')
    a('v_mov_b32 v251, 0')
    a.label(lp)
    a(f'buffer_load_dword v250, v251, {WS}, s{off_sreg} offen sc1')
    a('s_waitcnt vmcnt(0)')
    a('v_readfirstlane_b32 s56, v250')
    a(f's_cmp_ge_u32 s56, {target}'); a(f's_cbranch_scc1 {ok}')
    a(f's_add_u32 s{sSpin}, s{sSpin}, 1'); a(f's_cmp_gt_u32 s{sSpin}, {SPIN_MAX}'); a(f's_cbranch_scc1 {fail}')
    nap(a)
    a(f's_branch {lp}')
    a.label(ok)
    a('s_barrier')

def ctr_addr(a, dst, kind, breg):
    a(f's_lshl_b32 s{dst}, s{breg}, 7'); a(f's_add_u32 s{dst}, s{dst}, {L.ctr(kind)}')

def gemm_common(a, lda, ldb, splitB=False):
    g = G
    tid(a)
    GM.setup_lane_consts(a, lda, ldb, splitB)
    a(f's_lshl_b32 s{g.sLdsA}, s{g.sW}, 12')
    a(f's_lshl_b32 s{g.sLdsB}, s{g.sW}, {11 if splitB else 12}')

def load_ptr(a, base, key, nbytes):
    a(f's_load_dwordx2 s[{base}:{base+1}], s[0:1], {L.KA[key]}')
    a(f's_mov_b32 s{base+2}, {nbytes}'); a(f's_mov_b32 s{base+3}, 0x00020000')


EPI = 98304
def epi_T_bf16(a, accs, ld, sbase, ncol_tiles=2):
    g = G; t = g.vT
    a(f'v_and_b32 v{t}, 31, v0'); a(f'v_lshlrev_b32 v{t+1}, 7, v{t}'); a(f'v_and_b32 v{t+2}, 7, v0'); a(f'v_lshrrev_b32 v{t+3}, 5, v0')
    a(f's_lshl_b32 s46, s{g.sW}, 13'); a(f's_add_u32 s46, s46, {EPI}'); a(f'v_add_u32 v{t+1}, s46, v{t+1}')
    for rt in range(2):
        for ct in range(2):
            dst = g.FA + ((rt*2+ct) & 1) * 8
            pack_T(a, accs[rt][ct], dst)
            for kk in range(2):
                c0 = 4*ct + 2*kk
                a(f'v_add_u32 v{t+4}, {c0}, v{t+3}'); a(f'v_xor_b32 v{t+4}, v{t+4}, v{t+2}'); a(f'v_lshlrev_b32 v{t+4}, 4, v{t+4}'); a(f'v_add_u32 v{t+4}, v{t+4}, v{t+1}')
                a(f'ds_write_b128 v{t+4}, v[{dst+4*kk}:{dst+4*kk+3}] offset:{rt*4096}')
    a(f'v_lshrrev_b32 v{t}, 3, v0'); a(f'v_and_b32 v{t+2}, 7, v0'); a(f'v_xor_b32 v{t+3}, v{t+2}, v{t}'); a(f'v_lshlrev_b32 v{t+3}, 4, v{t+3}')
    a(f'v_lshlrev_b32 v{t+4}, 7, v{t}'); a(f'v_add_u32 v{t+3}, v{t+3}, v{t+4}'); a(f'v_add_u32 v{t+3}, s46, v{t+3}')
    a(f's_mov_b32 s47, {ld}'); a(f'v_mul_lo_u32 v{t}, v{t}, s47'); a(f'v_lshlrev_b32 v{t+2}, 4, v{t+2}'); a(f'v_add_u32 v{t}, v{t}, v{t+2}')
    a('s_waitcnt lgkmcnt(0)')
    for i in range(8): a(f'ds_read_b128 v[{g.FA+4*i}:{g.FA+4*i+3}], v{t+3} offset:{i*1024}')
    for i in range(8):
        a(f's_waitcnt lgkmcnt({7-i})')
        a(f's_add_u32 s47, s{sbase}, {i*8*ld}')
        a(f'buffer_store_dwordx4 v[{g.FA+4*i}:{g.FA+4*i+3}], v{t}, {WS}, s47 offen {SC}')

def epi_T_f32(a, ld, sbase):
    g = G; t = g.vT
    a(f'v_and_b32 v{t}, 31, v0'); a(f'v_lshlrev_b32 v{t+1}, 8, v{t}'); a(f'v_and_b32 v{t+2}, 7, v0'); a(f'v_lshrrev_b32 v{t+3}, 5, v0')
    a(f's_lshl_b32 s46, s{g.sW}, 14'); a(f's_add_u32 s46, s46, {EPI}'); a(f'v_add_u32 v{t+1}, s46, v{t+1}')
    for ct in range(2):
        for q in range(4):
            c0 = 8*ct + 2*q
            a(f'v_add_u32 v{t+4}, {c0}, v{t+3}'); a(f'v_xor_b32 v{t+4}, v{t+4}, v{t+2}'); a(f'v_lshlrev_b32 v{t+4}, 4, v{t+4}'); a(f'v_add_u32 v{t+4}, v{t+4}, v{t+1}')
            for rt in range(2):
                acc = g.ACC + (rt*2+ct)*16 + 4*q
                a(f'ds_write_b128 v{t+4}, v[{acc}:{acc+3}] offset:{rt*8192}')
    a(f'v_lshrrev_b32 v{t}, 4, v0'); a(f'v_and_b32 v{t+2}, 15, v0')
    a(f'v_xor_b32 v{t+3}, v{t+2}, v{t}'); a(f'v_xor_b32 v{t+5}, 4, v{t+3}')
    a(f'v_lshlrev_b32 v{t+3}, 4, v{t+3}'); a(f'v_lshlrev_b32 v{t+5}, 4, v{t+5}'); a(f'v_lshlrev_b32 v{t+4}, 8, v{t}'); a(f'v_add_u32 v{t+4}, s46, v{t+4}')
    a(f'v_add_u32 v{t+3}, v{t+3}, v{t+4}'); a(f'v_add_u32 v{t+5}, v{t+5}, v{t+4}')
    a(f's_mov_b32 s47, {ld}'); a(f'v_mul_lo_u32 v{t}, v{t}, s47'); a(f'v_lshlrev_b32 v{t+2}, 4, v{t+2}'); a(f'v_add_u32 v{t}, v{t}, v{t+2}')
    a('s_waitcnt lgkmcnt(0)')
    for half in range(2):
        for i in range(8):
            ii = half*8 + i
            a(f'ds_read_b128 v[{g.ACC+4*ii}:{g.ACC+4*ii+3}], v{t+3 if ii % 2 == 0 else t+5} offset:{ii*1024}')
        for i in range(8):
            ii = half*8 + i
            a(f's_waitcnt lgkmcnt({7-i})')
            a(f's_add_u32 s47, s{sbase}, {ii*4*ld}')
            a(f'buffer_store_dwordx4 v[{g.ACC+4*ii}:{g.ACC+4*ii+3}], v{t}, {WS}, s47 offen {SC}')

def task_ln1(a):
    tid(a)
    load_ptr(a, 8, 'x', 2048*640*2)
    a('v_lshrrev_b32 v1, 4, v0'); a('s_lshl_b32 s41, s40, 4'); a('v_add_u32 v1, s41, v1')
    a('v_mul_u32_u24 v1, 1280, v1'); a('v_and_b32 v5, 15, v0'); a('v_lshlrev_b32 v5, 4, v5'); a('v_add_u32 v1, v1, v5')
    a('s_waitcnt lgkmcnt(0)')
    for c in range(5): a(f'buffer_load_dwordx4 v[{8+4*c}:{11+4*c}], v1, s[8:11], 0 offen offset:{c*256}')
    a('s_waitcnt vmcnt(0)')
    unpack(a, 8, 32, 20)
    KN.ln_core(a, 32, 8)
    a(f's_mov_b32 s41, {L.XN}')
    for c in range(5): a(f'buffer_store_dwordx4 v[{8+4*c}:{11+4*c}], v1, {WS}, s41 offen offset:{c*256} {SC}')

def task_qkv(a, matrix):
    g = G
    key = ('Wq', 'Wk', 'Wv')[matrix]
    a(f's_lshl_b32 s{g.sT0}, s40, 7'); a(f's_lshl_b32 s{g.sT1}, s{g.sW}, 5'); a(f's_add_u32 s{g.sT0}, s{g.sT0}, s{g.sT1}')
    a(f's_mul_i32 s{g.sAoff}, s{g.sT0}, 1280'); a(f's_add_u32 s{g.sAoff}, s{g.sAoff}, {L.XN}')
    a(f's_lshl_b32 s{g.sBoff}, s43, 8'); a(f's_lshl_b32 s{g.sT1}, s{g.sW}, 17'); a(f's_add_u32 s{g.sBoff}, s{g.sBoff}, s{g.sT1}')
    a('s_barrier')
    GM.mainloop(a, 10, 1280, 8192, 'N' if matrix == 2 else 'T')
    t = g.vT
    if matrix != 2:
        a(f's_mov_b32 s45, {L.Q if matrix == 0 else L.K}')
        a(f's_lshl_b32 s46, s40, 7'); a(f's_lshl_b32 s47, s{g.sWM}, 6'); a('s_add_u32 s46, s46, s47'); a('s_lshl_b32 s46, s46, 13'); a('s_add_u32 s45, s45, s46')
        a(f's_lshl_b32 s46, s43, 8'); a('s_add_u32 s45, s45, s46'); a(f's_lshl_b32 s46, s{g.sWN}, 7'); a('s_add_u32 s45, s45, s46')
        epi_T_bf16(a, [[g.ACC, g.ACC+16], [g.ACC+32, g.ACC+48]], 8192, 45)
    else:
        a(f'v_bfe_u32 v{t}, v0, 4, 1'); a(f'v_lshlrev_b32 v{t}, 10, v{t}'); a(f'v_and_b32 v{t+1}, 15, v0'); a(f'v_lshlrev_b32 v{t+1}, 4, v{t+1}'); a(f'v_add_u32 v{t}, v{t}, v{t+1}')
        a(f'v_lshrrev_b32 v{t+1}, 5, v0'); a(f'v_lshlrev_b32 v{t+1}, 9, v{t+1}'); a(f'v_add_u32 v{t}, v{t}, v{t+1}')
        a(f's_lshl_b32 s45, s40, 2'); a(f's_lshl_b32 s46, s{g.sWM}, 1'); a('s_add_u32 s45, s45, s46'); a('s_lshl_b32 s45, s45, 18')
        a(f's_lshl_b32 s46, s43, 13'); a('s_add_u32 s45, s45, s46'); a(f's_lshl_b32 s46, s{g.sWN}, 12'); a('s_add_u32 s45, s45, s46'); a(f's_add_u32 s45, s45, {L.VT}')
        for rt in range(2):
            for ct in range(2):
                acc = g.ACC + (rt*2+ct)*16; dst = g.FA + ((rt*2+ct) & 1) * 8
                for i in range(8): a(f'v_cvt_pk_bf16_f32 v{dst+i}, v{acc+2*i}, v{acc+2*i+1}')
                a(f's_add_u32 s47, s45, {rt*262144 + ct*2048}')
                a(f'buffer_store_dwordx4 v[{dst}:{dst+3}], v{t}, {WS}, s47 offen {SC}')
                a(f'buffer_store_dwordx4 v[{dst+4}:{dst+7}], v{t}, {WS}, s47 offen offset:256 {SC}')

def qkv_loop(a, name, matrix, start_reg, stride, kind, fail):
    lp = a.newlabel(name); done = a.newlabel(name + 'd')
    gemm_common(a, 1280, 8192)
    load_ptr(a, G.SB, ('Wq', 'Wk', 'Wv')[matrix], 640*4096*2)
    a('s_waitcnt lgkmcnt(0)')
    a(f's_mov_b32 s{sJ}, s{start_reg}')
    a.label(lp)
    a(f's_cmp_ge_u32 s{sJ}, 512'); a(f's_cbranch_scc1 {done}')
    a(f's_lshr_b32 s40, s{sJ}, 5'); a(f's_and_b32 s43, s{sJ}, 31')
    if True:
        wl = a.newlabel('l1b'); wk = a.newlabel('l1bok')
        a('s_lshl_b32 s49, s40, 2'); a('s_add_u32 s49, s49, 128'); a('v_mov_b32 v251, 0')
        a.label(wl)
        a(f'buffer_load_dword v250, v251, {DBG}, s49 offen sc1')
        a('s_waitcnt vmcnt(0)')
        a('v_readfirstlane_b32 s56, v250')
        a(f's_cmp_ge_u32 s56, 8'); a(f's_cbranch_scc1 {wk}')
        a(f's_add_u32 s{sSpin}, s{sSpin}, 1'); a(f's_cmp_gt_u32 s{sSpin}, {SPIN_MAX}'); a(f's_cbranch_scc1 {fail}')
        a('s_sleep 3')
        a(f's_branch {wl}')
        a.label(wk)
    task_qkv(a, matrix)
    ctr_addr(a, 49, kind, 40)
    signal(a, off_sreg=49)
    a(f's_add_u32 s{sJ}, s{sJ}, {stride}')
    a(f's_branch {lp}')
    a.label(done)

def task_attn(a, fail):
    tid(a)
    ctr_addr(a, 49, L.C_Q, sB); wait_ctr(a, 49, 32, fail)
    Wd = WS
    a('v_lshrrev_b32 v1, 6, v0'); a('v_readfirstlane_b32 s8, v1'); a('v_and_b32 v0, 63, v0')
    a(f's_lshl_b32 s10, s{sB}, 2'); a(f's_lshr_b32 s9, s{sSub}, 3'); a('s_add_u32 s10, s10, s9')
    a(f's_and_b32 s11, s{sSub}, 7'); a('s_lshl_b32 s11, s11, 2'); a('s_add_u32 s11, s11, s8')
    a('v_and_b32 v6, 15, v0'); a('v_lshlrev_b32 v1, 13, v6'); a('v_lshrrev_b32 v7, 4, v0'); a('v_lshlrev_b32 v8, 4, v7'); a('v_add_u32 v1, v1, v8')
    a('v_bfe_u32 v2, v0, 2, 1'); a('v_lshlrev_b32 v2, 4, v2'); a('v_bfe_u32 v9, v0, 3, 1'); a('v_lshlrev_b32 v9, 2, v9'); a('v_add_u32 v2, v2, v9')
    a('v_and_b32 v9, 3, v0'); a('v_add_u32 v2, v2, v9'); a('v_lshlrev_b32 v2, 13, v2'); a('v_add_u32 v2, v2, v8')
    a('v_lshlrev_b32 v3, 4, v0'); a('v_lshlrev_b32 v4, 3, v0')
    a('v_lshlrev_b32 v5, 13, v6'); a('v_bfe_u32 v9, v0, 4, 1'); a('v_lshlrev_b32 v9, 5, v9'); a('v_add_u32 v5, v5, v9'); a('v_lshrrev_b32 v9, 5, v0'); a('v_lshlrev_b32 v9, 4, v9'); a('v_add_u32 v5, v5, v9')
    a('v_and_b32 v9, 1, v7'); a('v_lshlrev_b32 v9, 4, v9'); a('v_lshrrev_b32 v10, 1, v7'); a('v_lshlrev_b32 v10, 2, v10'); a('v_add_u32 v9, v9, v10'); a('v_sub_u32 v10, v6, v9')
    a('s_lshl_b32 s12, s10, 18'); a('s_lshl_b32 s13, s11, 8'); a('s_add_u32 s12, s12, s13')
    a(f's_add_u32 s14, s12, {L.Q}'); a(f's_add_u32 s15, s12, {L.K}'); a(f's_add_u32 s16, s12, {L.O}')
    a('s_lshl_b32 s17, s10, 5'); a('s_add_u32 s17, s17, s11')
    a('s_lshl_b32 s18, s17, 12'); a(f's_add_u32 s18, s18, {L.KM}')
    a('s_lshl_b32 s19, s17, 13'); a(f's_add_u32 s19, s19, {L.VT}')
    a('s_lshl_b32 s20, s17, 11'); a(f's_add_u32 s20, s20, {L.VM}')
    a(f's_mov_b32 s21, {hex(f32bits(C_SCALE))}')
    QF = 16; KX = 48; KMf = 80; S = 96; VT = 120; VMf = 152; P = 160; O = 176
    for qt in range(2):
        a(f's_add_u32 s22, s14, {qt*16*8192}')
        for kp in range(4): a(f'buffer_load_dwordx4 v[{QF+(qt*4+kp)*4}:{QF+(qt*4+kp)*4+3}], v1, {Wd}, s22 offen offset:{kp*64}')
    for kt in range(2):
        a(f's_add_u32 s22, s15, {kt*8*8192}')
        for kp in range(4): a(f'buffer_load_dwordx4 v[{KX+(kt*4+kp)*4}:{KX+(kt*4+kp)*4+3}], v2, {Wd}, s22 offen offset:{kp*64}')
    for et in range(8):
        a(f's_add_u32 s22, s19, {(et>>2)*4096}')
        a(f'buffer_load_dwordx4 v[{VT+et*4}:{VT+et*4+3}], v3, {Wd}, s22 offen offset:{(et&3)*1024}')
    lp = a.newlabel('atp'); ok = a.newlabel('atok')
    a.label(lp)
    for kp in range(4): a(f'buffer_load_dwordx4 v[{KMf+kp*4}:{KMf+kp*4+3}], v3, {Wd}, s18 offen offset:{kp*1024} sc1')
    for p in range(4): a(f'buffer_load_dwordx2 v[{VMf+2*p}:{VMf+2*p+1}], v4, {Wd}, s20 offen offset:{p*512} sc1')
    a('s_waitcnt vmcnt(0)')
    CH.maxchain(a, 11, list(range(KMf, KMf+16)) + list(range(VMf, VMf+8)))
    a('v_cmp_eq_u32 vcc, -1, v11'); a(f's_cbranch_vccz {ok}')
    a(f's_add_u32 s{sSpin}, s{sSpin}, 1'); a(f's_cmp_gt_u32 s{sSpin}, {SPIN_MAX}'); a(f's_cbranch_scc1 {fail}')
    nap(a)
    a(f's_branch {lp}')
    a.label(ok)
    Sreg = lambda kt, qt: S + (kt*2+qt)*4
    for kp in range(4):
        for qt in range(2):
            B = f'v[{QF+(qt*4+kp)*4}:{QF+(qt*4+kp)*4+3}]'
            for kt in range(3):
                A = f'v[{KMf+kp*4}:{KMf+kp*4+3}]' if kt == 0 else f'v[{KX+((kt-1)*4+kp)*4}:{KX+((kt-1)*4+kp)*4+3}]'
                d = Sreg(kt, qt); c = '0' if kp == 0 else f'v[{d}:{d+3}]'
                a(f'{MF32} v[{d}:{d+3}], {A}, {B}, {c}')
    a('v_mov_b32 v11, 0xff800000')
    for qt in range(2):
        for kt in (1, 2):
            for r in range(4):
                cst = 8*(kt-1) + r - 16*qt
                reg = Sreg(kt, qt) + r
                a(f'v_cmp_le_i32 vcc, {cst}, v10')
                a(f'v_cndmask_b32 v{reg}, v11, v{reg}, vcc')
        m = 12; t2 = 13
        s0 = Sreg(0, qt); s1 = Sreg(1, qt); s2 = Sreg(2, qt)
        a(f'v_max3_f32 v{m}, v{s0}, v{s0+1}, v{s1}'); a(f'v_max3_f32 v{m}, v{m}, v{s1+1}, v{s1+2}'); a(f'v_max3_f32 v{m}, v{m}, v{s1+3}, v{s2}')
        a(f'v_max3_f32 v{m}, v{m}, v{s2+1}, v{s2+2}'); a(f'v_max_f32 v{m}, v{m}, v{s2+3}')
        a(f'v_mov_b32 v{t2}, v{m}'); a(f'v_permlane32_swap_b32 v{m}, v{t2}'); a(f'v_max_f32 v{m}, v{m}, v{t2}')
        a(f'v_mov_b32 v{t2}, v{m}'); a(f'v_permlane16_swap_b32 v{m}, v{t2}'); a(f'v_max_f32 v{m}, v{m}, v{t2}')
        a(f'v_mul_f32 v{m}, s21, v{m}')
        vals = [s0, s0+1] + [s1+i for i in range(4)] + [s2+i for i in range(4)]
        for r in vals: a(f'v_fma_f32 v{r}, v{r}, s21, -v{m}')
        for r in vals: a(f'v_exp_f32 v{r}, v{r}')
        pb = P + qt*8
        a(f'v_cvt_pk_bf16_f32 v{pb}, v{s1}, v{s1+1}'); a(f'v_cvt_pk_bf16_f32 v{pb+1}, v{s1+2}, v{s1+3}')
        a(f'v_cvt_pk_bf16_f32 v{pb+2}, v{s2}, v{s2+1}'); a(f'v_cvt_pk_bf16_f32 v{pb+3}, v{s2+2}, v{s2+3}')
        a(f'v_cvt_pk_bf16_f32 v{pb+4}, v{s0}, v{s0+1}'); a(f'v_mov_b32 v{pb+5}, 0'); a(f'v_mov_b32 v{pb+6}, 0'); a(f'v_mov_b32 v{pb+7}, v{pb+4}')
        l = 14 + qt
        a(f'v_add_f32 v{l}, v{vals[0]}, v{vals[1]}')
        for r in vals[2:]: a(f'v_add_f32 v{l}, v{l}, v{r}')
        a(f'v_mov_b32 v{t2}, v{l}'); a(f'v_permlane32_swap_b32 v{l}, v{t2}'); a(f'v_add_f32 v{l}, v{l}, v{t2}')
        a(f'v_mov_b32 v{t2}, v{l}'); a(f'v_permlane16_swap_b32 v{l}, v{t2}'); a(f'v_add_f32 v{l}, v{l}, v{t2}')
        a(f'v_rcp_f32 v{l}, v{l}')
    Oreg = lambda et, qt: O + (qt*8+et)*4
    for qt in range(2):
        pb = P + qt*8
        for et in range(8):
            o = Oreg(et, qt)
            a(f'{MF32} v[{o}:{o+3}], v[{VT+et*4}:{VT+et*4+3}], v[{pb}:{pb+3}], 0')
        for et in range(8):
            o = Oreg(et, qt); p = et >> 1
            b = f'v[{pb+6}:{pb+7}]' if et & 1 else f'v[{pb+4}:{pb+5}]'
            a(f'{MF16} v[{o}:{o+3}], v[{VMf+2*p}:{VMf+2*p+1}], {b}, v[{o}:{o+3}]')
    a('s_lshl_b32 s22, s8, 13'); a(f's_add_u32 s22, s22, {EPI}')
    a('v_lshlrev_b32 v1, 8, v6'); a('v_add_u32 v1, s22, v1')
    a('v_bfe_u32 v2, v0, 4, 1'); a('v_lshlrev_b32 v2, 1, v2'); a('v_lshrrev_b32 v3, 5, v0'); a('v_add_u32 v2, v2, v3')
    a('v_and_b32 v3, 7, v0')
    for qt in range(2):
        l = 14 + qt
        for ep in range(4):
            e0 = Oreg(2*ep, qt); e1 = Oreg(2*ep+1, qt); d = QF + (ep & 1) * 4
            for r in range(4):
                a(f'v_mul_f32 v{e0+r}, v{e0+r}, v{l}'); a(f'v_mul_f32 v{e1+r}, v{e1+r}, v{l}')
            a(f'v_cvt_pk_bf16_f32 v{d}, v{e0}, v{e0+1}'); a(f'v_cvt_pk_bf16_f32 v{d+1}, v{e0+2}, v{e0+3}')
            a(f'v_cvt_pk_bf16_f32 v{d+2}, v{e1}, v{e1+1}'); a(f'v_cvt_pk_bf16_f32 v{d+3}, v{e1+2}, v{e1+3}')
            a(f'v_permlane16_swap_b32 v{d}, v{d+2}'); a(f'v_permlane16_swap_b32 v{d+1}, v{d+3}')
            a(f'v_add_u32 v4, {4*ep}, v2'); a('v_xor_b32 v4, v4, v3'); a('v_lshlrev_b32 v4, 4, v4'); a('v_add_u32 v4, v4, v1')
            a(f'ds_write_b128 v4, v[{d}:{d+3}] offset:{qt*4096}')
    a('v_lshrrev_b32 v7, 4, v0'); a('v_xor_b32 v2, v6, v7'); a('v_xor_b32 v3, 4, v2')
    a('v_lshlrev_b32 v2, 4, v2'); a('v_lshlrev_b32 v3, 4, v3'); a('v_lshlrev_b32 v4, 8, v7'); a('v_add_u32 v4, s22, v4'); a('v_add_u32 v2, v2, v4'); a('v_add_u32 v3, v3, v4')
    a('v_lshlrev_b32 v5, 13, v7'); a('v_lshlrev_b32 v4, 4, v6'); a('v_add_u32 v5, v5, v4')
    a('s_waitcnt lgkmcnt(0)')
    for i in range(8): a(f'ds_read_b128 v[{KX+4*i}:{KX+4*i+3}], v{2 if i % 2 == 0 else 3} offset:{i*1024}')
    for i in range(8):
        a(f's_waitcnt lgkmcnt({7-i})')
        a(f's_add_u32 s22, s16, {i*4*8192}')
        a(f'buffer_store_dwordx4 v[{KX+4*i}:{KX+4*i+3}], v5, {Wd}, s22 offen {SC}')
    ctr_addr(a, 49, L.C_AT, sB); signal(a, off_sreg=49)

def part_store(a, base, ks_reg, m_reg, n_reg):
    g = G
    a(f's_mul_i32 s45, s{ks_reg}, {2048*640*4}'); a(f's_add_u32 s45, s45, {base}')
    a(f's_lshl_b32 s46, s{m_reg}, 7'); a(f's_lshl_b32 s47, s{g.sWM}, 6'); a('s_add_u32 s46, s46, s47'); a('s_mul_i32 s46, s46, 2560'); a('s_add_u32 s45, s45, s46')
    a(f's_lshl_b32 s46, s{n_reg}, 9'); a('s_add_u32 s45, s45, s46'); a(f's_lshl_b32 s46, s{g.sWN}, 8'); a('s_add_u32 s45, s45, s46')
    epi_T_f32(a, 2560, 45)

def task_wo(a, fail):
    g = G
    ctr_addr(a, 49, L.C_AT, sB); wait_ctr(a, 49, 32, fail)
    load_ptr(a, g.SB, 'Wo', 4096*640*2)
    a(f's_and_b32 s42, s{sSub}, {WOS-1}'); a(f's_lshr_b32 s41, s{sSub}, {WOS.bit_length()-1}')
    gemm_common(a, 8192, 1280)
    KS = 4096 // WOS
    a(f's_lshl_b32 s{g.sT0}, s{sB}, 7'); a(f's_lshl_b32 s{g.sT1}, s{g.sW}, 5'); a(f's_add_u32 s{g.sT0}, s{g.sT0}, s{g.sT1}')
    a(f's_lshl_b32 s{g.sAoff}, s{g.sT0}, 13'); a(f's_add_u32 s{g.sAoff}, s{g.sAoff}, {L.O}')
    a(f's_mul_i32 s{g.sT1}, s42, {KS*2}'); a(f's_add_u32 s{g.sAoff}, s{g.sAoff}, s{g.sT1}')
    a(f's_mul_i32 s{g.sBoff}, s42, {KS*1280}'); a(f's_lshl_b32 s{g.sT1}, s41, 8'); a(f's_add_u32 s{g.sBoff}, s{g.sBoff}, s{g.sT1}')
    a(f's_mul_i32 s{g.sT1}, s{g.sW}, {16*1280}'); a(f's_add_u32 s{g.sBoff}, s{g.sBoff}, s{g.sT1}')
    a('s_waitcnt lgkmcnt(0)')
    a('s_barrier')
    GM.mainloop(a, KS // 64, 8192, 1280, 'T')
    part_store(a, L.PART, 42, sB, 41)
    ctr_addr(a, 49, L.C_WO, sB); signal(a, off_sreg=49)

def rows16_setup(a):
    tid(a)
    a('v_lshrrev_b32 v1, 6, v0'); a('v_and_b32 v0, 63, v0')
    a(f's_lshl_b32 s41, s{sB}, 7'); a(f's_lshl_b32 s42, s{sSub}, 2'); a('s_add_u32 s41, s41, s42'); a('v_add_u32 v1, s41, v1')
    a('v_mul_u32_u24 v1, 1280, v1'); a('v_lshlrev_b32 v5, 2, v0'); a('v_add_u32 v1, v1, v5')
    a('v_lshlrev_b32 v6, 1, v1')

def wave_reduce(a, v, t):
    for sh in (8, 4, 2, 1):
        a(f'v_add_f32_dpp v{v}, v{v}, v{v} row_ror:{sh} row_mask:0xf bank_mask:0xf')
    a(f'v_mov_b32 v{t}, v{v}'); a(f'v_permlane16_swap_b32 v{v}, v{t}'); a(f'v_add_f32 v{v}, v{v}, v{t}')
    a(f'v_mov_b32 v{t}, v{v}'); a(f'v_permlane32_swap_b32 v{v}, v{t}'); a(f'v_add_f32 v{v}, v{v}, v{t}')

def ln_row(a, X, out_pack):
    a(f'v_add_f32 v2, v{X}, v{X+1}')
    for i in range(2, 10): a(f'v_add_f32 v2, v2, v{X+i}')
    wave_reduce(a, 2, 3)
    a(f'v_mul_f32 v2, {hex(f32bits(1.0/640))}, v2')
    for i in range(10): a(f'v_sub_f32 v{X+i}, v{X+i}, v2')
    a(f'v_mul_f32 v3, v{X}, v{X}')
    for i in range(1, 10): a(f'v_fmac_f32 v3, v{X+i}, v{X+i}')
    wave_reduce(a, 3, 4)
    a(f'v_mov_b32 v4, {hex(f32bits(1e-5))}')
    a(f'v_mul_f32 v3, {hex(f32bits(1.0/640))}, v3'); a('v_add_f32 v3, v3, v4'); a('v_rsq_f32 v3, v3')
    for i in range(10): a(f'v_mul_f32 v{X+i}, v{X+i}, v3')
    for i in range(5): a(f'v_cvt_pk_bf16_f32 v{out_pack+i}, v{X+2*i}, v{X+2*i+1}')

def task_ln2(a, fail):
    ctr_addr(a, 49, L.C_WO, sB); wait_ctr(a, 49, 5*WOS, fail)
    load_ptr(a, 8, 'x', 2048*640*2)
    rows16_setup(a)
    a('s_waitcnt lgkmcnt(0)')
    X = 32; PB = 48
    for c in range(5): a(f'buffer_load_dword v{8+c}, v1, s[8:11], 0 offen offset:{c*256}')
    for sp in range(WOS):
        a(f's_mov_b32 s41, {L.PART + sp*2048*640*4}')
        for c in range(5):
            b = PB + sp*10 + c*2
            a(f'buffer_load_dwordx2 v[{b}:{b+1}], v6, {WS}, s41 offen offset:{c*512}')
    a(f's_waitcnt vmcnt({5*WOS})')
    unpack(a, 8, X, 5)
    for sp in range(WOS):
        a(f's_waitcnt vmcnt({5*(WOS-1-sp)})')
        for i in range(10): a(f'v_add_f32 v{X+i}, v{X+i}, v{PB+sp*10+i}')
    a(f's_mov_b32 s41, {L.H}')
    for c in range(5): a(f'buffer_store_dwordx2 v[{X+2*c}:{X+2*c+1}], v6, {WS}, s41 offen offset:{c*512} {SC}')
    for i in range(10): a(f'v_mov_b32 v{PB+i}, v{X+i}')
    ln_row(a, PB, 8)
    a(f's_mov_b32 s41, {L.HN}')
    for c in range(5): a(f'buffer_store_dword v{8+c}, v1, {WS}, s41 offen offset:{c*256} {SC}')
    ctr_addr(a, 49, L.C_LN2, sB); signal(a, off_sreg=49)

def task_up(a, fail):
    g = G
    ctr_addr(a, 49, L.C_LN2, sB); wait_ctr(a, 49, 32, fail)
    load_ptr(a, g.SB, 'Wg', 640*1728*2); load_ptr(a, g.SB2, 'Wu', 640*1728*2)
    gemm_common(a, 1280, 3456, splitB=True)
    a(f's_lshl_b32 s{g.sT0}, s{sB}, 7'); a(f's_lshl_b32 s{g.sT1}, s{g.sW}, 5'); a(f's_add_u32 s{g.sT0}, s{g.sT0}, s{g.sT1}')
    a(f's_mul_i32 s{g.sAoff}, s{g.sT0}, 1280'); a(f's_add_u32 s{g.sAoff}, s{g.sAoff}, {L.HN}')
    a(f's_lshl_b32 s{g.sBoff}, s{sSub}, 7'); a(f's_mul_i32 s{g.sT1}, s{g.sW}, {16*3456}'); a(f's_add_u32 s{g.sBoff}, s{g.sBoff}, s{g.sT1}')
    a('s_waitcnt lgkmcnt(0)')
    a('s_barrier')
    GM.mainloop(a, 10, 1280, 3456, 'T', splitB=True)
    t = g.vT
    a(f's_mov_b32 s48, {hex(f32bits(-1.4426950408889634))}')
    a(f'v_and_b32 v{t}, 31, v0'); a(f's_lshl_b32 s46, s{g.sWM}, 6'); a(f'v_add_u32 v{t+1}, s46, v{t}'); a(f'v_lshlrev_b32 v{t+1}, 7, v{t+1}'); a(f'v_add_u32 v{t+1}, {EPI}, v{t+1}')
    a(f'v_and_b32 v{t+6}, 7, v0'); a(f'v_lshrrev_b32 v{t+7}, 5, v0'); a(f's_lshl_b32 s47, s{g.sWN}, 2'); a(f'v_add_u32 v{t+7}, s47, v{t+7}')
    for rt in range(2):
        ag = g.ACC + (rt*2)*16; au = g.ACC + (rt*2+1)*16
        for i in range(16):
            x = t + 2 + (i & 3)
            a(f'v_mul_f32 v{x}, s48, v{ag+i}'); a(f'v_exp_f32 v{x}, v{x}'); a(f'v_add_f32 v{x}, 1.0, v{x}'); a(f'v_rcp_f32 v{x}, v{x}')
            a(f'v_mul_f32 v{ag+i}, v{ag+i}, v{x}'); a(f'v_mul_f32 v{ag+i}, v{ag+i}, v{au+i}')
        dst = g.FA + rt*8
        pack_T(a, ag, dst)
        for kk in range(2):
            a(f'v_add_u32 v{t+8}, {2*kk}, v{t+7}'); a(f'v_xor_b32 v{t+8}, v{t+8}, v{t+6}'); a(f'v_lshlrev_b32 v{t+8}, 4, v{t+8}'); a(f'v_add_u32 v{t+8}, v{t+8}, v{t+1}')
            a(f'ds_write_b128 v{t+8}, v[{dst+4*kk}:{dst+4*kk+3}] offset:{rt*4096}')
    a('s_waitcnt lgkmcnt(0)'); a('s_barrier')
    a(f'v_lshrrev_b32 v{t}, 3, v0'); a(f'v_and_b32 v{t+2}, 7, v0'); a(f'v_xor_b32 v{t+3}, v{t+2}, v{t}'); a(f'v_lshlrev_b32 v{t+3}, 4, v{t+3}')
    a(f'v_lshlrev_b32 v{t+4}, 7, v{t}'); a(f'v_add_u32 v{t+3}, v{t+3}, v{t+4}'); a(f's_lshl_b32 s46, s{g.sW}, 12'); a(f's_add_u32 s46, s46, {EPI}'); a(f'v_add_u32 v{t+3}, s46, v{t+3}')
    a(f's_mov_b32 s47, 3456'); a(f'v_mul_lo_u32 v{t}, v{t}, s47'); a(f'v_lshlrev_b32 v{t+2}, 4, v{t+2}'); a(f'v_add_u32 v{t}, v{t}, v{t+2}')
    a(f's_lshl_b32 s46, s{sB}, 7'); a(f's_lshl_b32 s47, s{g.sW}, 5'); a('s_add_u32 s46, s46, s47'); a('s_mul_i32 s45, s46, 3456'); a(f's_add_u32 s45, s45, {L.ACT}')
    a(f's_lshl_b32 s46, s{sSub}, 7'); a('s_add_u32 s45, s45, s46')
    for i in range(4): a(f'ds_read_b128 v[{g.FA+4*i}:{g.FA+4*i+3}], v{t+3} offset:{i*1024}')
    for i in range(4):
        a(f's_waitcnt lgkmcnt({3-i})')
        a(f's_add_u32 s47, s45, {i*8*3456}')
        a(f'buffer_store_dwordx4 v[{g.FA+4*i}:{g.FA+4*i+3}], v{t}, {WS}, s47 offen {SC}')
    ctr_addr(a, 49, L.C_UP, sB); signal(a, off_sreg=49)

def task_down(a, fail):
    g = G
    ctr_addr(a, 49, L.C_UP, sB); wait_ctr(a, 49, 27, fail)
    load_ptr(a, g.SB, 'Wd', 1728*640*2)
    a(f's_mul_i32 s41, s{sSub}, 43691'); a('s_lshr_b32 s41, s41, 17'); a('s_mul_i32 s42, s41, 3'); a(f's_sub_u32 s42, s{sSub}, s42')
    gemm_common(a, 3456, 1280)
    KS = 1728 // DNS
    a(f's_lshl_b32 s{g.sT0}, s{sB}, 7'); a(f's_lshl_b32 s{g.sT1}, s{g.sW}, 5'); a(f's_add_u32 s{g.sT0}, s{g.sT0}, s{g.sT1}')
    a(f's_mul_i32 s{g.sAoff}, s{g.sT0}, 3456'); a(f's_add_u32 s{g.sAoff}, s{g.sAoff}, {L.ACT}')
    a(f's_mul_i32 s{g.sT1}, s42, {KS*2}'); a(f's_add_u32 s{g.sAoff}, s{g.sAoff}, s{g.sT1}')
    a(f's_mul_i32 s{g.sBoff}, s42, {KS*1280}'); a(f's_lshl_b32 s{g.sT1}, s41, 8'); a(f's_add_u32 s{g.sBoff}, s{g.sBoff}, s{g.sT1}')
    a(f's_mul_i32 s{g.sT1}, s{g.sW}, {16*1280}'); a(f's_add_u32 s{g.sBoff}, s{g.sBoff}, s{g.sT1}')
    a('s_waitcnt lgkmcnt(0)')
    a('s_barrier')
    GM.mainloop(a, KS // 64, 3456, 1280, 'T')
    part_store(a, L.PART2, 42, sB, 41)
    ctr_addr(a, 49, L.C_DN, sB); signal(a, off_sreg=49)

def task_fin(a, fail):
    ctr_addr(a, 49, L.C_DN, sB); wait_ctr(a, 49, 5*DNS, fail)
    load_ptr(a, 8, 'out', 2048*640*2)
    rows16_setup(a)
    X = 32; PB = 48
    a(f's_mov_b32 s41, {L.H}')
    for c in range(5): a(f'buffer_load_dwordx2 v[{X+2*c}:{X+2*c+1}], v6, {WS}, s41 offen offset:{c*512}')
    for sp in range(DNS):
        a(f's_mov_b32 s41, {L.PART2 + sp*2048*640*4}')
        for c in range(5):
            b = PB + sp*10 + c*2
            a(f'buffer_load_dwordx2 v[{b}:{b+1}], v6, {WS}, s41 offen offset:{c*512}')
    a('s_waitcnt vmcnt(0) lgkmcnt(0)')
    for sp in range(DNS):
        for i in range(10): a(f'v_add_f32 v{X+i}, v{X+i}, v{PB+sp*10+i}')
    for i in range(5): a(f'v_cvt_pk_bf16_f32 v{8+i}, v{X+2*i}, v{X+2*i+1}')
    for c in range(5): a(f'buffer_store_dword v{8+c}, v1, s[8:11], 0 offen offset:{c*256}')

TASKS = [('attn', 32), ('wo', 5*WOS), ('ln2', 8), ('up', 27), ('down', 5*DNS), ('fin', 8)]
PERB = sum(n for _, n in TASKS)
ROLES = [('attn', 32, 1), ('wo', 40, 1), ('ln2', 32, 1), ('up', 27, 1), ('down', 15, 1), ('fin', 32, 1)]

WTRACE = False
def wstamp(a, i):
    if not WTRACE: return
    a('s_memrealtime s[58:59]'); a('s_waitcnt lgkmcnt(0)')
    a(f's_lshl_b32 s56, s{sWI}, 6'); a(f's_add_u32 s56, s56, {L.TRACE + 16384 + 4*i}')
    a('v_mov_b32 v250, s58'); a('v_mov_b32 v251, 0')
    a(f'buffer_store_dword v250, v251, {WS}, s56 offen')

def emit_worker(a, fail, end):
    a.label('worker')

    a('v_mov_b32 v254, v0')
    load_ptr(a, 4, 'ws', L.WS_BYTES)
    load_ptr(a, S_DBG, 'dbg', 256)
    a(f's_mov_b32 s{sSpin}, 0')
    a('s_waitcnt lgkmcnt(0)')
    wstamp(a, 0)
    nz = a.newlabel('nz')
    a(f's_cmp_lg_u32 s{sWI}, 0'); a(f's_cbranch_scc1 {nz}')
    a('v_lshlrev_b32 v1, 4, v0'); a('v_mov_b64 v[4:5], 0'); a('v_mov_b64 v[6:7], 0')
    for i in range(4):
        a(f's_mov_b32 s41, {L.SYNC + i*4096}')
        a(f'buffer_store_dwordx4 v[4:7], v1, {WS}, s41 offen sc1')
    signal(a, off_imm=12, dbg=True)
    a.label(nz)
    nl = a.newlabel('nl'); nf = a.newlabel('nf')
    a(f's_cmp_ge_u32 s{sWI}, 128'); a(f's_cbranch_scc1 {nl}')
    a(f's_mov_b32 s40, s{sWI}')
    task_ln1(a)
    a('s_waitcnt vmcnt(0)'); a('s_barrier')
    sk = a.newlabel('l1s')
    a('v_cmp_eq_u32 vcc, 0, v254'); a('s_and_saveexec_b64 s[56:57], vcc'); a(f's_cbranch_execz {sk}')
    a(f's_lshr_b32 s41, s{sWI}, 3'); a('s_lshl_b32 s41, s41, 2'); a('s_add_u32 s41, s41, 128')
    a('v_mov_b32 v250, 1'); a('v_mov_b32 v251, 0')
    a(f'buffer_atomic_add v250, v251, {DBG}, s41 offen')
    a.label(sk)
    a('s_mov_b64 exec, s[56:57]')
    a(f's_branch {nf}')
    a.label(nl)
    a('v_lshlrev_b32 v1, 4, v254'); a('v_mov_b64 v[4:5], -1'); a('v_mov_b64 v[6:7], -1')
    for base, total in ((L.P1, 2*L.P1SZ), (L.MEMF, 2*L.MEMSZ), (L.MEMX, 64*L.MEMSZ), (L.VM, 64*32*2048), (L.KM, 64*32*4096)):
        nchunk = total // 4096
        lp_ = a.newlabel('fl'); dn_ = a.newlabel('fd')
        a(f's_sub_u32 s40, s{sWI}, 128')
        a.label(lp_)
        a(f's_cmp_ge_u32 s40, {nchunk}'); a(f's_cbranch_scc1 {dn_}')
        a('s_lshl_b32 s41, s40, 12'); a(f's_add_u32 s41, s41, {base}')
        a(f'buffer_store_dwordx4 v[4:7], v1, {WS}, s41 offen sc1')
        a('s_add_u32 s40, s40, 64'); a(f's_branch {lp_}')
        a.label(dn_)
    signal(a, off_imm=16, dbg=True)
    a.label(nf)
    lp = a.newlabel('l1w'); ok = a.newlabel('l1ok')
    a('v_mov_b32 v251, 0')
    a.label(lp)
    a(f'buffer_load_dword v248, v251, {DBG}, 0 offen offset:12 sc1')
    a('s_waitcnt vmcnt(0)')
    a('v_readfirstlane_b32 s57, v248')
    a('s_cmp_ge_u32 s57, 1'); a(f's_cbranch_scc1 {ok}')
    a(f's_add_u32 s{sSpin}, s{sSpin}, 1'); a(f's_cmp_gt_u32 s{sSpin}, {SPIN_MAX}'); a(f's_cbranch_scc1 {fail}')
    a('s_sleep 4')
    a(f's_branch {lp}')
    a.label(ok)
    wstamp(a, 1)
    vv = a.newlabel('vt'); qq = a.newlabel('qt')
    a(f's_cmp_ge_u32 s{sWI}, 96'); a(f's_cbranch_scc1 {vv}')
    a(f's_mov_b32 s62, s{sWI}')
    qkv_loop(a, 'kl', 1, 62, 96, L.C_KV, fail)
    a(f's_branch {qq}')
    a.label(vv)
    a(f's_sub_u32 s62, s{sWI}, 96')
    qkv_loop(a, 'vl', 2, 62, 96, L.C_KV, fail)
    a.label(qq)
    wstamp(a, 2)
    qkv_loop(a, 'ql', 0, sWI, 192, L.C_Q, fail)
    wstamp(a, 3)
    lp = a.newlabel('rzw'); ok = a.newlabel('rzok')
    a('v_mov_b32 v251, 0')
    a.label(lp)
    a(f'buffer_load_dword v248, v251, {DBG}, 0 offen sc1')
    a('s_waitcnt vmcnt(0)')
    a('v_readfirstlane_b32 s56, v248')
    a('s_cmp_ge_u32 s56, 64'); a(f's_cbranch_scc1 {ok}')
    a(f's_add_u32 s{sSpin}, s{sSpin}, 1'); a(f's_cmp_gt_u32 s{sSpin}, {SPIN_MAX}'); a(f's_cbranch_scc1 {fail}')
    a('s_sleep 8')
    a(f's_branch {lp}')
    a.label(ok)
    fns = dict(attn=task_attn, wo=task_wo, ln2=task_ln2, up=task_up, down=task_down, fin=task_fin)
    a(f's_mov_b32 s{sSub}, s{sWI}')
    for name, n, copies in ROLES:
        sk = a.newlabel('rk')
        a(f's_cmp_ge_u32 s{sSub}, {n*copies}'); a(f's_cbranch_scc1 {sk}')
        a(f's_mov_b32 s{sB}, 0')
        for c in range(1, copies):
            a(f's_cmp_ge_u32 s{sSub}, {n}'); a(f's_cselect_b32 s56, {n}, 0'); a(f's_cselect_b32 s57, 1, 0')
            a(f's_sub_u32 s{sSub}, s{sSub}, s56'); a(f's_add_u32 s{sB}, s{sB}, s57')
        a(f's_mov_b32 s62, s{sSub}')
        lp = a.newlabel('rlp')
        a.label(lp)
        a(f's_mov_b32 s{sSub}, s62')
        fns[name](a, fail)
        a('s_barrier')
        a(f's_add_u32 s{sB}, s{sB}, {copies}')
        a(f's_cmp_lt_u32 s{sB}, 16'); a(f's_cbranch_scc1 {lp}')
        a('s_branch post_done')
        a.label(sk)
        a(f's_sub_u32 s{sSub}, s{sSub}, {n*copies}')
    a.label('post_done')
    wstamp(a, 4)
    a('s_endpgm')

def emit_fused(a, kname):
    fail = 'fz_fail'; end = 'fz_end'
    a.label(kname)
    a(f's_cmp_ge_u32 s2, 256'); a(f's_cbranch_scc1 {end}')
    CH.decode_role(a, 'worker')
    CH.emit_chain_body(a, fail, end, CH.Stamps(True) if STAMP else None)
    emit_worker(a, fail, end)
    a.label(fail)
    a(f's_load_dwordx2 s[8:9], s[0:1], {L.KA["dbg"]}'); a('s_mov_b32 s10, 256'); a('s_mov_b32 s11, 0x00020000')
    a('s_waitcnt lgkmcnt(0)')
    a('v_mov_b32 v1, 0xdead'); a('v_mov_b32 v2, 252')
    a(f'buffer_store_dword v1, v2, s[8:11], 0 offen')
    a('s_waitcnt vmcnt(0)')
    a.label(end)
    a('s_endpgm')
```

```python
from asmlib import Asm
import layout as L
import gemm as GM
from gemm import G, MF
import kernels as KN
from kernels import f32bits, pack_T, unpack, row_reduce16, MF32, MF16, C_SCALE
import chain5 as CH

sWI = 60; sJ = 61; sSpin = 63; sB = 38; sSub = 39
S_DBG = 84
WS = 's[4:7]'; DBG = f's[{S_DBG}:{S_DBG+3}]'
WOS = 8
DNS = 3
SPIN_MAX = 1 << 22
SC = 'sc1'
STAMP = False

def emit(a, ops):
    for x in ops:
        if isinstance(x, (list, tuple)): emit(a, x)
        else: a(x)

def tid(a): a('v_mov_b32 v0, v254')

def signal(a, off_sreg=None, off_imm=None, dbg=False):
    a('s_waitcnt vmcnt(0)')
    a('s_barrier')
    sk = a.newlabel('sig')
    a('v_cmp_eq_u32 vcc, 0, v254')
    a('s_and_saveexec_b64 s[56:57], vcc')
    a(f's_cbranch_execz {sk}')
    a('v_mov_b32 v250, 1'); a('v_mov_b32 v251, 0')
    if dbg:
        a(f'buffer_atomic_add v250, v251, {DBG}, 0 offen offset:{off_imm}')
    else:
        a(f'buffer_atomic_add v250, v251, {WS}, s{off_sreg} offen')
    a.label(sk)
    a('s_mov_b64 exec, s[56:57]')

def nap(a):
    sh = a.newlabel('nap'); e = a.newlabel('nape')
    a(f's_cmp_ge_u32 s{sB}, {L.NBLK - 1}'); a(f's_cbranch_scc1 {sh}')
    a('s_sleep 24'); a(f's_branch {e}')
    a.label(sh); a('s_sleep ' + __import__('os').environ.get('NAPS', '12'))
    a.label(e)

def wait_ctr(a, off_sreg, target, fail):
    lp = a.newlabel('wc'); ok = a.newlabel('wok')
    a('v_readfirstlane_b32 s56, v254')
    a(f's_cmp_ge_u32 s56, 64'); a(f's_cbranch_scc1 {ok}')
    a('v_mov_b32 v251, 0')
    a.label(lp)
    a(f'buffer_load_dword v250, v251, {WS}, s{off_sreg} offen sc1')
    a('s_waitcnt vmcnt(0)')
    a('v_readfirstlane_b32 s56, v250')
    a(f's_cmp_ge_u32 s56, {target}'); a(f's_cbranch_scc1 {ok}')
    a(f's_add_u32 s{sSpin}, s{sSpin}, 1'); a(f's_cmp_gt_u32 s{sSpin}, {SPIN_MAX}'); a(f's_cbranch_scc1 {fail}')
    nap(a)
    a(f's_branch {lp}')
    a.label(ok)
    a('s_barrier')

def ctr_addr(a, dst, kind, breg):
    a(f's_lshl_b32 s{dst}, s{breg}, 7'); a(f's_add_u32 s{dst}, s{dst}, {L.ctr(kind)}')

def gemm_common(a, lda, ldb, splitB=False):
    g = G
    tid(a)
    GM.setup_lane_consts(a, lda, ldb, splitB)
    a(f's_lshl_b32 s{g.sLdsA}, s{g.sW}, 12')
    a(f's_lshl_b32 s{g.sLdsB}, s{g.sW}, {11 if splitB else 12}')

def load_ptr(a, base, key, nbytes):
    a(f's_load_dwordx2 s[{base}:{base+1}], s[0:1], {L.KA[key]}')
    a(f's_mov_b32 s{base+2}, {nbytes}'); a(f's_mov_b32 s{base+3}, 0x00020000')


EPI = 98304
def epi_T_bf16(a, accs, ld, sbase, ncol_tiles=2):
    g = G; t = g.vT
    a(f'v_and_b32 v{t}, 31, v0'); a(f'v_lshlrev_b32 v{t+1}, 7, v{t}'); a(f'v_and_b32 v{t+2}, 7, v0'); a(f'v_lshrrev_b32 v{t+3}, 5, v0')
    a(f's_lshl_b32 s46, s{g.sW}, 13'); a(f's_add_u32 s46, s46, {EPI}'); a(f'v_add_u32 v{t+1}, s46, v{t+1}')
    for rt in range(2):
        for ct in range(2):
            dst = g.FA + ((rt*2+ct) & 1) * 8
            pack_T(a, accs[rt][ct], dst)
            for kk in range(2):
                c0 = 4*ct + 2*kk
                a(f'v_add_u32 v{t+4}, {c0}, v{t+3}'); a(f'v_xor_b32 v{t+4}, v{t+4}, v{t+2}'); a(f'v_lshlrev_b32 v{t+4}, 4, v{t+4}'); a(f'v_add_u32 v{t+4}, v{t+4}, v{t+1}')
                a(f'ds_write_b128 v{t+4}, v[{dst+4*kk}:{dst+4*kk+3}] offset:{rt*4096}')
    a(f'v_lshrrev_b32 v{t}, 3, v0'); a(f'v_and_b32 v{t+2}, 7, v0'); a(f'v_xor_b32 v{t+3}, v{t+2}, v{t}'); a(f'v_lshlrev_b32 v{t+3}, 4, v{t+3}')
    a(f'v_lshlrev_b32 v{t+4}, 7, v{t}'); a(f'v_add_u32 v{t+3}, v{t+3}, v{t+4}'); a(f'v_add_u32 v{t+3}, s46, v{t+3}')
    a(f's_mov_b32 s47, {ld}'); a(f'v_mul_lo_u32 v{t}, v{t}, s47'); a(f'v_lshlrev_b32 v{t+2}, 4, v{t+2}'); a(f'v_add_u32 v{t}, v{t}, v{t+2}')
    a('s_waitcnt lgkmcnt(0)')
    for i in range(8): a(f'ds_read_b128 v[{g.FA+4*i}:{g.FA+4*i+3}], v{t+3} offset:{i*1024}')
    for i in range(8):
        a(f's_waitcnt lgkmcnt({7-i})')
        a(f's_add_u32 s47, s{sbase}, {i*8*ld}')
        a(f'buffer_store_dwordx4 v[{g.FA+4*i}:{g.FA+4*i+3}], v{t}, {WS}, s47 offen {SC}')

def epi_T_f32(a, ld, sbase, epi=None, RT=2):
    epi = EPI if epi is None else epi
    g = G; t = g.vT
    a(f'v_and_b32 v{t}, 31, v0'); a(f'v_lshlrev_b32 v{t+1}, 8, v{t}'); a(f'v_and_b32 v{t+2}, 7, v0'); a(f'v_lshrrev_b32 v{t+3}, 5, v0')
    a(f's_lshl_b32 s46, s{g.sW}, {13 + RT - 1}'); a(f's_add_u32 s46, s46, {epi}'); a(f'v_add_u32 v{t+1}, s46, v{t+1}')
    for ct in range(2):
        for q in range(4):
            c0 = 8*ct + 2*q
            a(f'v_add_u32 v{t+4}, {c0}, v{t+3}'); a(f'v_xor_b32 v{t+4}, v{t+4}, v{t+2}'); a(f'v_lshlrev_b32 v{t+4}, 4, v{t+4}'); a(f'v_add_u32 v{t+4}, v{t+4}, v{t+1}')
            for rt in range(RT):
                acc = g.ACC + (rt*2+ct)*16 + 4*q
                a(f'ds_write_b128 v{t+4}, v[{acc}:{acc+3}] offset:{rt*8192}')
    a(f'v_lshrrev_b32 v{t}, 4, v0'); a(f'v_and_b32 v{t+2}, 15, v0')
    a(f'v_xor_b32 v{t+3}, v{t+2}, v{t}'); a(f'v_xor_b32 v{t+5}, 4, v{t+3}')
    a(f'v_lshlrev_b32 v{t+3}, 4, v{t+3}'); a(f'v_lshlrev_b32 v{t+5}, 4, v{t+5}'); a(f'v_lshlrev_b32 v{t+4}, 8, v{t}'); a(f'v_add_u32 v{t+4}, s46, v{t+4}')
    a(f'v_add_u32 v{t+3}, v{t+3}, v{t+4}'); a(f'v_add_u32 v{t+5}, v{t+5}, v{t+4}')
    a(f's_mov_b32 s47, {ld}'); a(f'v_mul_lo_u32 v{t}, v{t}, s47'); a(f'v_lshlrev_b32 v{t+2}, 4, v{t+2}'); a(f'v_add_u32 v{t}, v{t}, v{t+2}')
    a('s_waitcnt lgkmcnt(0)')
    for half in range(RT):
        for i in range(8):
            ii = half*8 + i
            a(f'ds_read_b128 v[{g.ACC+4*ii}:{g.ACC+4*ii+3}], v{t+3 if ii % 2 == 0 else t+5} offset:{ii*1024}')
        for i in range(8):
            ii = half*8 + i
            a(f's_waitcnt lgkmcnt({7-i})')
            a(f's_add_u32 s47, s{sbase}, {ii*4*ld}')
            a(f'buffer_store_dwordx4 v[{g.ACC+4*ii}:{g.ACC+4*ii+3}], v{t}, {WS}, s47 offen {SC}')

def task_ln1(a):
    tid(a)
    load_ptr(a, 8, 'x', 2048*640*2)
    a('v_lshrrev_b32 v1, 4, v0'); a('s_lshl_b32 s41, s40, 4'); a('v_add_u32 v1, s41, v1')
    a('v_mul_u32_u24 v1, 1280, v1'); a('v_and_b32 v5, 15, v0'); a('v_lshlrev_b32 v5, 4, v5'); a('v_add_u32 v1, v1, v5')
    a('s_waitcnt lgkmcnt(0)')
    for c in range(5): a(f'buffer_load_dwordx4 v[{8+4*c}:{11+4*c}], v1, s[8:11], 0 offen offset:{c*256}')
    a('s_waitcnt vmcnt(0)')
    unpack(a, 8, 32, 20)
    KN.ln_core(a, 32, 8)
    a(f's_mov_b32 s41, {L.XN}')
    for c in range(5): a(f'buffer_store_dwordx4 v[{8+4*c}:{11+4*c}], v1, {WS}, s41 offen offset:{c*256} {SC}')

def task_qkv(a, matrix):
    g = G
    key = ('Wq', 'Wk', 'Wv')[matrix]
    a(f's_lshl_b32 s{g.sT0}, s40, 7'); a(f's_lshl_b32 s{g.sT1}, s{g.sW}, 5'); a(f's_add_u32 s{g.sT0}, s{g.sT0}, s{g.sT1}')
    a(f's_mul_i32 s{g.sAoff}, s{g.sT0}, 1280'); a(f's_add_u32 s{g.sAoff}, s{g.sAoff}, {L.XN}')
    a(f's_lshl_b32 s{g.sBoff}, s43, 8'); a(f's_lshl_b32 s{g.sT1}, s{g.sW}, 17'); a(f's_add_u32 s{g.sBoff}, s{g.sBoff}, s{g.sT1}')
    a('s_barrier')
    GM.mainloop(a, 10, 1280, 8192, 'N' if matrix == 2 else 'T')
    t = g.vT
    if matrix != 2:
        a(f's_mov_b32 s45, {L.Q if matrix == 0 else L.K}')
        a(f's_lshl_b32 s46, s40, 7'); a(f's_lshl_b32 s47, s{g.sWM}, 6'); a('s_add_u32 s46, s46, s47'); a('s_lshl_b32 s46, s46, 13'); a('s_add_u32 s45, s45, s46')
        a(f's_lshl_b32 s46, s43, 8'); a('s_add_u32 s45, s45, s46'); a(f's_lshl_b32 s46, s{g.sWN}, 7'); a('s_add_u32 s45, s45, s46')
        epi_T_bf16(a, [[g.ACC, g.ACC+16], [g.ACC+32, g.ACC+48]], 8192, 45)
    else:
        a(f'v_bfe_u32 v{t}, v0, 4, 1'); a(f'v_lshlrev_b32 v{t}, 10, v{t}'); a(f'v_and_b32 v{t+1}, 15, v0'); a(f'v_lshlrev_b32 v{t+1}, 4, v{t+1}'); a(f'v_add_u32 v{t}, v{t}, v{t+1}')
        a(f'v_lshrrev_b32 v{t+1}, 5, v0'); a(f'v_lshlrev_b32 v{t+1}, 9, v{t+1}'); a(f'v_add_u32 v{t}, v{t}, v{t+1}')
        a(f's_lshl_b32 s45, s40, 2'); a(f's_lshl_b32 s46, s{g.sWM}, 1'); a('s_add_u32 s45, s45, s46'); a('s_lshl_b32 s45, s45, 18')
        a(f's_lshl_b32 s46, s43, 13'); a('s_add_u32 s45, s45, s46'); a(f's_lshl_b32 s46, s{g.sWN}, 12'); a('s_add_u32 s45, s45, s46'); a(f's_add_u32 s45, s45, {L.VT}')
        for rt in range(2):
            for ct in range(2):
                acc = g.ACC + (rt*2+ct)*16; dst = g.FA + ((rt*2+ct) & 1) * 8
                for i in range(8): a(f'v_cvt_pk_bf16_f32 v{dst+i}, v{acc+2*i}, v{acc+2*i+1}')
                a(f's_add_u32 s47, s45, {rt*262144 + ct*2048}')
                a(f'buffer_store_dwordx4 v[{dst}:{dst+3}], v{t}, {WS}, s47 offen {SC}')
                a(f'buffer_store_dwordx4 v[{dst+4}:{dst+7}], v{t}, {WS}, s47 offen offset:256 {SC}')

def qkv_loop(a, name, matrix, start_reg, stride, kind, fail):
    lp = a.newlabel(name); done = a.newlabel(name + 'd')
    gemm_common(a, 1280, 8192)
    load_ptr(a, G.SB, ('Wq', 'Wk', 'Wv')[matrix], 640*4096*2)
    a('s_waitcnt lgkmcnt(0)')
    a(f's_mov_b32 s{sJ}, s{start_reg}')
    a.label(lp)
    a(f's_cmp_ge_u32 s{sJ}, 512'); a(f's_cbranch_scc1 {done}')
    a(f's_lshr_b32 s40, s{sJ}, 5'); a(f's_and_b32 s43, s{sJ}, 31')
    if True:
        wl = a.newlabel('l1b'); wk = a.newlabel('l1bok')
        a('s_lshl_b32 s49, s40, 2'); a('s_add_u32 s49, s49, 128'); a('v_mov_b32 v251, 0')
        a.label(wl)
        a(f'buffer_load_dword v250, v251, {DBG}, s49 offen sc1')
        a('s_waitcnt vmcnt(0)')
        a('v_readfirstlane_b32 s56, v250')
        a(f's_cmp_ge_u32 s56, 8'); a(f's_cbranch_scc1 {wk}')
        a(f's_add_u32 s{sSpin}, s{sSpin}, 1'); a(f's_cmp_gt_u32 s{sSpin}, {SPIN_MAX}'); a(f's_cbranch_scc1 {fail}')
        a('s_sleep 3')
        a(f's_branch {wl}')
        a.label(wk)
    task_qkv(a, matrix)
    ctr_addr(a, 49, kind, 40)
    signal(a, off_sreg=49)
    a(f's_add_u32 s{sJ}, s{sJ}, {stride}')
    a(f's_branch {lp}')
    a.label(done)

def task_attn(a, fail):
    tid(a)
    a(f's_lshr_b32 s48, s{sB}, 1'); ctr_addr(a, 49, L.C_Q, 48); wait_ctr(a, 49, 32, fail)
    Wd = WS
    a('v_lshrrev_b32 v1, 6, v0'); a('v_readfirstlane_b32 s8, v1'); a('v_and_b32 v0, 63, v0')
    a(f's_lshl_b32 s10, s{sB}, 1'); a(f's_lshr_b32 s9, s{sSub}, 3'); a('s_add_u32 s10, s10, s9')
    a(f's_and_b32 s11, s{sSub}, 7'); a('s_lshl_b32 s11, s11, 2'); a('s_add_u32 s11, s11, s8')
    a('v_and_b32 v6, 15, v0'); a('v_lshlrev_b32 v1, 13, v6'); a('v_lshrrev_b32 v7, 4, v0'); a('v_lshlrev_b32 v8, 4, v7'); a('v_add_u32 v1, v1, v8')
    a('v_bfe_u32 v2, v0, 2, 1'); a('v_lshlrev_b32 v2, 4, v2'); a('v_bfe_u32 v9, v0, 3, 1'); a('v_lshlrev_b32 v9, 2, v9'); a('v_add_u32 v2, v2, v9')
    a('v_and_b32 v9, 3, v0'); a('v_add_u32 v2, v2, v9'); a('v_lshlrev_b32 v2, 13, v2'); a('v_add_u32 v2, v2, v8')
    a('v_lshlrev_b32 v3, 4, v0'); a('v_lshlrev_b32 v4, 3, v0')
    a('v_lshlrev_b32 v5, 13, v6'); a('v_bfe_u32 v9, v0, 4, 1'); a('v_lshlrev_b32 v9, 5, v9'); a('v_add_u32 v5, v5, v9'); a('v_lshrrev_b32 v9, 5, v0'); a('v_lshlrev_b32 v9, 4, v9'); a('v_add_u32 v5, v5, v9')
    a('v_and_b32 v9, 1, v7'); a('v_lshlrev_b32 v9, 4, v9'); a('v_lshrrev_b32 v10, 1, v7'); a('v_lshlrev_b32 v10, 2, v10'); a('v_add_u32 v9, v9, v10'); a('v_sub_u32 v10, v6, v9')
    a('s_lshl_b32 s12, s10, 18'); a('s_lshl_b32 s13, s11, 8'); a('s_add_u32 s12, s12, s13')
    a(f's_add_u32 s14, s12, {L.Q}'); a(f's_add_u32 s15, s12, {L.K}'); a(f's_add_u32 s16, s12, {L.O}')
    a('s_lshl_b32 s17, s10, 5'); a('s_add_u32 s17, s17, s11')
    a('s_lshl_b32 s18, s17, 12'); a(f's_add_u32 s18, s18, {L.KM}')
    a('s_lshl_b32 s19, s17, 13'); a(f's_add_u32 s19, s19, {L.VT}')
    a('s_lshl_b32 s20, s17, 11'); a(f's_add_u32 s20, s20, {L.VM}')
    a(f's_mov_b32 s21, {hex(f32bits(C_SCALE))}')
    QF = 16; KX = 48; KMf = 80; S = 96; VT = 120; VMf = 152; P = 160; O = 176
    for qt in range(2):
        a(f's_add_u32 s22, s14, {qt*16*8192}')
        for kp in range(4): a(f'buffer_load_dwordx4 v[{QF+(qt*4+kp)*4}:{QF+(qt*4+kp)*4+3}], v1, {Wd}, s22 offen offset:{kp*64}')
    for kt in range(2):
        a(f's_add_u32 s22, s15, {kt*8*8192}')
        for kp in range(4): a(f'buffer_load_dwordx4 v[{KX+(kt*4+kp)*4}:{KX+(kt*4+kp)*4+3}], v2, {Wd}, s22 offen offset:{kp*64}')
    for et in range(8):
        a(f's_add_u32 s22, s19, {(et>>2)*4096}')
        a(f'buffer_load_dwordx4 v[{VT+et*4}:{VT+et*4+3}], v3, {Wd}, s22 offen offset:{(et&3)*1024}')
    lp = a.newlabel('atp'); ok = a.newlabel('atok')
    a.label(lp)
    for kp in range(4): a(f'buffer_load_dwordx4 v[{KMf+kp*4}:{KMf+kp*4+3}], v3, {Wd}, s18 offen offset:{kp*1024} sc1')
    for p in range(4): a(f'buffer_load_dwordx2 v[{VMf+2*p}:{VMf+2*p+1}], v4, {Wd}, s20 offen offset:{p*512} sc1')
    a('s_waitcnt vmcnt(0)')
    CH.maxchain(a, 11, list(range(KMf, KMf+16)) + list(range(VMf, VMf+8)))
    a('v_cmp_eq_u32 vcc, -1, v11'); a(f's_cbranch_vccz {ok}')
    a(f's_add_u32 s{sSpin}, s{sSpin}, 1'); a(f's_cmp_gt_u32 s{sSpin}, {SPIN_MAX}'); a(f's_cbranch_scc1 {fail}')
    nap(a)
    a(f's_branch {lp}')
    a.label(ok)
    Sreg = lambda kt, qt: S + (kt*2+qt)*4
    for kp in range(4):
        for qt in range(2):
            B = f'v[{QF+(qt*4+kp)*4}:{QF+(qt*4+kp)*4+3}]'
            for kt in range(3):
                A = f'v[{KMf+kp*4}:{KMf+kp*4+3}]' if kt == 0 else f'v[{KX+((kt-1)*4+kp)*4}:{KX+((kt-1)*4+kp)*4+3}]'
                d = Sreg(kt, qt); c = '0' if kp == 0 else f'v[{d}:{d+3}]'
                a(f'{MF32} v[{d}:{d+3}], {A}, {B}, {c}')
    a('v_mov_b32 v11, 0xff800000')
    for qt in range(2):
        for kt in (1, 2):
            for r in range(4):
                cst = 8*(kt-1) + r - 16*qt
                reg = Sreg(kt, qt) + r
                a(f'v_cmp_le_i32 vcc, {cst}, v10')
                a(f'v_cndmask_b32 v{reg}, v11, v{reg}, vcc')
        m = 12; t2 = 13
        s0 = Sreg(0, qt); s1 = Sreg(1, qt); s2 = Sreg(2, qt)
        a(f'v_max3_f32 v{m}, v{s0}, v{s0+1}, v{s1}'); a(f'v_max3_f32 v{m}, v{m}, v{s1+1}, v{s1+2}'); a(f'v_max3_f32 v{m}, v{m}, v{s1+3}, v{s2}')
        a(f'v_max3_f32 v{m}, v{m}, v{s2+1}, v{s2+2}'); a(f'v_max_f32 v{m}, v{m}, v{s2+3}')
        a(f'v_mov_b32 v{t2}, v{m}'); a(f'v_permlane32_swap_b32 v{m}, v{t2}'); a(f'v_max_f32 v{m}, v{m}, v{t2}')
        a(f'v_mov_b32 v{t2}, v{m}'); a(f'v_permlane16_swap_b32 v{m}, v{t2}'); a(f'v_max_f32 v{m}, v{m}, v{t2}')
        a(f'v_mul_f32 v{m}, s21, v{m}')
        vals = [s0, s0+1] + [s1+i for i in range(4)] + [s2+i for i in range(4)]
        for r in vals: a(f'v_fma_f32 v{r}, v{r}, s21, -v{m}')
        for r in vals: a(f'v_exp_f32 v{r}, v{r}')
        pb = P + qt*8
        a(f'v_cvt_pk_bf16_f32 v{pb}, v{s1}, v{s1+1}'); a(f'v_cvt_pk_bf16_f32 v{pb+1}, v{s1+2}, v{s1+3}')
        a(f'v_cvt_pk_bf16_f32 v{pb+2}, v{s2}, v{s2+1}'); a(f'v_cvt_pk_bf16_f32 v{pb+3}, v{s2+2}, v{s2+3}')
        a(f'v_cvt_pk_bf16_f32 v{pb+4}, v{s0}, v{s0+1}'); a(f'v_mov_b32 v{pb+5}, 0'); a(f'v_mov_b32 v{pb+6}, 0'); a(f'v_mov_b32 v{pb+7}, v{pb+4}')
        l = 14 + qt
        a(f'v_add_f32 v{l}, v{vals[0]}, v{vals[1]}')
        for r in vals[2:]: a(f'v_add_f32 v{l}, v{l}, v{r}')
        a(f'v_mov_b32 v{t2}, v{l}'); a(f'v_permlane32_swap_b32 v{l}, v{t2}'); a(f'v_add_f32 v{l}, v{l}, v{t2}')
        a(f'v_mov_b32 v{t2}, v{l}'); a(f'v_permlane16_swap_b32 v{l}, v{t2}'); a(f'v_add_f32 v{l}, v{l}, v{t2}')
        a(f'v_rcp_f32 v{l}, v{l}')
    Oreg = lambda et, qt: O + (qt*8+et)*4
    for qt in range(2):
        pb = P + qt*8
        for et in range(8):
            o = Oreg(et, qt)
            a(f'{MF32} v[{o}:{o+3}], v[{VT+et*4}:{VT+et*4+3}], v[{pb}:{pb+3}], 0')
        for et in range(8):
            o = Oreg(et, qt); p = et >> 1
            b = f'v[{pb+6}:{pb+7}]' if et & 1 else f'v[{pb+4}:{pb+5}]'
            a(f'{MF16} v[{o}:{o+3}], v[{VMf+2*p}:{VMf+2*p+1}], {b}, v[{o}:{o+3}]')
    a('s_lshl_b32 s22, s8, 13'); a(f's_add_u32 s22, s22, {EPI}')
    a('v_lshlrev_b32 v1, 8, v6'); a('v_add_u32 v1, s22, v1')
    a('v_bfe_u32 v2, v0, 4, 1'); a('v_lshlrev_b32 v2, 1, v2'); a('v_lshrrev_b32 v3, 5, v0'); a('v_add_u32 v2, v2, v3')
    a('v_and_b32 v3, 7, v0')
    for qt in range(2):
        l = 14 + qt
        for ep in range(4):
            e0 = Oreg(2*ep, qt); e1 = Oreg(2*ep+1, qt); d = QF + (ep & 1) * 4
            for r in range(4):
                a(f'v_mul_f32 v{e0+r}, v{e0+r}, v{l}'); a(f'v_mul_f32 v{e1+r}, v{e1+r}, v{l}')
            a(f'v_cvt_pk_bf16_f32 v{d}, v{e0}, v{e0+1}'); a(f'v_cvt_pk_bf16_f32 v{d+1}, v{e0+2}, v{e0+3}')
            a(f'v_cvt_pk_bf16_f32 v{d+2}, v{e1}, v{e1+1}'); a(f'v_cvt_pk_bf16_f32 v{d+3}, v{e1+2}, v{e1+3}')
            a(f'v_permlane16_swap_b32 v{d}, v{d+2}'); a(f'v_permlane16_swap_b32 v{d+1}, v{d+3}')
            a(f'v_add_u32 v4, {4*ep}, v2'); a('v_xor_b32 v4, v4, v3'); a('v_lshlrev_b32 v4, 4, v4'); a('v_add_u32 v4, v4, v1')
            a(f'ds_write_b128 v4, v[{d}:{d+3}] offset:{qt*4096}')
    a('v_lshrrev_b32 v7, 4, v0'); a('v_xor_b32 v2, v6, v7'); a('v_xor_b32 v3, 4, v2')
    a('v_lshlrev_b32 v2, 4, v2'); a('v_lshlrev_b32 v3, 4, v3'); a('v_lshlrev_b32 v4, 8, v7'); a('v_add_u32 v4, s22, v4'); a('v_add_u32 v2, v2, v4'); a('v_add_u32 v3, v3, v4')
    a('v_lshlrev_b32 v5, 13, v7'); a('v_lshlrev_b32 v4, 4, v6'); a('v_add_u32 v5, v5, v4')
    a('s_waitcnt lgkmcnt(0)')
    for i in range(8): a(f'ds_read_b128 v[{KX+4*i}:{KX+4*i+3}], v{2 if i % 2 == 0 else 3} offset:{i*1024}')
    for i in range(8):
        a(f's_waitcnt lgkmcnt({7-i})')
        a(f's_add_u32 s22, s16, {i*4*8192}')
        a(f'buffer_store_dwordx4 v[{KX+4*i}:{KX+4*i+3}], v5, {Wd}, s22 offen {SC}')
    ctr_addr(a, 49, L.C_AT, sB); signal(a, off_sreg=49)

def part_store(a, base, ks_reg, m_reg, n_reg, epi=None, RT=2):
    g = G
    a(f's_mul_i32 s45, s{ks_reg}, {2048*640*4}'); a(f's_add_u32 s45, s45, {base}')
    a(f's_lshl_b32 s46, s{m_reg}, {6 + RT - 1}'); a(f's_lshl_b32 s47, s{g.sWM}, {5 + RT - 1}'); a('s_add_u32 s46, s46, s47'); a('s_mul_i32 s46, s46, 2560'); a('s_add_u32 s45, s45, s46')
    a(f's_lshl_b32 s46, s{n_reg}, 9'); a('s_add_u32 s45, s45, s46'); a(f's_lshl_b32 s46, s{g.sWN}, 8'); a('s_add_u32 s45, s45, s46')
    epi_T_f32(a, 2560, 45, epi, RT)

def task_wo(a, fail):
    g = G
    ctr_addr(a, 49, L.C_AT, sB); wait_ctr(a, 49, 32, fail)
    load_ptr(a, g.SB, 'Wo', 4096*640*2)
    a(f's_and_b32 s42, s{sSub}, {WOS-1}'); a(f's_lshr_b32 s41, s{sSub}, {WOS.bit_length()-1}')
    gemm_common(a, 8192, 1280)
    KS = 4096 // WOS
    a(f's_lshl_b32 s{g.sT0}, s{sB}, 7'); a(f's_lshl_b32 s{g.sT1}, s{g.sW}, 5'); a(f's_add_u32 s{g.sT0}, s{g.sT0}, s{g.sT1}')
    a(f's_lshl_b32 s{g.sAoff}, s{g.sT0}, 13'); a(f's_add_u32 s{g.sAoff}, s{g.sAoff}, {L.O}')
    a(f's_mul_i32 s{g.sT1}, s42, {KS*2}'); a(f's_add_u32 s{g.sAoff}, s{g.sAoff}, s{g.sT1}')
    a(f's_mul_i32 s{g.sBoff}, s42, {KS*1280}'); a(f's_lshl_b32 s{g.sT1}, s41, 8'); a(f's_add_u32 s{g.sBoff}, s{g.sBoff}, s{g.sT1}')
    a(f's_mul_i32 s{g.sT1}, s{g.sW}, {16*1280}'); a(f's_add_u32 s{g.sBoff}, s{g.sBoff}, s{g.sT1}')
    a('s_waitcnt lgkmcnt(0)')
    a('s_barrier')
    GM.mainloop(a, KS // 64, 8192, 1280, 'T')
    part_store(a, L.PART, 42, sB, 41)
    ctr_addr(a, 49, L.C_WO, sB); signal(a, off_sreg=49)

def rows16_setup(a):
    tid(a)
    a('v_lshrrev_b32 v1, 6, v0'); a('v_and_b32 v0, 63, v0')
    a(f's_lshl_b32 s41, s{sB}, 6'); a(f's_lshl_b32 s42, s{sSub}, 2'); a('s_add_u32 s41, s41, s42'); a('v_add_u32 v1, s41, v1')
    a('v_mul_u32_u24 v1, 1280, v1'); a('v_lshlrev_b32 v5, 2, v0'); a('v_add_u32 v1, v1, v5')
    a('v_lshlrev_b32 v6, 1, v1')

def wave_reduce(a, v, t):
    for sh in (8, 4, 2, 1):
        a(f'v_add_f32_dpp v{v}, v{v}, v{v} row_ror:{sh} row_mask:0xf bank_mask:0xf')
    a(f'v_mov_b32 v{t}, v{v}'); a(f'v_permlane16_swap_b32 v{v}, v{t}'); a(f'v_add_f32 v{v}, v{v}, v{t}')
    a(f'v_mov_b32 v{t}, v{v}'); a(f'v_permlane32_swap_b32 v{v}, v{t}'); a(f'v_add_f32 v{v}, v{v}, v{t}')

def ln_row(a, X, out_pack):
    a(f'v_add_f32 v2, v{X}, v{X+1}')
    for i in range(2, 10): a(f'v_add_f32 v2, v2, v{X+i}')
    wave_reduce(a, 2, 3)
    a(f'v_mul_f32 v2, {hex(f32bits(1.0/640))}, v2')
    for i in range(10): a(f'v_sub_f32 v{X+i}, v{X+i}, v2')
    a(f'v_mul_f32 v3, v{X}, v{X}')
    for i in range(1, 10): a(f'v_fmac_f32 v3, v{X+i}, v{X+i}')
    wave_reduce(a, 3, 4)
    a(f'v_mov_b32 v4, {hex(f32bits(1e-5))}')
    a(f'v_mul_f32 v3, {hex(f32bits(1.0/640))}, v3'); a('v_add_f32 v3, v3, v4'); a('v_rsq_f32 v3, v3')
    for i in range(10): a(f'v_mul_f32 v{X+i}, v{X+i}, v3')
    for i in range(5): a(f'v_cvt_pk_bf16_f32 v{out_pack+i}, v{X+2*i}, v{X+2*i+1}')

def task_ln2(a, fail):
    ctr_addr(a, 49, L.C_WO, sB); wait_ctr(a, 49, 5*WOS, fail)
    load_ptr(a, 8, 'x', 2048*640*2)
    rows16_setup(a)
    a('s_waitcnt lgkmcnt(0)')
    X = 32; PB = 48
    for c in range(5): a(f'buffer_load_dword v{8+c}, v1, s[8:11], 0 offen offset:{c*256}')
    for sp in range(WOS):
        a(f's_mov_b32 s41, {L.PART + sp*2048*640*4}')
        for c in range(5):
            b = PB + sp*10 + c*2
            a(f'buffer_load_dwordx2 v[{b}:{b+1}], v6, {WS}, s41 offen offset:{c*512}')
    a(f's_waitcnt vmcnt({5*WOS})')
    unpack(a, 8, X, 5)
    for sp in range(WOS):
        a(f's_waitcnt vmcnt({5*(WOS-1-sp)})')
        for i in range(10): a(f'v_add_f32 v{X+i}, v{X+i}, v{PB+sp*10+i}')
    a(f's_mov_b32 s41, {L.H}')
    for c in range(5): a(f'buffer_store_dwordx2 v[{X+2*c}:{X+2*c+1}], v6, {WS}, s41 offen offset:{c*512} {SC}')
    for i in range(10): a(f'v_mov_b32 v{PB+i}, v{X+i}')
    ln_row(a, PB, 8)
    a(f's_mov_b32 s41, {L.HN}')
    for c in range(5): a(f'buffer_store_dword v{8+c}, v1, {WS}, s41 offen offset:{c*256} {SC}')
    ctr_addr(a, 49, L.C_LN2, sB); signal(a, off_sreg=49)

def up_epilogue(a):
    g = G; t = g.vT
    a('s_barrier')
    a(f's_mov_b32 s48, {hex(f32bits(-1.4426950408889634))}')
    a(f'v_and_b32 v{t}, 31, v0'); a(f's_lshl_b32 s46, s{g.sWM}, 5'); a(f'v_add_u32 v{t+1}, s46, v{t}'); a(f'v_lshlrev_b32 v{t+1}, 7, v{t+1}')
    a(f'v_and_b32 v{t+6}, 7, v0'); a(f'v_lshrrev_b32 v{t+7}, 5, v0'); a(f's_lshl_b32 s47, s{g.sWN}, 2'); a(f'v_add_u32 v{t+7}, s47, v{t+7}')
    ag = g.ACC; au = g.ACC + 16
    for i in range(16):
        x = t + 2 + (i & 3)
        a(f'v_mul_f32 v{x}, s48, v{ag+i}'); a(f'v_exp_f32 v{x}, v{x}'); a(f'v_add_f32 v{x}, 1.0, v{x}'); a(f'v_rcp_f32 v{x}, v{x}')
        a(f'v_mul_f32 v{ag+i}, v{ag+i}, v{x}'); a(f'v_mul_f32 v{ag+i}, v{ag+i}, v{au+i}')
    dst = g.FA
    pack_T(a, ag, dst)
    for kk in range(2):
        a(f'v_add_u32 v{t+8}, {2*kk}, v{t+7}'); a(f'v_xor_b32 v{t+8}, v{t+8}, v{t+6}'); a(f'v_lshlrev_b32 v{t+8}, 4, v{t+8}'); a(f'v_add_u32 v{t+8}, v{t+8}, v{t+1}')
        a(f'ds_write_b128 v{t+8}, v[{dst+4*kk}:{dst+4*kk+3}]')
    a('s_waitcnt lgkmcnt(0)'); a('s_barrier')
    a(f'v_lshrrev_b32 v{t}, 3, v0'); a(f'v_and_b32 v{t+2}, 7, v0'); a(f'v_xor_b32 v{t+3}, v{t+2}, v{t}'); a(f'v_lshlrev_b32 v{t+3}, 4, v{t+3}')
    a(f'v_lshlrev_b32 v{t+4}, 7, v{t}'); a(f'v_add_u32 v{t+3}, v{t+3}, v{t+4}'); a(f's_lshl_b32 s46, s{g.sW}, 11'); a(f'v_add_u32 v{t+3}, s46, v{t+3}')
    a(f's_mov_b32 s47, 3456'); a(f'v_mul_lo_u32 v{t}, v{t}, s47'); a(f'v_lshlrev_b32 v{t+2}, 4, v{t+2}'); a(f'v_add_u32 v{t}, v{t}, v{t+2}')
    a(f's_lshl_b32 s46, s{sB}, 6'); a(f's_lshl_b32 s47, s{g.sW}, 4'); a('s_add_u32 s46, s46, s47'); a('s_mul_i32 s45, s46, 3456'); a(f's_add_u32 s45, s45, {L.ACT}')
    a(f's_lshl_b32 s46, s{sSub}, 7'); a('s_add_u32 s45, s45, s46')
    for i in range(2): a(f'ds_read_b128 v[{g.FA+4*i}:{g.FA+4*i+3}], v{t+3} offset:{i*1024}')
    for i in range(2):
        a(f's_waitcnt lgkmcnt({1-i})')
        a(f's_add_u32 s47, s45, {i*8*3456}')
        a(f'buffer_store_dwordx4 v[{g.FA+4*i}:{g.FA+4*i+3}], v{t}, {WS}, s47 offen {SC}')

def task_up(a, fail):
    g = G
    ctr_addr(a, 49, L.C_LN2, sB); wait_ctr(a, 49, 32, fail)
    load_ptr(a, g.SB, 'Wg', 640*1728*2); load_ptr(a, g.SB2, 'Wu', 640*1728*2)
    gemm_common(a, 1280, 3456, splitB=True)
    a(f's_lshl_b32 s{g.sT0}, s{sB}, 7'); a(f's_lshl_b32 s{g.sT1}, s{g.sW}, 5'); a(f's_add_u32 s{g.sT0}, s{g.sT0}, s{g.sT1}')
    a(f's_mul_i32 s{g.sAoff}, s{g.sT0}, 1280'); a(f's_add_u32 s{g.sAoff}, s{g.sAoff}, {L.HN}')
    a(f's_lshl_b32 s{g.sBoff}, s{sSub}, 7'); a(f's_mul_i32 s{g.sT1}, s{g.sW}, {16*3456}'); a(f's_add_u32 s{g.sBoff}, s{g.sBoff}, s{g.sT1}')
    a('s_waitcnt lgkmcnt(0)')
    a('s_barrier')
    GM.mainloop(a, 10, 1280, 3456, 'T', splitB=True)
    t = g.vT
    up_epilogue(a)
    ctr_addr(a, 49, L.C_UP, sB); signal(a, off_sreg=49)

def task_down(a, fail):
    g = G
    ctr_addr(a, 49, L.C_UP, sB); wait_ctr(a, 49, 27, fail)
    load_ptr(a, g.SB, 'Wd', 1728*640*2)
    a(f's_mul_i32 s41, s{sSub}, 43691'); a('s_lshr_b32 s41, s41, 17'); a('s_mul_i32 s42, s41, 3'); a(f's_sub_u32 s42, s{sSub}, s42')
    gemm_common(a, 3456, 1280)
    KS = 1728 // DNS
    a(f's_lshl_b32 s{g.sT0}, s{sB}, 7'); a(f's_lshl_b32 s{g.sT1}, s{g.sW}, 5'); a(f's_add_u32 s{g.sT0}, s{g.sT0}, s{g.sT1}')
    a(f's_mul_i32 s{g.sAoff}, s{g.sT0}, 3456'); a(f's_add_u32 s{g.sAoff}, s{g.sAoff}, {L.ACT}')
    a(f's_mul_i32 s{g.sT1}, s42, {KS*2}'); a(f's_add_u32 s{g.sAoff}, s{g.sAoff}, s{g.sT1}')
    a(f's_mul_i32 s{g.sBoff}, s42, {KS*1280}'); a(f's_lshl_b32 s{g.sT1}, s41, 8'); a(f's_add_u32 s{g.sBoff}, s{g.sBoff}, s{g.sT1}')
    a(f's_mul_i32 s{g.sT1}, s{g.sW}, {16*1280}'); a(f's_add_u32 s{g.sBoff}, s{g.sBoff}, s{g.sT1}')
    a('s_waitcnt lgkmcnt(0)')
    a('s_barrier')
    GM.mainloop(a, KS // 64, 3456, 1280, 'T')
    part_store(a, L.PART2, 42, sB, 41)
    ctr_addr(a, 49, L.C_DN, sB); signal(a, off_sreg=49)

def task_fin(a, fail):
    ctr_addr(a, 49, L.C_DN, sB); wait_ctr(a, 49, 5*DNS, fail)
    load_ptr(a, 8, 'out', 2048*640*2)
    rows16_setup(a)
    X = 32; PB = 48
    a(f's_mov_b32 s41, {L.H}')
    for c in range(5): a(f'buffer_load_dwordx2 v[{X+2*c}:{X+2*c+1}], v6, {WS}, s41 offen offset:{c*512}')
    for sp in range(DNS):
        a(f's_mov_b32 s41, {L.PART2 + sp*2048*640*4}')
        for c in range(5):
            b = PB + sp*10 + c*2
            a(f'buffer_load_dwordx2 v[{b}:{b+1}], v6, {WS}, s41 offen offset:{c*512}')
    a('s_waitcnt vmcnt(0) lgkmcnt(0)')
    for sp in range(DNS):
        for i in range(10): a(f'v_add_f32 v{X+i}, v{X+i}, v{PB+sp*10+i}')
    for i in range(5): a(f'v_cvt_pk_bf16_f32 v{8+i}, v{X+2*i}, v{X+2*i+1}')
    for c in range(5): a(f'buffer_store_dword v{8+c}, v1, s[8:11], 0 offen offset:{c*256}')


def s_wo_setup(a):
    g = G
    load_ptr(a, g.SB, 'Wo', 4096*640*2)
    a(f's_and_b32 s42, s{sSub}, {WOS-1}'); a(f's_lshr_b32 s41, s{sSub}, {WOS.bit_length()-1}')
    tid(a); GM.stat_setup(a, 8192, 1280)
    KS = 4096 // WOS
    a(f's_mul_i32 s{g.sBoff}, s42, {KS*1280}'); a(f's_lshl_b32 s{g.sT1}, s41, 8'); a(f's_add_u32 s{g.sBoff}, s{g.sBoff}, s{g.sT1}')
    a(f's_mul_i32 s{g.sT1}, s{g.sW}, {16*1280}'); a(f's_add_u32 s{g.sBoff}, s{g.sBoff}, s{g.sT1}')
    a('s_waitcnt lgkmcnt(0)')
    GM.stat_load_B(a, KS // 64, 1280)
def s_wo(a, fail):
    g = G; KS = 4096 // WOS
    ctr_addr(a, 49, L.C_AT, sB); wait_ctr(a, 49, 16, fail)
    bstamp(a, 5)
    a(f's_lshl_b32 s{g.sT0}, s{sB}, 6'); a(f's_lshl_b32 s{g.sT1}, s{g.sW}, 4'); a(f's_add_u32 s{g.sT0}, s{g.sT0}, s{g.sT1}')
    a(f's_lshl_b32 s{g.sAoff}, s{g.sT0}, 13'); a(f's_add_u32 s{g.sAoff}, s{g.sAoff}, {L.O}')
    a(f's_mul_i32 s{g.sT1}, s42, {KS*2}'); a(f's_add_u32 s{g.sAoff}, s{g.sAoff}, s{g.sT1}')
    GM.stat_mainloop(a, KS // 64, 8192)
    bstamp(a, 6)
    a('s_barrier')
    part_store(a, L.PART, 42, sB, 41, epi=0, RT=1)
    bstamp(a, 7)
    ctr_addr(a, 49, L.C_WO, sB); signal(a, off_sreg=49)
    bstamp(a, 8)

def s_up_setup(a):
    g = G
    load_ptr(a, g.SB, 'Wg', 640*1728*2); load_ptr(a, g.SB2, 'Wu', 640*1728*2)
    tid(a); GM.stat_setup(a, 1280, 3456, splitB=True)
    a(f's_lshl_b32 s{g.sBoff}, s{sSub}, 7'); a(f's_mul_i32 s{g.sT1}, s{g.sW}, {16*3456}'); a(f's_add_u32 s{g.sBoff}, s{g.sBoff}, s{g.sT1}')
    a('s_waitcnt lgkmcnt(0)')
    GM.stat_load_B(a, 10, 3456, splitB=True)
def s_up(a, fail):
    g = G
    ctr_addr(a, 49, L.C_LN2, sB); wait_ctr(a, 49, 16, fail)
    bstamp(a, 5)
    a(f's_lshl_b32 s{g.sT0}, s{sB}, 6'); a(f's_lshl_b32 s{g.sT1}, s{g.sW}, 4'); a(f's_add_u32 s{g.sT0}, s{g.sT0}, s{g.sT1}')
    a(f's_mul_i32 s{g.sAoff}, s{g.sT0}, 1280'); a(f's_add_u32 s{g.sAoff}, s{g.sAoff}, {L.HN}')
    GM.stat_mainloop(a, 10, 1280)
    bstamp(a, 6)
    up_epilogue(a)
    bstamp(a, 7)
    ctr_addr(a, 49, L.C_UP, sB); signal(a, off_sreg=49)
    bstamp(a, 8)

def s_down_setup(a):
    g = G
    load_ptr(a, g.SB, 'Wd', 1728*640*2)
    a(f's_mul_i32 s41, s{sSub}, 43691'); a('s_lshr_b32 s41, s41, 17'); a('s_mul_i32 s42, s41, 3'); a(f's_sub_u32 s42, s{sSub}, s42')
    tid(a); GM.stat_setup(a, 3456, 1280)
    KS = 1728 // DNS
    a(f's_mul_i32 s{g.sBoff}, s42, {KS*1280}'); a(f's_lshl_b32 s{g.sT1}, s41, 8'); a(f's_add_u32 s{g.sBoff}, s{g.sBoff}, s{g.sT1}')
    a(f's_mul_i32 s{g.sT1}, s{g.sW}, {16*1280}'); a(f's_add_u32 s{g.sBoff}, s{g.sBoff}, s{g.sT1}')
    a('s_waitcnt lgkmcnt(0)')
    GM.stat_load_B(a, KS // 64, 1280)
def s_down(a, fail):
    g = G; KS = 1728 // DNS
    ctr_addr(a, 49, L.C_UP, sB); wait_ctr(a, 49, 27, fail)
    bstamp(a, 5)
    a(f's_lshl_b32 s{g.sT0}, s{sB}, 6'); a(f's_lshl_b32 s{g.sT1}, s{g.sW}, 4'); a(f's_add_u32 s{g.sT0}, s{g.sT0}, s{g.sT1}')
    a(f's_mul_i32 s{g.sAoff}, s{g.sT0}, 3456'); a(f's_add_u32 s{g.sAoff}, s{g.sAoff}, {L.ACT}')
    a(f's_mul_i32 s{g.sT1}, s42, {KS*2}'); a(f's_add_u32 s{g.sAoff}, s{g.sAoff}, s{g.sT1}')
    GM.stat_mainloop(a, KS // 64, 3456)
    bstamp(a, 6)
    a('s_barrier')
    part_store(a, L.PART2, 42, sB, 41, epi=0, RT=1)
    bstamp(a, 7)
    ctr_addr(a, 49, L.C_DN, sB); signal(a, off_sreg=49)
    bstamp(a, 8)

TASKS = [('attn', 32), ('wo', 5*WOS), ('ln2', 8), ('up', 27), ('down', 5*DNS), ('fin', 8)]
PERB = sum(n for _, n in TASKS)
ROLES = [('attn', 16, 2), ('wo', 40, 1), ('ln2', 16, 1), ('up', 27, 2), ('down', 15, 2), ('fin', 16, 1)]

WTRACE = False
def wstamp(a, i):
    if not WTRACE: return
    a('s_memrealtime s[58:59]'); a('s_waitcnt lgkmcnt(0)')
    a(f's_lshl_b32 s56, s{sWI}, 6'); a(f's_add_u32 s56, s56, {L.TRACE + 16384 + 4*i}')
    a('v_mov_b32 v250, s58'); a('v_mov_b32 v251, 0')
    a(f'buffer_store_dword v250, v251, {WS}, s56 offen')

def bstamp(a, i):
    if not WTRACE: return
    sk = a.newlabel('bs')
    a(f's_cmp_lg_u32 s{sB}, {L.NBLK - 1}'); a(f's_cbranch_scc1 {sk}')
    wstamp(a, i)
    a.label(sk)

def emit_worker(a, fail, end):
    a.label('worker')

    a('v_mov_b32 v254, v0')
    load_ptr(a, 4, 'ws', L.WS_BYTES)
    load_ptr(a, S_DBG, 'dbg', 256)
    a(f's_mov_b32 s{sSpin}, 0')
    a('s_waitcnt lgkmcnt(0)')
    wstamp(a, 0)
    nz = a.newlabel('nz')
    a(f's_cmp_lg_u32 s{sWI}, 0'); a(f's_cbranch_scc1 {nz}')
    a('v_lshlrev_b32 v1, 4, v0'); a('v_mov_b64 v[4:5], 0'); a('v_mov_b64 v[6:7], 0')
    for i in range(8):
        a(f's_mov_b32 s41, {L.SYNC + i*4096}')
        a(f'buffer_store_dwordx4 v[4:7], v1, {WS}, s41 offen sc1')
    signal(a, off_imm=12, dbg=True)
    a.label(nz)
    nl = a.newlabel('nl'); nf = a.newlabel('nf')
    a(f's_cmp_ge_u32 s{sWI}, 128'); a(f's_cbranch_scc1 {nl}')
    a(f's_mov_b32 s40, s{sWI}')
    task_ln1(a)
    a('s_waitcnt vmcnt(0)'); a('s_barrier')
    sk = a.newlabel('l1s')
    a('v_cmp_eq_u32 vcc, 0, v254'); a('s_and_saveexec_b64 s[56:57], vcc'); a(f's_cbranch_execz {sk}')
    a(f's_lshr_b32 s41, s{sWI}, 3'); a('s_lshl_b32 s41, s41, 2'); a('s_add_u32 s41, s41, 128')
    a('v_mov_b32 v250, 1'); a('v_mov_b32 v251, 0')
    a(f'buffer_atomic_add v250, v251, {DBG}, s41 offen')
    a.label(sk)
    a('s_mov_b64 exec, s[56:57]')
    a(f's_branch {nf}')
    a.label(nl)
    a('v_lshlrev_b32 v1, 4, v254'); a('v_mov_b64 v[4:5], -1'); a('v_mov_b64 v[6:7], -1')
    for base, total in ((L.P1, 2*L.P1SZ), (L.MEMF, 2*L.MEMSZ), (L.MEMX, 64*L.MEMSZ), (L.VM, 64*32*2048), (L.KM, 64*32*4096)):
        nchunk = total // 4096
        lp_ = a.newlabel('fl'); dn_ = a.newlabel('fd')
        a(f's_sub_u32 s40, s{sWI}, 128')
        a.label(lp_)
        a(f's_cmp_ge_u32 s40, {nchunk}'); a(f's_cbranch_scc1 {dn_}')
        a('s_lshl_b32 s41, s40, 12'); a(f's_add_u32 s41, s41, {base}')
        a(f'buffer_store_dwordx4 v[4:7], v1, {WS}, s41 offen sc1')
        a('s_add_u32 s40, s40, 64'); a(f's_branch {lp_}')
        a.label(dn_)
    signal(a, off_imm=16, dbg=True)
    a.label(nf)
    lp = a.newlabel('l1w'); ok = a.newlabel('l1ok')
    a('v_mov_b32 v251, 0')
    a.label(lp)
    a(f'buffer_load_dword v248, v251, {DBG}, 0 offen offset:12 sc1')
    a('s_waitcnt vmcnt(0)')
    a('v_readfirstlane_b32 s57, v248')
    a('s_cmp_ge_u32 s57, 1'); a(f's_cbranch_scc1 {ok}')
    a(f's_add_u32 s{sSpin}, s{sSpin}, 1'); a(f's_cmp_gt_u32 s{sSpin}, {SPIN_MAX}'); a(f's_cbranch_scc1 {fail}')
    a('s_sleep 4')
    a(f's_branch {lp}')
    a.label(ok)
    wstamp(a, 1)
    vv = a.newlabel('vt'); qq = a.newlabel('qt')
    a(f's_cmp_ge_u32 s{sWI}, 96'); a(f's_cbranch_scc1 {vv}')
    a(f's_mov_b32 s62, s{sWI}')
    qkv_loop(a, 'kl', 1, 62, 96, L.C_KV, fail)
    a(f's_branch {qq}')
    a.label(vv)
    a(f's_sub_u32 s62, s{sWI}, 96')
    qkv_loop(a, 'vl', 2, 62, 96, L.C_KV, fail)
    a.label(qq)
    wstamp(a, 2)
    qkv_loop(a, 'ql', 0, sWI, 192, L.C_Q, fail)
    wstamp(a, 3)
    lp = a.newlabel('rzw'); ok = a.newlabel('rzok')
    a('v_mov_b32 v251, 0')
    a.label(lp)
    a(f'buffer_load_dword v248, v251, {DBG}, 0 offen sc1')
    a('s_waitcnt vmcnt(0)')
    a('v_readfirstlane_b32 s56, v248')
    a('s_cmp_ge_u32 s56, 64'); a(f's_cbranch_scc1 {ok}')
    a(f's_add_u32 s{sSpin}, s{sSpin}, 1'); a(f's_cmp_gt_u32 s{sSpin}, {SPIN_MAX}'); a(f's_cbranch_scc1 {fail}')
    a('s_sleep 8')
    a(f's_branch {lp}')
    a.label(ok)
    fns = dict(attn=task_attn, wo=s_wo, ln2=task_ln2, up=s_up, down=s_down, fin=task_fin)
    setups = dict(wo=s_wo_setup, up=s_up_setup, down=s_down_setup)
    a(f's_mov_b32 s{sSub}, s{sWI}')
    for name, n, copies in ROLES:
        sk = a.newlabel('rk')
        a(f's_cmp_ge_u32 s{sSub}, {n*copies}'); a(f's_cbranch_scc1 {sk}')
        a(f's_mov_b32 s{sB}, 0')
        for c in range(1, copies):
            a(f's_cmp_ge_u32 s{sSub}, {n}'); a(f's_cselect_b32 s56, {n}, 0'); a(f's_cselect_b32 s57, 1, 0')
            a(f's_sub_u32 s{sSub}, s{sSub}, s56'); a(f's_add_u32 s{sB}, s{sB}, s57')
        a(f's_mov_b32 s62, s{sSub}')
        if name in setups: setups[name](a)
        lp = a.newlabel('rlp')
        a.label(lp)
        a(f's_mov_b32 s{sSub}, s62')
        fns[name](a, fail)
        a('s_barrier')
        a(f's_add_u32 s{sB}, s{sB}, {copies}')
        a(f's_cmp_lt_u32 s{sB}, {L.NBLK}'); a(f's_cbranch_scc1 {lp}')
        a('s_branch post_done')
        a.label(sk)
        a(f's_sub_u32 s{sSub}, s{sSub}, {n*copies}')
    a.label('post_done')
    wstamp(a, 4)
    a('s_endpgm')

def emit_fused(a, kname):
    fail = 'fz_fail'; end = 'fz_end'
    a.label(kname)
    a(f's_cmp_ge_u32 s2, 256'); a(f's_cbranch_scc1 {end}')
    CH.decode_role(a, 'worker')
    CH.emit_chain_body(a, fail, end, CH.Stamps(True) if STAMP else None)
    emit_worker(a, fail, end)
    a.label(fail)
    a(f's_load_dwordx2 s[8:9], s[0:1], {L.KA["dbg"]}'); a('s_mov_b32 s10, 256'); a('s_mov_b32 s11, 0x00020000')
    a('s_waitcnt lgkmcnt(0)')
    a('v_mov_b32 v1, 0xdead'); a('v_mov_b32 v2, 252')
    a(f'buffer_store_dword v1, v2, s[8:11], 0 offen')
    a('s_waitcnt vmcnt(0)')
    a.label(end)
    a('s_endpgm')
```

```python
from asmlib import Asm
import layout as L

MF = 'v_mfma_f32_32x32x16_bf16'

def srd(a, base, ka_off, nbytes, add=0):
    a(f's_load_dwordx2 s[{base}:{base+1}], s[0:1], {ka_off}')
    a(f's_mov_b32 s{base+2}, {nbytes}')
    a(f's_mov_b32 s{base+3}, 0x00020000')

class G:
    SA = 4
    SB = 8
    SB2 = 12
    SO = 16
    SX = 20
    sW = 24; sWM = 25; sWN = 26; sAoff = 27; sBoff = 28; sK = 29; sT0 = 30; sT1 = 31; sT2 = 32; sM0 = 33; sN0 = 34; sLdsA = 35; sLdsB = 36; sTile = 37
    vAe = 1; vAo = 2; vB = 3
    vRA = 4
    vRB = 16
    vT = 22
    FA = 32
    FB = 48
    ACC = 64
    STAGE = 32768
    ABYTES = 16384

def setup_lane_consts(a, lda, ldb, splitB=False):
    g = G
    a(f'v_lshrrev_b32 v{g.vT}, 6, v0'); a(f'v_readfirstlane_b32 s{g.sW}, v{g.vT}'); a('v_and_b32 v0, 63, v0')
    a(f's_lshr_b32 s{g.sWM}, s{g.sW}, 1'); a(f's_and_b32 s{g.sWN}, s{g.sW}, 1')
    t = g.vT
    a(f'v_lshrrev_b32 v{t}, 3, v0'); a(f's_mov_b32 s{g.sT0}, {lda}'); a(f'v_mul_lo_u32 v{t}, v{t}, s{g.sT0}')
    a(f'v_and_b32 v{t+1}, 7, v0'); a(f'v_lshrrev_b32 v{t+2}, 4, v0'); a(f'v_xor_b32 v{t+1}, v{t+1}, v{t+2}')
    a(f'v_lshlrev_b32 v{t+2}, 4, v{t+1}'); a(f'v_add_u32 v{g.vAe}, v{t}, v{t+2}')
    a(f'v_xor_b32 v{t+1}, 4, v{t+1}'); a(f'v_lshlrev_b32 v{t+2}, 4, v{t+1}'); a(f'v_add_u32 v{g.vAo}, v{t}, v{t+2}')
    if not splitB:
        a(f'v_lshrrev_b32 v{t}, 4, v0'); a(f's_mov_b32 s{g.sT0}, {ldb}'); a(f'v_mul_lo_u32 v{t+1}, v{t}, s{g.sT0}')
        a(f'v_bfe_u32 v{t+2}, v0, 2, 2'); a(f'v_xor_b32 v{t+2}, v{t+2}, v{t}'); a(f'v_lshlrev_b32 v{t+2}, 6, v{t+2}')
        a(f'v_add_u32 v{t+1}, v{t+1}, v{t+2}'); a(f'v_and_b32 v{t+2}, 3, v0'); a(f'v_lshlrev_b32 v{t+2}, 4, v{t+2}')
        a(f'v_add_u32 v{g.vB}, v{t+1}, v{t+2}')
    else:
        a(f'v_lshrrev_b32 v{t}, 3, v0'); a(f's_mov_b32 s{g.sT0}, {ldb}'); a(f'v_mul_lo_u32 v{t+1}, v{t}, s{g.sT0}')
        a(f'v_bfe_u32 v{t+2}, v0, 2, 1'); a(f'v_bfe_u32 v{t+3}, v0, 4, 1'); a(f'v_xor_b32 v{t+2}, v{t+2}, v{t+3}'); a(f'v_lshlrev_b32 v{t+2}, 6, v{t+2}')
        a(f'v_add_u32 v{t+1}, v{t+1}, v{t+2}'); a(f'v_and_b32 v{t+2}, 3, v0'); a(f'v_lshlrev_b32 v{t+2}, 4, v{t+2}')
        a(f'v_add_u32 v{g.vB}, v{t+1}, v{t+2}')
    a(f'v_and_b32 v{t}, 31, v0'); a(f's_lshl_b32 s{g.sT0}, s{g.sWM}, 6'); a(f'v_add_u32 v{t+1}, s{g.sT0}, v{t}'); a(f'v_lshlrev_b32 v{t+1}, 7, v{t+1}')
    a(f'v_bfe_u32 v{t+2}, v0, 1, 3'); a(f'v_lshrrev_b32 v{t+3}, 5, v0')
    for j in range(4):
        a(f'v_add_u32 v{t+4}, {2*j}, v{t+3}'); a(f'v_xor_b32 v{t+4}, v{t+4}, v{t+2}'); a(f'v_lshlrev_b32 v{t+4}, 4, v{t+4}')
        for st in range(3):
            a(f'v_add_u32 v{t+5}, v{t+1}, v{t+4}')
            a(f'v_add_u32 v{g.vRA + 4*st + j}, {st*g.STAGE}, v{t+5}')
    if not splitB:
        a(f'v_lshrrev_b32 v{t}, 5, v0'); a(f'v_lshlrev_b32 v{t}, 3, v{t}'); a(f'v_bfe_u32 v{t+1}, v0, 2, 2'); a(f'v_add_u32 v{t}, v{t}, v{t+1}')
        a(f'v_lshlrev_b32 v{t}, 8, v{t}')
        a(f'v_bfe_u32 v{t+2}, v0, 4, 1'); a(f'v_lshlrev_b32 v{t+2}, 5, v{t+2}'); a(f'v_add_u32 v{t}, v{t}, v{t+2}')
        a(f'v_and_b32 v{t+2}, 3, v0'); a(f'v_lshlrev_b32 v{t+2}, 3, v{t+2}'); a(f'v_add_u32 v{t}, v{t}, v{t+2}')
        a(f's_lshl_b32 s{g.sT0}, s{g.sWN}, 1')
        for ct in range(2):
            a(f's_add_u32 s{g.sT1}, s{g.sT0}, {ct}')
            a(f'v_xor_b32 v{t+2}, s{g.sT1}, v{t+1}'); a(f'v_lshlrev_b32 v{t+2}, 6, v{t+2}'); a(f'v_add_u32 v{t+2}, v{t}, v{t+2}')
            for st in range(3):
                a(f'v_add_u32 v{g.vRB + 2*st + ct}, {st*g.STAGE + g.ABYTES}, v{t+2}')
    else:
        a(f'v_lshrrev_b32 v{t}, 5, v0'); a(f'v_lshlrev_b32 v{t}, 3, v{t}'); a(f'v_bfe_u32 v{t+1}, v0, 2, 2'); a(f'v_add_u32 v{t}, v{t}, v{t+1}')
        a(f'v_lshlrev_b32 v{t}, 7, v{t}')
        a(f'v_bfe_u32 v{t+2}, v0, 4, 1'); a(f'v_lshlrev_b32 v{t+2}, 5, v{t+2}'); a(f'v_add_u32 v{t}, v{t}, v{t+2}')
        a(f'v_and_b32 v{t+2}, 3, v0'); a(f'v_lshlrev_b32 v{t+2}, 3, v{t+2}'); a(f'v_add_u32 v{t}, v{t}, v{t+2}')
        a(f'v_bfe_u32 v{t+1}, v0, 3, 1'); a(f'v_xor_b32 v{t+1}, s{g.sWN}, v{t+1}'); a(f'v_lshlrev_b32 v{t+1}, 6, v{t+1}'); a(f'v_add_u32 v{t}, v{t}, v{t+1}')
        for ct in range(2):
            for st in range(3):
                a(f'v_add_u32 v{g.vRB + 2*st + ct}, {st*g.STAGE + g.ABYTES + ct*8192}, v{t}')

def dma_ops(kreg_off_A, kreg_off_B, stage, lda, ldb, splitB):
    g = G; ops = []
    for ii in range(4):
        v = g.vAe if ii % 2 == 0 else g.vAo
        ops.append([f's_add_u32 s{g.sT0}, s{g.sAoff}, {ii*8*lda + kreg_off_A}',
                    f's_add_u32 m0, s{g.sLdsA}, {stage*g.STAGE + ii*1024}',
                    f'buffer_load_dwordx4 v{v}, s[{g.SA}:{g.SA+3}], s{g.sT0} offen lds'])
    for ii in range(4):
        if not splitB:
            ops.append([f's_add_u32 s{g.sT0}, s{g.sBoff}, {ii*4*ldb + kreg_off_B}',
                        f's_add_u32 m0, s{g.sLdsB}, {stage*g.STAGE + g.ABYTES + ii*1024}',
                        f'buffer_load_dwordx4 v{g.vB}, s[{g.SB}:{g.SB+3}], s{g.sT0} offen lds'])
        else:
            sr = g.SB if ii < 2 else g.SB2
            ops.append([f's_add_u32 s{g.sT0}, s{g.sBoff}, {(ii&1)*8*ldb + kreg_off_B}',
                        f's_add_u32 m0, s{g.sLdsB}, {stage*g.STAGE + g.ABYTES + (ii>>1)*8192 + (ii&1)*1024}',
                        f'buffer_load_dwordx4 v{g.vB}, s[{sr}:{sr+3}], s{g.sT0} offen lds'])
    return ops

def frag_reads(stage, j, fs):
    g = G; ops = []
    for rt in range(2):
        b = g.FA + fs*8 + rt*4
        ops.append(f'ds_read_b128 v[{b}:{b+3}], v{g.vRA + 4*stage + j} offset:{rt*4096}')
    return ops
def fragB_reads(stage, j, fs, splitB):
    g = G; ops = []
    rs = 128 if splitB else 256
    for ct in range(2):
        b = g.FB + fs*8 + ct*4
        for q in range(2):
            ops.append(f'ds_read_b64_tr_b16 v[{b+2*q}:{b+2*q+1}], v{g.vRB + 2*stage + ct} offset:{(16*j + 4*q)*rs}')
    return ops

def mainloop(a, nk, lda, ldb, orient, splitB=False):
    g = G
    kA = lambda k: k * 128
    kB = lambda k: k * 64 * ldb
    def emit(x):
        for o in x:
            if isinstance(o, list): emit(o)
            else: a(o)
    for k in range(min(2, nk)):
        emit(dma_ops(kA(k), kB(k), k % 3, lda, ldb, splitB))
    for r in range(g.ACC, g.ACC + 64, 2): a(f'v_mov_b64 v[{r}:{r+1}], 0')
    a(f's_waitcnt vmcnt({8 if nk > 1 else 0})')
    a('s_barrier')
    emit(frag_reads(0, 0, 0)); emit(fragB_reads(0, 0, 0, splitB))
    for k in range(nk):
        st = k % 3
        dm = dma_ops(kA(k+2), kB(k+2), (k+2) % 3, lda, ldb, splitB) if k + 2 < nk else []
        for j in range(4):
            fs = j & 1
            nxt = []
            if j < 3:
                nxt = frag_reads(st, j+1, fs ^ 1) + fragB_reads(st, j+1, fs ^ 1, splitB)
            pre = []
            if j == 3 and k + 1 < nk:
                nd = 8 if k + 2 < nk else 0
                pre = [f's_waitcnt vmcnt({nd}) lgkmcnt(0)', 's_barrier']
                nxt = frag_reads((k+1) % 3, 0, fs ^ 1) + fragB_reads((k+1) % 3, 0, fs ^ 1, splitB)
            if not pre: a('s_waitcnt lgkmcnt(0)')
            emit(pre)
            fill = list(nxt)
            if j in (0, 1, 2) and dm:
                take = 3 if j < 2 else 2
                for _ in range(take):
                    if dm: fill.append(dm.pop(0))
            mf = []
            for rt in range(2):
                for ct in range(2):
                    acc = g.ACC + (rt*2 + ct) * 16
                    A = f'v[{g.FA + fs*8 + rt*4}:{g.FA + fs*8 + rt*4 + 3}]'; B = f'v[{g.FB + fs*8 + ct*4}:{g.FB + fs*8 + ct*4 + 3}]'
                    if orient == 'N': mf.append(f'{MF} v[{acc}:{acc+15}], {A}, {B}, v[{acc}:{acc+15}]')
                    else: mf.append(f'{MF} v[{acc}:{acc+15}], {B}, {A}, v[{acc}:{acc+15}]')
            per = (len(fill) + 3) // 4
            for i, m in enumerate(mf):
                a(m)
                emit(fill[i*per:(i+1)*per])
        assert not dm

NST = 8
ASTAGE = 16384
BTMP = 131072
def breg(k, j, ct):
    idx = (k * 4 + j) * 2 + ct
    r = idx * 4
    if r < 256: return ('a', r)
    return ('v', 128 + r - 256)
def rr4(x): return f'{x[0]}[{x[1]}:{x[1]+3}]'

RT = 1
def stat_setup(a, lda, ldb, splitB=False):
    g = G
    a(f'v_lshrrev_b32 v{g.vT}, 6, v0'); a(f'v_readfirstlane_b32 s{g.sW}, v{g.vT}'); a('v_and_b32 v0, 63, v0')
    a(f's_lshr_b32 s{g.sWM}, s{g.sW}, 1'); a(f's_and_b32 s{g.sWN}, s{g.sW}, 1')
    t = g.vT
    a(f'v_lshrrev_b32 v{t}, 3, v0'); a(f's_mov_b32 s{g.sT0}, {lda}'); a(f'v_mul_lo_u32 v{t}, v{t}, s{g.sT0}')
    a(f'v_and_b32 v{t+1}, 7, v0'); a(f'v_lshrrev_b32 v{t+2}, 4, v0'); a(f'v_xor_b32 v{t+1}, v{t+1}, v{t+2}')
    a(f'v_lshlrev_b32 v{t+2}, 4, v{t+1}'); a(f'v_add_u32 v{g.vAe}, v{t}, v{t+2}')
    a(f'v_xor_b32 v{t+1}, 4, v{t+1}'); a(f'v_lshlrev_b32 v{t+2}, 4, v{t+1}'); a(f'v_add_u32 v{g.vAo}, v{t}, v{t+2}')
    if not splitB:
        a(f'v_lshrrev_b32 v{t}, 4, v0'); a(f's_mov_b32 s{g.sT0}, {ldb}'); a(f'v_mul_lo_u32 v{t+1}, v{t}, s{g.sT0}')
        a(f'v_bfe_u32 v{t+2}, v0, 2, 2'); a(f'v_xor_b32 v{t+2}, v{t+2}, v{t}'); a(f'v_lshlrev_b32 v{t+2}, 6, v{t+2}')
        a(f'v_add_u32 v{t+1}, v{t+1}, v{t+2}'); a(f'v_and_b32 v{t+2}, 3, v0'); a(f'v_lshlrev_b32 v{t+2}, 4, v{t+2}')
        a(f'v_add_u32 v{g.vB}, v{t+1}, v{t+2}')
    else:
        a(f'v_lshrrev_b32 v{t}, 3, v0'); a(f's_mov_b32 s{g.sT0}, {ldb}'); a(f'v_mul_lo_u32 v{t+1}, v{t}, s{g.sT0}')
        a(f'v_bfe_u32 v{t+2}, v0, 2, 1'); a(f'v_bfe_u32 v{t+3}, v0, 4, 1'); a(f'v_xor_b32 v{t+2}, v{t+2}, v{t+3}'); a(f'v_lshlrev_b32 v{t+2}, 6, v{t+2}')
        a(f'v_add_u32 v{t+1}, v{t+1}, v{t+2}'); a(f'v_and_b32 v{t+2}, 3, v0'); a(f'v_lshlrev_b32 v{t+2}, 4, v{t+2}')
        a(f'v_add_u32 v{g.vB}, v{t+1}, v{t+2}')
    a(f'v_and_b32 v{t}, 31, v0'); a(f's_lshl_b32 s{g.sT0}, s{g.sWM}, {5 + (RT - 1)}'); a(f'v_add_u32 v{t+1}, s{g.sT0}, v{t}'); a(f'v_lshlrev_b32 v{t+1}, 7, v{t+1}')
    a(f'v_bfe_u32 v{t+2}, v0, 1, 3'); a(f'v_lshrrev_b32 v{t+3}, 5, v0')
    for j in range(4):
        a(f'v_add_u32 v{t+4}, {2*j}, v{t+3}'); a(f'v_xor_b32 v{t+4}, v{t+4}, v{t+2}'); a(f'v_lshlrev_b32 v{t+4}, 4, v{t+4}')
        a(f'v_add_u32 v{g.vRA + j}, v{t+1}, v{t+4}')
        a(f'v_add_u32 v{g.vRA + 4 + j}, 65536, v{g.vRA + j}')
    if not splitB:
        a(f'v_lshrrev_b32 v{t}, 5, v0'); a(f'v_lshlrev_b32 v{t}, 3, v{t}'); a(f'v_bfe_u32 v{t+1}, v0, 2, 2'); a(f'v_add_u32 v{t}, v{t}, v{t+1}')
        a(f'v_lshlrev_b32 v{t}, 8, v{t}')
        a(f'v_bfe_u32 v{t+2}, v0, 4, 1'); a(f'v_lshlrev_b32 v{t+2}, 5, v{t+2}'); a(f'v_add_u32 v{t}, v{t}, v{t+2}')
        a(f'v_and_b32 v{t+2}, 3, v0'); a(f'v_lshlrev_b32 v{t+2}, 3, v{t+2}'); a(f'v_add_u32 v{t}, v{t}, v{t+2}')
        a(f's_lshl_b32 s{g.sT0}, s{g.sWN}, 1')
        for ct in range(2):
            a(f's_add_u32 s{g.sT1}, s{g.sT0}, {ct}')
            a(f'v_xor_b32 v{t+2}, s{g.sT1}, v{t+1}'); a(f'v_lshlrev_b32 v{t+2}, 6, v{t+2}'); a(f'v_add_u32 v{t+2}, v{t}, v{t+2}')
            a(f'v_add_u32 v{g.vRB + ct}, {BTMP}, v{t+2}')
    else:
        a(f'v_lshrrev_b32 v{t}, 5, v0'); a(f'v_lshlrev_b32 v{t}, 3, v{t}'); a(f'v_bfe_u32 v{t+1}, v0, 2, 2'); a(f'v_add_u32 v{t}, v{t}, v{t+1}')
        a(f'v_lshlrev_b32 v{t}, 7, v{t}')
        a(f'v_bfe_u32 v{t+2}, v0, 4, 1'); a(f'v_lshlrev_b32 v{t+2}, 5, v{t+2}'); a(f'v_add_u32 v{t}, v{t}, v{t+2}')
        a(f'v_and_b32 v{t+2}, 3, v0'); a(f'v_lshlrev_b32 v{t+2}, 3, v{t+2}'); a(f'v_add_u32 v{t}, v{t}, v{t+2}')
        a(f'v_bfe_u32 v{t+1}, v0, 3, 1'); a(f'v_xor_b32 v{t+1}, s{g.sWN}, v{t+1}'); a(f'v_lshlrev_b32 v{t+1}, 6, v{t+1}'); a(f'v_add_u32 v{t}, v{t}, v{t+1}')
        for ct in range(2):
            a(f'v_add_u32 v{g.vRB + ct}, {BTMP + ct*8192}, v{t}')
    a(f's_lshl_b32 s{g.sLdsA}, s{g.sW}, {11 + (RT - 1)}')
    a(f's_lshl_b32 s{g.sLdsB}, s{g.sW}, {11 if splitB else 12}'); a(f's_add_u32 s{g.sLdsB}, s{g.sLdsB}, {BTMP}')

def stat_load_B(a, nk, ldb, splitB=False):
    g = G
    def issue(k):
        st = (k & 1) * 16384
        for ii in range(4):
            if not splitB:
                a(f's_add_u32 s{g.sT0}, s{g.sBoff}, {ii*4*ldb + k*64*ldb}'); a(f's_add_u32 m0, s{g.sLdsB}, {st + ii*1024}')
                a(f'buffer_load_dwordx4 v{g.vB}, s[{g.SB}:{g.SB+3}], s{g.sT0} offen lds')
            else:
                sr = g.SB if ii < 2 else g.SB2
                a(f's_add_u32 s{g.sT0}, s{g.sBoff}, {(ii&1)*8*ldb + k*64*ldb}'); a(f's_add_u32 m0, s{g.sLdsB}, {st + (ii>>1)*8192 + (ii&1)*1024}')
                a(f'buffer_load_dwordx4 v{g.vB}, s[{sr}:{sr+3}], s{g.sT0} offen lds')
    rs = 128 if splitB else 256
    issue(0)
    for k in range(nk):
        if k + 1 < nk:
            a('s_barrier')
            issue(k + 1)
            a('s_waitcnt vmcnt(4)')
        else:
            a('s_waitcnt vmcnt(0)')
        a('s_barrier')
        st = (k & 1) * 16384
        for j in range(4):
            for ct in range(2):
                d = breg(k, j, ct)
                for q in range(2):
                    a(f'ds_read_b64_tr_b16 {d[0]}[{d[1]+2*q}:{d[1]+2*q+1}], v{g.vRB + ct} offset:{st + (16*j + 4*q)*rs}')
        a('s_waitcnt lgkmcnt(0)')

def stat_nst(): return 10 if RT == 1 else NST
def stat_astage(): return 8192 * RT
def stat_issue_A(a, k, lda):
    g = G; st = k % stat_nst()
    for ii in range(2 * RT):
        v = g.vAe if ii % 2 == 0 else g.vAo
        a(f's_add_u32 s{g.sT0}, s{g.sAoff}, {ii*8*lda + k*128}')
        a(f's_add_u32 m0, s{g.sLdsA}, {st*stat_astage() + ii*1024}')
        a(f'buffer_load_dwordx4 v{v}, s[{g.SA}:{g.SA+3}], s{g.sT0} offen lds')

def stat_mainloop(a, nk, lda, orient='T'):
    g = G
    NS = stat_nst(); AS = stat_astage(); ND = 2 * RT
    def emit(x):
        for o in x:
            if isinstance(o, list): emit(o)
            else: a(o)
    npre = min(NS, nk)
    for k in range(npre): stat_issue_A(a, k, lda)
    for r in range(g.ACC, g.ACC + 32 * RT, 2): a(f'v_mov_b64 v[{r}:{r+1}], 0')
    def areads(k, j, fs):
        off = (k % NS) * AS
        base = g.vRA + (4 if off >= 65536 else 0) + j
        return [f'ds_read_b128 v[{g.FA + fs*8 + rt*4}:{g.FA + fs*8 + rt*4 + 3}], v{base} offset:{(off & 65535) + rt*4096}' for rt in range(RT)]
    issued = npre
    def wait_stage(k):
        outstanding_after = (issued - (k + 1)) * ND
        a(f's_waitcnt vmcnt({min(63, outstanding_after)}) lgkmcnt(0)')
        a('s_barrier')
    wait_stage(0)
    emit(areads(0, 0, 0))
    for k in range(nk):
        for j in range(4):
            fs = j & 1
            nxt = []
            if j < 3:
                a('s_waitcnt lgkmcnt(0)')
                nxt = areads(k, j+1, fs ^ 1)
            elif k + 1 < nk:
                wait_stage(k + 1)
                nxt = areads(k+1, 0, fs ^ 1)
            else:
                a('s_waitcnt lgkmcnt(0)')
            mf = []
            for rt in range(RT):
                for ct in range(2):
                    acc = g.ACC + (rt*2 + ct) * 16
                    A = f'v[{g.FA + fs*8 + rt*4}:{g.FA + fs*8 + rt*4 + 3}]'; B = rr4(breg(k, j, ct))
                    if orient == 'N': mf.append(f'{MF} v[{acc}:{acc+15}], {A}, {B}, v[{acc}:{acc+15}]')
                    else: mf.append(f'{MF} v[{acc}:{acc+15}], {B}, {A}, v[{acc}:{acc+15}]')
            fill = list(nxt)
            emit(fill[:1])
            for i, m in enumerate(mf):
                a(m)
                if i + 1 < len(fill): emit([fill[i + 1]])
            if j == 3 and k + 1 < nk and issued < nk and (issued % NS) == (k % NS):
                stat_issue_A(a, issued, lda); issued += 1
```

```python
from asmlib import Asm
import layout as L
import struct

KVB = 0
AFR = 32768
QKX = 45056
OFR = 53248
SEL = 55296
WL  = 65536
GSLEEP = int(__import__('os').environ.get('GSLEEP', 4))
LDS_BYTES = 163840
SPIN_MAX = 1 << 22
OSLEEP = int(__import__('os').environ.get('OSLEEP', 4))
HSLEEP = int(__import__('os').environ.get('HSLEEP', 24))
TRACE = L.TRACE
COARSE = True

S_WS = 4; S_T0 = 8; S_DBG = 12; S_T1 = 20; S_T2 = 24
sH = 16; sW = 17; sS = 18; sSpin = 19
sRdy = 39; sKVr = 32; sP1c = 33; sP1b = 34; sKVw = 35; sPubF = 36; sPubX = 37; sOwnO = 38
sMaskH = 40; sMaskLo = 42; sC = 44
sP1w = 45; sP1r = 46; sMr = 47; sMw = 48; sMz = 49; sTmp = 50; sTmp2 = 51; sTmp3 = 52; sOwn = 53; sKV = 54; sVMo = 55; sKMo = 56
sM2 = 57; sKsrc = 58; sVsrc = 59; sFast = 60; sThr = 61
sT = 64
W = f's[{S_WS}:{S_WS+3}]'
MH = f's[{sMaskH}:{sMaskH+1}]'; ML = f's[{sMaskLo}:{sMaskLo+1}]'
SM = 'v_smfmac_f32_16x16x64_bf16'
MF32 = 'v_mfma_f32_16x16x32_bf16'
MF16 = 'v_mfma_f32_16x16x16_bf16'

def f32bits(x): return struct.unpack('<I', struct.pack('<f', x))[0]
C_SCALE = (128 ** -0.5) * 1.4426950408889634

def srd(a, base, ka_off, nbytes):
    a(f's_load_dwordx2 s[{base}:{base+1}], s[0:1], {ka_off}')
    a(f's_mov_b32 s{base+2}, {nbytes}')
    a(f's_mov_b32 s{base+3}, 0x00020000')

def emit(a, ops):
    for x in ops:
        if isinstance(x, (list, tuple)): emit(a, x)
        else: a(x)

def load_chunks(a, chunks, vaddr, nslots=10):
    N = len(chunks); DEPTH = nslots - 1
    def issue(c):
        ch = chunks[c]; slot = (c % nslots) * 16384
        a(f's_mul_i32 s{sTmp}, s{sW}, {ch["istep"]*4}')
        a(f's_add_u32 s{sTmp}, s{sTmp}, s{ch["sbase"]}')
        a(f's_lshl_b32 s{sTmp2}, s{sW}, 12')
        for j in range(4):
            a(f's_add_u32 s{sTmp3}, s{sTmp}, {ch["soff"] + j*ch["istep"]}')
            a(f's_add_u32 m0, s{sTmp2}, {slot + j*1024}')
            a(f'buffer_load_dwordx4 v{ch["vofs"]}, s[{ch["srd"]}:{ch["srd"]+3}], s{sTmp3} offen lds')
    for c in range(min(DEPTH, N)): issue(c)
    for c in range(N):
        ch = chunks[c]; slot = (c % nslots) * 16384
        inflight = min(N, c + DEPTH) - (c + 1)
        a(f's_waitcnt vmcnt({4*inflight})')
        a('s_barrier')
        if c + DEPTH < N: issue(c + DEPTH)
        a(f'v_add_u32 v{vaddr}, {slot}, v{ch["vtr"]}')
        for o in range(2):
            dest = ch['dests'][o]
            kind, base = dest[0], int(dest[1:])
            for rho in range(4):
                imm = ch['rows'][rho] * 256 + ch['tcol'][o]
                a(f'ds_read_b64_tr_b16 {kind}[{base+2*rho}:{base+2*rho+1}], v{vaddr} offset:{imm}')
        a('s_waitcnt lgkmcnt(0)')

def spin_check(a, lbl_fail):
    a(f's_add_u32 s{sSpin}, s{sSpin}, 1')
    a(f's_cmp_gt_u32 s{sSpin}, {SPIN_MAX}')
    a(f's_cbranch_scc1 {lbl_fail}')

def maxchain(a, dst, regs, op='u32'):
    regs = list(regs)
    a(f'v_max3_{op} v{dst}, v{regs[0]}, v{regs[1]}, v{regs[2]}')
    regs = regs[3:]
    while len(regs) >= 2:
        a(f'v_max3_{op} v{dst}, v{dst}, v{regs[0]}, v{regs[1]}'); regs = regs[2:]
    if regs:
        a(f'v_max_{op} v{dst}, v{dst}, v{regs[0]}')

def gather_pre(a, sOffReg):
    a(f's_sub_u32 s{sTmp}, s{sW}, 2')
    a(f's_mul_i32 s{sTmp}, s{sTmp}, 5120')
    a(f's_add_u32 s{sTmp}, s{sTmp}, s{sOffReg}')
    a(f's_add_u32 s{sTmp2}, s{sTmp}, 4096')

def gather(a, fail, st=None, fl='sc1'):
    fine = st is not None and 'fine' in __import__('os').environ.get('EXP', '')
    lp = a.newlabel('g5')
    a.label(lp)
    for i in range(4):
        a(f'buffer_load_dwordx4 v[{72+4*i}:{75+4*i}], v2, {W}, s{sTmp} offen offset:{i*1024} {fl}')
    a(f'buffer_load_dwordx4 v[88:91], v2, {W}, s{sTmp2} offen {fl}')
    spin_check(a, fail)
    if fine: st(a, 1)
    for i in range(5):
        a(f's_waitcnt vmcnt({4-i})')
        if fine and i == 0: st(a, 2)
        if fine and i == 4: st(a, 3)
        a(f'ds_write_b128 v3, v[{72+4*i}:{75+4*i}] offset:{i*1024}')
        if i == 0:
            a(f'v_max3_u32 v92, v72, v73, v74'); a(f'v_max_u32 v92, v92, v75')
        else:
            a(f'v_max3_u32 v92, v92, v{72+4*i}, v{73+4*i}'); a(f'v_max3_u32 v92, v92, v{74+4*i}, v{75+4*i}')
    if fine: a(f's_add_u32 s{sT+4}, s{sT+4}, 63')
    a('v_cmp_eq_u32 vcc, -1, v92')
    a(f's_cbranch_vccnz {lp}')

def gather2(a, fail, fl='sc1', stag=2, res=None):
    def issue(b):
        for i in range(4):
            a(f'buffer_load_dwordx4 v[{b+4*i}:{b+3+4*i}], v2, {W}, s{sTmp} offen offset:{i*1024} {fl}')
        a(f'buffer_load_dwordx4 v[{b+16}:{b+19}], v2, {W}, s{sTmp2} offen {fl}')
    def consume(b, younger):
        for i in range(5):
            a(f's_waitcnt vmcnt({4-i+younger})')
            a(f'ds_write_b128 v3, v[{b+4*i}:{b+3+4*i}] offset:{i*1024}')
            if i == 0:
                a(f'v_max3_u32 v92, v{b}, v{b+1}, v{b+2}'); a(f'v_max_u32 v92, v92, v{b+3}')
            else:
                a(f'v_max3_u32 v92, v92, v{b+4*i}, v{b+1+4*i}'); a(f'v_max3_u32 v92, v92, v{b+2+4*i}, v{b+3+4*i}')
        a('v_cmp_eq_u32 vcc, -1, v92')
    lp = a.newlabel('g2'); done = a.newlabel('g2d')
    if res is not None: a(f's_mov_b32 s{res}, 0')
    issue(72)
    a(f's_sleep {stag}')
    a.label(lp)
    issue(40)
    spin_check(a, fail)
    consume(72, 5)
    a(f's_cbranch_vccz {done}')
    if res is not None: a(f's_add_u32 s{res}, s{res}, 1')
    issue(72)
    consume(40, 5)
    a(f's_cbranch_vccz {done}')
    if res is not None: a(f's_add_u32 s{res}, s{res}, 1')
    a(f's_branch {lp}')
    a.label(done)

def mem0_load(a, base):
    srd(a, S_T0 + 92 - 8, L.KA['mem0'], 10240) if False else None
def mem0_frags(a, phase=None):
    R = 40 if phase is None else 116
    if phase in (None, 'load'):
        sr = S_T0 if phase is None else 84
        srd(a, sr, L.KA['mem0'], 10240)
        a('v_bfe_u32 v36, v0, 2, 2'); a('v_lshlrev_b32 v36, 1, v36'); a('v_and_b32 v37, 1, v0'); a('v_add_u32 v36, v36, v37')
        a('v_mul_u32_u24 v36, 1280, v36')
        a('v_lshrrev_b32 v37, 4, v0'); a('v_lshlrev_b32 v37, 5, v37'); a('v_add_u32 v36, v36, v37')
        a('v_bfe_u32 v37, v0, 1, 1'); a('v_lshlrev_b32 v37, 2, v37'); a('v_add_u32 v36, v36, v37')
        a(f's_lshl_b32 s{sTmp}, s{sW}, 7')
        a('s_waitcnt lgkmcnt(0)')
        for t in range(3):
            a(f's_add_u32 s{sTmp2}, s{sTmp}, {t*512}')
            for j in range(4):
                a(f'buffer_load_dword v{R+4*t+j}, v36, s[{sr}:{sr+3}], s{sTmp2} offen offset:{8*j}')
        a('s_waitcnt vmcnt(0)')
    if phase in (None, 'write'):
        a(f's_lshl_b32 s{sTmp3}, s{sW}, 10')
        a(f'v_add_u32 v38, s{sTmp3}, v4')
        for t in range(3):
            a(f'ds_write_b128 v38, v[{R+4*t}:{R+3+4*t}] offset:{t*4096}')
        a('s_waitcnt lgkmcnt(0)')

class Stamps:
    sel = 0; trace = False; tstep = 20
    def __init__(self, on): self.on = on
    def val(self, a, i, sreg):
        if not (self.on and self.trace): return
        lb = a.newlabel('tv')
        a(f's_cmp_lg_u32 s{sS}, {self.tstep + 1}'); a(f's_cbranch_scc1 {lb}')
        a(f's_mov_b32 s{sT+i}, s{sreg}')
        a.label(lb)
    def __call__(self, a, i):
        if not self.on: return
        if self.trace:
            a(f's_memrealtime s[{sT+14}:{sT+15}]')
            a('s_waitcnt lgkmcnt(0)')
            lb = a.newlabel('tr')
            a(f's_cmp_lg_u32 s{sS}, {self.tstep + (1 if (i in (10, 11) and not getattr(self, "helper", False)) else 0)}'); a(f's_cbranch_scc1 {lb}')
            a(f's_mov_b32 s{sT+i}, s{sT+14}')
            a.label(lb)
            return
        a(f's_memtime s[{sT+14}:{sT+15}]')
        a('s_waitcnt lgkmcnt(0)')
        a(f's_sub_u32 s{sT+12}, s{sT+14}, s{sT+13}')
        a(f's_add_u32 s{sT+i}, s{sT+i}, s{sT+12}')
        a(f's_mov_b32 s{sT+13}, s{sT+14}')
    def dump(self, a, off):
        if not self.on: return
        if self.trace:
            a(f's_lshl_b32 s{sTmp}, s{sH}, 2'); a(f's_or_b32 s{sTmp}, s{sTmp}, s{sW}'); a(f's_lshl_b32 s{sTmp}, s{sTmp}, 6')
            a(f's_add_u32 s{sTmp}, s{sTmp}, {TRACE + off}')
            a('v_mov_b32 v36, 0')
            for i in range(12):
                a(f'v_mov_b32 v37, s{sT+i}')
                a(f'buffer_store_dword v37, v36, {W}, s{sTmp} offen offset:{4*i}')
            a('s_waitcnt vmcnt(0)')
        elif off == 0:
            sk = a.newlabel('tsk')
            a(f's_lshl_b32 s{sTmp}, s{sH}, 2'); a(f's_or_b32 s{sTmp}, s{sTmp}, s{sW}')
            a(f's_cmp_lg_u32 s{sTmp}, {self.sel}'); a(f's_cbranch_scc1 {sk}')
            a('v_mov_b32 v36, 0')
            for i in range(12):
                a(f'v_mov_b32 v37, s{sT+i}')
                a(f'buffer_store_dword v37, v36, s[{S_DBG}:{S_DBG+3}], 0 offen offset:{64+4*i}')
            a('s_waitcnt vmcnt(0)')
            a.label(sk)

def trbase(a, dst, wo):
    a('v_lshrrev_b32 v36, 4, v0'); a('v_bfe_u32 v37, v0, 2, 2')
    if not wo:
        a('v_lshlrev_b32 v38, 3, v36')
    else:
        a('v_and_b32 v38, 1, v36'); a('v_lshlrev_b32 v38, 5, v38')
        a('v_lshrrev_b32 v39, 1, v36'); a('v_lshlrev_b32 v39, 2, v39'); a('v_add_u32 v38, v38, v39')
    a('v_add_u32 v38, v38, v37'); a('v_lshlrev_b32 v38, 8, v38')
    a('v_and_b32 v39, 3, v0'); a('v_lshlrev_b32 v39, 3, v39')
    a(f'v_add_u32 v{dst}, v38, v39')
    a(f's_lshl_b32 s{sTmp}, s{sW}, {5 if wo else 6}')
    a(f'v_add_u32 v{dst}, s{sTmp}, v{dst}')

def xcc_or(a):
    skip = a.newlabel('xo')
    a(f's_cmp_lg_u32 s{sW}, 0'); a(f's_cbranch_scc1 {skip}')
    a('s_mov_b64 s[62:63], exec'); a('s_mov_b64 exec, 1')
    a('v_mov_b32 v36, 0')
    a(f's_getreg_b32 s{sTmp}, hwreg(HW_REG_XCC_ID)')
    a(f's_and_b32 s{sTmp}, s{sTmp}, 15'); a(f's_lshl_b32 s{sTmp}, 1, s{sTmp}')
    a(f'v_mov_b32 v37, s{sTmp}')
    a(f'buffer_atomic_or v37, v36, s[{S_DBG}:{S_DBG+3}], 0 offen offset:4')
    a('s_waitcnt vmcnt(0)')
    if FUSED:
        a('v_mov_b32 v37, 1')
        a(f'buffer_atomic_add v37, v36, s[{S_DBG}:{S_DBG+3}], 0 offen')
        a('s_waitcnt vmcnt(0)')
    a('s_mov_b64 exec, s[62:63]')
    a.label(skip)

def rendezvous(a, is_main, fail):
    a('s_waitcnt vmcnt(0)')
    a('s_barrier')
    skip = a.newlabel('rz'); lp = a.newlabel('rzp')
    a(f's_cmp_lg_u32 s{sW}, 0'); a(f's_cbranch_scc1 {skip}')
    a('s_mov_b64 s[62:63], exec'); a('s_mov_b64 exec, 1')
    a('v_mov_b32 v36, 0'); a('v_mov_b32 v37, 1')
    if not (FUSED and is_main):
        a(f'buffer_atomic_add v37, v36, s[{S_DBG}:{S_DBG+3}], 0 offen')
    a.label(lp)
    a(f'buffer_load_dwordx2 v[38:39], v36, s[{S_DBG}:{S_DBG+3}], 0 offen sc1')
    a(f'buffer_load_dword v40, v36, s[{S_DBG}:{S_DBG+3}], 0 offen offset:16 sc1')
    spin_check(a, fail)
    a('s_waitcnt vmcnt(0)')
    a(f'v_readfirstlane_b32 s{sTmp}, v38'); a(f'v_readfirstlane_b32 s{sTmp2}, v40')
    a(f's_cmp_lt_u32 s{sTmp}, 64'); a(f's_cbranch_scc1 {lp}')
    if FUSED:
        a(f's_cmp_lt_u32 s{sTmp2}, 64'); a(f's_cbranch_scc1 {lp}')
    a(f'v_mov_b32 v36, {QKX}')
    a('ds_write_b32 v36, v39')
    a('s_waitcnt lgkmcnt(0)')
    a('s_mov_b64 exec, s[62:63]')
    a.label(skip)
    a('s_barrier')
    a(f'v_mov_b32 v36, {QKX}')
    a('ds_read_b32 v39, v36')
    a('s_waitcnt lgkmcnt(0)')
    a(f'v_readfirstlane_b32 s{sTmp}, v39')
    a(f's_bcnt1_i32_b32 s{sTmp}, s{sTmp}')
    a(f's_cmp_eq_u32 s{sTmp}, 1')
    a(f's_cselect_b32 s{sFast}, 1, 0')

FUSED = False
def emit_chain_body(a, fail, end, st=None):
    st = st or Stamps(False)
    srd(a, S_WS, L.KA['ws'], L.WS_BYTES)
    srd(a, S_DBG, L.KA['dbg'], 256)
    if COARSE: a('s_memrealtime s[96:97]')
    a(f'v_lshrrev_b32 v1, 6, v0'); a(f'v_readfirstlane_b32 s{sW}, v1'); a(f'v_and_b32 v0, 63, v0')
    a(f's_mov_b32 s{sMaskH}, 0xCCCCCCCC'); a(f's_mov_b32 s{sMaskH+1}, 0xCCCCCCCC')
    a(f's_mov_b32 s{sMaskLo}, -1'); a(f's_mov_b32 s{sMaskLo+1}, 0')
    a(f'v_mov_b32 v1, 0x4444'); a(f'v_mov_b32 v2, 0xEEEE')
    a(f'v_cndmask_b32 v1, v1, v2, {MH}')
    a(f'v_lshlrev_b32 v2, 4, v0')
    a(f's_mov_b32 s{sC}, {hex(f32bits(C_SCALE))}')
    a(f's_mov_b32 s{sThr}, {hex(f32bits(60.0))}')
    a(f's_mov_b32 s{sSpin}, 0')
    for i in range(14): a(f's_mov_b32 s{sT+i}, 0')
    a(f'v_add_u32 v4, {AFR}, v2')
    a('s_waitcnt lgkmcnt(0)')
    a('s_cmp_eq_u32 s3, 1'); a(f's_cbranch_scc1 chain_helper')
    emit_main(a, st, fail, end)
    emit_helper(a, st, fail, end)

def decode_role(a, worker_label):
    a('s_and_b32 s3, s2, 7')
    a(f's_lshr_b32 s{sH}, s2, 3')
    a(f's_mul_i32 s60, s{sH}, 6'); a('s_add_u32 s60, s60, s3'); a('s_sub_u32 s60, s60, 2')
    a('s_cmp_gt_u32 s3, 1'); a(f's_cbranch_scc1 {worker_label}')

def emit_chain(a, timing=False, kname='chain_kernel'):
    fail = 'chain_fail'; end = 'chain_end'
    st = Stamps(timing)
    a.label(kname)
    a(f's_cmp_ge_u32 s2, 256'); a(f's_cbranch_scc1 {end}')
    decode_role(a, end)
    emit_chain_body(a, fail, end, st)
    a.label(fail)
    a('v_mov_b32 v1, 0xdead'); a('v_mov_b32 v2, 252')
    a(f'buffer_store_dword v1, v2, s[{S_DBG}:{S_DBG+3}], 0 offen')
    a('s_waitcnt vmcnt(0)')
    a.label(end)
    a('s_endpgm')

def qk_home(m, t, kb):
    idx = m * 20 + kb * 2 + t
    if idx < 32: return ('a', idx * 8)
    return ('v', 128 + (idx - 32) * 8)
def rr(home, n=8): return f'{home[0]}[{home[1]}:{home[1]+n-1}]'
def wo_pair(cg, eb):
    if eb == 0 and cg < 4: return None
    if cg < 4: return cg
    return 4 + eb

def interleave(a, mf, fill, start=0, per=1):
    fi = 0
    for i, m in enumerate(mf):
        emit(a, m if isinstance(m, list) else [m])
        if i >= start:
            for _ in range(per):
                if fi < len(fill):
                    g = fill[fi]; fi += 1
                    emit(a, g if isinstance(g, list) else [g])
    while fi < len(fill):
        g = fill[fi]; fi += 1
        emit(a, g if isinstance(g, list) else [g])

def half_add_ops(ra, rb):
    return [f'v_permlane32_swap_b32 v{ra+r}, v{rb+r}' for r in range(4)] + [f'v_add_f32 v{ra+r}, v{ra+r}, v{rb+r}' for r in range(4)]


import os
EXP = os.environ.get('EXP', '')
sTch = 30
sTag = 49; sFlip = 34; sFlipO = 34; sMf = 33; sHs = 36; sHs0 = 37; sHs1 = 38
ADAPT = os.environ.get('ADAPT', '1') == '1'
ADUP = int(os.environ.get('ADUP', 12))
HAB = int(os.environ.get('HAB', 0))
HDN = int(os.environ.get('HDN', 2))
sOwnP = 31
def zero(lo, hi): return [f'v_mov_b64 v[{r}:{r+1}], 0' for r in range(lo, hi, 2)]

def dma_w(a):
    a(f's_mov_b32 m0, s{sKVw}')
    a(f'buffer_load_dwordx4 v10, {W}, s{sKsrc} offen lds')
    a(f'buffer_load_dwordx4 v13, {W}, s{sKsrc} offen offset:1024 lds')
    a(f's_add_u32 m0, s{sKVw}, 8192')
    a(f'buffer_load_dwordx4 v2, {W}, s{sVsrc} offen lds')
    a(f'buffer_load_dwordx4 v2, {W}, s{sVsrc} offen offset:1024 lds')

def km_ops(land):
    return [f's_lshl_b32 s{sTmp3}, s{sW}, 10', f'v_add_u32 v{land+4}, s{sTmp3}, v6',
            f'ds_read_b64_tr_b16 v[{land}:{land+1}], v{land+4} offset:4096', f'ds_read_b64_tr_b16 v[{land+2}:{land+3}], v{land+4} offset:{4096+128}',
            's_waitcnt lgkmcnt(0)',
            f'buffer_store_dwordx4 v[{land}:{land+3}], v2, {W}, s{sKMo} offen sc1',
            f's_add_u32 s{sKMo}, s{sKMo}, {32*4096}']

def advance(a):
    if FUSED:
        a(f'v_readfirstlane_b32 s{sRdy}, v12'); a('v_mov_b32 v12, -1')
    a(f's_add_u32 s{sKsrc}, s{sKsrc}, {32*8192}'); a(f's_add_u32 s{sVsrc}, s{sVsrc}, {32*8192}');
    a(f's_xor_b32 s{sKVw}, s{sKVw}, 16384')
    a('v_xor_b32 v14, 16384, v14')
    a(f's_add_u32 s{sS}, s{sS}, 1')
    a(f's_add_u32 s{sVMo}, s{sVMo}, {32*2048}'); a(f's_add_u32 s{sKMo}, s{sKMo}, {32*4096}')
    a(f's_mov_b32 s{sTmp3}, s{sP1w}'); a(f's_mov_b32 s{sP1w}, s{sP1r}'); a(f's_mov_b32 s{sP1r}, s{sTmp3}')
    a(f's_add_u32 s{sMw}, s{sMw}, {L.MEMSZ}'); a(f's_xor_b32 s{sMf}, s{sMf}, {L.MEMSZ}')
    a(f's_bfe_u32 s{sTag}, s{sS}, {(1 << 16) | 1}'); a(f's_xor_b32 s{sFlip}, s{sTag}, 1')

def emit_main(a, st, fail, end):
    a.comment('======== MAIN ========')
    srd(a, S_T0, L.KA['Wq'], 640*4096*2)
    srd(a, S_T1, L.KA['Wk'], 640*4096*2)
    srd(a, S_T2, L.KA['Wo'], 640*4096*2)
    xcc_or(a)
    mem0_frags(a, 'load')
    a('v_lshrrev_b32 v36, 4, v0'); a('v_and_b32 v37, 15, v0'); a('v_lshlrev_b32 v37, 4, v37')
    a('v_lshlrev_b32 v10, 13, v36'); a('v_add_u32 v10, v10, v37')
    a('v_mul_u32_u24 v11, 1280, v36'); a('v_add_u32 v11, v11, v37')
    trbase(a, 12, False)
    trbase(a, 13, True)
    a(f's_lshl_b32 s28, s{sH}, 8')
    a(f's_mul_i32 s29, s{sH}, {128*1280}')
    a('s_waitcnt lgkmcnt(0)')
    chunks = []
    for m, s_ in ((0, S_T0), (1, S_T1)):
        for kb in range(10):
            d = [qk_home(m, t, kb) for t in range(2)]
            chunks.append(dict(srd=s_, vofs=10, sbase=28, soff=64*kb*8192, istep=4*8192, vtr=12, rows=[0, 4, 32, 36], tcol=[0, 32],
                               dests=[f'{x[0]}{x[1]}' for x in d]))
    for eb in range(2):
        for cg in range(5):
            p = wo_pair(cg, eb)
            d = [f'v{192 + (cg*2+t)*8}' if p is None else f'v{20 + (p*2+t)*8}' for t in range(2)]
            chunks.append(dict(srd=S_T2, vofs=11, sbase=29, soff=64*eb*1280 + cg*256, istep=4*1280, vtr=13, rows=[0, 16, 8, 24], tcol=[0, 128], dests=d))
    load_chunks(a, chunks, 14)
    if COARSE: a('s_memrealtime s[90:91]')
    a('s_barrier')
    a(f's_mul_i32 s{sTmp}, s{sW}, {12*2048}'); a(f's_add_u32 s{sTmp}, s{sTmp}, {WL}')
    a(f'v_add_u32 v15, s{sTmp}, v2')
    for i in range(12):
        a(f'ds_write_b128 v15, v[{20+8*i}:{23+8*i}] offset:{i*2048}')
        a(f'ds_write_b128 v15, v[{24+8*i}:{27+8*i}] offset:{i*2048+1024}')
    a('s_waitcnt lgkmcnt(0)')
    mem0_frags(a, 'write')
    a(f's_sub_u32 s{sTmp}, s{sW}, 2'); a(f's_mul_i32 s{sTmp}, s{sTmp}, 5120'); a(f'v_add_u32 v3, s{sTmp}, v4')
    a('v_and_b32 v36, 15, v0'); a('v_lshlrev_b32 v36, 5, v36'); a('v_lshrrev_b32 v37, 4, v0'); a('v_lshlrev_b32 v37, 3, v37'); a('v_add_u32 v36, v36, v37')
    a(f's_lshl_b32 s{sTmp}, s{sW}, 10'); a(f's_add_u32 s{sTmp}, s{sTmp}, {QKX}'); a(f'v_add_u32 v5, s{sTmp}, v36')
    a('v_lshrrev_b32 v36, 4, v0'); a('v_lshlrev_b32 v36, 3, v36'); a('v_bfe_u32 v37, v0, 2, 2'); a('v_add_u32 v36, v36, v37')
    a('v_lshlrev_b32 v36, 5, v36'); a('v_and_b32 v37, 3, v0'); a('v_lshlrev_b32 v37, 3, v37'); a('v_add_u32 v36, v36, v37')
    a(f'v_add_u32 v6, {QKX}, v36')
    a('v_lshrrev_b32 v36, 4, v0'); a('v_lshlrev_b32 v36, 13, v36'); a('v_and_b32 v37, 15, v0'); a('v_lshlrev_b32 v37, 4, v37'); a('v_add_u32 v7, v36, v37')
    a('v_bfe_u32 v36, v0, 2, 2'); a('v_lshlrev_b32 v36, 10, v36'); a('v_and_b32 v37, 3, v0'); a('v_lshlrev_b32 v37, 4, v37'); a('v_add_u32 v36, v36, v37')
    a('v_lshrrev_b32 v37, 4, v0'); a('v_lshlrev_b32 v37, 2, v37'); a('v_add_u32 v8, v36, v37')
    a('v_lshlrev_b32 v9, 3, v0')
    a(f's_lshr_b32 s{sTmp}, s{sW}, 1'); a(f's_lshl_b32 s{sTmp}, s{sTmp}, 10'); a(f's_and_b32 s{sTmp2}, s{sW}, 1'); a(f's_lshl_b32 s{sTmp2}, s{sTmp2}, 3')
    a(f's_add_u32 s{sTmp}, s{sTmp}, s{sTmp2}'); a(f's_add_u32 s{sTmp}, s{sTmp}, {OFR}'); a(f'v_add_u32 v11, s{sTmp}, v2')
    a('v_bfe_u32 v36, v0, 2, 1'); a('v_lshlrev_b32 v36, 4, v36'); a('v_bfe_u32 v37, v0, 3, 1'); a('v_lshlrev_b32 v37, 2, v37')
    a('v_add_u32 v36, v36, v37'); a('v_and_b32 v37, 3, v0'); a('v_add_u32 v36, v36, v37'); a('v_lshlrev_b32 v36, 13, v36')
    a('v_lshrrev_b32 v37, 4, v0'); a('v_lshlrev_b32 v37, 4, v37'); a('v_add_u32 v10, v36, v37')
    a('v_mov_b32 v12, -1')
    a('v_bfe_u32 v36, v0, 2, 2'); a('v_lshlrev_b32 v36, 1, v36'); a('v_and_b32 v37, 1, v0'); a('v_add_u32 v36, v36, v37')
    for q in range(4):
        a(f'v_mov_b32 v{16+q}, 0'); a(f'v_mov_b32 v37, 0x3F80')
        a(f'v_cmp_eq_u32 vcc, {2*q}, v36'); a(f'v_cndmask_b32 v{16+q}, v{16+q}, v37, vcc')
        a(f'v_mov_b32 v37, 0x3F800000')
        a(f'v_cmp_eq_u32 vcc, {2*q+1}, v36'); a(f'v_cndmask_b32 v{16+q}, v{16+q}, v37, vcc')
    a(f'v_add_u32 v13, {SEL}, v2')
    a('ds_write_b128 v13, v[16:19]')
    a('s_waitcnt lgkmcnt(0)')
    for q in range(4): a(f'v_mov_b32 v{16+q}, 0x3F803F80')
    a(f'v_add_u32 v14, {KVB}, v2')
    a('v_mov_b32 v121, 0'); a('v_mov_b32 v122, 0'); a(f'v_mov_b32 v124, s{sC}')
    a(f's_mov_b32 s{sOwn}, -1')
    a(f's_cmp_eq_u32 s{sW}, 0'); a(f's_cselect_b32 s{sOwn}, s{sH}, s{sOwn}')
    a(f's_add_u32 s{sTmp}, s{sH}, 32'); a(f's_cmp_lt_u32 s{sTmp}, 48'); a(f's_cselect_b32 s{sTmp}, s{sTmp}, -1')
    a(f's_cmp_eq_u32 s{sW}, 1'); a(f's_cselect_b32 s{sOwn}, s{sTmp}, s{sOwn}')
    a(f's_lshr_b32 s{sTmp}, s{sOwn}, 2'); a(f's_and_b32 s{sTmp}, s{sTmp}, 15'); a(f's_mul_i32 s{sTmp2}, s{sTmp}, 11'); a(f's_lshr_b32 s{sTmp2}, s{sTmp2}, 5')
    a(f's_mul_i32 s{sTmp3}, s{sTmp2}, 3'); a(f's_sub_u32 s{sTmp3}, s{sTmp}, s{sTmp3}')
    a(f's_lshl_b32 s{sOwnP}, s{sTmp3}, 12'); a(f's_lshl_b32 s{sTmp2}, s{sTmp2}, 8'); a(f's_add_u32 s{sOwnP}, s{sOwnP}, s{sTmp2}')
    a(f's_and_b32 s{sTmp}, s{sOwn}, 3'); a(f's_lshl_b32 s{sTmp}, s{sTmp}, 6'); a(f's_add_u32 s{sOwnP}, s{sOwnP}, s{sTmp}')
    a(f's_cmp_eq_u32 s{sOwn}, -1'); a(f's_cselect_b32 s{sOwnP}, 24576, s{sOwnP}')
    a(f's_mul_i32 s{sP1w}, s{sW}, {3*32768}'); a(f's_lshl_b32 s{sTmp}, s{sH}, 8')
    a(f's_add_u32 s{sP1w}, s{sP1w}, s{sTmp}'); a(f's_add_u32 s{sP1w}, s{sP1w}, {L.P1}')
    a(f's_add_u32 s{sP1r}, s{sP1w}, {L.P1SZ}')
    a('s_barrier')
    a(f's_lshl_b32 s{sKsrc}, s{sH}, 8'); a(f's_add_u32 s{sKsrc}, s{sKsrc}, {L.K}')
    a(f's_lshl_b32 s{sVsrc}, s{sH}, 13'); a(f's_add_u32 s{sVsrc}, s{sVsrc}, {L.VT}')
    a(f's_lshl_b32 s{sVMo}, s{sH}, 11'); a(f's_add_u32 s{sVMo}, s{sVMo}, {L.VM}'); a(f's_lshl_b32 s{sTmp}, s{sW}, 9'); a(f's_add_u32 s{sVMo}, s{sVMo}, s{sTmp}')
    a(f's_lshl_b32 s{sKMo}, s{sH}, 12'); a(f's_add_u32 s{sKMo}, s{sKMo}, {L.KM}')
    a(f's_lshl_b32 s{sTmp}, s{sW}, 10'); a(f's_add_u32 s{sKMo}, s{sKMo}, s{sTmp}')
    if FUSED:
        lp = a.newlabel('kvw'); lp2 = a.newlabel('kvw2')
        a('v_mov_b32 v36, 0')
        a.label(lp)
        a('s_sleep 2')
        a(f'buffer_load_dword v37, v36, s[{S_DBG}:{S_DBG+3}], 0 offen offset:12 sc1')
        spin_check(a, fail)
        a('s_waitcnt vmcnt(0)')
        a(f'v_readfirstlane_b32 s{sTmp}, v37'); a(f's_cmp_eq_u32 s{sTmp}, 0'); a(f's_cbranch_scc1 {lp}')
        a(f's_mov_b32 s{sTmp2}, {L.ctr(L.C_KV)}')
        a.label(lp2)
        a('s_sleep 2')
        a(f'buffer_load_dword v37, v36, {W}, s{sTmp2} offen sc1')
        spin_check(a, fail)
        a('s_waitcnt vmcnt(0)')
        a('v_cmp_gt_u32 vcc, 64, v37'); a(f's_cbranch_vccnz {lp2}')
        a(f's_mov_b32 s{sRdy}, 64')
    a('v_subrev_u32 v13, 960, v10')
    a(f's_lshr_b32 s{sTmp}, s{sW}, 1'); a(f's_lshl_b32 s{sTmp}, s{sTmp}, 16')
    a(f's_and_b32 s{sTmp2}, s{sW}, 1'); a(f's_lshl_b32 s{sTmp2}, s{sTmp2}, 7')
    a(f's_add_u32 s{sTmp}, s{sTmp}, s{sTmp2}'); a(f's_add_u32 s{sKsrc}, s{sKsrc}, s{sTmp}')
    a(f's_lshl_b32 s{sTmp}, s{sW}, 11'); a(f's_add_u32 s{sVsrc}, s{sVsrc}, s{sTmp}')
    a(f's_add_u32 s{sKVw}, s{sTmp}, {KVB}')
    dma_w(a)
    a(f's_add_u32 s{sKsrc}, s{sKsrc}, {32*8192}'); a(f's_add_u32 s{sVsrc}, s{sVsrc}, {32*8192}'); a(f's_xor_b32 s{sKVw}, s{sKVw}, 16384')
    if COARSE: a('s_memrealtime s[88:89]'); a('s_waitcnt lgkmcnt(0)')
    rendezvous(a, True, fail)
    a(f's_mov_b32 s{sS}, 0')
    a(f's_mov_b32 s{sMw}, {L.MEMSZ}'); a(f's_mov_b32 s{sMf}, {L.MEMSZ}'); a(f's_mov_b32 s{sTag}, 0'); a(f's_mov_b32 s{sFlip}, 1')
    emit(a, zero(20, 36))
    a('s_barrier')
    if st.on and not st.trace:
        a(f's_memtime s[{sT+14}:{sT+15}]'); a('s_waitcnt lgkmcnt(0)'); a(f's_mov_b32 s{sT+13}, s{sT+14}')
    if COARSE:
        a('s_memrealtime s[98:99]'); a('s_memtime s[92:93]'); a('s_waitcnt lgkmcnt(0)')
    a(f's_cmp_eq_u32 s{sFast}, 0'); a('s_cbranch_scc1 main_loop_safe')
    main_loop(a, True, st, fail)
    main_loop(a, False, st, fail)
    a.label('main_last')
    a(f's_lshl_b32 s{sKMo}, s{sH}, 12'); a(f's_add_u32 s{sKMo}, s{sKMo}, {L.KM + 63*32*4096}'); a(f's_lshl_b32 s{sTmp}, s{sW}, 10'); a(f's_add_u32 s{sKMo}, s{sKMo}, s{sTmp}')
    emit(a, km_ops(40))
    st.dump(a, 0)
    if COARSE:
        sk = a.newlabel('csk')
        a('s_memrealtime s[100:101]'); a('s_memtime s[94:95]'); a('s_waitcnt lgkmcnt(0)')
        sk0 = a.newlabel('csk0')
        a(f's_cmp_lg_u32 s{sW}, 0'); a(f's_cbranch_scc1 {sk0}')
        a('v_mov_b32 v36, 0'); a(f's_lshl_b32 s{sTmp}, s{sH}, 5'); a(f's_add_u32 s{sTmp}, s{sTmp}, {TRACE + 32768}')
        for i, r in enumerate((96, 90, 88, 98, 100)):
            a(f'v_mov_b32 v37, s{r}')
            a(f'buffer_store_dword v37, v36, {W}, s{sTmp} offen offset:{4*i}')
        a.label(sk0)
        a(f's_or_b32 s{sTmp}, s{sH}, s{sW}'); a(f's_cmp_lg_u32 s{sTmp}, 0'); a(f's_cbranch_scc1 {sk}')
        a('v_mov_b32 v36, 0')
        a('s_sub_u32 s98, s98, s96'); a('s_sub_u32 s100, s100, s96'); a('s_sub_u32 s94, s94, s92')
        a('s_sub_u32 s90, s90, s96'); a('s_sub_u32 s88, s88, s96')
        for q in range(4): a(f's_sub_u32 s{80+q}, s{80+q}, s96')
        for i, r in enumerate((98, 100, 94, 90, 88, 80, 81, 82, 83)):
            a(f'v_mov_b32 v37, s{r}')
            a(f'buffer_store_dword v37, v36, s[{S_DBG}:{S_DBG+3}], 0 offen offset:{128+4*i}')
        a('s_waitcnt vmcnt(0)')
        a.label(sk)
    a(f's_branch {end}')

def main_loop(a, fast, st, fail):
    sc = ('nt' if 'ntst' in EXP else '') if fast else 'sc1'
    tag = 'fast' if fast else 'safe'
    a.label(f'main_loop_{tag}')
    F = lambda kb: f'v[{72+4*kb}:{75+4*kb}]'
    if COARSE:
        nn = a.newlabel('cs')
        a(f's_and_b32 s{sTmp}, s{sS}, 15'); a(f's_cmp_lg_u32 s{sTmp}, 0'); a(f's_cbranch_scc1 {nn}')
        a('s_memrealtime s[86:87]'); a('s_waitcnt lgkmcnt(0)')
        a(f's_lshr_b32 s{sTmp}, s{sS}, 4')
        for q in range(4):
            a(f's_cmp_eq_u32 s{sTmp}, {q}'); a(f's_cselect_b32 s{80+q}, s86, s{80+q}')
        a.label(nn)
    if 'skel' in EXP:
        a(f's_cmp_ge_u32 s{sS}, 63'); a('s_cbranch_scc1 main_last')
        a(f's_sleep {int(os.environ.get("CSLEEP", 8))}')
        emit(a, zero(28, 40))
        st(a, 0)
        for qq in range(3):
            a(f'v_and_or_b32 v{28+4*qq}, v{28+4*qq}, -2, s{sTag}')
            a(f's_add_u32 s{sTmp}, s{sP1w}, {qq*32768}'); a(f'buffer_store_dwordx4 v[{28+4*qq}:{31+4*qq}], v7, {W}, s{sTmp} offen {sc}')
        a(f's_branch skel_{tag}')
    for kb in range(10):
        a(f'ds_read_b128 {F(kb)}, v4 offset:{kb*1024}')
    if FUSED:
        rok = a.newlabel('rok'); rl = a.newlabel('rl')
        a(f's_cmp_ge_u32 s{sRdy}, 64'); a(f's_cbranch_scc1 {rok}')
        a(f's_add_u32 s{sTmp}, s{sS}, 1'); a(f's_lshr_b32 s{sTmp}, s{sTmp}, 2'); a(f's_min_u32 s{sTmp}, s{sTmp}, 15'); a(f's_lshl_b32 s{sTmp}, s{sTmp}, 7'); a(f's_add_u32 s{sTmp}, s{sTmp}, {L.ctr(L.C_KV)}')
        a.label(rl)
        a(f'buffer_load_dword v36, v121, {W}, s{sTmp} offen sc1')
        spin_check(a, fail)
        a('s_waitcnt vmcnt(0)')
        a(f'v_readfirstlane_b32 s{sRdy}, v36')
        a(f's_cmp_lt_u32 s{sRdy}, 64'); a(f's_cbranch_scc1 {rl}')
        a.label(rok)
    if 'nodma' not in EXP: dma_w(a)
    mf = []
    for kb in range(10):
        for t in range(2):
            ins = f'{SM} v[{20+4*t}:{23+4*t}], {F(kb)}, {rr(qk_home(0, t, kb))}, v1'
            nk = max(0, 2*(kb-6)) if kb >= 6 else 0
            mf.append([f's_waitcnt lgkmcnt({9-kb+nk})', ins] if t == 0 else ins)
    fill = [[]]*11 + [['s_waitcnt vmcnt(4)'] if 'ab' in EXP else []] + [f'ds_read_b128 v[{40+4*i}:{43+4*i}], v14 offset:{i*1024}' for i in range(8)]
    interleave(a, mf, fill)
    st(a, 0)
    mf = [f'{SM} v[{28+4*t}:{31+4*t}], {F(kb)}, {rr(qk_home(1, t, kb))}, v1' for kb in range(10) for t in range(2)]
    if 'nok1' in EXP: mf = ['s_nop 0'] * 20
    if 'halfk1' in EXP: mf = [m if i % 2 == 0 else 's_nop 0' for i, m in enumerate(mf)]
    fill = [[], [], 'v_add_f32 v20, v20, v22', 'v_add_f32 v21, v21, v23', 'v_add_f32 v24, v24, v26', 'v_add_f32 v25, v25, v27',
            'v_cvt_pk_bf16_f32 v36, v20, v21', 'v_cvt_pk_bf16_f32 v37, v24, v25',
            'ds_write2_b32 v5, v36, v36 offset0:0 offset1:1', 'ds_write2_b32 v5, v37, v37 offset0:128 offset1:129', 'v_add_u32 v39, 4096, v5', [],
            ['s_waitcnt lgkmcnt(0)', 's_barrier']]
    fill += [[f'ds_read_b64_tr_b16 v[{72+4*kp}:{73+4*kp}], v6 offset:{kp*1024}', f'ds_read_b64_tr_b16 v[{74+4*kp}:{75+4*kp}], v6 offset:{kp*1024+128}'] for kp in range(4)]
    interleave(a, mf, fill)
    st(a, 1)
    mf = []
    for kp in range(4):
        c1 = '0' if kp == 0 else 'v[20:23]'; c2 = '0' if kp == 0 else 'v[24:27]'
        mf.append((['s_waitcnt lgkmcnt(0)'] if kp == 0 else []) + [f'{MF32} v[20:23], v[{40+4*kp}:{43+4*kp}], v[{72+4*kp}:{75+4*kp}], {c1}'])
        mf.append(f'{MF32} v[24:27], v[{56+4*kp}:{59+4*kp}], v[{72+4*kp}:{75+4*kp}], {c2}')
    fill = [[f's_lshl_b32 s{sTmp}, s{sW}, 11'], ['v_add_f32 v28, v28, v30', 'v_add_f32 v29, v29, v31'], ['v_add_f32 v32, v32, v34', 'v_add_f32 v33, v33, v35'],
            ['v_cvt_pk_bf16_f32 v36, v28, v29', 'v_cvt_pk_bf16_f32 v37, v32, v33'],
            ['ds_write2_b32 v39, v36, v36 offset0:0 offset1:1', 'ds_write2_b32 v39, v37, v37 offset0:128 offset1:129'],
            [f'v_add_u32 v127, s{sTmp}, v14'], [], []]
    interleave(a, mf, fill)
    a('s_waitcnt lgkmcnt(0)')
    a('s_barrier')
    a(f's_cmp_ge_u32 s{sS}, 63'); a('s_cbranch_scc1 main_last')
    for kp in range(4):
        for rho in range(2):
            a(f'ds_read_b64_tr_b16 v[{88+4*kp+2*rho}:{89+4*kp+2*rho}], v6 offset:{4096+kp*1024+rho*128}')
    a('v_max3_f32 v126, v20, v21, v22'); a('v_max3_f32 v125, v23, v24, v25')
    a('ds_read_b128 v[104:107], v127 offset:8192'); a('ds_read_b128 v[108:111], v127 offset:9216')
    a(f'buffer_load_dwordx2 v[112:113], v9, {W}, s{sVMo} offen sc1')
    a('v_max3_f32 v126, v126, v26, v27'); a('v_max_f32 v126, v126, v125')
    a('v_mov_b32 v125, v126')
    if FUSED:
        a(f's_add_u32 s{sTmp}, s{sS}, 2'); a(f's_lshr_b32 s{sTmp}, s{sTmp}, 2'); a(f's_min_u32 s{sTmp}, s{sTmp}, 15'); a(f's_lshl_b32 s{sTmp}, s{sTmp}, 7'); a(f's_add_u32 s{sTmp}, s{sTmp}, {L.ctr(L.C_KV)}')
    else:
        a('s_nop 0')
    a('v_permlane32_swap_b32 v126, v125'); a('v_max_f32 v126, v126, v125')
    a('v_mov_b32 v125, v126')
    if FUSED: a(f'buffer_load_dword v12, v121, {W}, s{sTmp} offen sc1')
    a('v_permlane16_swap_b32 v126, v125'); a('v_max_f32 v126, v126, v125')
    a('v_mul_f32 v127, v124, v126'); a('v_sub_f32 v127, 0, v127')
    st(a, 2)
    wl = []
    for i in range(4):
        wl += [f'ds_read_b128 v[{40+8*i}:{43+8*i}], v15 offset:{i*2048}', f'ds_read_b128 v[{44+8*i}:{47+8*i}], v15 offset:{i*2048+1024}']
    for r in range(20, 28): a(f'v_fma_f32 v{r}, v{r}, v124, v127')
    mfs = []
    for kp in range(4):
        c0 = '0' if kp == 0 else 'v[28:31]'
        mfs.append([f's_waitcnt lgkmcnt({2 + 6 - 2*kp})', f'{MF32} v[28:31], v[{88+4*kp}:{91+4*kp}], v[{72+4*kp}:{75+4*kp}], {c0}'])
    fill = [[f'v_exp_f32 v{r}, v{r}', f'v_exp_f32 v{r+1}, v{r+1}'] for r in range(20, 28, 2)]
    interleave(a, mfs, fill)
    a(f'buffer_load_dwordx2 v[114:115], v9, {W}, s{sVMo} offen sc1')
    a('v_cvt_pk_bf16_f32 v116, v20, v21'); a('v_cvt_pk_bf16_f32 v117, v22, v23')
    a('v_cvt_pk_bf16_f32 v118, v24, v25'); a('v_cvt_pk_bf16_f32 v119, v26, v27')
    a('v_fma_f32 v28, v28, v124, v127'); a('v_fma_f32 v29, v29, v124, v127')
    st(a, 3)
    a('s_waitcnt lgkmcnt(0)')
    a(f'{MF32} v[32:35], v[104:107], v[116:119], 0')
    a('v_max_f32 v126, v28, v29')
    a(f'{MF32} v[36:39], v[108:111], v[116:119], 0')
    a(f'v_cmp_lt_f32 vcc, s{sThr}, v126')
    a(f'{MF32} v[20:23], v[16:19], v[116:119], 0')
    emit(a, wl[:4])
    ok = a.newlabel('thr')
    a(f's_cbranch_vccz {ok}')
    a('v_max_f32 v126, 0, v126')
    a('v_mov_b32 v125, v126'); a('v_permlane32_swap_b32 v126, v125'); a('v_max_f32 v126, v126, v125')
    a('v_mov_b32 v125, v126'); a('v_permlane16_swap_b32 v126, v125'); a('v_max_f32 v126, v126, v125')
    for r in range(28, 30): a(f'v_sub_f32 v{r}, v{r}, v126')
    a('v_sub_f32 v126, 0, v126'); a('v_exp_f32 v126, v126')
    for r in list(range(32, 40)) + list(range(20, 24)): a(f'v_mul_f32 v{r}, v{r}, v126')
    a.label(ok)
    a('v_exp_f32 v28, v28'); a('v_exp_f32 v29, v29')
    emit(a, wl[4:])
    a('v_cvt_pk_bf16_f32 v120, v28, v29'); a('v_cvt_pk_bf16_f32 v123, v28, v29')
    a(f'{MF16} v[20:23], v[16:17], v[120:121], v[20:23]')
    if 'nokm' not in EXP:
        a(f's_lshl_b32 s{sTmp3}, s{sW}, 10'); a(f'v_add_u32 v125, s{sTmp3}, v6')
        a('ds_read_b64_tr_b16 v[116:117], v125 offset:4096'); a(f'ds_read_b64_tr_b16 v[118:119], v125 offset:{4096+128}')
    emit(a, zero(72, 88))
    st(a, 4)
    vp = a.newlabel('vmp'); vok = a.newlabel('vmok')
    nyoung = 2 if FUSED else 1
    if 'novm' in EXP: a(f's_branch {vok}')
    a('s_waitcnt vmcnt(1)')
    a('v_max_u32 v126, v112, v113')
    a('v_cmp_eq_u32 vcc, -1, v126'); a(f's_cbranch_vccz {vok}')
    if st.on and not st.trace and 'vmc' in EXP: a(f's_add_u32 s{sT+10}, s{sT+10}, 63')
    a('s_waitcnt vmcnt(0)')
    a('v_mov_b64 v[112:113], v[114:115]')
    a.label(vp)
    a('v_max_u32 v126, v112, v113')
    a('v_cmp_eq_u32 vcc, -1, v126'); a(f's_cbranch_vccz {vok}')
    if st.on and not st.trace and 'vmc' in EXP: a(f's_add_u32 s{sT+11}, s{sT+11}, 63')
    a(f'buffer_load_dwordx2 v[112:113], v9, {W}, s{sVMo} offen sc1')
    spin_check(a, fail)
    a('s_waitcnt vmcnt(0)')
    a(f's_branch {vp}')
    a.label(vok)
    st(a, 5)
    a(f'{MF16} v[32:35], v[112:113], v[120:121], v[32:35]')
    a(f'{MF16} v[36:39], v[112:113], v[122:123], v[36:39]')
    a('v_rcp_f32 v126, v20')
    a('v_mov_b32 v127, v126')
    for t, o in ((0, 32), (1, 36)):
        a(f'v_cndmask_b32 v{24+2*t}, v{o}, v{o+2}, {MH}')
        a(f'v_cndmask_b32 v{25+2*t}, v{o+1}, v{o+3}, {MH}')
        a(f'v_pk_mul_f32 v[{24+2*t}:{25+2*t}], v[{24+2*t}:{25+2*t}], v[126:127]')
        a(f'v_cvt_pk_bf16_f32 v{28+t}, v{24+2*t}, v{25+2*t}')
    a('ds_write_b64 v11, v[28:29]')
    if 'nokm' not in EXP:
        a('s_waitcnt lgkmcnt(1)')
        a(f'buffer_store_dwordx4 v[116:119], v2, {W}, s{sKMo} offen sc1')
    emit(a, zero(88, 98))
    a('s_waitcnt lgkmcnt(0)')
    a('s_barrier')
    a(f'v_add_u32 v127, {OFR}, v2')
    a('ds_read_b128 v[20:23], v127'); a('ds_read_b128 v[24:27], v127 offset:1024')
    emit(a, zero(98, 112))
    emit(a, zero(38, 40))
    st(a, 6)
    def epi(cg):
        ops = []
        for t in range(2):
            ac = 72 + 4*(cg*2+t); d = 28 + 4*(cg >> 1) + 2*(cg & 1) + t
            ops += [f'v_add_f32 v{ac}, v{ac}, v{ac+2}', f'v_add_f32 v{ac+1}, v{ac+1}, v{ac+3}', f'v_cvt_pk_bf16_f32 v{d}, v{ac}, v{ac+1}']
        if cg in (1, 3, 4):
            qq = cg >> 1; d = 28 + 4*qq
            ops += [f'v_and_or_b32 v{d}, v{d}, -2, s{sTag}', [f's_add_u32 s{sTmp}, s{sP1w}, {qq*32768}', f'buffer_store_dwordx4 v[{d}:{d+3}], v7, {W}, s{sTmp} offen {sc}']]
        return ops
    def pf(pair):
        sl = (pair & 1) * 2; ops = []
        for t in range(2):
            i = pair * 2 + t; b = 40 + 8 * (sl + t)
            ops += [f'ds_read_b128 v[{b}:{b+3}], v15 offset:{i*2048}', f'ds_read_b128 v[{b+4}:{b+7}], v15 offset:{i*2048+1024}']
        return ops
    a('s_waitcnt lgkmcnt(0)')
    pend = []
    n = 0
    for cg in range(5):
        for eb in range(2):
            p = wo_pair(cg, eb)
            A = 'v[20:23]' if eb == 0 else 'v[24:27]'
            for t in range(2):
                ac = 72 + 4*(cg*2+t)
                b = 192 + (cg*2+t)*8 if p is None else 40 + 8 * ((p & 1) * 2 + t)
                if p is not None and t == 0 and p >= 2:
                    a(f's_waitcnt lgkmcnt({4 if p < 5 else 0})')
                a(f'{SM} v[{ac}:{ac+3}], {A}, v[{b}:{b+7}], v1')
                n += 1
                if p is not None and t == 1 and p + 2 < 6:
                    emit(a, pf(p + 2))
                k = 0
                while pend and pend[0][0] <= n and k < (1 if (p is not None and t == 1 and p + 2 < 6) else 2):
                    emit(a, [pend.pop(0)[1]]); k += 1
        pend += [(n + 3, op_) for op_ in epi(cg)]
    emit(a, [x[1] for x in pend])
    if 'skel' in EXP: a.label(f'skel_{tag}')
    st(a, 7)
    gat = a.newlabel('gat'); join = a.newlabel('join'); op = a.newlabel('ownp'); nown = a.newlabel('nown'); post = a.newlabel('post')
    a(f's_cmp_ge_u32 s{sW}, 2'); a(f's_cbranch_scc1 {gat}')
    a(f's_cmp_eq_u32 s{sOwn}, -1'); a(f's_cbranch_scc1 {nown}')
    a(f'v_add_u32 v127, {SEL}, v2'); a('ds_read_b128 v[36:39], v127')
    a(f's_and_b32 s{sTmp}, s{sS}, 1'); a(f's_mul_i32 s{sTmp}, s{sTmp}, {L.P1SZ}')
    a(f's_lshl_b32 s{sTmp2}, s{sOwn}, 13'); a(f's_add_u32 s{sTmp}, s{sTmp}, s{sTmp2}')
    a(f's_add_u32 s{sTmp}, s{sTmp}, {L.P1}'); a(f's_add_u32 s{sTmp2}, s{sTmp}, 4096')
    a(f's_add_u32 s{sPubX}, s{sOwnP}, s{sMw}'); a(f's_add_u32 s{sPubX}, s{sPubX}, {L.MEMX}')
    a(f's_add_u32 s{sPubF}, s{sOwnP}, s{sMf}'); a(f's_add_u32 s{sPubF}, s{sPubF}, {L.MEMF}')
    if OSLEEP: a(f's_sleep {OSLEEP}')
    a('s_waitcnt lgkmcnt(0)')
    OL = 'nt' if ('ntld' in EXP and fast) else 'sc1'
    def oissue(b):
        for m in range(8):
            so = sTmp if m < 4 else sTmp2
            a(f'buffer_load_dwordx4 v[{b+4*m}:{b+3+4*m}], v2, {W}, s{so} offen offset:{(m&3)*1024} {OL}')
    def oconsume(b, younger):
        for m in range(8):
            a(f's_waitcnt vmcnt({7-m+younger})')
            if 'fine' in EXP and m == 0: st(a, 2)
            if 'fine' in EXP and m == 7: st(a, 3)
            c = '0' if m == 0 else 'v[20:23]'
            a(f'{MF32} v[20:23], v[{b+4*m}:{b+3+4*m}], v[36:39], {c}')
            if m == 0: a(f'v_xor_b32 v28, s{sFlipO}, v{b}')
            else: a(f'v_bitop3_b32 v28, v28, v{b+4*m}, s{sFlipO} bitop3:0x60')
        a('v_and_b32 v28, 1, v28')
        a('v_cmp_eq_u32 vcc, 0, v28')
    if 'ab' in EXP:
        od = a.newlabel('od')
        oissue(40)
        a(f's_sleep {int(os.environ.get("STAG", 2))}')
        a.label(op)
        oissue(72)
        spin_check(a, fail)
        oconsume(40, 8)
        a(f's_cbranch_vccz {od}')
        oissue(40)
        oconsume(72, 8)
        a(f's_cbranch_vccnz {op}')
        a.label(od)
    else:
        a.label(op)
        oissue(40)
        spin_check(a, fail)
        if 'fine' in EXP: st(a, 1)
        oconsume(40, 0)
        if 'fine' in EXP: a(f's_add_u32 s{sT+4}, s{sT+4}, 63')
        if 'noown' not in EXP: a(f's_cbranch_vccnz {op}')
    a(f'v_cndmask_b32 v24, v20, v22, {MH}'); a(f'v_cndmask_b32 v25, v21, v23, {MH}')
    a('v_cvt_pk_bf16_f32 v24, v24, v25')
    if 'nop16' not in EXP:
        a('v_mov_b32 v25, v24'); a('v_permlane16_swap_b32 v24, v25')
        a('v_mov_b32 v26, v24'); a('v_mov_b32 v27, v25')
        a('v_permlane32_swap_b32 v24, v26'); a('v_permlane32_swap_b32 v25, v27')
        a('s_mov_b64 exec, 0xffff')
        a(f'buffer_store_dwordx4 v[24:27], v8, {W}, s{sPubF} offen {sc}')
        a('s_mov_b64 exec, -1')
    else:
        a(f'buffer_store_dword v24, v8, {W}, s{sPubF} offen {sc}')
    st(a, 8)
    a('s_barrier')
    XD = int(os.environ.get('XDELAY', 0))
    if XD: a(f's_sleep {XD}')
    if 'nop16' not in EXP:
        a('s_mov_b64 exec, 0xffff')
        a(f'buffer_store_dwordx4 v[24:27], v8, {W}, s{sPubX} offen sc1')
        a('s_mov_b64 exec, -1')
    elif 'nomemx' not in EXP: a(f'buffer_store_dword v24, v8, {W}, s{sPubX} offen sc1')
    a(f's_xor_b32 s{sTmp}, s{sMf}, {L.MEMSZ}'); a(f's_add_u32 s{sTmp}, s{sTmp}, s{sOwnP}'); a(f's_add_u32 s{sTmp}, s{sTmp}, {L.MEMF}')
    a('v_mov_b32 v28, -1')
    a(f'buffer_store_dword v28, v8, {W}, s{sTmp} offen {sc}')
    a(f's_branch {post}')
    a.label(nown)
    st(a, 8)
    a('s_barrier')
    a.label(post)
    advance(a)
    emit(a, zero(20, 36))
    if 'ab' in EXP: a('s_waitcnt vmcnt(2)')
    a(f's_branch {join}')
    a.label(gat)
    a(f's_add_u32 s{sM2}, s{sMf}, {L.MEMF}')
    advance(a)
    gather_pre(a, sM2)
    emit(a, zero(20, 36))
    a('s_barrier')
    if GSLEEP: a(f's_sleep {GSLEEP}')
    st(a, 10); st.val(a, 2, sSpin)
    LF = ('nt' if ('ntld' in EXP and fast) else 'sc1')
    if 'nogather' not in EXP:
        if 'ab' in EXP: gather2(a, fail, LF, int(os.environ.get('STAG', 2)))
        else: gather(a, fail, st, LF)
    st.val(a, 3, sSpin); st(a, 11)
    a.label(join)
    a('s_waitcnt lgkmcnt(0)')
    a('s_barrier')
    st(a, 9)
    a(f's_branch main_loop_{tag}')

def emit_helper(a, st, fail, end):
    a.comment('======== HELPER ========')
    a.label('chain_helper')
    srd(a, S_T1, L.KA['Wv'], 640*4096*2)
    a('v_lshrrev_b32 v36, 4, v0'); a('v_and_b32 v37, 15, v0'); a('v_lshlrev_b32 v37, 4, v37')
    a('v_lshlrev_b32 v10, 13, v36'); a('v_add_u32 v10, v10, v37')
    trbase(a, 12, False)
    a(f's_lshl_b32 s30, s{sH}, 8')
    a('s_waitcnt lgkmcnt(0)')
    chunks = []
    for kb in range(10):
        chunks.append(dict(srd=S_T1, vofs=10, sbase=30, soff=64*kb*8192, istep=4*8192, vtr=12, rows=[0, 4, 32, 36], tcol=[0, 32],
                           dests=[f'a{(kb*2)*8}', f'a{(kb*2+1)*8}']))
    load_chunks(a, chunks, 14)
    a('s_barrier')
    a('v_mov_b64 v[12:13], -1'); a('v_mov_b64 v[14:15], -1')
    a('v_lshlrev_b32 v9, 3, v0')
    a(f's_lshl_b32 s{sVMo}, s{sH}, 11'); a(f's_add_u32 s{sVMo}, s{sVMo}, {L.VM}')
    if not FUSED:
        def fill(base, total):
            per = total // 32
            n = per // 4096
            a(f's_mul_i32 s{sTmp}, s{sH}, {per}'); a(f's_lshl_b32 s{sTmp2}, s{sW}, 10'); a(f's_add_u32 s{sTmp}, s{sTmp}, s{sTmp2}'); a(f's_add_u32 s{sTmp}, s{sTmp}, {base}')
            for i in range(n):
                a(f'buffer_store_dwordx4 v[12:15], v2, {W}, s{sTmp} offen sc1')
                if i < n - 1: a(f's_add_u32 s{sTmp}, s{sTmp}, 4096')
        fill(L.VM, 64 * 32 * 2048)
        fill(L.P1, 2 * L.P1SZ)
        fill(L.MEMX, 64 * L.MEMSZ)
        fill(L.MEMF, 131072)
    mem0_frags(a)
    a(f's_sub_u32 s{sTmp}, s{sW}, 2'); a(f's_mul_i32 s{sTmp}, s{sTmp}, 5120'); a(f'v_add_u32 v3, s{sTmp}, v4')
    if COARSE:
        a('s_memrealtime s[90:91]'); a('s_waitcnt lgkmcnt(0)')
        a('v_mov_b32 v36, 0'); a(f's_lshl_b32 s{sTmp}, s{sH}, 5'); a(f's_add_u32 s{sTmp}, s{sTmp}, {TRACE + 32768 + 1024}')
        a('v_mov_b32 v37, s96'); a(f'buffer_store_dword v37, v36, {W}, s{sTmp} offen'); a('v_mov_b32 v37, s90'); a(f'buffer_store_dword v37, v36, {W}, s{sTmp} offen offset:4')
    rendezvous(a, False, fail)
    a(f's_lshl_b32 s{sTmp}, s{sW}, 9'); a(f's_add_u32 s{sVMo}, s{sVMo}, s{sTmp}')
    a(f's_mov_b32 s{sS}, 0')
    a(f's_mov_b32 s{sMr}, {L.MEMX + L.MEMSZ}')
    a(f's_mov_b32 s{sHs}, {int(os.environ.get("HS0", 140))}'); a(f's_mov_b32 s{sHs1}, 1')
    emit(a, zero(28, 36))
    a('s_barrier')
    if 'skel' in EXP: a(f's_branch {end}')
    a.label('helper_loop')
    st(a, 0)
    for kb in range(10):
        a(f'ds_read_b128 v[{72+4*kb}:{75+4*kb}], v4 offset:{kb*1024}')
    for kb in range(10):
        a(f's_waitcnt lgkmcnt({9-kb})')
        for t in range(2):
            acc = 28 + t * 4; b = (kb*2+t)*8
            if 'nov' in EXP and kb > 0: continue
            a(f'{SM} v[{acc}:{acc+3}], v[{72+4*kb}:{75+4*kb}], a[{b}:{b+7}], v1')
    a('v_add_f32 v28, v28, v30'); a('v_add_f32 v29, v29, v31'); a('v_cvt_pk_bf16_f32 v44, v28, v29')
    a('v_add_f32 v32, v32, v34'); a('v_add_f32 v33, v33, v35'); a('v_cvt_pk_bf16_f32 v45, v32, v33')
    a(f'buffer_store_dwordx2 v[44:45], v9, {W}, s{sVMo} offen sc1')
    st(a, 1)
    a(f's_add_u32 s{sVMo}, s{sVMo}, {32*2048}')
    a(f's_cmp_ge_u32 s{sS}, 63'); a(f's_cbranch_scc1 helper_done')
    emit(a, zero(28, 36))
    a('s_barrier')
    hj = a.newlabel('hj')
    a(f's_cmp_lt_u32 s{sW}, 2'); a(f's_cbranch_scc1 {hj}')
    gather_pre(a, sMr)
    if ADAPT and not HAB:
        a(f's_cmp_gt_u32 s{sHs1}, 1')
        a(f's_cselect_b32 s{sTmp3}, {ADUP + 1}, 0')
        a(f's_add_u32 s{sHs}, s{sHs}, s{sTmp3}')
        a(f's_max_u32 s{sHs}, s{sHs}, 1'); a(f's_sub_u32 s{sHs}, s{sHs}, 1'); a(f's_min_u32 s{sHs}, s{sHs}, 600')
    if ADAPT:
        sl = a.newlabel('hsl'); se = a.newlabel('hse')
        a(f's_lshr_b32 s{sTmp3}, s{sHs}, 2')
        a.label(sl)
        a(f's_cmp_eq_u32 s{sTmp3}, 0'); a(f's_cbranch_scc1 {se}')
        a('s_sleep 1')
        a(f's_sub_u32 s{sTmp3}, s{sTmp3}, 1'); a(f's_branch {sl}')
        a.label(se)
        a(f's_mov_b32 s{sHs0}, s{sSpin}')
    elif HSLEEP: a(f's_sleep {HSLEEP}')
    st(a, 2)
    if ADAPT and HAB:
        gather2(a, fail, 'sc1', HAB, res=sHs0)
        a(f's_cmp_eq_u32 s{sHs0}, 0'); a(f's_cselect_b32 s{sTmp3}, {HDN}, 0'); a(f's_max_u32 s{sHs}, s{sHs}, {HDN}'); a(f's_sub_u32 s{sHs}, s{sHs}, s{sTmp3}')
        a(f's_cmp_ge_u32 s{sHs0}, 2'); a(f's_cselect_b32 s{sTmp3}, {ADUP}, 0'); a(f's_add_u32 s{sHs}, s{sHs}, s{sTmp3}'); a(f's_min_u32 s{sHs}, s{sHs}, 600')
    else:
        gather(a, fail)
    st(a, 3)
    if ADAPT and not HAB: a(f's_sub_u32 s{sHs1}, s{sSpin}, s{sHs0}')
    a.label(hj)
    a('s_waitcnt lgkmcnt(0)')
    a('s_barrier')
    a(f's_add_u32 s{sS}, s{sS}, 1')
    a(f's_add_u32 s{sMr}, s{sMr}, {L.MEMSZ}')
    a('s_branch helper_loop')
    a.label('helper_done')
    st.dump(a, 8192)
    a(f's_branch {end}')
```

```python
from asmlib import Asm
import layout as L
import gemm as GM
from gemm import G, MF
import kernels as KN
from kernels import f32bits, pack_T, unpack, row_reduce16, MF32, MF16, C_SCALE
import chain5 as CH

sWI = 60; sJ = 61; sSpin = 63; sB = 38; sSub = 39
S_DBG = 84
WS = 's[4:7]'; DBG = f's[{S_DBG}:{S_DBG+3}]'
WOS = 8
DNS = 3
SPIN_MAX = 1 << 22
SC = 'sc1'
STAMP = False

def emit(a, ops):
    for x in ops:
        if isinstance(x, (list, tuple)): emit(a, x)
        else: a(x)

def tid(a): a('v_mov_b32 v0, v254')

def signal(a, off_sreg=None, off_imm=None, dbg=False, younger=0):
    a(f's_waitcnt vmcnt({younger})')
    a('s_barrier')
    sk = a.newlabel('sig')
    a('v_cmp_eq_u32 vcc, 0, v254')
    a('s_and_saveexec_b64 s[56:57], vcc')
    a(f's_cbranch_execz {sk}')
    a('v_mov_b32 v250, 1'); a('v_mov_b32 v251, 0')
    if dbg:
        a(f'buffer_atomic_add v250, v251, {DBG}, 0 offen offset:{off_imm}')
    else:
        a(f'buffer_atomic_add v250, v251, {WS}, s{off_sreg} offen')
    a.label(sk)
    a('s_mov_b64 exec, s[56:57]')

def nap(a, short=None):
    sh = a.newlabel('nap'); e = a.newlabel('nape')
    a(f's_cmp_ge_u32 s{sB}, {L.NBLK - 1}'); a(f's_cbranch_scc1 {sh}')
    a('s_sleep 24'); a(f's_branch {e}')
    a.label(sh); a('s_sleep ' + (str(short) if short is not None else __import__('os').environ.get('NAPS', '12')))
    a.label(e)

def wait_ctr(a, off_sreg, target, fail):
    lp = a.newlabel('wc'); ok = a.newlabel('wok')
    a('v_readfirstlane_b32 s56, v254')
    a(f's_cmp_ge_u32 s56, 64'); a(f's_cbranch_scc1 {ok}')
    a('v_mov_b32 v251, 0')
    a.label(lp)
    a(f'buffer_load_dword v250, v251, {WS}, s{off_sreg} offen sc1')
    a('s_waitcnt vmcnt(0)')
    a('v_readfirstlane_b32 s56, v250')
    a(f's_cmp_ge_u32 s56, {target}'); a(f's_cbranch_scc1 {ok}')
    a(f's_add_u32 s{sSpin}, s{sSpin}, 1'); a(f's_cmp_gt_u32 s{sSpin}, {SPIN_MAX}'); a(f's_cbranch_scc1 {fail}')
    nap(a)
    a(f's_branch {lp}')
    a.label(ok)
    a('s_barrier')

def ctr_addr(a, dst, kind, breg):
    a(f's_lshl_b32 s{dst}, s{breg}, 7'); a(f's_add_u32 s{dst}, s{dst}, {L.ctr(kind)}')

def gemm_common(a, lda, ldb, splitB=False):
    g = G
    tid(a)
    GM.setup_lane_consts(a, lda, ldb, splitB)
    a(f's_lshl_b32 s{g.sLdsA}, s{g.sW}, 12')
    a(f's_lshl_b32 s{g.sLdsB}, s{g.sW}, {11 if splitB else 12}')

def load_ptr(a, base, key, nbytes):
    a(f's_load_dwordx2 s[{base}:{base+1}], s[0:1], {L.KA[key]}')
    a(f's_mov_b32 s{base+2}, {nbytes}'); a(f's_mov_b32 s{base+3}, 0x00020000')


EPI = 98304
def epi_T_bf16(a, accs, ld, sbase, ncol_tiles=2, epi=None):
    epi = EPI if epi is None else epi
    g = G; t = g.vT
    a(f'v_and_b32 v{t}, 31, v0'); a(f'v_lshlrev_b32 v{t+1}, 7, v{t}'); a(f'v_and_b32 v{t+2}, 7, v0'); a(f'v_lshrrev_b32 v{t+3}, 5, v0')
    a(f's_lshl_b32 s46, s{g.sW}, 13'); a(f's_add_u32 s46, s46, {epi}'); a(f'v_add_u32 v{t+1}, s46, v{t+1}')
    for rt in range(2):
        for ct in range(2):
            dst = g.FA + ((rt*2+ct) & 1) * 8
            pack_T(a, accs[rt][ct], dst)
            for kk in range(2):
                c0 = 4*ct + 2*kk
                a(f'v_add_u32 v{t+4}, {c0}, v{t+3}'); a(f'v_xor_b32 v{t+4}, v{t+4}, v{t+2}'); a(f'v_lshlrev_b32 v{t+4}, 4, v{t+4}'); a(f'v_add_u32 v{t+4}, v{t+4}, v{t+1}')
                a(f'ds_write_b128 v{t+4}, v[{dst+4*kk}:{dst+4*kk+3}] offset:{rt*4096}')
    a(f'v_lshrrev_b32 v{t}, 3, v0'); a(f'v_and_b32 v{t+2}, 7, v0'); a(f'v_xor_b32 v{t+3}, v{t+2}, v{t}'); a(f'v_lshlrev_b32 v{t+3}, 4, v{t+3}')
    a(f'v_lshlrev_b32 v{t+4}, 7, v{t}'); a(f'v_add_u32 v{t+3}, v{t+3}, v{t+4}'); a(f'v_add_u32 v{t+3}, s46, v{t+3}')
    a(f's_mov_b32 s47, {ld}'); a(f'v_mul_lo_u32 v{t}, v{t}, s47'); a(f'v_lshlrev_b32 v{t+2}, 4, v{t+2}'); a(f'v_add_u32 v{t}, v{t}, v{t+2}')
    a('s_waitcnt lgkmcnt(0)')
    for i in range(8): a(f'ds_read_b128 v[{g.FA+4*i}:{g.FA+4*i+3}], v{t+3} offset:{i*1024}')
    for i in range(8):
        a(f's_waitcnt lgkmcnt({7-i})')
        a(f's_add_u32 s47, s{sbase}, {i*8*ld}')
        a(f'buffer_store_dwordx4 v[{g.FA+4*i}:{g.FA+4*i+3}], v{t}, {WS}, s47 offen {SC}')

def epi_T_f32(a, ld, sbase, epi=None, RT=2):
    epi = EPI if epi is None else epi
    g = G; t = g.vT
    a(f'v_and_b32 v{t}, 31, v0'); a(f'v_lshlrev_b32 v{t+1}, 8, v{t}'); a(f'v_and_b32 v{t+2}, 7, v0'); a(f'v_lshrrev_b32 v{t+3}, 5, v0')
    a(f's_lshl_b32 s46, s{g.sW}, {13 + RT - 1}'); a(f's_add_u32 s46, s46, {epi}'); a(f'v_add_u32 v{t+1}, s46, v{t+1}')
    for ct in range(2):
        for q in range(4):
            c0 = 8*ct + 2*q
            a(f'v_add_u32 v{t+4}, {c0}, v{t+3}'); a(f'v_xor_b32 v{t+4}, v{t+4}, v{t+2}'); a(f'v_lshlrev_b32 v{t+4}, 4, v{t+4}'); a(f'v_add_u32 v{t+4}, v{t+4}, v{t+1}')
            for rt in range(RT):
                acc = g.ACC + (rt*2+ct)*16 + 4*q
                a(f'ds_write_b128 v{t+4}, v[{acc}:{acc+3}] offset:{rt*8192}')
    a(f'v_lshrrev_b32 v{t}, 4, v0'); a(f'v_and_b32 v{t+2}, 15, v0')
    a(f'v_xor_b32 v{t+3}, v{t+2}, v{t}'); a(f'v_xor_b32 v{t+5}, 4, v{t+3}')
    a(f'v_lshlrev_b32 v{t+3}, 4, v{t+3}'); a(f'v_lshlrev_b32 v{t+5}, 4, v{t+5}'); a(f'v_lshlrev_b32 v{t+4}, 8, v{t}'); a(f'v_add_u32 v{t+4}, s46, v{t+4}')
    a(f'v_add_u32 v{t+3}, v{t+3}, v{t+4}'); a(f'v_add_u32 v{t+5}, v{t+5}, v{t+4}')
    a(f's_mov_b32 s47, {ld}'); a(f'v_mul_lo_u32 v{t}, v{t}, s47'); a(f'v_lshlrev_b32 v{t+2}, 4, v{t+2}'); a(f'v_add_u32 v{t}, v{t}, v{t+2}')
    a('s_waitcnt lgkmcnt(0)')
    for half in range(RT):
        for i in range(8):
            ii = half*8 + i
            a(f'ds_read_b128 v[{g.ACC+4*ii}:{g.ACC+4*ii+3}], v{t+3 if ii % 2 == 0 else t+5} offset:{ii*1024}')
        for i in range(8):
            ii = half*8 + i
            a(f's_waitcnt lgkmcnt({7-i})')
            a(f's_add_u32 s47, s{sbase}, {ii*4*ld}')
            a(f'buffer_store_dwordx4 v[{g.ACC+4*ii}:{g.ACC+4*ii+3}], v{t}, {WS}, s47 offen {SC}')

def task_ln1(a):
    tid(a)
    load_ptr(a, 8, 'x', 2048*640*2)
    a('v_lshrrev_b32 v1, 4, v0'); a('s_lshl_b32 s41, s40, 4'); a('v_add_u32 v1, s41, v1')
    a('v_mul_u32_u24 v1, 1280, v1'); a('v_and_b32 v5, 15, v0'); a('v_lshlrev_b32 v5, 4, v5'); a('v_add_u32 v1, v1, v5')
    a('s_waitcnt lgkmcnt(0)')
    for c in range(5): a(f'buffer_load_dwordx4 v[{8+4*c}:{11+4*c}], v1, s[8:11], 0 offen offset:{c*256}')
    a('s_waitcnt vmcnt(0)')
    unpack(a, 8, 32, 20)
    KN.ln_core(a, 32, 8)
    a(f's_mov_b32 s41, {L.XN}')
    for c in range(5): a(f'buffer_store_dwordx4 v[{8+4*c}:{11+4*c}], v1, {WS}, s41 offen offset:{c*256} {SC}')

def task_qkv(a, matrix):
    g = G
    key = ('Wq', 'Wk', 'Wv')[matrix]
    a(f's_lshl_b32 s{g.sT0}, s40, 7'); a(f's_lshl_b32 s{g.sT1}, s{g.sW}, 5'); a(f's_add_u32 s{g.sT0}, s{g.sT0}, s{g.sT1}')
    a(f's_mul_i32 s{g.sAoff}, s{g.sT0}, 1280'); a(f's_add_u32 s{g.sAoff}, s{g.sAoff}, {L.XN}')
    a(f's_lshl_b32 s{g.sBoff}, s43, 8'); a(f's_lshl_b32 s{g.sT1}, s{g.sW}, 17'); a(f's_add_u32 s{g.sBoff}, s{g.sBoff}, s{g.sT1}')
    a('s_barrier')
    GM.mainloop(a, 10, 1280, 8192, 'N' if matrix == 2 else 'T')
    t = g.vT
    if matrix != 2:
        a(f's_mov_b32 s45, {L.Q if matrix == 0 else L.K}')
        a(f's_lshl_b32 s46, s40, 7'); a(f's_lshl_b32 s47, s{g.sWM}, 6'); a('s_add_u32 s46, s46, s47'); a('s_lshl_b32 s46, s46, 13'); a('s_add_u32 s45, s45, s46')
        a(f's_lshl_b32 s46, s43, 8'); a('s_add_u32 s45, s45, s46'); a(f's_lshl_b32 s46, s{g.sWN}, 7'); a('s_add_u32 s45, s45, s46')
        epi_T_bf16(a, [[g.ACC, g.ACC+16], [g.ACC+32, g.ACC+48]], 8192, 45)
    else:
        a(f'v_bfe_u32 v{t}, v0, 4, 1'); a(f'v_lshlrev_b32 v{t}, 10, v{t}'); a(f'v_and_b32 v{t+1}, 15, v0'); a(f'v_lshlrev_b32 v{t+1}, 4, v{t+1}'); a(f'v_add_u32 v{t}, v{t}, v{t+1}')
        a(f'v_lshrrev_b32 v{t+1}, 5, v0'); a(f'v_lshlrev_b32 v{t+1}, 9, v{t+1}'); a(f'v_add_u32 v{t}, v{t}, v{t+1}')
        a(f's_lshl_b32 s45, s40, 2'); a(f's_lshl_b32 s46, s{g.sWM}, 1'); a('s_add_u32 s45, s45, s46'); a('s_lshl_b32 s45, s45, 18')
        a(f's_lshl_b32 s46, s43, 13'); a('s_add_u32 s45, s45, s46'); a(f's_lshl_b32 s46, s{g.sWN}, 12'); a('s_add_u32 s45, s45, s46'); a(f's_add_u32 s45, s45, {L.VT}')
        for rt in range(2):
            for ct in range(2):
                acc = g.ACC + (rt*2+ct)*16; dst = g.FA + ((rt*2+ct) & 1) * 8
                for i in range(8): a(f'v_cvt_pk_bf16_f32 v{dst+i}, v{acc+2*i}, v{acc+2*i+1}')
                a(f's_add_u32 s47, s45, {rt*262144 + ct*2048}')
                a(f'buffer_store_dwordx4 v[{dst}:{dst+3}], v{t}, {WS}, s47 offen {SC}')
                a(f'buffer_store_dwordx4 v[{dst+4}:{dst+7}], v{t}, {WS}, s47 offen offset:256 {SC}')

def qkv_loop(a, name, matrix, start_reg, stride, kind, fail):
    lp = a.newlabel(name); done = a.newlabel(name + 'd')
    gemm_common(a, 1280, 8192)
    load_ptr(a, G.SB, ('Wq', 'Wk', 'Wv')[matrix], 640*4096*2)
    a('s_waitcnt lgkmcnt(0)')
    a(f's_mov_b32 s{sJ}, s{start_reg}')
    a.label(lp)
    a(f's_cmp_ge_u32 s{sJ}, 512'); a(f's_cbranch_scc1 {done}')
    a(f's_lshr_b32 s40, s{sJ}, 5'); a(f's_and_b32 s43, s{sJ}, 31')
    if True:
        wl = a.newlabel('l1b'); wk = a.newlabel('l1bok')
        a('s_lshl_b32 s49, s40, 2'); a('s_add_u32 s49, s49, 128'); a('v_mov_b32 v251, 0')
        a.label(wl)
        a(f'buffer_load_dword v250, v251, {DBG}, s49 offen sc1')
        a('s_waitcnt vmcnt(0)')
        a('v_readfirstlane_b32 s56, v250')
        a(f's_cmp_ge_u32 s56, 8'); a(f's_cbranch_scc1 {wk}')
        a(f's_add_u32 s{sSpin}, s{sSpin}, 1'); a(f's_cmp_gt_u32 s{sSpin}, {SPIN_MAX}'); a(f's_cbranch_scc1 {fail}')
        a('s_sleep 3')
        a(f's_branch {wl}')
        a.label(wk)
    task_qkv(a, matrix)
    ctr_addr(a, 49, kind, 40)
    signal(a, off_sreg=49)
    a(f's_add_u32 s{sJ}, s{sJ}, {stride}')
    a(f's_branch {lp}')
    a.label(done)


def qkv_stat(a, matrix, fail):
    g = G
    GM.set_rt(2)
    load_ptr(a, g.SB, ('Wq', 'Wk', 'Wv')[matrix], 640*4096*2)
    tid(a); GM.stat_setup(a, 1280, 8192)
    a(f's_lshl_b32 s{g.sBoff}, s43, 8'); a(f's_lshl_b32 s{g.sT1}, s{g.sW}, 17'); a(f's_add_u32 s{g.sBoff}, s{g.sBoff}, s{g.sT1}')
    a('s_waitcnt lgkmcnt(0)')
    GM.stat_load_B(a, 10, 8192)
    wl = a.newlabel('l1b'); wk = a.newlabel('l1bok')
    a('v_and_b32 v251, 15, v0'); a('v_lshlrev_b32 v251, 2, v251')
    a.label(wl)
    a(f'buffer_load_dword v250, v251, {DBG}, 0 offen offset:128 sc1')
    a('s_waitcnt vmcnt(0)')
    a('v_cmp_gt_u32 vcc, 8, v250'); a(f's_cbranch_vccz {wk}')
    a(f's_add_u32 s{sSpin}, s{sSpin}, 1'); a(f's_cmp_gt_u32 s{sSpin}, {SPIN_MAX}'); a(f's_cbranch_scc1 {fail}')
    a('s_sleep 3')
    a(f's_branch {wl}')
    a.label(wk)
    def aoff():
        a(f's_lshl_b32 s{g.sT0}, s40, 7'); a(f's_lshl_b32 s{g.sT1}, s{g.sW}, 5'); a(f's_add_u32 s{g.sT0}, s{g.sT0}, s{g.sT1}')
        a(f's_mul_i32 s{g.sAoff}, s{g.sT0}, 1280'); a(f's_add_u32 s{g.sAoff}, s{g.sAoff}, {L.XN}')
    a('s_barrier')
    aoff()
    GM.stat_pre(a, 10, 1280)
    lp = a.newlabel('qs')
    a.label(lp)
    GM.stat_mainloop(a, 10, 1280, 'N' if matrix == 2 else 'T', pre=True)
    a('s_barrier')
    a('s_mov_b32 s50, s40'); a('s_add_u32 s40, s40, 2'); a('s_min_u32 s40, s40, 15')
    aoff()
    GM.stat_pre(a, 10, 1280, 0, 4)
    a('s_mov_b32 s40, s50')
    t = g.vT
    if matrix != 2:
        a(f's_mov_b32 s45, {L.Q if matrix == 0 else L.K}')
        a(f's_lshl_b32 s46, s40, 7'); a(f's_lshl_b32 s47, s{g.sWM}, 6'); a('s_add_u32 s46, s46, s47'); a('s_lshl_b32 s46, s46, 13'); a('s_add_u32 s45, s45, s46')
        a(f's_lshl_b32 s46, s43, 8'); a('s_add_u32 s45, s45, s46'); a(f's_lshl_b32 s46, s{g.sWN}, 7'); a('s_add_u32 s45, s45, s46')
        epi_T_bf16(a, [[g.ACC, g.ACC+16], [g.ACC+32, g.ACC+48]], 8192, 45, epi=GM.BTMP)
    else:
        a(f'v_bfe_u32 v{t}, v0, 4, 1'); a(f'v_lshlrev_b32 v{t}, 10, v{t}'); a(f'v_and_b32 v{t+1}, 15, v0'); a(f'v_lshlrev_b32 v{t+1}, 4, v{t+1}'); a(f'v_add_u32 v{t}, v{t}, v{t+1}')
        a(f'v_lshrrev_b32 v{t+1}, 5, v0'); a(f'v_lshlrev_b32 v{t+1}, 9, v{t+1}'); a(f'v_add_u32 v{t}, v{t}, v{t+1}')
        a(f's_lshl_b32 s45, s40, 2'); a(f's_lshl_b32 s46, s{g.sWM}, 1'); a('s_add_u32 s45, s45, s46'); a('s_lshl_b32 s45, s45, 18')
        a(f's_lshl_b32 s46, s43, 13'); a('s_add_u32 s45, s45, s46'); a(f's_lshl_b32 s46, s{g.sWN}, 12'); a('s_add_u32 s45, s45, s46'); a(f's_add_u32 s45, s45, {L.VT}')
        for rt in range(2):
            for ct in range(2):
                acc = g.ACC + (rt*2+ct)*16; dst = g.FA + ((rt*2+ct) & 1) * 8
                for i in range(8): a(f'v_cvt_pk_bf16_f32 v{dst+i}, v{acc+2*i}, v{acc+2*i+1}')
                a(f's_add_u32 s47, s45, {rt*262144 + ct*2048}')
                a(f'buffer_store_dwordx4 v[{dst}:{dst+3}], v{t}, {WS}, s47 offen {SC}')
                a(f'buffer_store_dwordx4 v[{dst+4}:{dst+7}], v{t}, {WS}, s47 offen offset:256 {SC}')
    ctr_addr(a, 49, L.C_Q if matrix == 0 else L.C_KV, 40)
    GM.stat_pre(a, 10, 1280, 4, 8)
    signal(a, off_sreg=49, younger=16)
    a('s_add_u32 s40, s40, 2')
    a('s_cmp_lt_u32 s40, 16'); a(f's_cbranch_scc1 {lp}')
    a('s_waitcnt vmcnt(0)')
    a('s_barrier')
    GM.set_rt(1)

def task_attn(a, fail):
    tid(a)
    a(f's_lshr_b32 s48, s{sB}, 1'); ctr_addr(a, 49, L.C_Q, 48); wait_ctr(a, 49, 32, fail)
    Wd = WS
    a('v_lshrrev_b32 v1, 6, v0'); a('v_readfirstlane_b32 s8, v1'); a('v_and_b32 v0, 63, v0')
    a(f's_lshl_b32 s10, s{sB}, 1'); a(f's_lshr_b32 s9, s{sSub}, 3'); a('s_add_u32 s10, s10, s9')
    a(f's_and_b32 s11, s{sSub}, 7'); a('s_lshl_b32 s11, s11, 2'); a('s_add_u32 s11, s11, s8')
    a('v_and_b32 v6, 15, v0'); a('v_lshlrev_b32 v1, 13, v6'); a('v_lshrrev_b32 v7, 4, v0'); a('v_lshlrev_b32 v8, 4, v7'); a('v_add_u32 v1, v1, v8')
    a('v_bfe_u32 v2, v0, 2, 1'); a('v_lshlrev_b32 v2, 4, v2'); a('v_bfe_u32 v9, v0, 3, 1'); a('v_lshlrev_b32 v9, 2, v9'); a('v_add_u32 v2, v2, v9')
    a('v_and_b32 v9, 3, v0'); a('v_add_u32 v2, v2, v9'); a('v_lshlrev_b32 v2, 13, v2'); a('v_add_u32 v2, v2, v8')
    a('v_lshlrev_b32 v3, 4, v0'); a('v_lshlrev_b32 v4, 3, v0')
    a('v_lshlrev_b32 v5, 13, v6'); a('v_bfe_u32 v9, v0, 4, 1'); a('v_lshlrev_b32 v9, 5, v9'); a('v_add_u32 v5, v5, v9'); a('v_lshrrev_b32 v9, 5, v0'); a('v_lshlrev_b32 v9, 4, v9'); a('v_add_u32 v5, v5, v9')
    a('v_and_b32 v9, 1, v7'); a('v_lshlrev_b32 v9, 4, v9'); a('v_lshrrev_b32 v10, 1, v7'); a('v_lshlrev_b32 v10, 2, v10'); a('v_add_u32 v9, v9, v10'); a('v_sub_u32 v10, v6, v9')
    a('s_lshl_b32 s12, s10, 18'); a('s_lshl_b32 s13, s11, 8'); a('s_add_u32 s12, s12, s13')
    a(f's_add_u32 s14, s12, {L.Q}'); a(f's_add_u32 s15, s12, {L.K}'); a(f's_add_u32 s16, s12, {L.O}')
    a('s_lshl_b32 s17, s10, 5'); a('s_add_u32 s17, s17, s11')
    a('s_lshl_b32 s18, s17, 12'); a(f's_add_u32 s18, s18, {L.KM}')
    a('s_lshl_b32 s19, s17, 13'); a(f's_add_u32 s19, s19, {L.VT}')
    a('s_lshl_b32 s20, s17, 11'); a(f's_add_u32 s20, s20, {L.VM}')
    a(f's_mov_b32 s21, {hex(f32bits(C_SCALE))}')
    QF = 16; KX = 48; KMf = 80; S = 96; VT = 120; VMf = 152; P = 160; O = 176
    for qt in range(2):
        a(f's_add_u32 s22, s14, {qt*16*8192}')
        for kp in range(4): a(f'buffer_load_dwordx4 v[{QF+(qt*4+kp)*4}:{QF+(qt*4+kp)*4+3}], v1, {Wd}, s22 offen offset:{kp*64}')
    for kt in range(2):
        a(f's_add_u32 s22, s15, {kt*8*8192}')
        for kp in range(4): a(f'buffer_load_dwordx4 v[{KX+(kt*4+kp)*4}:{KX+(kt*4+kp)*4+3}], v2, {Wd}, s22 offen offset:{kp*64}')
    for et in range(8):
        a(f's_add_u32 s22, s19, {(et>>2)*4096}')
        a(f'buffer_load_dwordx4 v[{VT+et*4}:{VT+et*4+3}], v3, {Wd}, s22 offen offset:{(et&3)*1024}')
    lp = a.newlabel('atp'); ok = a.newlabel('atok')
    a.label(lp)
    for kp in range(4): a(f'buffer_load_dwordx4 v[{KMf+kp*4}:{KMf+kp*4+3}], v3, {Wd}, s18 offen offset:{kp*1024} sc1')
    for p in range(4): a(f'buffer_load_dwordx2 v[{VMf+2*p}:{VMf+2*p+1}], v4, {Wd}, s20 offen offset:{p*512} sc1')
    a('s_waitcnt vmcnt(0)')
    CH.maxchain(a, 11, list(range(KMf, KMf+16)) + list(range(VMf, VMf+8)))
    a('v_cmp_eq_u32 vcc, -1, v11'); a(f's_cbranch_vccz {ok}')
    a(f's_add_u32 s{sSpin}, s{sSpin}, 1'); a(f's_cmp_gt_u32 s{sSpin}, {SPIN_MAX}'); a(f's_cbranch_scc1 {fail}')
    nap(a, 2)
    a(f's_branch {lp}')
    a.label(ok)
    Sreg = lambda kt, qt: S + (kt*2+qt)*4
    for kp in range(4):
        for qt in range(2):
            B = f'v[{QF+(qt*4+kp)*4}:{QF+(qt*4+kp)*4+3}]'
            for kt in range(3):
                A = f'v[{KMf+kp*4}:{KMf+kp*4+3}]' if kt == 0 else f'v[{KX+((kt-1)*4+kp)*4}:{KX+((kt-1)*4+kp)*4+3}]'
                d = Sreg(kt, qt); c = '0' if kp == 0 else f'v[{d}:{d+3}]'
                a(f'{MF32} v[{d}:{d+3}], {A}, {B}, {c}')
    a('v_mov_b32 v11, 0xff800000')
    for qt in range(2):
        for kt in (1, 2):
            for r in range(4):
                cst = 8*(kt-1) + r - 16*qt
                reg = Sreg(kt, qt) + r
                a(f'v_cmp_le_i32 vcc, {cst}, v10')
                a(f'v_cndmask_b32 v{reg}, v11, v{reg}, vcc')
        m = 12; t2 = 13
        s0 = Sreg(0, qt); s1 = Sreg(1, qt); s2 = Sreg(2, qt)
        a(f'v_max3_f32 v{m}, v{s0}, v{s0+1}, v{s1}'); a(f'v_max3_f32 v{m}, v{m}, v{s1+1}, v{s1+2}'); a(f'v_max3_f32 v{m}, v{m}, v{s1+3}, v{s2}')
        a(f'v_max3_f32 v{m}, v{m}, v{s2+1}, v{s2+2}'); a(f'v_max_f32 v{m}, v{m}, v{s2+3}')
        a(f'v_mov_b32 v{t2}, v{m}'); a(f'v_permlane32_swap_b32 v{m}, v{t2}'); a(f'v_max_f32 v{m}, v{m}, v{t2}')
        a(f'v_mov_b32 v{t2}, v{m}'); a(f'v_permlane16_swap_b32 v{m}, v{t2}'); a(f'v_max_f32 v{m}, v{m}, v{t2}')
        a(f'v_mul_f32 v{m}, s21, v{m}')
        vals = [s0, s0+1] + [s1+i for i in range(4)] + [s2+i for i in range(4)]
        for r in vals: a(f'v_fma_f32 v{r}, v{r}, s21, -v{m}')
        for r in vals: a(f'v_exp_f32 v{r}, v{r}')
        pb = P + qt*8
        a(f'v_cvt_pk_bf16_f32 v{pb}, v{s1}, v{s1+1}'); a(f'v_cvt_pk_bf16_f32 v{pb+1}, v{s1+2}, v{s1+3}')
        a(f'v_cvt_pk_bf16_f32 v{pb+2}, v{s2}, v{s2+1}'); a(f'v_cvt_pk_bf16_f32 v{pb+3}, v{s2+2}, v{s2+3}')
        a(f'v_cvt_pk_bf16_f32 v{pb+4}, v{s0}, v{s0+1}'); a(f'v_mov_b32 v{pb+5}, 0'); a(f'v_mov_b32 v{pb+6}, 0'); a(f'v_mov_b32 v{pb+7}, v{pb+4}')
        l = 14 + qt
        a(f'v_add_f32 v{l}, v{vals[0]}, v{vals[1]}')
        for r in vals[2:]: a(f'v_add_f32 v{l}, v{l}, v{r}')
        a(f'v_mov_b32 v{t2}, v{l}'); a(f'v_permlane32_swap_b32 v{l}, v{t2}'); a(f'v_add_f32 v{l}, v{l}, v{t2}')
        a(f'v_mov_b32 v{t2}, v{l}'); a(f'v_permlane16_swap_b32 v{l}, v{t2}'); a(f'v_add_f32 v{l}, v{l}, v{t2}')
        a(f'v_rcp_f32 v{l}, v{l}')
    Oreg = lambda et, qt: O + (qt*8+et)*4
    for qt in range(2):
        pb = P + qt*8
        for et in range(8):
            o = Oreg(et, qt)
            a(f'{MF32} v[{o}:{o+3}], v[{VT+et*4}:{VT+et*4+3}], v[{pb}:{pb+3}], 0')
        for et in range(8):
            o = Oreg(et, qt); p = et >> 1
            b = f'v[{pb+6}:{pb+7}]' if et & 1 else f'v[{pb+4}:{pb+5}]'
            a(f'{MF16} v[{o}:{o+3}], v[{VMf+2*p}:{VMf+2*p+1}], {b}, v[{o}:{o+3}]')
    a('s_lshl_b32 s22, s8, 13'); a(f's_add_u32 s22, s22, {EPI}')
    a('v_lshlrev_b32 v1, 8, v6'); a('v_add_u32 v1, s22, v1')
    a('v_bfe_u32 v2, v0, 4, 1'); a('v_lshlrev_b32 v2, 1, v2'); a('v_lshrrev_b32 v3, 5, v0'); a('v_add_u32 v2, v2, v3')
    a('v_and_b32 v3, 7, v0')
    for qt in range(2):
        l = 14 + qt
        for ep in range(4):
            e0 = Oreg(2*ep, qt); e1 = Oreg(2*ep+1, qt); d = QF + (ep & 1) * 4
            for r in range(4):
                a(f'v_mul_f32 v{e0+r}, v{e0+r}, v{l}'); a(f'v_mul_f32 v{e1+r}, v{e1+r}, v{l}')
            a(f'v_cvt_pk_bf16_f32 v{d}, v{e0}, v{e0+1}'); a(f'v_cvt_pk_bf16_f32 v{d+1}, v{e0+2}, v{e0+3}')
            a(f'v_cvt_pk_bf16_f32 v{d+2}, v{e1}, v{e1+1}'); a(f'v_cvt_pk_bf16_f32 v{d+3}, v{e1+2}, v{e1+3}')
            a(f'v_permlane16_swap_b32 v{d}, v{d+2}'); a(f'v_permlane16_swap_b32 v{d+1}, v{d+3}')
            a(f'v_add_u32 v4, {4*ep}, v2'); a('v_xor_b32 v4, v4, v3'); a('v_lshlrev_b32 v4, 4, v4'); a('v_add_u32 v4, v4, v1')
            a(f'ds_write_b128 v4, v[{d}:{d+3}] offset:{qt*4096}')
    a('v_lshrrev_b32 v7, 4, v0'); a('v_xor_b32 v2, v6, v7'); a('v_xor_b32 v3, 4, v2')
    a('v_lshlrev_b32 v2, 4, v2'); a('v_lshlrev_b32 v3, 4, v3'); a('v_lshlrev_b32 v4, 8, v7'); a('v_add_u32 v4, s22, v4'); a('v_add_u32 v2, v2, v4'); a('v_add_u32 v3, v3, v4')
    a('v_lshlrev_b32 v5, 13, v7'); a('v_lshlrev_b32 v4, 4, v6'); a('v_add_u32 v5, v5, v4')
    a('s_waitcnt lgkmcnt(0)')
    for i in range(8): a(f'ds_read_b128 v[{KX+4*i}:{KX+4*i+3}], v{2 if i % 2 == 0 else 3} offset:{i*1024}')
    for i in range(8):
        a(f's_waitcnt lgkmcnt({7-i})')
        a(f's_add_u32 s22, s16, {i*4*8192}')
        a(f'buffer_store_dwordx4 v[{KX+4*i}:{KX+4*i+3}], v5, {Wd}, s22 offen {SC}')
    ctr_addr(a, 49, L.C_AT, sB); signal(a, off_sreg=49)

def part_store(a, base, ks_reg, m_reg, n_reg, epi=None, RT=2):
    g = G
    a(f's_mul_i32 s45, s{ks_reg}, {2048*640*4}'); a(f's_add_u32 s45, s45, {base}')
    a(f's_lshl_b32 s46, s{m_reg}, {6 + RT - 1}'); a(f's_lshl_b32 s47, s{g.sWM}, {5 + RT - 1}'); a('s_add_u32 s46, s46, s47'); a('s_mul_i32 s46, s46, 2560'); a('s_add_u32 s45, s45, s46')
    a(f's_lshl_b32 s46, s{n_reg}, 9'); a('s_add_u32 s45, s45, s46'); a(f's_lshl_b32 s46, s{g.sWN}, 8'); a('s_add_u32 s45, s45, s46')
    epi_T_f32(a, 2560, 45, epi, RT)

def task_wo(a, fail):
    g = G
    ctr_addr(a, 49, L.C_AT, sB); wait_ctr(a, 49, 32, fail)
    load_ptr(a, g.SB, 'Wo', 4096*640*2)
    a(f's_and_b32 s42, s{sSub}, {WOS-1}'); a(f's_lshr_b32 s41, s{sSub}, {WOS.bit_length()-1}')
    gemm_common(a, 8192, 1280)
    KS = 4096 // WOS
    a(f's_lshl_b32 s{g.sT0}, s{sB}, 7'); a(f's_lshl_b32 s{g.sT1}, s{g.sW}, 5'); a(f's_add_u32 s{g.sT0}, s{g.sT0}, s{g.sT1}')
    a(f's_lshl_b32 s{g.sAoff}, s{g.sT0}, 13'); a(f's_add_u32 s{g.sAoff}, s{g.sAoff}, {L.O}')
    a(f's_mul_i32 s{g.sT1}, s42, {KS*2}'); a(f's_add_u32 s{g.sAoff}, s{g.sAoff}, s{g.sT1}')
    a(f's_mul_i32 s{g.sBoff}, s42, {KS*1280}'); a(f's_lshl_b32 s{g.sT1}, s41, 8'); a(f's_add_u32 s{g.sBoff}, s{g.sBoff}, s{g.sT1}')
    a(f's_mul_i32 s{g.sT1}, s{g.sW}, {16*1280}'); a(f's_add_u32 s{g.sBoff}, s{g.sBoff}, s{g.sT1}')
    a('s_waitcnt lgkmcnt(0)')
    a('s_barrier')
    GM.mainloop(a, KS // 64, 8192, 1280, 'T')
    part_store(a, L.PART, 42, sB, 41)
    ctr_addr(a, 49, L.C_WO, sB); signal(a, off_sreg=49)

def rows16_setup(a):
    tid(a)
    a('v_lshrrev_b32 v1, 6, v0'); a('v_and_b32 v0, 63, v0')
    a(f's_lshl_b32 s41, s{sB}, 6'); a(f's_lshl_b32 s42, s{sSub}, 2'); a('s_add_u32 s41, s41, s42'); a('v_add_u32 v1, s41, v1')
    a('v_mul_u32_u24 v1, 1280, v1'); a('v_lshlrev_b32 v5, 2, v0'); a('v_add_u32 v1, v1, v5')
    a('v_lshlrev_b32 v6, 1, v1')

def wave_reduce(a, v, t):
    for sh in (8, 4, 2, 1):
        a(f'v_add_f32_dpp v{v}, v{v}, v{v} row_ror:{sh} row_mask:0xf bank_mask:0xf')
    a(f'v_mov_b32 v{t}, v{v}'); a(f'v_permlane16_swap_b32 v{v}, v{t}'); a(f'v_add_f32 v{v}, v{v}, v{t}')
    a(f'v_mov_b32 v{t}, v{v}'); a(f'v_permlane32_swap_b32 v{v}, v{t}'); a(f'v_add_f32 v{v}, v{v}, v{t}')

def ln_row(a, X, out_pack):
    a(f'v_add_f32 v2, v{X}, v{X+1}')
    for i in range(2, 10): a(f'v_add_f32 v2, v2, v{X+i}')
    wave_reduce(a, 2, 3)
    a(f'v_mul_f32 v2, {hex(f32bits(1.0/640))}, v2')
    for i in range(10): a(f'v_sub_f32 v{X+i}, v{X+i}, v2')
    a(f'v_mul_f32 v3, v{X}, v{X}')
    for i in range(1, 10): a(f'v_fmac_f32 v3, v{X+i}, v{X+i}')
    wave_reduce(a, 3, 4)
    a(f'v_mov_b32 v4, {hex(f32bits(1e-5))}')
    a(f'v_mul_f32 v3, {hex(f32bits(1.0/640))}, v3'); a('v_add_f32 v3, v3, v4'); a('v_rsq_f32 v3, v3')
    for i in range(10): a(f'v_mul_f32 v{X+i}, v{X+i}, v3')
    for i in range(5): a(f'v_cvt_pk_bf16_f32 v{out_pack+i}, v{X+2*i}, v{X+2*i+1}')

def task_ln2(a, fail):
    ctr_addr(a, 49, L.C_WO, sB); wait_ctr(a, 49, 5*WOS, fail)
    load_ptr(a, 8, 'x', 2048*640*2)
    rows16_setup(a)
    a('s_waitcnt lgkmcnt(0)')
    X = 32; PB = 48
    for c in range(5): a(f'buffer_load_dword v{8+c}, v1, s[8:11], 0 offen offset:{c*256}')
    for sp in range(WOS):
        a(f's_mov_b32 s41, {L.PART + sp*2048*640*4}')
        for c in range(5):
            b = PB + sp*10 + c*2
            a(f'buffer_load_dwordx2 v[{b}:{b+1}], v6, {WS}, s41 offen offset:{c*512}')
    a(f's_waitcnt vmcnt({5*WOS})')
    unpack(a, 8, X, 5)
    for sp in range(WOS):
        a(f's_waitcnt vmcnt({5*(WOS-1-sp)})')
        for i in range(10): a(f'v_add_f32 v{X+i}, v{X+i}, v{PB+sp*10+i}')
    a(f's_mov_b32 s41, {L.H}')
    for c in range(5): a(f'buffer_store_dwordx2 v[{X+2*c}:{X+2*c+1}], v6, {WS}, s41 offen offset:{c*512} {SC}')
    for i in range(10): a(f'v_mov_b32 v{PB+i}, v{X+i}')
    ln_row(a, PB, 8)
    a(f's_mov_b32 s41, {L.HN}')
    for c in range(5): a(f'buffer_store_dword v{8+c}, v1, {WS}, s41 offen offset:{c*256} {SC}')
    ctr_addr(a, 49, L.C_LN2, sB); signal(a, off_sreg=49)

def up_epilogue(a):
    g = G; t = g.vT
    a('s_barrier')
    a(f's_mov_b32 s48, {hex(f32bits(-1.4426950408889634))}')
    a(f'v_and_b32 v{t}, 31, v0'); a(f's_lshl_b32 s46, s{g.sWM}, 5'); a(f'v_add_u32 v{t+1}, s46, v{t}'); a(f'v_lshlrev_b32 v{t+1}, 7, v{t+1}')
    a(f'v_and_b32 v{t+6}, 7, v0'); a(f'v_lshrrev_b32 v{t+7}, 5, v0'); a(f's_lshl_b32 s47, s{g.sWN}, 2'); a(f'v_add_u32 v{t+7}, s47, v{t+7}')
    ag = g.ACC; au = g.ACC + 16
    for i in range(16):
        x = t + 2 + (i & 3)
        a(f'v_mul_f32 v{x}, s48, v{ag+i}'); a(f'v_exp_f32 v{x}, v{x}'); a(f'v_add_f32 v{x}, 1.0, v{x}'); a(f'v_rcp_f32 v{x}, v{x}')
        a(f'v_mul_f32 v{ag+i}, v{ag+i}, v{x}'); a(f'v_mul_f32 v{ag+i}, v{ag+i}, v{au+i}')
    dst = g.FA
    pack_T(a, ag, dst)
    for kk in range(2):
        a(f'v_add_u32 v{t+8}, {2*kk}, v{t+7}'); a(f'v_xor_b32 v{t+8}, v{t+8}, v{t+6}'); a(f'v_lshlrev_b32 v{t+8}, 4, v{t+8}'); a(f'v_add_u32 v{t+8}, v{t+8}, v{t+1}')
        a(f'ds_write_b128 v{t+8}, v[{dst+4*kk}:{dst+4*kk+3}]')
    a('s_waitcnt lgkmcnt(0)'); a('s_barrier')
    a(f'v_lshrrev_b32 v{t}, 3, v0'); a(f'v_and_b32 v{t+2}, 7, v0'); a(f'v_xor_b32 v{t+3}, v{t+2}, v{t}'); a(f'v_lshlrev_b32 v{t+3}, 4, v{t+3}')
    a(f'v_lshlrev_b32 v{t+4}, 7, v{t}'); a(f'v_add_u32 v{t+3}, v{t+3}, v{t+4}'); a(f's_lshl_b32 s46, s{g.sW}, 11'); a(f'v_add_u32 v{t+3}, s46, v{t+3}')
    a(f's_mov_b32 s47, 3456'); a(f'v_mul_lo_u32 v{t}, v{t}, s47'); a(f'v_lshlrev_b32 v{t+2}, 4, v{t+2}'); a(f'v_add_u32 v{t}, v{t}, v{t+2}')
    a(f's_lshl_b32 s46, s{sB}, 6'); a(f's_lshl_b32 s47, s{g.sW}, 4'); a('s_add_u32 s46, s46, s47'); a('s_mul_i32 s45, s46, 3456'); a(f's_add_u32 s45, s45, {L.ACT}')
    a(f's_lshl_b32 s46, s{sSub}, 7'); a('s_add_u32 s45, s45, s46')
    for i in range(2): a(f'ds_read_b128 v[{g.FA+4*i}:{g.FA+4*i+3}], v{t+3} offset:{i*1024}')
    for i in range(2):
        a(f's_waitcnt lgkmcnt({1-i})')
        a(f's_add_u32 s47, s45, {i*8*3456}')
        a(f'buffer_store_dwordx4 v[{g.FA+4*i}:{g.FA+4*i+3}], v{t}, {WS}, s47 offen {SC}')

def task_up(a, fail):
    g = G
    ctr_addr(a, 49, L.C_LN2, sB); wait_ctr(a, 49, 32, fail)
    load_ptr(a, g.SB, 'Wg', 640*1728*2); load_ptr(a, g.SB2, 'Wu', 640*1728*2)
    gemm_common(a, 1280, 3456, splitB=True)
    a(f's_lshl_b32 s{g.sT0}, s{sB}, 7'); a(f's_lshl_b32 s{g.sT1}, s{g.sW}, 5'); a(f's_add_u32 s{g.sT0}, s{g.sT0}, s{g.sT1}')
    a(f's_mul_i32 s{g.sAoff}, s{g.sT0}, 1280'); a(f's_add_u32 s{g.sAoff}, s{g.sAoff}, {L.HN}')
    a(f's_lshl_b32 s{g.sBoff}, s{sSub}, 7'); a(f's_mul_i32 s{g.sT1}, s{g.sW}, {16*3456}'); a(f's_add_u32 s{g.sBoff}, s{g.sBoff}, s{g.sT1}')
    a('s_waitcnt lgkmcnt(0)')
    a('s_barrier')
    GM.mainloop(a, 10, 1280, 3456, 'T', splitB=True)
    t = g.vT
    up_epilogue(a)
    ctr_addr(a, 49, L.C_UP, sB); signal(a, off_sreg=49)

def task_down(a, fail):
    g = G
    ctr_addr(a, 49, L.C_UP, sB); wait_ctr(a, 49, 27, fail)
    load_ptr(a, g.SB, 'Wd', 1728*640*2)
    a(f's_mul_i32 s41, s{sSub}, 43691'); a('s_lshr_b32 s41, s41, 17'); a('s_mul_i32 s42, s41, 3'); a(f's_sub_u32 s42, s{sSub}, s42')
    gemm_common(a, 3456, 1280)
    KS = 1728 // DNS
    a(f's_lshl_b32 s{g.sT0}, s{sB}, 7'); a(f's_lshl_b32 s{g.sT1}, s{g.sW}, 5'); a(f's_add_u32 s{g.sT0}, s{g.sT0}, s{g.sT1}')
    a(f's_mul_i32 s{g.sAoff}, s{g.sT0}, 3456'); a(f's_add_u32 s{g.sAoff}, s{g.sAoff}, {L.ACT}')
    a(f's_mul_i32 s{g.sT1}, s42, {KS*2}'); a(f's_add_u32 s{g.sAoff}, s{g.sAoff}, s{g.sT1}')
    a(f's_mul_i32 s{g.sBoff}, s42, {KS*1280}'); a(f's_lshl_b32 s{g.sT1}, s41, 8'); a(f's_add_u32 s{g.sBoff}, s{g.sBoff}, s{g.sT1}')
    a(f's_mul_i32 s{g.sT1}, s{g.sW}, {16*1280}'); a(f's_add_u32 s{g.sBoff}, s{g.sBoff}, s{g.sT1}')
    a('s_waitcnt lgkmcnt(0)')
    a('s_barrier')
    GM.mainloop(a, KS // 64, 3456, 1280, 'T')
    part_store(a, L.PART2, 42, sB, 41)
    ctr_addr(a, 49, L.C_DN, sB); signal(a, off_sreg=49)

def task_fin(a, fail):
    ctr_addr(a, 49, L.C_DN, sB); wait_ctr(a, 49, 5*DNS, fail)
    load_ptr(a, 8, 'out', 2048*640*2)
    rows16_setup(a)
    X = 32; PB = 48
    a(f's_mov_b32 s41, {L.H}')
    for c in range(5): a(f'buffer_load_dwordx2 v[{X+2*c}:{X+2*c+1}], v6, {WS}, s41 offen offset:{c*512}')
    for sp in range(DNS):
        a(f's_mov_b32 s41, {L.PART2 + sp*2048*640*4}')
        for c in range(5):
            b = PB + sp*10 + c*2
            a(f'buffer_load_dwordx2 v[{b}:{b+1}], v6, {WS}, s41 offen offset:{c*512}')
    a('s_waitcnt vmcnt(0) lgkmcnt(0)')
    for sp in range(DNS):
        for i in range(10): a(f'v_add_f32 v{X+i}, v{X+i}, v{PB+sp*10+i}')
    for i in range(5): a(f'v_cvt_pk_bf16_f32 v{8+i}, v{X+2*i}, v{X+2*i+1}')
    for c in range(5): a(f'buffer_store_dword v{8+c}, v1, s[8:11], 0 offen offset:{c*256}')


def s_wo_setup(a):
    g = G
    load_ptr(a, g.SB, 'Wo', 4096*640*2)
    a(f's_and_b32 s42, s{sSub}, {WOS-1}'); a(f's_lshr_b32 s41, s{sSub}, {WOS.bit_length()-1}')
    tid(a); GM.stat_setup(a, 8192, 1280)
    KS = 4096 // WOS
    a(f's_mul_i32 s{g.sBoff}, s42, {KS*1280}'); a(f's_lshl_b32 s{g.sT1}, s41, 8'); a(f's_add_u32 s{g.sBoff}, s{g.sBoff}, s{g.sT1}')
    a(f's_mul_i32 s{g.sT1}, s{g.sW}, {16*1280}'); a(f's_add_u32 s{g.sBoff}, s{g.sBoff}, s{g.sT1}')
    a('s_waitcnt lgkmcnt(0)')
    GM.stat_load_B(a, KS // 64, 1280)
def s_wo(a, fail):
    g = G; KS = 4096 // WOS
    ctr_addr(a, 49, L.C_AT, sB); wait_ctr(a, 49, 16, fail)
    bstamp(a, 5)
    a(f's_lshl_b32 s{g.sT0}, s{sB}, 6'); a(f's_lshl_b32 s{g.sT1}, s{g.sW}, 4'); a(f's_add_u32 s{g.sT0}, s{g.sT0}, s{g.sT1}')
    a(f's_lshl_b32 s{g.sAoff}, s{g.sT0}, 13'); a(f's_add_u32 s{g.sAoff}, s{g.sAoff}, {L.O}')
    a(f's_mul_i32 s{g.sT1}, s42, {KS*2}'); a(f's_add_u32 s{g.sAoff}, s{g.sAoff}, s{g.sT1}')
    GM.stat_mainloop(a, KS // 64, 8192)
    bstamp(a, 6)
    a('s_barrier')
    part_store(a, L.PART, 42, sB, 41, epi=0, RT=1)
    bstamp(a, 7)
    ctr_addr(a, 49, L.C_WO, sB); signal(a, off_sreg=49)
    bstamp(a, 8)

def s_up_setup(a):
    g = G
    load_ptr(a, g.SB, 'Wg', 640*1728*2); load_ptr(a, g.SB2, 'Wu', 640*1728*2)
    tid(a); GM.stat_setup(a, 1280, 3456, splitB=True)
    a(f's_lshl_b32 s{g.sBoff}, s{sSub}, 7'); a(f's_mul_i32 s{g.sT1}, s{g.sW}, {16*3456}'); a(f's_add_u32 s{g.sBoff}, s{g.sBoff}, s{g.sT1}')
    a('s_waitcnt lgkmcnt(0)')
    GM.stat_load_B(a, 10, 3456, splitB=True)
def s_up(a, fail):
    g = G
    ctr_addr(a, 49, L.C_LN2, sB); wait_ctr(a, 49, 16, fail)
    bstamp(a, 5)
    a(f's_lshl_b32 s{g.sT0}, s{sB}, 6'); a(f's_lshl_b32 s{g.sT1}, s{g.sW}, 4'); a(f's_add_u32 s{g.sT0}, s{g.sT0}, s{g.sT1}')
    a(f's_mul_i32 s{g.sAoff}, s{g.sT0}, 1280'); a(f's_add_u32 s{g.sAoff}, s{g.sAoff}, {L.HN}')
    GM.stat_mainloop(a, 10, 1280)
    bstamp(a, 6)
    up_epilogue(a)
    bstamp(a, 7)
    ctr_addr(a, 49, L.C_UP, sB); signal(a, off_sreg=49)
    bstamp(a, 8)

def s_down_setup(a):
    g = G
    load_ptr(a, g.SB, 'Wd', 1728*640*2)
    a(f's_mul_i32 s41, s{sSub}, 43691'); a('s_lshr_b32 s41, s41, 17'); a('s_mul_i32 s42, s41, 3'); a(f's_sub_u32 s42, s{sSub}, s42')
    tid(a); GM.stat_setup(a, 3456, 1280)
    KS = 1728 // DNS
    a(f's_mul_i32 s{g.sBoff}, s42, {KS*1280}'); a(f's_lshl_b32 s{g.sT1}, s41, 8'); a(f's_add_u32 s{g.sBoff}, s{g.sBoff}, s{g.sT1}')
    a(f's_mul_i32 s{g.sT1}, s{g.sW}, {16*1280}'); a(f's_add_u32 s{g.sBoff}, s{g.sBoff}, s{g.sT1}')
    a('s_waitcnt lgkmcnt(0)')
    GM.stat_load_B(a, KS // 64, 1280)
def s_down(a, fail):
    g = G; KS = 1728 // DNS
    ctr_addr(a, 49, L.C_UP, sB); wait_ctr(a, 49, 27, fail)
    bstamp(a, 5)
    a(f's_lshl_b32 s{g.sT0}, s{sB}, 6'); a(f's_lshl_b32 s{g.sT1}, s{g.sW}, 4'); a(f's_add_u32 s{g.sT0}, s{g.sT0}, s{g.sT1}')
    a(f's_mul_i32 s{g.sAoff}, s{g.sT0}, 3456'); a(f's_add_u32 s{g.sAoff}, s{g.sAoff}, {L.ACT}')
    a(f's_mul_i32 s{g.sT1}, s42, {KS*2}'); a(f's_add_u32 s{g.sAoff}, s{g.sAoff}, s{g.sT1}')
    GM.stat_mainloop(a, KS // 64, 3456)
    bstamp(a, 6)
    a('s_barrier')
    part_store(a, L.PART2, 42, sB, 41, epi=0, RT=1)
    bstamp(a, 7)
    ctr_addr(a, 49, L.C_DN, sB); signal(a, off_sreg=49)
    bstamp(a, 8)

TASKS = [('attn', 32), ('wo', 5*WOS), ('ln2', 8), ('up', 27), ('down', 5*DNS), ('fin', 8)]
PERB = sum(n for _, n in TASKS)
ROLES = [('attn', 16, 2), ('wo', 40, 1), ('ln2', 16, 1), ('up', 27, 2), ('down', 15, 2), ('fin', 16, 1)]

WTRACE = False
def wstamp(a, i):
    if not WTRACE: return
    a('s_memrealtime s[58:59]'); a('s_waitcnt lgkmcnt(0)')
    a(f's_lshl_b32 s56, s{sWI}, 6'); a(f's_add_u32 s56, s56, {L.TRACE + 16384 + 4*i}')
    a('v_mov_b32 v250, s58'); a('v_mov_b32 v251, 0')
    a(f'buffer_store_dword v250, v251, {WS}, s56 offen')

def bstamp(a, i):
    if not WTRACE: return
    sk = a.newlabel('bs')
    a(f's_cmp_lg_u32 s{sB}, {L.NBLK - 1}'); a(f's_cbranch_scc1 {sk}')
    wstamp(a, i)
    a.label(sk)

def emit_worker(a, fail, end):
    a.label('worker')

    a('v_mov_b32 v254, v0')
    load_ptr(a, 4, 'ws', L.WS_BYTES)
    load_ptr(a, S_DBG, 'dbg', 256)
    a(f's_mov_b32 s{sSpin}, 0')
    a('s_waitcnt lgkmcnt(0)')
    wstamp(a, 0)
    nz = a.newlabel('nz')
    a(f's_cmp_lg_u32 s{sWI}, 0'); a(f's_cbranch_scc1 {nz}')
    a('v_lshlrev_b32 v1, 4, v0'); a('v_mov_b64 v[4:5], 0'); a('v_mov_b64 v[6:7], 0')
    for i in range(8):
        a(f's_mov_b32 s41, {L.SYNC + i*4096}')
        a(f'buffer_store_dwordx4 v[4:7], v1, {WS}, s41 offen sc1')
    signal(a, off_imm=12, dbg=True)
    a.label(nz)
    nl = a.newlabel('nl'); nf = a.newlabel('nf')
    a(f's_cmp_ge_u32 s{sWI}, 128'); a(f's_cbranch_scc1 {nl}')
    a(f's_mov_b32 s40, s{sWI}')
    task_ln1(a)
    a('s_waitcnt vmcnt(0)'); a('s_barrier')
    sk = a.newlabel('l1s')
    a('v_cmp_eq_u32 vcc, 0, v254'); a('s_and_saveexec_b64 s[56:57], vcc'); a(f's_cbranch_execz {sk}')
    a(f's_lshr_b32 s41, s{sWI}, 3'); a('s_lshl_b32 s41, s41, 2'); a('s_add_u32 s41, s41, 128')
    a('v_mov_b32 v250, 1'); a('v_mov_b32 v251, 0')
    a(f'buffer_atomic_add v250, v251, {DBG}, s41 offen')
    a.label(sk)
    a('s_mov_b64 exec, s[56:57]')
    a(f's_branch {nf}')
    a.label(nl)
    a('v_lshlrev_b32 v1, 4, v254'); a('v_mov_b64 v[4:5], -1'); a('v_mov_b64 v[6:7], -1')
    for base, total in ((L.P1, 2*L.P1SZ), (L.MEMF, 2*L.MEMSZ), (L.MEMX, 64*L.MEMSZ), (L.VM, 64*32*2048), (L.KM, 64*32*4096)):
        nchunk = total // 4096
        lp_ = a.newlabel('fl'); dn_ = a.newlabel('fd')
        a(f's_sub_u32 s40, s{sWI}, 128')
        a.label(lp_)
        a(f's_cmp_ge_u32 s40, {nchunk}'); a(f's_cbranch_scc1 {dn_}')
        a('s_lshl_b32 s41, s40, 12'); a(f's_add_u32 s41, s41, {base}')
        a(f'buffer_store_dwordx4 v[4:7], v1, {WS}, s41 offen sc1')
        a('s_add_u32 s40, s40, 64'); a(f's_branch {lp_}')
        a.label(dn_)
    signal(a, off_imm=16, dbg=True)
    a.label(nf)
    lp = a.newlabel('l1w'); ok = a.newlabel('l1ok')
    a('v_mov_b32 v251, 0')
    a.label(lp)
    a(f'buffer_load_dword v248, v251, {DBG}, 0 offen offset:12 sc1')
    a('s_waitcnt vmcnt(0)')
    a('v_readfirstlane_b32 s57, v248')
    a('s_cmp_ge_u32 s57, 1'); a(f's_cbranch_scc1 {ok}')
    a(f's_add_u32 s{sSpin}, s{sSpin}, 1'); a(f's_cmp_gt_u32 s{sSpin}, {SPIN_MAX}'); a(f's_cbranch_scc1 {fail}')
    a('s_sleep 4')
    a(f's_branch {lp}')
    a.label(ok)
    wstamp(a, 1)
    a(f's_cmp_ge_u32 s{sWI}, 96'); a('s_cselect_b32 s40, 1, 0'); a('s_cselect_b32 s41, 96, 0'); a(f's_sub_u32 s41, s{sWI}, s41')
    a('s_and_b32 s43, s41, 31'); a('s_lshr_b32 s44, s41, 5')
    qv = a.newlabel('qv'); qq = a.newlabel('qq'); qd = a.newlabel('qd')
    a('s_cmp_eq_u32 s44, 1'); a(f's_cbranch_scc1 {qv}')
    a('s_cmp_eq_u32 s44, 2'); a(f's_cbranch_scc1 {qq}')
    qkv_stat(a, 1, fail); a(f's_branch {qd}')
    a.label(qv); qkv_stat(a, 2, fail); a(f's_branch {qd}')
    a.label(qq); qkv_stat(a, 0, fail)
    a.label(qd)
    wstamp(a, 2)
    wstamp(a, 3)
    lp = a.newlabel('rzw'); ok = a.newlabel('rzok')
    a('v_mov_b32 v251, 0')
    a.label(lp)
    a(f'buffer_load_dword v248, v251, {DBG}, 0 offen offset:16 sc1')
    a('s_waitcnt vmcnt(0)')
    a('v_readfirstlane_b32 s56, v248')
    a('s_cmp_ge_u32 s56, 64'); a(f's_cbranch_scc1 {ok}')
    a(f's_add_u32 s{sSpin}, s{sSpin}, 1'); a(f's_cmp_gt_u32 s{sSpin}, {SPIN_MAX}'); a(f's_cbranch_scc1 {fail}')
    a('s_sleep 8')
    a(f's_branch {lp}')
    a.label(ok)
    fns = dict(attn=task_attn, wo=s_wo, ln2=task_ln2, up=s_up, down=s_down, fin=task_fin)
    setups = dict(wo=s_wo_setup, up=s_up_setup, down=s_down_setup)
    a(f's_mov_b32 s{sSub}, s{sWI}')
    for name, n, copies in ROLES:
        sk = a.newlabel('rk')
        a(f's_cmp_ge_u32 s{sSub}, {n*copies}'); a(f's_cbranch_scc1 {sk}')
        a(f's_mov_b32 s{sB}, 0')
        for c in range(1, copies):
            a(f's_cmp_ge_u32 s{sSub}, {n}'); a(f's_cselect_b32 s56, {n}, 0'); a(f's_cselect_b32 s57, 1, 0')
            a(f's_sub_u32 s{sSub}, s{sSub}, s56'); a(f's_add_u32 s{sB}, s{sB}, s57')
        a(f's_mov_b32 s62, s{sSub}')
        if name in setups: setups[name](a)
        lp = a.newlabel('rlp')
        a.label(lp)
        a(f's_mov_b32 s{sSub}, s62')
        fns[name](a, fail)
        a('s_barrier')
        a(f's_add_u32 s{sB}, s{sB}, {copies}')
        a(f's_cmp_lt_u32 s{sB}, {L.NBLK}'); a(f's_cbranch_scc1 {lp}')
        a('s_branch post_done')
        a.label(sk)
        a(f's_sub_u32 s{sSub}, s{sSub}, {n*copies}')
    a.label('post_done')
    wstamp(a, 4)
    a('s_endpgm')

def emit_fused(a, kname):
    fail = 'fz_fail'; end = 'fz_end'
    a.label(kname)
    a(f's_cmp_ge_u32 s2, 256'); a(f's_cbranch_scc1 {end}')
    CH.decode_role(a, 'worker')
    CH.emit_chain_body(a, fail, end, CH.Stamps(True) if STAMP else None)
    emit_worker(a, fail, end)
    a.label(fail)
    a(f's_load_dwordx2 s[8:9], s[0:1], {L.KA["dbg"]}'); a('s_mov_b32 s10, 256'); a('s_mov_b32 s11, 0x00020000')
    a('s_waitcnt lgkmcnt(0)')
    a('v_mov_b32 v1, 0xdead'); a('v_mov_b32 v2, 252')
    a(f'buffer_store_dword v1, v2, s[8:11], 0 offen')
    a('s_waitcnt vmcnt(0)')
    a.label(end)
    a('s_endpgm')
```

```python
from asmlib import Asm
import layout as L

MF = 'v_mfma_f32_32x32x16_bf16'

def srd(a, base, ka_off, nbytes, add=0):
    a(f's_load_dwordx2 s[{base}:{base+1}], s[0:1], {ka_off}')
    a(f's_mov_b32 s{base+2}, {nbytes}')
    a(f's_mov_b32 s{base+3}, 0x00020000')

class G:
    SA = 4
    SB = 8
    SB2 = 12
    SO = 16
    SX = 20
    sW = 24; sWM = 25; sWN = 26; sAoff = 27; sBoff = 28; sK = 29; sT0 = 30; sT1 = 31; sT2 = 32; sM0 = 33; sN0 = 34; sLdsA = 35; sLdsB = 36; sTile = 37
    vAe = 1; vAo = 2; vB = 3
    vRA = 4
    vRB = 16
    vT = 22
    FA = 32
    FB = 48
    ACC = 64
    STAGE = 32768
    ABYTES = 16384

def setup_lane_consts(a, lda, ldb, splitB=False):
    g = G
    a(f'v_lshrrev_b32 v{g.vT}, 6, v0'); a(f'v_readfirstlane_b32 s{g.sW}, v{g.vT}'); a('v_and_b32 v0, 63, v0')
    a(f's_lshr_b32 s{g.sWM}, s{g.sW}, 1'); a(f's_and_b32 s{g.sWN}, s{g.sW}, 1')
    t = g.vT
    a(f'v_lshrrev_b32 v{t}, 3, v0'); a(f's_mov_b32 s{g.sT0}, {lda}'); a(f'v_mul_lo_u32 v{t}, v{t}, s{g.sT0}')
    a(f'v_and_b32 v{t+1}, 7, v0'); a(f'v_lshrrev_b32 v{t+2}, 4, v0'); a(f'v_xor_b32 v{t+1}, v{t+1}, v{t+2}')
    a(f'v_lshlrev_b32 v{t+2}, 4, v{t+1}'); a(f'v_add_u32 v{g.vAe}, v{t}, v{t+2}')
    a(f'v_xor_b32 v{t+1}, 4, v{t+1}'); a(f'v_lshlrev_b32 v{t+2}, 4, v{t+1}'); a(f'v_add_u32 v{g.vAo}, v{t}, v{t+2}')
    if not splitB:
        a(f'v_lshrrev_b32 v{t}, 4, v0'); a(f's_mov_b32 s{g.sT0}, {ldb}'); a(f'v_mul_lo_u32 v{t+1}, v{t}, s{g.sT0}')
        a(f'v_bfe_u32 v{t+2}, v0, 2, 2'); a(f'v_xor_b32 v{t+2}, v{t+2}, v{t}'); a(f'v_lshlrev_b32 v{t+2}, 6, v{t+2}')
        a(f'v_add_u32 v{t+1}, v{t+1}, v{t+2}'); a(f'v_and_b32 v{t+2}, 3, v0'); a(f'v_lshlrev_b32 v{t+2}, 4, v{t+2}')
        a(f'v_add_u32 v{g.vB}, v{t+1}, v{t+2}')
    else:
        a(f'v_lshrrev_b32 v{t}, 3, v0'); a(f's_mov_b32 s{g.sT0}, {ldb}'); a(f'v_mul_lo_u32 v{t+1}, v{t}, s{g.sT0}')
        a(f'v_bfe_u32 v{t+2}, v0, 2, 1'); a(f'v_bfe_u32 v{t+3}, v0, 4, 1'); a(f'v_xor_b32 v{t+2}, v{t+2}, v{t+3}'); a(f'v_lshlrev_b32 v{t+2}, 6, v{t+2}')
        a(f'v_add_u32 v{t+1}, v{t+1}, v{t+2}'); a(f'v_and_b32 v{t+2}, 3, v0'); a(f'v_lshlrev_b32 v{t+2}, 4, v{t+2}')
        a(f'v_add_u32 v{g.vB}, v{t+1}, v{t+2}')
    a(f'v_and_b32 v{t}, 31, v0'); a(f's_lshl_b32 s{g.sT0}, s{g.sWM}, 6'); a(f'v_add_u32 v{t+1}, s{g.sT0}, v{t}'); a(f'v_lshlrev_b32 v{t+1}, 7, v{t+1}')
    a(f'v_bfe_u32 v{t+2}, v0, 1, 3'); a(f'v_lshrrev_b32 v{t+3}, 5, v0')
    for j in range(4):
        a(f'v_add_u32 v{t+4}, {2*j}, v{t+3}'); a(f'v_xor_b32 v{t+4}, v{t+4}, v{t+2}'); a(f'v_lshlrev_b32 v{t+4}, 4, v{t+4}')
        for st in range(3):
            a(f'v_add_u32 v{t+5}, v{t+1}, v{t+4}')
            a(f'v_add_u32 v{g.vRA + 4*st + j}, {st*g.STAGE}, v{t+5}')
    if not splitB:
        a(f'v_lshrrev_b32 v{t}, 5, v0'); a(f'v_lshlrev_b32 v{t}, 3, v{t}'); a(f'v_bfe_u32 v{t+1}, v0, 2, 2'); a(f'v_add_u32 v{t}, v{t}, v{t+1}')
        a(f'v_lshlrev_b32 v{t}, 8, v{t}')
        a(f'v_bfe_u32 v{t+2}, v0, 4, 1'); a(f'v_lshlrev_b32 v{t+2}, 5, v{t+2}'); a(f'v_add_u32 v{t}, v{t}, v{t+2}')
        a(f'v_and_b32 v{t+2}, 3, v0'); a(f'v_lshlrev_b32 v{t+2}, 3, v{t+2}'); a(f'v_add_u32 v{t}, v{t}, v{t+2}')
        a(f's_lshl_b32 s{g.sT0}, s{g.sWN}, 1')
        for ct in range(2):
            a(f's_add_u32 s{g.sT1}, s{g.sT0}, {ct}')
            a(f'v_xor_b32 v{t+2}, s{g.sT1}, v{t+1}'); a(f'v_lshlrev_b32 v{t+2}, 6, v{t+2}'); a(f'v_add_u32 v{t+2}, v{t}, v{t+2}')
            for st in range(3):
                a(f'v_add_u32 v{g.vRB + 2*st + ct}, {st*g.STAGE + g.ABYTES}, v{t+2}')
    else:
        a(f'v_lshrrev_b32 v{t}, 5, v0'); a(f'v_lshlrev_b32 v{t}, 3, v{t}'); a(f'v_bfe_u32 v{t+1}, v0, 2, 2'); a(f'v_add_u32 v{t}, v{t}, v{t+1}')
        a(f'v_lshlrev_b32 v{t}, 7, v{t}')
        a(f'v_bfe_u32 v{t+2}, v0, 4, 1'); a(f'v_lshlrev_b32 v{t+2}, 5, v{t+2}'); a(f'v_add_u32 v{t}, v{t}, v{t+2}')
        a(f'v_and_b32 v{t+2}, 3, v0'); a(f'v_lshlrev_b32 v{t+2}, 3, v{t+2}'); a(f'v_add_u32 v{t}, v{t}, v{t+2}')
        a(f'v_bfe_u32 v{t+1}, v0, 3, 1'); a(f'v_xor_b32 v{t+1}, s{g.sWN}, v{t+1}'); a(f'v_lshlrev_b32 v{t+1}, 6, v{t+1}'); a(f'v_add_u32 v{t}, v{t}, v{t+1}')
        for ct in range(2):
            for st in range(3):
                a(f'v_add_u32 v{g.vRB + 2*st + ct}, {st*g.STAGE + g.ABYTES + ct*8192}, v{t}')

def dma_ops(kreg_off_A, kreg_off_B, stage, lda, ldb, splitB):
    g = G; ops = []
    for ii in range(4):
        v = g.vAe if ii % 2 == 0 else g.vAo
        ops.append([f's_add_u32 s{g.sT0}, s{g.sAoff}, {ii*8*lda + kreg_off_A}',
                    f's_add_u32 m0, s{g.sLdsA}, {stage*g.STAGE + ii*1024}',
                    f'buffer_load_dwordx4 v{v}, s[{g.SA}:{g.SA+3}], s{g.sT0} offen lds'])
    for ii in range(4):
        if not splitB:
            ops.append([f's_add_u32 s{g.sT0}, s{g.sBoff}, {ii*4*ldb + kreg_off_B}',
                        f's_add_u32 m0, s{g.sLdsB}, {stage*g.STAGE + g.ABYTES + ii*1024}',
                        f'buffer_load_dwordx4 v{g.vB}, s[{g.SB}:{g.SB+3}], s{g.sT0} offen lds'])
        else:
            sr = g.SB if ii < 2 else g.SB2
            ops.append([f's_add_u32 s{g.sT0}, s{g.sBoff}, {(ii&1)*8*ldb + kreg_off_B}',
                        f's_add_u32 m0, s{g.sLdsB}, {stage*g.STAGE + g.ABYTES + (ii>>1)*8192 + (ii&1)*1024}',
                        f'buffer_load_dwordx4 v{g.vB}, s[{sr}:{sr+3}], s{g.sT0} offen lds'])
    return ops

def frag_reads(stage, j, fs):
    g = G; ops = []
    for rt in range(2):
        b = g.FA + fs*8 + rt*4
        ops.append(f'ds_read_b128 v[{b}:{b+3}], v{g.vRA + 4*stage + j} offset:{rt*4096}')
    return ops
def fragB_reads(stage, j, fs, splitB):
    g = G; ops = []
    rs = 128 if splitB else 256
    for ct in range(2):
        b = g.FB + fs*8 + ct*4
        for q in range(2):
            ops.append(f'ds_read_b64_tr_b16 v[{b+2*q}:{b+2*q+1}], v{g.vRB + 2*stage + ct} offset:{(16*j + 4*q)*rs}')
    return ops

def mainloop(a, nk, lda, ldb, orient, splitB=False):
    g = G
    kA = lambda k: k * 128
    kB = lambda k: k * 64 * ldb
    def emit(x):
        for o in x:
            if isinstance(o, list): emit(o)
            else: a(o)
    for k in range(min(2, nk)):
        emit(dma_ops(kA(k), kB(k), k % 3, lda, ldb, splitB))
    for r in range(g.ACC, g.ACC + 64, 2): a(f'v_mov_b64 v[{r}:{r+1}], 0')
    a(f's_waitcnt vmcnt({8 if nk > 1 else 0})')
    a('s_barrier')
    emit(frag_reads(0, 0, 0)); emit(fragB_reads(0, 0, 0, splitB))
    for k in range(nk):
        st = k % 3
        dm = dma_ops(kA(k+2), kB(k+2), (k+2) % 3, lda, ldb, splitB) if k + 2 < nk else []
        for j in range(4):
            fs = j & 1
            nxt = []
            if j < 3:
                nxt = frag_reads(st, j+1, fs ^ 1) + fragB_reads(st, j+1, fs ^ 1, splitB)
            pre = []
            if j == 3 and k + 1 < nk:
                nd = 8 if k + 2 < nk else 0
                pre = [f's_waitcnt vmcnt({nd}) lgkmcnt(0)', 's_barrier']
                nxt = frag_reads((k+1) % 3, 0, fs ^ 1) + fragB_reads((k+1) % 3, 0, fs ^ 1, splitB)
            if not pre: a('s_waitcnt lgkmcnt(0)')
            emit(pre)
            fill = list(nxt)
            if j in (0, 1, 2) and dm:
                take = 3 if j < 2 else 2
                for _ in range(take):
                    if dm: fill.append(dm.pop(0))
            mf = []
            for rt in range(2):
                for ct in range(2):
                    acc = g.ACC + (rt*2 + ct) * 16
                    A = f'v[{g.FA + fs*8 + rt*4}:{g.FA + fs*8 + rt*4 + 3}]'; B = f'v[{g.FB + fs*8 + ct*4}:{g.FB + fs*8 + ct*4 + 3}]'
                    if orient == 'N': mf.append(f'{MF} v[{acc}:{acc+15}], {A}, {B}, v[{acc}:{acc+15}]')
                    else: mf.append(f'{MF} v[{acc}:{acc+15}], {B}, {A}, v[{acc}:{acc+15}]')
            per = (len(fill) + 3) // 4
            for i, m in enumerate(mf):
                a(m)
                emit(fill[i*per:(i+1)*per])
        assert not dm

NST = 8
ASTAGE = 16384
BTMP = 131072
def breg(k, j, ct):
    idx = (k * 4 + j) * 2 + ct
    r = idx * 4
    if r < 256: return ('a', r)
    return ('v', 128 + r - 256)
def rr4(x): return f'{x[0]}[{x[1]}:{x[1]+3}]'

def set_rt(x):
    global RT
    RT = x
RT = 1
def stat_setup(a, lda, ldb, splitB=False):
    g = G
    a(f'v_lshrrev_b32 v{g.vT}, 6, v0'); a(f'v_readfirstlane_b32 s{g.sW}, v{g.vT}'); a('v_and_b32 v0, 63, v0')
    a(f's_lshr_b32 s{g.sWM}, s{g.sW}, 1'); a(f's_and_b32 s{g.sWN}, s{g.sW}, 1')
    t = g.vT
    a(f'v_lshrrev_b32 v{t}, 3, v0'); a(f's_mov_b32 s{g.sT0}, {lda}'); a(f'v_mul_lo_u32 v{t}, v{t}, s{g.sT0}')
    a(f'v_and_b32 v{t+1}, 7, v0'); a(f'v_lshrrev_b32 v{t+2}, 4, v0'); a(f'v_xor_b32 v{t+1}, v{t+1}, v{t+2}')
    a(f'v_lshlrev_b32 v{t+2}, 4, v{t+1}'); a(f'v_add_u32 v{g.vAe}, v{t}, v{t+2}')
    a(f'v_xor_b32 v{t+1}, 4, v{t+1}'); a(f'v_lshlrev_b32 v{t+2}, 4, v{t+1}'); a(f'v_add_u32 v{g.vAo}, v{t}, v{t+2}')
    if not splitB:
        a(f'v_lshrrev_b32 v{t}, 4, v0'); a(f's_mov_b32 s{g.sT0}, {ldb}'); a(f'v_mul_lo_u32 v{t+1}, v{t}, s{g.sT0}')
        a(f'v_bfe_u32 v{t+2}, v0, 2, 2'); a(f'v_xor_b32 v{t+2}, v{t+2}, v{t}'); a(f'v_lshlrev_b32 v{t+2}, 6, v{t+2}')
        a(f'v_add_u32 v{t+1}, v{t+1}, v{t+2}'); a(f'v_and_b32 v{t+2}, 3, v0'); a(f'v_lshlrev_b32 v{t+2}, 4, v{t+2}')
        a(f'v_add_u32 v{g.vB}, v{t+1}, v{t+2}')
    else:
        a(f'v_lshrrev_b32 v{t}, 3, v0'); a(f's_mov_b32 s{g.sT0}, {ldb}'); a(f'v_mul_lo_u32 v{t+1}, v{t}, s{g.sT0}')
        a(f'v_bfe_u32 v{t+2}, v0, 2, 1'); a(f'v_bfe_u32 v{t+3}, v0, 4, 1'); a(f'v_xor_b32 v{t+2}, v{t+2}, v{t+3}'); a(f'v_lshlrev_b32 v{t+2}, 6, v{t+2}')
        a(f'v_add_u32 v{t+1}, v{t+1}, v{t+2}'); a(f'v_and_b32 v{t+2}, 3, v0'); a(f'v_lshlrev_b32 v{t+2}, 4, v{t+2}')
        a(f'v_add_u32 v{g.vB}, v{t+1}, v{t+2}')
    a(f'v_and_b32 v{t}, 31, v0'); a(f's_lshl_b32 s{g.sT0}, s{g.sWM}, {5 + (RT - 1)}'); a(f'v_add_u32 v{t+1}, s{g.sT0}, v{t}'); a(f'v_lshlrev_b32 v{t+1}, 7, v{t+1}')
    a(f'v_bfe_u32 v{t+2}, v0, 1, 3'); a(f'v_lshrrev_b32 v{t+3}, 5, v0')
    for j in range(4):
        a(f'v_add_u32 v{t+4}, {2*j}, v{t+3}'); a(f'v_xor_b32 v{t+4}, v{t+4}, v{t+2}'); a(f'v_lshlrev_b32 v{t+4}, 4, v{t+4}')
        a(f'v_add_u32 v{g.vRA + j}, v{t+1}, v{t+4}')
        a(f'v_add_u32 v{g.vRA + 4 + j}, 65536, v{g.vRA + j}')
    if not splitB:
        a(f'v_lshrrev_b32 v{t}, 5, v0'); a(f'v_lshlrev_b32 v{t}, 3, v{t}'); a(f'v_bfe_u32 v{t+1}, v0, 2, 2'); a(f'v_add_u32 v{t}, v{t}, v{t+1}')
        a(f'v_lshlrev_b32 v{t}, 8, v{t}')
        a(f'v_bfe_u32 v{t+2}, v0, 4, 1'); a(f'v_lshlrev_b32 v{t+2}, 5, v{t+2}'); a(f'v_add_u32 v{t}, v{t}, v{t+2}')
        a(f'v_and_b32 v{t+2}, 3, v0'); a(f'v_lshlrev_b32 v{t+2}, 3, v{t+2}'); a(f'v_add_u32 v{t}, v{t}, v{t+2}')
        a(f's_lshl_b32 s{g.sT0}, s{g.sWN}, 1')
        for ct in range(2):
            a(f's_add_u32 s{g.sT1}, s{g.sT0}, {ct}')
            a(f'v_xor_b32 v{t+2}, s{g.sT1}, v{t+1}'); a(f'v_lshlrev_b32 v{t+2}, 6, v{t+2}'); a(f'v_add_u32 v{t+2}, v{t}, v{t+2}')
            a(f'v_add_u32 v{g.vRB + ct}, {BTMP}, v{t+2}')
    else:
        a(f'v_lshrrev_b32 v{t}, 5, v0'); a(f'v_lshlrev_b32 v{t}, 3, v{t}'); a(f'v_bfe_u32 v{t+1}, v0, 2, 2'); a(f'v_add_u32 v{t}, v{t}, v{t+1}')
        a(f'v_lshlrev_b32 v{t}, 7, v{t}')
        a(f'v_bfe_u32 v{t+2}, v0, 4, 1'); a(f'v_lshlrev_b32 v{t+2}, 5, v{t+2}'); a(f'v_add_u32 v{t}, v{t}, v{t+2}')
        a(f'v_and_b32 v{t+2}, 3, v0'); a(f'v_lshlrev_b32 v{t+2}, 3, v{t+2}'); a(f'v_add_u32 v{t}, v{t}, v{t+2}')
        a(f'v_bfe_u32 v{t+1}, v0, 3, 1'); a(f'v_xor_b32 v{t+1}, s{g.sWN}, v{t+1}'); a(f'v_lshlrev_b32 v{t+1}, 6, v{t+1}'); a(f'v_add_u32 v{t}, v{t}, v{t+1}')
        for ct in range(2):
            a(f'v_add_u32 v{g.vRB + ct}, {BTMP + ct*8192}, v{t}')
    a(f's_lshl_b32 s{g.sLdsA}, s{g.sW}, {11 + (RT - 1)}')
    a(f's_lshl_b32 s{g.sLdsB}, s{g.sW}, {11 if splitB else 12}'); a(f's_add_u32 s{g.sLdsB}, s{g.sLdsB}, {BTMP}')

def stat_load_B(a, nk, ldb, splitB=False):
    g = G
    def issue(k):
        st = (k & 1) * 16384
        for ii in range(4):
            if not splitB:
                a(f's_add_u32 s{g.sT0}, s{g.sBoff}, {ii*4*ldb + k*64*ldb}'); a(f's_add_u32 m0, s{g.sLdsB}, {st + ii*1024}')
                a(f'buffer_load_dwordx4 v{g.vB}, s[{g.SB}:{g.SB+3}], s{g.sT0} offen lds')
            else:
                sr = g.SB if ii < 2 else g.SB2
                a(f's_add_u32 s{g.sT0}, s{g.sBoff}, {(ii&1)*8*ldb + k*64*ldb}'); a(f's_add_u32 m0, s{g.sLdsB}, {st + (ii>>1)*8192 + (ii&1)*1024}')
                a(f'buffer_load_dwordx4 v{g.vB}, s[{sr}:{sr+3}], s{g.sT0} offen lds')
    rs = 128 if splitB else 256
    issue(0)
    for k in range(nk):
        if k + 1 < nk:
            a('s_barrier')
            issue(k + 1)
            a('s_waitcnt vmcnt(4)')
        else:
            a('s_waitcnt vmcnt(0)')
        a('s_barrier')
        st = (k & 1) * 16384
        for j in range(4):
            for ct in range(2):
                d = breg(k, j, ct)
                for q in range(2):
                    a(f'ds_read_b64_tr_b16 {d[0]}[{d[1]+2*q}:{d[1]+2*q+1}], v{g.vRB + ct} offset:{st + (16*j + 4*q)*rs}')
        a('s_waitcnt lgkmcnt(0)')

def stat_nst(): return 10 if RT == 1 else NST
def stat_astage(): return 8192 * RT
def stat_issue_A(a, k, lda):
    g = G; st = k % stat_nst()
    for ii in range(2 * RT):
        v = g.vAe if ii % 2 == 0 else g.vAo
        a(f's_add_u32 s{g.sT0}, s{g.sAoff}, {ii*8*lda + k*128}')
        a(f's_add_u32 m0, s{g.sLdsA}, {st*stat_astage() + ii*1024}')
        a(f'buffer_load_dwordx4 v{v}, s[{g.SA}:{g.SA+3}], s{g.sT0} offen lds')

def stat_pre(a, nk, lda, lo=0, hi=None):
    hi = min(stat_nst(), nk) if hi is None else hi
    for k in range(lo, hi): stat_issue_A(a, k, lda)

def stat_mainloop(a, nk, lda, orient='T', pre=False, younger=0):
    g = G
    NS = stat_nst(); AS = stat_astage(); ND = 2 * RT
    def emit(x):
        for o in x:
            if isinstance(o, list): emit(o)
            else: a(o)
    npre = min(NS, nk)
    if not pre:
        for k in range(npre): stat_issue_A(a, k, lda)
    for r in range(g.ACC, g.ACC + 32 * RT, 2): a(f'v_mov_b64 v[{r}:{r+1}], 0')
    def areads(k, j, fs):
        off = (k % NS) * AS
        base = g.vRA + (4 if off >= 65536 else 0) + j
        return [f'ds_read_b128 v[{g.FA + fs*8 + rt*4}:{g.FA + fs*8 + rt*4 + 3}], v{base} offset:{(off & 65535) + rt*4096}' for rt in range(RT)]
    issued = npre
    def wait_stage(k):
        outstanding_after = (issued - (k + 1)) * ND
        a(f's_waitcnt vmcnt({min(63, outstanding_after)}) lgkmcnt(0)')
        a('s_barrier')
    wait_stage(0)
    emit(areads(0, 0, 0))
    for k in range(nk):
        for j in range(4):
            fs = j & 1
            nxt = []
            if j < 3:
                a('s_waitcnt lgkmcnt(0)')
                nxt = areads(k, j+1, fs ^ 1)
            elif k + 1 < nk:
                wait_stage(k + 1)
                nxt = areads(k+1, 0, fs ^ 1)
            else:
                a('s_waitcnt lgkmcnt(0)')
            mf = []
            for rt in range(RT):
                for ct in range(2):
                    acc = g.ACC + (rt*2 + ct) * 16
                    A = f'v[{g.FA + fs*8 + rt*4}:{g.FA + fs*8 + rt*4 + 3}]'; B = rr4(breg(k, j, ct))
                    if orient == 'N': mf.append(f'{MF} v[{acc}:{acc+15}], {A}, {B}, v[{acc}:{acc+15}]')
                    else: mf.append(f'{MF} v[{acc}:{acc+15}], {B}, {A}, v[{acc}:{acc+15}]')
            fill = list(nxt)
            emit(fill[:1])
            for i, m in enumerate(mf):
                a(m)
                if i + 1 < len(fill): emit([fill[i + 1]])
            if j == 3 and k + 1 < nk and issued < nk and (issued % NS) == (k % NS):
                stat_issue_A(a, issued, lda); issued += 1
```

```python
from asmlib import Asm
import layout as L
import gemm as GM
from gemm import G, MF
import kernels as KN
from kernels import f32bits, pack_T, unpack, row_reduce16, MF32, MF16, C_SCALE
import chain5 as CH

sWI = 60; sJ = 61; sSpin = 63; sB = 38; sSub = 39
S_DBG = 84
WS = 's[4:7]'; DBG = f's[{S_DBG}:{S_DBG+3}]'
WOS = 8
DNS = 3
SPIN_MAX = 1 << 22
SC = 'sc1'
STAMP = False

def emit(a, ops):
    for x in ops:
        if isinstance(x, (list, tuple)): emit(a, x)
        else: a(x)

class T: tid = 254; a = 250; b = 251
def tid(a): a(f'v_mov_b32 v0, v{T.tid}')

def signal(a, off_sreg=None, off_imm=None, dbg=False, younger=0):
    a(f's_waitcnt vmcnt({younger})')
    a('s_barrier')
    sk = a.newlabel('sig')
    a(f'v_cmp_eq_u32 vcc, 0, v{T.tid}')
    a('s_and_saveexec_b64 s[56:57], vcc')
    a(f's_cbranch_execz {sk}')
    a(f'v_mov_b32 v{T.a}, 1'); a(f'v_mov_b32 v{T.b}, 0')
    if dbg:
        a(f'buffer_atomic_add v{T.a}, v{T.b}, {DBG}, 0 offen offset:{off_imm}')
    else:
        a(f'buffer_atomic_add v{T.a}, v{T.b}, {WS}, s{off_sreg} offen')
    a.label(sk)
    a('s_mov_b64 exec, s[56:57]')

def nap(a, short=None):
    sh = a.newlabel('nap'); e = a.newlabel('nape')
    a(f's_cmp_ge_u32 s{sB}, {L.NBLK - 1}'); a(f's_cbranch_scc1 {sh}')
    a('s_sleep 24'); a(f's_branch {e}')
    a.label(sh); a('s_sleep ' + (str(short) if short is not None else __import__('os').environ.get('NAPS', '12')))
    a.label(e)

def wait_ctr(a, off_sreg, target, fail):
    lp = a.newlabel('wc'); ok = a.newlabel('wok')
    a(f'v_readfirstlane_b32 s56, v{T.tid}')
    a(f's_cmp_ge_u32 s56, 64'); a(f's_cbranch_scc1 {ok}')
    a(f'v_mov_b32 v{T.b}, 0')
    a.label(lp)
    a(f'buffer_load_dword v{T.a}, v{T.b}, {WS}, s{off_sreg} offen sc1')
    a('s_waitcnt vmcnt(0)')
    a(f'v_readfirstlane_b32 s56, v{T.a}')
    a(f's_cmp_ge_u32 s56, {target}'); a(f's_cbranch_scc1 {ok}')
    a(f's_add_u32 s{sSpin}, s{sSpin}, 1'); a(f's_cmp_gt_u32 s{sSpin}, {SPIN_MAX}'); a(f's_cbranch_scc1 {fail}')
    nap(a)
    a(f's_branch {lp}')
    a.label(ok)
    a('s_barrier')

def ctr_addr(a, dst, kind, breg):
    a(f's_lshl_b32 s{dst}, s{breg}, 7'); a(f's_add_u32 s{dst}, s{dst}, {L.ctr(kind)}')

def gemm_common(a, lda, ldb, splitB=False):
    g = G
    tid(a)
    GM.setup_lane_consts(a, lda, ldb, splitB)
    a(f's_lshl_b32 s{g.sLdsA}, s{g.sW}, 12')
    a(f's_lshl_b32 s{g.sLdsB}, s{g.sW}, {11 if splitB else 12}')

def load_ptr(a, base, key, nbytes):
    a(f's_load_dwordx2 s[{base}:{base+1}], s[0:1], {L.KA[key]}')
    a(f's_mov_b32 s{base+2}, {nbytes}'); a(f's_mov_b32 s{base+3}, 0x00020000')


EPI = 98304
def epi_T_bf16(a, accs, ld, sbase, ncol_tiles=2, epi=None):
    epi = EPI if epi is None else epi
    g = G; t = g.vT
    a(f'v_and_b32 v{t}, 31, v0'); a(f'v_lshlrev_b32 v{t+1}, 7, v{t}'); a(f'v_and_b32 v{t+2}, 7, v0'); a(f'v_lshrrev_b32 v{t+3}, 5, v0')
    a(f's_lshl_b32 s46, s{g.sW}, 13'); a(f's_add_u32 s46, s46, {epi}'); a(f'v_add_u32 v{t+1}, s46, v{t+1}')
    for rt in range(2):
        for ct in range(2):
            dst = g.FA + ((rt*2+ct) & 1) * 8
            pack_T(a, accs[rt][ct], dst)
            for kk in range(2):
                c0 = 4*ct + 2*kk
                a(f'v_add_u32 v{t+4}, {c0}, v{t+3}'); a(f'v_xor_b32 v{t+4}, v{t+4}, v{t+2}'); a(f'v_lshlrev_b32 v{t+4}, 4, v{t+4}'); a(f'v_add_u32 v{t+4}, v{t+4}, v{t+1}')
                a(f'ds_write_b128 v{t+4}, v[{dst+4*kk}:{dst+4*kk+3}] offset:{rt*4096}')
    a(f'v_lshrrev_b32 v{t}, 3, v0'); a(f'v_and_b32 v{t+2}, 7, v0'); a(f'v_xor_b32 v{t+3}, v{t+2}, v{t}'); a(f'v_lshlrev_b32 v{t+3}, 4, v{t+3}')
    a(f'v_lshlrev_b32 v{t+4}, 7, v{t}'); a(f'v_add_u32 v{t+3}, v{t+3}, v{t+4}'); a(f'v_add_u32 v{t+3}, s46, v{t+3}')
    a(f's_mov_b32 s47, {ld}'); a(f'v_mul_lo_u32 v{t}, v{t}, s47'); a(f'v_lshlrev_b32 v{t+2}, 4, v{t+2}'); a(f'v_add_u32 v{t}, v{t}, v{t+2}')
    a('s_waitcnt lgkmcnt(0)')
    for i in range(8): a(f'ds_read_b128 v[{g.FA+4*i}:{g.FA+4*i+3}], v{t+3} offset:{i*1024}')
    for i in range(8):
        a(f's_waitcnt lgkmcnt({7-i})')
        a(f's_add_u32 s47, s{sbase}, {i*8*ld}')
        a(f'buffer_store_dwordx4 v[{g.FA+4*i}:{g.FA+4*i+3}], v{t}, {WS}, s47 offen {SC}')

def epi_T_f32(a, ld, sbase, epi=None, RT=2):
    epi = EPI if epi is None else epi
    g = G; t = g.vT
    a(f'v_and_b32 v{t}, 31, v0'); a(f'v_lshlrev_b32 v{t+1}, 8, v{t}'); a(f'v_and_b32 v{t+2}, 7, v0'); a(f'v_lshrrev_b32 v{t+3}, 5, v0')
    a(f's_lshl_b32 s46, s{g.sW}, {13 + RT - 1}'); a(f's_add_u32 s46, s46, {epi}'); a(f'v_add_u32 v{t+1}, s46, v{t+1}')
    for ct in range(2):
        for q in range(4):
            c0 = 8*ct + 2*q
            a(f'v_add_u32 v{t+4}, {c0}, v{t+3}'); a(f'v_xor_b32 v{t+4}, v{t+4}, v{t+2}'); a(f'v_lshlrev_b32 v{t+4}, 4, v{t+4}'); a(f'v_add_u32 v{t+4}, v{t+4}, v{t+1}')
            for rt in range(RT):
                acc = g.ACC + (rt*2+ct)*16 + 4*q
                a(f'ds_write_b128 v{t+4}, v[{acc}:{acc+3}] offset:{rt*8192}')
    a(f'v_lshrrev_b32 v{t}, 4, v0'); a(f'v_and_b32 v{t+2}, 15, v0')
    a(f'v_xor_b32 v{t+3}, v{t+2}, v{t}'); a(f'v_xor_b32 v{t+5}, 4, v{t+3}')
    a(f'v_lshlrev_b32 v{t+3}, 4, v{t+3}'); a(f'v_lshlrev_b32 v{t+5}, 4, v{t+5}'); a(f'v_lshlrev_b32 v{t+4}, 8, v{t}'); a(f'v_add_u32 v{t+4}, s46, v{t+4}')
    a(f'v_add_u32 v{t+3}, v{t+3}, v{t+4}'); a(f'v_add_u32 v{t+5}, v{t+5}, v{t+4}')
    a(f's_mov_b32 s47, {ld}'); a(f'v_mul_lo_u32 v{t}, v{t}, s47'); a(f'v_lshlrev_b32 v{t+2}, 4, v{t+2}'); a(f'v_add_u32 v{t}, v{t}, v{t+2}')
    a('s_waitcnt lgkmcnt(0)')
    for half in range(RT):
        for i in range(8):
            ii = half*8 + i
            a(f'ds_read_b128 v[{g.ACC+4*ii}:{g.ACC+4*ii+3}], v{t+3 if ii % 2 == 0 else t+5} offset:{ii*1024}')
        for i in range(8):
            ii = half*8 + i
            a(f's_waitcnt lgkmcnt({7-i})')
            a(f's_add_u32 s47, s{sbase}, {ii*4*ld}')
            a(f'buffer_store_dwordx4 v[{g.ACC+4*ii}:{g.ACC+4*ii+3}], v{t}, {WS}, s47 offen {SC}')

def task_ln1(a):
    tid(a)
    load_ptr(a, 8, 'x', 2048*640*2)
    a('v_lshrrev_b32 v1, 4, v0'); a('s_lshl_b32 s41, s40, 4'); a('v_add_u32 v1, s41, v1')
    a('v_mul_u32_u24 v1, 1280, v1'); a('v_and_b32 v5, 15, v0'); a('v_lshlrev_b32 v5, 4, v5'); a('v_add_u32 v1, v1, v5')
    a('s_waitcnt lgkmcnt(0)')
    for c in range(5): a(f'buffer_load_dwordx4 v[{8+4*c}:{11+4*c}], v1, s[8:11], 0 offen offset:{c*256}')
    a('s_waitcnt vmcnt(0)')
    unpack(a, 8, 32, 20)
    KN.ln_core(a, 32, 8)
    a(f's_mov_b32 s41, {L.XN}')
    for c in range(5): a(f'buffer_store_dwordx4 v[{8+4*c}:{11+4*c}], v1, {WS}, s41 offen offset:{c*256} {SC}')

def task_qkv(a, matrix):
    g = G
    key = ('Wq', 'Wk', 'Wv')[matrix]
    a(f's_lshl_b32 s{g.sT0}, s40, 7'); a(f's_lshl_b32 s{g.sT1}, s{g.sW}, 5'); a(f's_add_u32 s{g.sT0}, s{g.sT0}, s{g.sT1}')
    a(f's_mul_i32 s{g.sAoff}, s{g.sT0}, 1280'); a(f's_add_u32 s{g.sAoff}, s{g.sAoff}, {L.XN}')
    a(f's_lshl_b32 s{g.sBoff}, s43, 8'); a(f's_lshl_b32 s{g.sT1}, s{g.sW}, 17'); a(f's_add_u32 s{g.sBoff}, s{g.sBoff}, s{g.sT1}')
    a('s_barrier')
    GM.mainloop(a, 10, 1280, 8192, 'N' if matrix == 2 else 'T')
    t = g.vT
    if matrix != 2:
        a(f's_mov_b32 s45, {L.Q if matrix == 0 else L.K}')
        a(f's_lshl_b32 s46, s40, 7'); a(f's_lshl_b32 s47, s{g.sWM}, 6'); a('s_add_u32 s46, s46, s47'); a('s_lshl_b32 s46, s46, 13'); a('s_add_u32 s45, s45, s46')
        a(f's_lshl_b32 s46, s43, 8'); a('s_add_u32 s45, s45, s46'); a(f's_lshl_b32 s46, s{g.sWN}, 7'); a('s_add_u32 s45, s45, s46')
        epi_T_bf16(a, [[g.ACC, g.ACC+16], [g.ACC+32, g.ACC+48]], 8192, 45)
    else:
        a(f'v_bfe_u32 v{t}, v0, 4, 1'); a(f'v_lshlrev_b32 v{t}, 10, v{t}'); a(f'v_and_b32 v{t+1}, 15, v0'); a(f'v_lshlrev_b32 v{t+1}, 4, v{t+1}'); a(f'v_add_u32 v{t}, v{t}, v{t+1}')
        a(f'v_lshrrev_b32 v{t+1}, 5, v0'); a(f'v_lshlrev_b32 v{t+1}, 9, v{t+1}'); a(f'v_add_u32 v{t}, v{t}, v{t+1}')
        a(f's_lshl_b32 s45, s40, 2'); a(f's_lshl_b32 s46, s{g.sWM}, 1'); a('s_add_u32 s45, s45, s46'); a('s_lshl_b32 s45, s45, 18')
        a(f's_lshl_b32 s46, s43, 13'); a('s_add_u32 s45, s45, s46'); a(f's_lshl_b32 s46, s{g.sWN}, 12'); a('s_add_u32 s45, s45, s46'); a(f's_add_u32 s45, s45, {L.VT}')
        for rt in range(2):
            for ct in range(2):
                acc = g.ACC + (rt*2+ct)*16; dst = g.FA + ((rt*2+ct) & 1) * 8
                for i in range(8): a(f'v_cvt_pk_bf16_f32 v{dst+i}, v{acc+2*i}, v{acc+2*i+1}')
                a(f's_add_u32 s47, s45, {rt*262144 + ct*2048}')
                a(f'buffer_store_dwordx4 v[{dst}:{dst+3}], v{t}, {WS}, s47 offen {SC}')
                a(f'buffer_store_dwordx4 v[{dst+4}:{dst+7}], v{t}, {WS}, s47 offen offset:256 {SC}')

def qkv_loop(a, name, matrix, start_reg, stride, kind, fail):
    lp = a.newlabel(name); done = a.newlabel(name + 'd')
    gemm_common(a, 1280, 8192)
    load_ptr(a, G.SB, ('Wq', 'Wk', 'Wv')[matrix], 640*4096*2)
    a('s_waitcnt lgkmcnt(0)')
    a(f's_mov_b32 s{sJ}, s{start_reg}')
    a.label(lp)
    a(f's_cmp_ge_u32 s{sJ}, 512'); a(f's_cbranch_scc1 {done}')
    a(f's_lshr_b32 s40, s{sJ}, 5'); a(f's_and_b32 s43, s{sJ}, 31')
    if True:
        wl = a.newlabel('l1b'); wk = a.newlabel('l1bok')
        a('s_lshl_b32 s49, s40, 2'); a('s_add_u32 s49, s49, 128'); a('v_mov_b32 v251, 0')
        a.label(wl)
        a(f'buffer_load_dword v250, v251, {DBG}, s49 offen sc1')
        a('s_waitcnt vmcnt(0)')
        a('v_readfirstlane_b32 s56, v250')
        a(f's_cmp_ge_u32 s56, 8'); a(f's_cbranch_scc1 {wk}')
        a(f's_add_u32 s{sSpin}, s{sSpin}, 1'); a(f's_cmp_gt_u32 s{sSpin}, {SPIN_MAX}'); a(f's_cbranch_scc1 {fail}')
        a('s_sleep 3')
        a(f's_branch {wl}')
        a.label(wk)
    task_qkv(a, matrix)
    ctr_addr(a, 49, kind, 40)
    signal(a, off_sreg=49)
    a(f's_add_u32 s{sJ}, s{sJ}, {stride}')
    a(f's_branch {lp}')
    a.label(done)


def qkv_stat(a, matrix, fail):
    g = G
    GM.set_rt(2)
    load_ptr(a, g.SB, ('Wq', 'Wk', 'Wv')[matrix], 640*4096*2)
    tid(a); GM.stat_setup(a, 1280, 8192)
    a(f's_lshl_b32 s{g.sBoff}, s43, 8'); a(f's_lshl_b32 s{g.sT1}, s{g.sW}, 17'); a(f's_add_u32 s{g.sBoff}, s{g.sBoff}, s{g.sT1}')
    a('s_waitcnt lgkmcnt(0)')
    GM.stat_load_B(a, 10, 8192)
    wl = a.newlabel('l1b'); wk = a.newlabel('l1bok')
    a('v_and_b32 v251, 15, v0'); a('v_lshlrev_b32 v251, 2, v251')
    a.label(wl)
    a(f'buffer_load_dword v250, v251, {DBG}, 0 offen offset:128 sc1')
    a('s_waitcnt vmcnt(0)')
    a('v_cmp_gt_u32 vcc, 8, v250'); a(f's_cbranch_vccz {wk}')
    a(f's_add_u32 s{sSpin}, s{sSpin}, 1'); a(f's_cmp_gt_u32 s{sSpin}, {SPIN_MAX}'); a(f's_cbranch_scc1 {fail}')
    a('s_sleep 3')
    a(f's_branch {wl}')
    a.label(wk)
    def aoff():
        a(f's_lshl_b32 s{g.sT0}, s40, 7'); a(f's_lshl_b32 s{g.sT1}, s{g.sW}, 5'); a(f's_add_u32 s{g.sT0}, s{g.sT0}, s{g.sT1}')
        a(f's_mul_i32 s{g.sAoff}, s{g.sT0}, 1280'); a(f's_add_u32 s{g.sAoff}, s{g.sAoff}, {L.XN}')
    a('s_barrier')
    aoff()
    GM.stat_pre(a, 10, 1280)
    lp = a.newlabel('qs')
    a.label(lp)
    GM.stat_mainloop(a, 10, 1280, 'N' if matrix == 2 else 'T', pre=True)
    a('s_barrier')
    a('s_mov_b32 s50, s40'); a('s_add_u32 s40, s40, 2'); a('s_min_u32 s40, s40, 15')
    aoff()
    GM.stat_pre(a, 10, 1280, 0, 4)
    a('s_mov_b32 s40, s50')
    t = g.vT
    if matrix != 2:
        a(f's_mov_b32 s45, {L.Q if matrix == 0 else L.K}')
        a(f's_lshl_b32 s46, s40, 7'); a(f's_lshl_b32 s47, s{g.sWM}, 6'); a('s_add_u32 s46, s46, s47'); a('s_lshl_b32 s46, s46, 13'); a('s_add_u32 s45, s45, s46')
        a(f's_lshl_b32 s46, s43, 8'); a('s_add_u32 s45, s45, s46'); a(f's_lshl_b32 s46, s{g.sWN}, 7'); a('s_add_u32 s45, s45, s46')
        epi_T_bf16(a, [[g.ACC, g.ACC+16], [g.ACC+32, g.ACC+48]], 8192, 45, epi=GM.BTMP)
    else:
        a(f'v_bfe_u32 v{t}, v0, 4, 1'); a(f'v_lshlrev_b32 v{t}, 10, v{t}'); a(f'v_and_b32 v{t+1}, 15, v0'); a(f'v_lshlrev_b32 v{t+1}, 4, v{t+1}'); a(f'v_add_u32 v{t}, v{t}, v{t+1}')
        a(f'v_lshrrev_b32 v{t+1}, 5, v0'); a(f'v_lshlrev_b32 v{t+1}, 9, v{t+1}'); a(f'v_add_u32 v{t}, v{t}, v{t+1}')
        a(f's_lshl_b32 s45, s40, 2'); a(f's_lshl_b32 s46, s{g.sWM}, 1'); a('s_add_u32 s45, s45, s46'); a('s_lshl_b32 s45, s45, 18')
        a(f's_lshl_b32 s46, s43, 13'); a('s_add_u32 s45, s45, s46'); a(f's_lshl_b32 s46, s{g.sWN}, 12'); a('s_add_u32 s45, s45, s46'); a(f's_add_u32 s45, s45, {L.VT}')
        for rt in range(2):
            for ct in range(2):
                acc = g.ACC + (rt*2+ct)*16; dst = g.FA + ((rt*2+ct) & 1) * 8
                for i in range(8): a(f'v_cvt_pk_bf16_f32 v{dst+i}, v{acc+2*i}, v{acc+2*i+1}')
                a(f's_add_u32 s47, s45, {rt*262144 + ct*2048}')
                a(f'buffer_store_dwordx4 v[{dst}:{dst+3}], v{t}, {WS}, s47 offen {SC}')
                a(f'buffer_store_dwordx4 v[{dst+4}:{dst+7}], v{t}, {WS}, s47 offen offset:256 {SC}')
    ctr_addr(a, 49, L.C_Q if matrix == 0 else L.C_KV, 40)
    GM.stat_pre(a, 10, 1280, 4, 8)
    signal(a, off_sreg=49, younger=16)
    a('s_add_u32 s40, s40, 2')
    a('s_cmp_lt_u32 s40, 16'); a(f's_cbranch_scc1 {lp}')
    a('s_waitcnt vmcnt(0)')
    a('s_barrier')
    GM.set_rt(1)

def task_attn(a, fail):
    tid(a)
    a(f's_lshr_b32 s48, s{sB}, 1'); ctr_addr(a, 49, L.C_Q, 48); wait_ctr(a, 49, 32, fail)
    Wd = WS
    a('v_lshrrev_b32 v1, 6, v0'); a('v_readfirstlane_b32 s8, v1'); a('v_and_b32 v0, 63, v0')
    a(f's_lshl_b32 s10, s{sB}, 1'); a(f's_lshr_b32 s9, s{sSub}, 3'); a('s_add_u32 s10, s10, s9')
    a(f's_and_b32 s11, s{sSub}, 7'); a('s_lshl_b32 s11, s11, 2'); a('s_add_u32 s11, s11, s8')
    a('v_and_b32 v6, 15, v0'); a('v_lshlrev_b32 v1, 13, v6'); a('v_lshrrev_b32 v7, 4, v0'); a('v_lshlrev_b32 v8, 4, v7'); a('v_add_u32 v1, v1, v8')
    a('v_bfe_u32 v2, v0, 2, 1'); a('v_lshlrev_b32 v2, 4, v2'); a('v_bfe_u32 v9, v0, 3, 1'); a('v_lshlrev_b32 v9, 2, v9'); a('v_add_u32 v2, v2, v9')
    a('v_and_b32 v9, 3, v0'); a('v_add_u32 v2, v2, v9'); a('v_lshlrev_b32 v2, 13, v2'); a('v_add_u32 v2, v2, v8')
    a('v_lshlrev_b32 v3, 4, v0'); a('v_lshlrev_b32 v4, 3, v0')
    a('v_lshlrev_b32 v5, 13, v6'); a('v_bfe_u32 v9, v0, 4, 1'); a('v_lshlrev_b32 v9, 5, v9'); a('v_add_u32 v5, v5, v9'); a('v_lshrrev_b32 v9, 5, v0'); a('v_lshlrev_b32 v9, 4, v9'); a('v_add_u32 v5, v5, v9')
    a('v_and_b32 v9, 1, v7'); a('v_lshlrev_b32 v9, 4, v9'); a('v_lshrrev_b32 v10, 1, v7'); a('v_lshlrev_b32 v10, 2, v10'); a('v_add_u32 v9, v9, v10'); a('v_sub_u32 v10, v6, v9')
    a('s_lshl_b32 s12, s10, 18'); a('s_lshl_b32 s13, s11, 8'); a('s_add_u32 s12, s12, s13')
    a(f's_add_u32 s14, s12, {L.Q}'); a(f's_add_u32 s15, s12, {L.K}'); a(f's_add_u32 s16, s12, {L.O}')
    a('s_lshl_b32 s17, s10, 5'); a('s_add_u32 s17, s17, s11')
    a('s_lshl_b32 s18, s17, 12'); a(f's_add_u32 s18, s18, {L.KM}')
    a('s_lshl_b32 s19, s17, 13'); a(f's_add_u32 s19, s19, {L.VT}')
    a('s_lshl_b32 s20, s17, 11'); a(f's_add_u32 s20, s20, {L.VM}')
    a(f's_mov_b32 s21, {hex(f32bits(C_SCALE))}')
    QF = 16; KX = 48; KMf = 80; S = 96; VT = 120; VMf = 152; P = 160; O = 176
    for qt in range(2):
        a(f's_add_u32 s22, s14, {qt*16*8192}')
        for kp in range(4): a(f'buffer_load_dwordx4 v[{QF+(qt*4+kp)*4}:{QF+(qt*4+kp)*4+3}], v1, {Wd}, s22 offen offset:{kp*64}')
    for kt in range(2):
        a(f's_add_u32 s22, s15, {kt*8*8192}')
        for kp in range(4): a(f'buffer_load_dwordx4 v[{KX+(kt*4+kp)*4}:{KX+(kt*4+kp)*4+3}], v2, {Wd}, s22 offen offset:{kp*64}')
    for et in range(8):
        a(f's_add_u32 s22, s19, {(et>>2)*4096}')
        a(f'buffer_load_dwordx4 v[{VT+et*4}:{VT+et*4+3}], v3, {Wd}, s22 offen offset:{(et&3)*1024}')
    lp = a.newlabel('atp'); ok = a.newlabel('atok')
    a.label(lp)
    for kp in range(4): a(f'buffer_load_dwordx4 v[{KMf+kp*4}:{KMf+kp*4+3}], v3, {Wd}, s18 offen offset:{kp*1024} sc1')
    for p in range(4): a(f'buffer_load_dwordx2 v[{VMf+2*p}:{VMf+2*p+1}], v4, {Wd}, s20 offen offset:{p*512} sc1')
    a('s_waitcnt vmcnt(0)')
    CH.maxchain(a, 11, list(range(KMf, KMf+16)) + list(range(VMf, VMf+8)))
    a('v_cmp_eq_u32 vcc, -1, v11'); a(f's_cbranch_vccz {ok}')
    a(f's_add_u32 s{sSpin}, s{sSpin}, 1'); a(f's_cmp_gt_u32 s{sSpin}, {SPIN_MAX}'); a(f's_cbranch_scc1 {fail}')
    nap(a, 2)
    a(f's_branch {lp}')
    a.label(ok)
    Sreg = lambda kt, qt: S + (kt*2+qt)*4
    for kp in range(4):
        for qt in range(2):
            B = f'v[{QF+(qt*4+kp)*4}:{QF+(qt*4+kp)*4+3}]'
            for kt in range(3):
                A = f'v[{KMf+kp*4}:{KMf+kp*4+3}]' if kt == 0 else f'v[{KX+((kt-1)*4+kp)*4}:{KX+((kt-1)*4+kp)*4+3}]'
                d = Sreg(kt, qt); c = '0' if kp == 0 else f'v[{d}:{d+3}]'
                a(f'{MF32} v[{d}:{d+3}], {A}, {B}, {c}')
    a('v_mov_b32 v11, 0xff800000')
    for qt in range(2):
        for kt in (1, 2):
            for r in range(4):
                cst = 8*(kt-1) + r - 16*qt
                reg = Sreg(kt, qt) + r
                a(f'v_cmp_le_i32 vcc, {cst}, v10')
                a(f'v_cndmask_b32 v{reg}, v11, v{reg}, vcc')
        m = 12; t2 = 13
        s0 = Sreg(0, qt); s1 = Sreg(1, qt); s2 = Sreg(2, qt)
        a(f'v_max3_f32 v{m}, v{s0}, v{s0+1}, v{s1}'); a(f'v_max3_f32 v{m}, v{m}, v{s1+1}, v{s1+2}'); a(f'v_max3_f32 v{m}, v{m}, v{s1+3}, v{s2}')
        a(f'v_max3_f32 v{m}, v{m}, v{s2+1}, v{s2+2}'); a(f'v_max_f32 v{m}, v{m}, v{s2+3}')
        a(f'v_mov_b32 v{t2}, v{m}'); a(f'v_permlane32_swap_b32 v{m}, v{t2}'); a(f'v_max_f32 v{m}, v{m}, v{t2}')
        a(f'v_mov_b32 v{t2}, v{m}'); a(f'v_permlane16_swap_b32 v{m}, v{t2}'); a(f'v_max_f32 v{m}, v{m}, v{t2}')
        a(f'v_mul_f32 v{m}, s21, v{m}')
        vals = [s0, s0+1] + [s1+i for i in range(4)] + [s2+i for i in range(4)]
        for r in vals: a(f'v_fma_f32 v{r}, v{r}, s21, -v{m}')
        for r in vals: a(f'v_exp_f32 v{r}, v{r}')
        pb = P + qt*8
        a(f'v_cvt_pk_bf16_f32 v{pb}, v{s1}, v{s1+1}'); a(f'v_cvt_pk_bf16_f32 v{pb+1}, v{s1+2}, v{s1+3}')
        a(f'v_cvt_pk_bf16_f32 v{pb+2}, v{s2}, v{s2+1}'); a(f'v_cvt_pk_bf16_f32 v{pb+3}, v{s2+2}, v{s2+3}')
        a(f'v_cvt_pk_bf16_f32 v{pb+4}, v{s0}, v{s0+1}'); a(f'v_mov_b32 v{pb+5}, 0'); a(f'v_mov_b32 v{pb+6}, 0'); a(f'v_mov_b32 v{pb+7}, v{pb+4}')
        l = 14 + qt
        a(f'v_add_f32 v{l}, v{vals[0]}, v{vals[1]}')
        for r in vals[2:]: a(f'v_add_f32 v{l}, v{l}, v{r}')
        a(f'v_mov_b32 v{t2}, v{l}'); a(f'v_permlane32_swap_b32 v{l}, v{t2}'); a(f'v_add_f32 v{l}, v{l}, v{t2}')
        a(f'v_mov_b32 v{t2}, v{l}'); a(f'v_permlane16_swap_b32 v{l}, v{t2}'); a(f'v_add_f32 v{l}, v{l}, v{t2}')
        a(f'v_rcp_f32 v{l}, v{l}')
    Oreg = lambda et, qt: O + (qt*8+et)*4
    for qt in range(2):
        pb = P + qt*8
        for et in range(8):
            o = Oreg(et, qt)
            a(f'{MF32} v[{o}:{o+3}], v[{VT+et*4}:{VT+et*4+3}], v[{pb}:{pb+3}], 0')
        for et in range(8):
            o = Oreg(et, qt); p = et >> 1
            b = f'v[{pb+6}:{pb+7}]' if et & 1 else f'v[{pb+4}:{pb+5}]'
            a(f'{MF16} v[{o}:{o+3}], v[{VMf+2*p}:{VMf+2*p+1}], {b}, v[{o}:{o+3}]')
    a('s_lshl_b32 s22, s8, 13'); a(f's_add_u32 s22, s22, {EPI}')
    a('v_lshlrev_b32 v1, 8, v6'); a('v_add_u32 v1, s22, v1')
    a('v_bfe_u32 v2, v0, 4, 1'); a('v_lshlrev_b32 v2, 1, v2'); a('v_lshrrev_b32 v3, 5, v0'); a('v_add_u32 v2, v2, v3')
    a('v_and_b32 v3, 7, v0')
    for qt in range(2):
        l = 14 + qt
        for ep in range(4):
            e0 = Oreg(2*ep, qt); e1 = Oreg(2*ep+1, qt); d = QF + (ep & 1) * 4
            for r in range(4):
                a(f'v_mul_f32 v{e0+r}, v{e0+r}, v{l}'); a(f'v_mul_f32 v{e1+r}, v{e1+r}, v{l}')
            a(f'v_cvt_pk_bf16_f32 v{d}, v{e0}, v{e0+1}'); a(f'v_cvt_pk_bf16_f32 v{d+1}, v{e0+2}, v{e0+3}')
            a(f'v_cvt_pk_bf16_f32 v{d+2}, v{e1}, v{e1+1}'); a(f'v_cvt_pk_bf16_f32 v{d+3}, v{e1+2}, v{e1+3}')
            a(f'v_permlane16_swap_b32 v{d}, v{d+2}'); a(f'v_permlane16_swap_b32 v{d+1}, v{d+3}')
            a(f'v_add_u32 v4, {4*ep}, v2'); a('v_xor_b32 v4, v4, v3'); a('v_lshlrev_b32 v4, 4, v4'); a('v_add_u32 v4, v4, v1')
            a(f'ds_write_b128 v4, v[{d}:{d+3}] offset:{qt*4096}')
    a('v_lshrrev_b32 v7, 4, v0'); a('v_xor_b32 v2, v6, v7'); a('v_xor_b32 v3, 4, v2')
    a('v_lshlrev_b32 v2, 4, v2'); a('v_lshlrev_b32 v3, 4, v3'); a('v_lshlrev_b32 v4, 8, v7'); a('v_add_u32 v4, s22, v4'); a('v_add_u32 v2, v2, v4'); a('v_add_u32 v3, v3, v4')
    a('v_lshlrev_b32 v5, 13, v7'); a('v_lshlrev_b32 v4, 4, v6'); a('v_add_u32 v5, v5, v4')
    a('s_waitcnt lgkmcnt(0)')
    for i in range(8): a(f'ds_read_b128 v[{KX+4*i}:{KX+4*i+3}], v{2 if i % 2 == 0 else 3} offset:{i*1024}')
    for i in range(8):
        a(f's_waitcnt lgkmcnt({7-i})')
        a(f's_add_u32 s22, s16, {i*4*8192}')
        a(f'buffer_store_dwordx4 v[{KX+4*i}:{KX+4*i+3}], v5, {Wd}, s22 offen {SC}')
    ctr_addr(a, 49, L.C_AT, sB); signal(a, off_sreg=49)

def part_store(a, base, ks_reg, m_reg, n_reg, epi=None, RT=2):
    g = G
    a(f's_mul_i32 s45, s{ks_reg}, {2048*640*4}'); a(f's_add_u32 s45, s45, {base}')
    a(f's_lshl_b32 s46, s{m_reg}, {6 + RT - 1}'); a(f's_lshl_b32 s47, s{g.sWM}, {5 + RT - 1}'); a('s_add_u32 s46, s46, s47'); a('s_mul_i32 s46, s46, 2560'); a('s_add_u32 s45, s45, s46')
    a(f's_lshl_b32 s46, s{n_reg}, 9'); a('s_add_u32 s45, s45, s46'); a(f's_lshl_b32 s46, s{g.sWN}, 8'); a('s_add_u32 s45, s45, s46')
    epi_T_f32(a, 2560, 45, epi, RT)

def task_wo(a, fail):
    g = G
    ctr_addr(a, 49, L.C_AT, sB); wait_ctr(a, 49, 32, fail)
    load_ptr(a, g.SB, 'Wo', 4096*640*2)
    a(f's_and_b32 s42, s{sSub}, {WOS-1}'); a(f's_lshr_b32 s41, s{sSub}, {WOS.bit_length()-1}')
    gemm_common(a, 8192, 1280)
    KS = 4096 // WOS
    a(f's_lshl_b32 s{g.sT0}, s{sB}, 7'); a(f's_lshl_b32 s{g.sT1}, s{g.sW}, 5'); a(f's_add_u32 s{g.sT0}, s{g.sT0}, s{g.sT1}')
    a(f's_lshl_b32 s{g.sAoff}, s{g.sT0}, 13'); a(f's_add_u32 s{g.sAoff}, s{g.sAoff}, {L.O}')
    a(f's_mul_i32 s{g.sT1}, s42, {KS*2}'); a(f's_add_u32 s{g.sAoff}, s{g.sAoff}, s{g.sT1}')
    a(f's_mul_i32 s{g.sBoff}, s42, {KS*1280}'); a(f's_lshl_b32 s{g.sT1}, s41, 8'); a(f's_add_u32 s{g.sBoff}, s{g.sBoff}, s{g.sT1}')
    a(f's_mul_i32 s{g.sT1}, s{g.sW}, {16*1280}'); a(f's_add_u32 s{g.sBoff}, s{g.sBoff}, s{g.sT1}')
    a('s_waitcnt lgkmcnt(0)')
    a('s_barrier')
    GM.mainloop(a, KS // 64, 8192, 1280, 'T')
    part_store(a, L.PART, 42, sB, 41)
    ctr_addr(a, 49, L.C_WO, sB); signal(a, off_sreg=49)

def rows16_setup(a):
    tid(a)
    a('v_lshrrev_b32 v1, 6, v0'); a('v_and_b32 v0, 63, v0')
    a(f's_lshl_b32 s41, s{sB}, 6'); a(f's_lshl_b32 s42, s{sSub}, 2'); a('s_add_u32 s41, s41, s42'); a('v_add_u32 v1, s41, v1')
    a('v_mul_u32_u24 v1, 1280, v1'); a('v_lshlrev_b32 v5, 2, v0'); a('v_add_u32 v1, v1, v5')
    a('v_lshlrev_b32 v6, 1, v1')

def wave_reduce(a, v, t):
    for sh in (8, 4, 2, 1):
        a(f'v_add_f32_dpp v{v}, v{v}, v{v} row_ror:{sh} row_mask:0xf bank_mask:0xf')
    a(f'v_mov_b32 v{t}, v{v}'); a(f'v_permlane16_swap_b32 v{v}, v{t}'); a(f'v_add_f32 v{v}, v{v}, v{t}')
    a(f'v_mov_b32 v{t}, v{v}'); a(f'v_permlane32_swap_b32 v{v}, v{t}'); a(f'v_add_f32 v{v}, v{v}, v{t}')

def ln_row(a, X, out_pack):
    a(f'v_add_f32 v2, v{X}, v{X+1}')
    for i in range(2, 10): a(f'v_add_f32 v2, v2, v{X+i}')
    wave_reduce(a, 2, 3)
    a(f'v_mul_f32 v2, {hex(f32bits(1.0/640))}, v2')
    for i in range(10): a(f'v_sub_f32 v{X+i}, v{X+i}, v2')
    a(f'v_mul_f32 v3, v{X}, v{X}')
    for i in range(1, 10): a(f'v_fmac_f32 v3, v{X+i}, v{X+i}')
    wave_reduce(a, 3, 4)
    a(f'v_mov_b32 v4, {hex(f32bits(1e-5))}')
    a(f'v_mul_f32 v3, {hex(f32bits(1.0/640))}, v3'); a('v_add_f32 v3, v3, v4'); a('v_rsq_f32 v3, v3')
    for i in range(10): a(f'v_mul_f32 v{X+i}, v{X+i}, v3')
    for i in range(5): a(f'v_cvt_pk_bf16_f32 v{out_pack+i}, v{X+2*i}, v{X+2*i+1}')

def task_ln2(a, fail):
    ctr_addr(a, 49, L.C_WO, sB); wait_ctr(a, 49, 5*WOS, fail)
    load_ptr(a, 8, 'x', 2048*640*2)
    rows16_setup(a)
    a('s_waitcnt lgkmcnt(0)')
    X = 32; PB = 48
    for c in range(5): a(f'buffer_load_dword v{8+c}, v1, s[8:11], 0 offen offset:{c*256}')
    for sp in range(WOS):
        a(f's_mov_b32 s41, {L.PART + sp*2048*640*4}')
        for c in range(5):
            b = PB + sp*10 + c*2
            a(f'buffer_load_dwordx2 v[{b}:{b+1}], v6, {WS}, s41 offen offset:{c*512}')
    a(f's_waitcnt vmcnt({5*WOS})')
    unpack(a, 8, X, 5)
    for sp in range(WOS):
        a(f's_waitcnt vmcnt({5*(WOS-1-sp)})')
        for i in range(10): a(f'v_add_f32 v{X+i}, v{X+i}, v{PB+sp*10+i}')
    a(f's_mov_b32 s41, {L.H}')
    for c in range(5): a(f'buffer_store_dwordx2 v[{X+2*c}:{X+2*c+1}], v6, {WS}, s41 offen offset:{c*512} {SC}')
    for i in range(10): a(f'v_mov_b32 v{PB+i}, v{X+i}')
    ln_row(a, PB, 8)
    a(f's_mov_b32 s41, {L.HN}')
    for c in range(5): a(f'buffer_store_dword v{8+c}, v1, {WS}, s41 offen offset:{c*256} {SC}')
    ctr_addr(a, 49, L.C_LN2, sB); signal(a, off_sreg=49)

def up_epilogue(a):
    g = G; t = g.vT
    a('s_barrier')
    a(f's_mov_b32 s48, {hex(f32bits(-1.4426950408889634))}')
    a(f'v_and_b32 v{t}, 31, v0'); a(f's_lshl_b32 s46, s{g.sWM}, 5'); a(f'v_add_u32 v{t+1}, s46, v{t}'); a(f'v_lshlrev_b32 v{t+1}, 7, v{t+1}')
    a(f'v_and_b32 v{t+6}, 7, v0'); a(f'v_lshrrev_b32 v{t+7}, 5, v0'); a(f's_lshl_b32 s47, s{g.sWN}, 2'); a(f'v_add_u32 v{t+7}, s47, v{t+7}')
    ag = g.ACC; au = g.ACC + 16
    for i in range(16):
        x = t + 2 + (i & 3)
        a(f'v_mul_f32 v{x}, s48, v{ag+i}'); a(f'v_exp_f32 v{x}, v{x}'); a(f'v_add_f32 v{x}, 1.0, v{x}'); a(f'v_rcp_f32 v{x}, v{x}')
        a(f'v_mul_f32 v{ag+i}, v{ag+i}, v{x}'); a(f'v_mul_f32 v{ag+i}, v{ag+i}, v{au+i}')
    dst = g.FA
    pack_T(a, ag, dst)
    for kk in range(2):
        a(f'v_add_u32 v{t+8}, {2*kk}, v{t+7}'); a(f'v_xor_b32 v{t+8}, v{t+8}, v{t+6}'); a(f'v_lshlrev_b32 v{t+8}, 4, v{t+8}'); a(f'v_add_u32 v{t+8}, v{t+8}, v{t+1}')
        a(f'ds_write_b128 v{t+8}, v[{dst+4*kk}:{dst+4*kk+3}]')
    a('s_waitcnt lgkmcnt(0)'); a('s_barrier')
    a(f'v_lshrrev_b32 v{t}, 3, v0'); a(f'v_and_b32 v{t+2}, 7, v0'); a(f'v_xor_b32 v{t+3}, v{t+2}, v{t}'); a(f'v_lshlrev_b32 v{t+3}, 4, v{t+3}')
    a(f'v_lshlrev_b32 v{t+4}, 7, v{t}'); a(f'v_add_u32 v{t+3}, v{t+3}, v{t+4}'); a(f's_lshl_b32 s46, s{g.sW}, 11'); a(f'v_add_u32 v{t+3}, s46, v{t+3}')
    a(f's_mov_b32 s47, 3456'); a(f'v_mul_lo_u32 v{t}, v{t}, s47'); a(f'v_lshlrev_b32 v{t+2}, 4, v{t+2}'); a(f'v_add_u32 v{t}, v{t}, v{t+2}')
    a(f's_lshl_b32 s46, s{sB}, 6'); a(f's_lshl_b32 s47, s{g.sW}, 4'); a('s_add_u32 s46, s46, s47'); a('s_mul_i32 s45, s46, 3456'); a(f's_add_u32 s45, s45, {L.ACT}')
    a(f's_lshl_b32 s46, s{sSub}, 7'); a('s_add_u32 s45, s45, s46')
    for i in range(2): a(f'ds_read_b128 v[{g.FA+4*i}:{g.FA+4*i+3}], v{t+3} offset:{i*1024}')
    for i in range(2):
        a(f's_waitcnt lgkmcnt({1-i})')
        a(f's_add_u32 s47, s45, {i*8*3456}')
        a(f'buffer_store_dwordx4 v[{g.FA+4*i}:{g.FA+4*i+3}], v{t}, {WS}, s47 offen {SC}')

def task_up(a, fail):
    g = G
    ctr_addr(a, 49, L.C_LN2, sB); wait_ctr(a, 49, 32, fail)
    load_ptr(a, g.SB, 'Wg', 640*1728*2); load_ptr(a, g.SB2, 'Wu', 640*1728*2)
    gemm_common(a, 1280, 3456, splitB=True)
    a(f's_lshl_b32 s{g.sT0}, s{sB}, 7'); a(f's_lshl_b32 s{g.sT1}, s{g.sW}, 5'); a(f's_add_u32 s{g.sT0}, s{g.sT0}, s{g.sT1}')
    a(f's_mul_i32 s{g.sAoff}, s{g.sT0}, 1280'); a(f's_add_u32 s{g.sAoff}, s{g.sAoff}, {L.HN}')
    a(f's_lshl_b32 s{g.sBoff}, s{sSub}, 7'); a(f's_mul_i32 s{g.sT1}, s{g.sW}, {16*3456}'); a(f's_add_u32 s{g.sBoff}, s{g.sBoff}, s{g.sT1}')
    a('s_waitcnt lgkmcnt(0)')
    a('s_barrier')
    GM.mainloop(a, 10, 1280, 3456, 'T', splitB=True)
    t = g.vT
    up_epilogue(a)
    ctr_addr(a, 49, L.C_UP, sB); signal(a, off_sreg=49)

def task_down(a, fail):
    g = G
    ctr_addr(a, 49, L.C_UP, sB); wait_ctr(a, 49, 27, fail)
    load_ptr(a, g.SB, 'Wd', 1728*640*2)
    a(f's_mul_i32 s41, s{sSub}, 43691'); a('s_lshr_b32 s41, s41, 17'); a('s_mul_i32 s42, s41, 3'); a(f's_sub_u32 s42, s{sSub}, s42')
    gemm_common(a, 3456, 1280)
    KS = 1728 // DNS
    a(f's_lshl_b32 s{g.sT0}, s{sB}, 7'); a(f's_lshl_b32 s{g.sT1}, s{g.sW}, 5'); a(f's_add_u32 s{g.sT0}, s{g.sT0}, s{g.sT1}')
    a(f's_mul_i32 s{g.sAoff}, s{g.sT0}, 3456'); a(f's_add_u32 s{g.sAoff}, s{g.sAoff}, {L.ACT}')
    a(f's_mul_i32 s{g.sT1}, s42, {KS*2}'); a(f's_add_u32 s{g.sAoff}, s{g.sAoff}, s{g.sT1}')
    a(f's_mul_i32 s{g.sBoff}, s42, {KS*1280}'); a(f's_lshl_b32 s{g.sT1}, s41, 8'); a(f's_add_u32 s{g.sBoff}, s{g.sBoff}, s{g.sT1}')
    a(f's_mul_i32 s{g.sT1}, s{g.sW}, {16*1280}'); a(f's_add_u32 s{g.sBoff}, s{g.sBoff}, s{g.sT1}')
    a('s_waitcnt lgkmcnt(0)')
    a('s_barrier')
    GM.mainloop(a, KS // 64, 3456, 1280, 'T')
    part_store(a, L.PART2, 42, sB, 41)
    ctr_addr(a, 49, L.C_DN, sB); signal(a, off_sreg=49)

def task_fin(a, fail):
    ctr_addr(a, 49, L.C_DN, sB); wait_ctr(a, 49, 5*DNS, fail)
    load_ptr(a, 8, 'out', 2048*640*2)
    rows16_setup(a)
    X = 32; PB = 48
    a(f's_mov_b32 s41, {L.H}')
    for c in range(5): a(f'buffer_load_dwordx2 v[{X+2*c}:{X+2*c+1}], v6, {WS}, s41 offen offset:{c*512}')
    for sp in range(DNS):
        a(f's_mov_b32 s41, {L.PART2 + sp*2048*640*4}')
        for c in range(5):
            b = PB + sp*10 + c*2
            a(f'buffer_load_dwordx2 v[{b}:{b+1}], v6, {WS}, s41 offen offset:{c*512}')
    a('s_waitcnt vmcnt(0) lgkmcnt(0)')
    for sp in range(DNS):
        for i in range(10): a(f'v_add_f32 v{X+i}, v{X+i}, v{PB+sp*10+i}')
    for i in range(5): a(f'v_cvt_pk_bf16_f32 v{8+i}, v{X+2*i}, v{X+2*i+1}')
    for c in range(5): a(f'buffer_store_dword v{8+c}, v1, s[8:11], 0 offen offset:{c*256}')


def s_wo_setup(a):
    g = G
    load_ptr(a, g.SB, 'Wo', 4096*640*2)
    a(f's_and_b32 s42, s{sSub}, {WOS-1}'); a(f's_lshr_b32 s41, s{sSub}, {WOS.bit_length()-1}')
    tid(a); GM.stat_setup(a, 8192, 1280)
    KS = 4096 // WOS
    a(f's_mul_i32 s{g.sBoff}, s42, {KS*1280}'); a(f's_lshl_b32 s{g.sT1}, s41, 8'); a(f's_add_u32 s{g.sBoff}, s{g.sBoff}, s{g.sT1}')
    a(f's_mul_i32 s{g.sT1}, s{g.sW}, {16*1280}'); a(f's_add_u32 s{g.sBoff}, s{g.sBoff}, s{g.sT1}')
    a('s_waitcnt lgkmcnt(0)')
    GM.stat_load_B(a, KS // 64, 1280)
def s_wo(a, fail):
    g = G; KS = 4096 // WOS
    ctr_addr(a, 49, L.C_AT, sB); wait_ctr(a, 49, 16, fail)
    bstamp(a, 5)
    a(f's_lshl_b32 s{g.sT0}, s{sB}, 6'); a(f's_lshl_b32 s{g.sT1}, s{g.sW}, 4'); a(f's_add_u32 s{g.sT0}, s{g.sT0}, s{g.sT1}')
    a(f's_lshl_b32 s{g.sAoff}, s{g.sT0}, 13'); a(f's_add_u32 s{g.sAoff}, s{g.sAoff}, {L.O}')
    a(f's_mul_i32 s{g.sT1}, s42, {KS*2}'); a(f's_add_u32 s{g.sAoff}, s{g.sAoff}, s{g.sT1}')
    GM.stat_mainloop(a, KS // 64, 8192)
    bstamp(a, 6)
    a('s_barrier')
    part_store(a, L.PART, 42, sB, 41, epi=0, RT=1)
    bstamp(a, 7)
    ctr_addr(a, 49, L.C_WO, sB); signal(a, off_sreg=49)
    bstamp(a, 8)

def s_up_setup(a):
    g = G
    load_ptr(a, g.SB, 'Wg', 640*1728*2); load_ptr(a, g.SB2, 'Wu', 640*1728*2)
    tid(a); GM.stat_setup(a, 1280, 3456, splitB=True)
    a(f's_lshl_b32 s{g.sBoff}, s{sSub}, 7'); a(f's_mul_i32 s{g.sT1}, s{g.sW}, {16*3456}'); a(f's_add_u32 s{g.sBoff}, s{g.sBoff}, s{g.sT1}')
    a('s_waitcnt lgkmcnt(0)')
    GM.stat_load_B(a, 10, 3456, splitB=True)
def s_up(a, fail):
    g = G
    ctr_addr(a, 49, L.C_LN2, sB); wait_ctr(a, 49, 16, fail)
    bstamp(a, 5)
    a(f's_lshl_b32 s{g.sT0}, s{sB}, 6'); a(f's_lshl_b32 s{g.sT1}, s{g.sW}, 4'); a(f's_add_u32 s{g.sT0}, s{g.sT0}, s{g.sT1}')
    a(f's_mul_i32 s{g.sAoff}, s{g.sT0}, 1280'); a(f's_add_u32 s{g.sAoff}, s{g.sAoff}, {L.HN}')
    GM.stat_mainloop(a, 10, 1280)
    bstamp(a, 6)
    up_epilogue(a)
    bstamp(a, 7)
    ctr_addr(a, 49, L.C_UP, sB); signal(a, off_sreg=49)
    bstamp(a, 8)

def s_down_setup(a):
    g = G
    load_ptr(a, g.SB, 'Wd', 1728*640*2)
    a(f's_mul_i32 s41, s{sSub}, 43691'); a('s_lshr_b32 s41, s41, 17'); a('s_mul_i32 s42, s41, 3'); a(f's_sub_u32 s42, s{sSub}, s42')
    tid(a); GM.stat_setup(a, 3456, 1280)
    KS = 1728 // DNS
    a(f's_mul_i32 s{g.sBoff}, s42, {KS*1280}'); a(f's_lshl_b32 s{g.sT1}, s41, 8'); a(f's_add_u32 s{g.sBoff}, s{g.sBoff}, s{g.sT1}')
    a(f's_mul_i32 s{g.sT1}, s{g.sW}, {16*1280}'); a(f's_add_u32 s{g.sBoff}, s{g.sBoff}, s{g.sT1}')
    a('s_waitcnt lgkmcnt(0)')
    GM.stat_load_B(a, KS // 64, 1280)
def s_down(a, fail):
    g = G; KS = 1728 // DNS
    ctr_addr(a, 49, L.C_UP, sB); wait_ctr(a, 49, 27, fail)
    bstamp(a, 5)
    a(f's_lshl_b32 s{g.sT0}, s{sB}, 6'); a(f's_lshl_b32 s{g.sT1}, s{g.sW}, 4'); a(f's_add_u32 s{g.sT0}, s{g.sT0}, s{g.sT1}')
    a(f's_mul_i32 s{g.sAoff}, s{g.sT0}, 3456'); a(f's_add_u32 s{g.sAoff}, s{g.sAoff}, {L.ACT}')
    a(f's_mul_i32 s{g.sT1}, s42, {KS*2}'); a(f's_add_u32 s{g.sAoff}, s{g.sAoff}, s{g.sT1}')
    GM.stat_mainloop(a, KS // 64, 3456)
    bstamp(a, 6)
    a('s_barrier')
    part_store(a, L.PART2, 42, sB, 41, epi=0, RT=1)
    bstamp(a, 7)
    ctr_addr(a, 49, L.C_DN, sB); signal(a, off_sreg=49)
    bstamp(a, 8)


def n_down_setup(a):
    g = G
    load_ptr(a, g.SB, 'Wd', 1728*640*2); load_ptr(a, g.SO, 'out', 2048*640*2)
    a('v_mov_b32 v31, v254')
    T.tid = 31; T.a = 29; T.b = 30
    tid(a); GM.narrow_setup(a, 3456, 1280)
    a(f's_lshl_b32 s{g.sBoff}, s{sSub}, 7'); a(f's_mul_i32 s{g.sT1}, s{g.sW}, {16*1280}'); a(f's_add_u32 s{g.sBoff}, s{g.sBoff}, s{g.sT1}')
    a('s_waitcnt lgkmcnt(0)')
    GM.narrow_load_B(a, 27, 1280)
def n_down(a, fail):
    g = G; t = g.vT
    ctr_addr(a, 49, L.C_UP, sB); wait_ctr(a, 49, 27, fail)
    bstamp(a, 5)
    a(f's_lshl_b32 s{g.sT0}, s{sB}, 6'); a(f's_lshl_b32 s{g.sT1}, s{g.sW}, 4'); a(f's_add_u32 s{g.sT0}, s{g.sT0}, s{g.sT1}')
    a(f's_mul_i32 s{g.sAoff}, s{g.sT0}, 3456'); a(f's_add_u32 s{g.sAoff}, s{g.sAoff}, {L.ACT}')
    GM.narrow_mainloop(a, 27, 3456)
    bstamp(a, 6)
    a(f'v_and_b32 v{t}, 31, v0'); a(f'v_mul_u32_u24 v{t+2}, 2560, v{t}'); a(f'v_lshrrev_b32 v{t+1}, 5, v0'); a(f'v_lshlrev_b32 v{t+3}, 4, v{t+1}'); a(f'v_add_u32 v{t+2}, v{t+2}, v{t+3}')
    a(f'v_mul_u32_u24 v{t}, 1280, v{t}'); a(f'v_add_u32 v{t}, v{t}, v{t+3}')
    a(f's_lshl_b32 s46, s{sB}, 6'); a(f's_lshl_b32 s47, s{g.sWM}, 5'); a('s_add_u32 s46, s46, s47')
    a('s_mul_i32 s45, s46, 2560'); a(f's_add_u32 s45, s45, {L.H}'); a(f's_lshl_b32 s47, s{sSub}, 8'); a('s_add_u32 s45, s45, s47'); a(f's_lshl_b32 s47, s{g.sWN}, 7'); a('s_add_u32 s45, s45, s47')
    a('s_mul_i32 s44, s46, 1280'); a(f's_lshl_b32 s47, s{sSub}, 7'); a('s_add_u32 s44, s44, s47'); a(f's_lshl_b32 s47, s{g.sWN}, 6'); a('s_add_u32 s44, s44, s47')
    hb = g.FA
    for q in range(4): a(f'buffer_load_dwordx4 v[{hb+4*q}:{hb+4*q+3}], v{t+2}, {WS}, s45 offen offset:{q*32}')
    a('s_waitcnt vmcnt(0)')
    for i in range(16): a(f'v_add_f32 v{g.ACC+i}, v{g.ACC+i}, v{hb+i}')
    pack_T(a, g.ACC, g.FA + 16)
    d = g.FA + 16
    a(f'buffer_store_dwordx4 v[{d}:{d+3}], v{t}, s[{g.SO}:{g.SO+3}], s44 offen')
    a(f'buffer_store_dwordx4 v[{d+4}:{d+7}], v{t}, s[{g.SO}:{g.SO+3}], s44 offen offset:32')
    bstamp(a, 7)

TASKS = [('attn', 32), ('wo', 5*WOS), ('ln2', 8), ('up', 27), ('down', 5*DNS), ('fin', 8)]
PERB = sum(n for _, n in TASKS)
ROLES = [('attn', 16, 2), ('wo', 40, 1), ('ln2', 16, 1), ('up', 27, 2), ('down', 10, 4)]

WTRACE = False
def wstamp(a, i):
    if not WTRACE: return
    a('s_memrealtime s[58:59]'); a('s_waitcnt lgkmcnt(0)')
    a(f's_lshl_b32 s56, s{sWI}, 6'); a(f's_add_u32 s56, s56, {L.TRACE + 16384 + 4*i}')
    a(f'v_mov_b32 v{T.a}, s58'); a(f'v_mov_b32 v{T.b}, 0')
    a(f'buffer_store_dword v{T.a}, v{T.b}, {WS}, s56 offen')

def bstamp(a, i):
    if not WTRACE: return
    sk = a.newlabel('bs')
    a(f's_cmp_lg_u32 s{sB}, {L.NBLK - 1}'); a(f's_cbranch_scc1 {sk}')
    wstamp(a, i)
    a.label(sk)

def emit_worker(a, fail, end):
    a.label('worker')

    a('v_mov_b32 v254, v0')
    load_ptr(a, 4, 'ws', L.WS_BYTES)
    load_ptr(a, S_DBG, 'dbg', 256)
    a(f's_mov_b32 s{sSpin}, 0')
    a('s_waitcnt lgkmcnt(0)')
    wstamp(a, 0)
    nz = a.newlabel('nz')
    a(f's_cmp_lg_u32 s{sWI}, 0'); a(f's_cbranch_scc1 {nz}')
    a('v_lshlrev_b32 v1, 4, v0'); a('v_mov_b64 v[4:5], 0'); a('v_mov_b64 v[6:7], 0')
    for i in range(8):
        a(f's_mov_b32 s41, {L.SYNC + i*4096}')
        a(f'buffer_store_dwordx4 v[4:7], v1, {WS}, s41 offen sc1')
    signal(a, off_imm=12, dbg=True)
    a.label(nz)
    nl = a.newlabel('nl'); nf = a.newlabel('nf')
    a(f's_cmp_ge_u32 s{sWI}, 128'); a(f's_cbranch_scc1 {nl}')
    a(f's_mov_b32 s40, s{sWI}')
    task_ln1(a)
    a('s_waitcnt vmcnt(0)'); a('s_barrier')
    sk = a.newlabel('l1s')
    a('v_cmp_eq_u32 vcc, 0, v254'); a('s_and_saveexec_b64 s[56:57], vcc'); a(f's_cbranch_execz {sk}')
    a(f's_lshr_b32 s41, s{sWI}, 3'); a('s_lshl_b32 s41, s41, 2'); a('s_add_u32 s41, s41, 128')
    a('v_mov_b32 v250, 1'); a('v_mov_b32 v251, 0')
    a(f'buffer_atomic_add v250, v251, {DBG}, s41 offen')
    a.label(sk)
    a('s_mov_b64 exec, s[56:57]')
    a(f's_branch {nf}')
    a.label(nl)
    a('v_lshlrev_b32 v1, 4, v254'); a('v_mov_b64 v[4:5], -1'); a('v_mov_b64 v[6:7], -1')
    for base, total in ((L.P1, 2*L.P1SZ), (L.MEMF, 2*L.MEMSZ), (L.MEMX, 64*L.MEMSZ), (L.VM, 64*32*2048), (L.KM, 64*32*4096)):
        nchunk = total // 4096
        lp_ = a.newlabel('fl'); dn_ = a.newlabel('fd')
        a(f's_sub_u32 s40, s{sWI}, 128')
        a.label(lp_)
        a(f's_cmp_ge_u32 s40, {nchunk}'); a(f's_cbranch_scc1 {dn_}')
        a('s_lshl_b32 s41, s40, 12'); a(f's_add_u32 s41, s41, {base}')
        a(f'buffer_store_dwordx4 v[4:7], v1, {WS}, s41 offen sc1')
        a('s_add_u32 s40, s40, 64'); a(f's_branch {lp_}')
        a.label(dn_)
    signal(a, off_imm=16, dbg=True)
    a.label(nf)
    lp = a.newlabel('l1w'); ok = a.newlabel('l1ok')
    a('v_mov_b32 v251, 0')
    a.label(lp)
    a(f'buffer_load_dword v248, v251, {DBG}, 0 offen offset:12 sc1')
    a('s_waitcnt vmcnt(0)')
    a('v_readfirstlane_b32 s57, v248')
    a('s_cmp_ge_u32 s57, 1'); a(f's_cbranch_scc1 {ok}')
    a(f's_add_u32 s{sSpin}, s{sSpin}, 1'); a(f's_cmp_gt_u32 s{sSpin}, {SPIN_MAX}'); a(f's_cbranch_scc1 {fail}')
    a('s_sleep 4')
    a(f's_branch {lp}')
    a.label(ok)
    wstamp(a, 1)
    a(f's_cmp_ge_u32 s{sWI}, 96'); a('s_cselect_b32 s40, 1, 0'); a('s_cselect_b32 s41, 96, 0'); a(f's_sub_u32 s41, s{sWI}, s41')
    a('s_and_b32 s43, s41, 31'); a('s_lshr_b32 s44, s41, 5')
    qv = a.newlabel('qv'); qq = a.newlabel('qq'); qd = a.newlabel('qd')
    a('s_cmp_eq_u32 s44, 1'); a(f's_cbranch_scc1 {qv}')
    a('s_cmp_eq_u32 s44, 2'); a(f's_cbranch_scc1 {qq}')
    qkv_stat(a, 1, fail); a(f's_branch {qd}')
    a.label(qv); qkv_stat(a, 2, fail); a(f's_branch {qd}')
    a.label(qq); qkv_stat(a, 0, fail)
    a.label(qd)
    wstamp(a, 2)
    wstamp(a, 3)
    lp = a.newlabel('rzw'); ok = a.newlabel('rzok')
    a('v_mov_b32 v251, 0')
    a.label(lp)
    a(f'buffer_load_dword v248, v251, {DBG}, 0 offen offset:16 sc1')
    a('s_waitcnt vmcnt(0)')
    a('v_readfirstlane_b32 s56, v248')
    a('s_cmp_ge_u32 s56, 64'); a(f's_cbranch_scc1 {ok}')
    a(f's_add_u32 s{sSpin}, s{sSpin}, 1'); a(f's_cmp_gt_u32 s{sSpin}, {SPIN_MAX}'); a(f's_cbranch_scc1 {fail}')
    a('s_sleep 8')
    a(f's_branch {lp}')
    a.label(ok)
    fns = dict(attn=task_attn, wo=s_wo, ln2=task_ln2, up=s_up, down=n_down, fin=task_fin)
    setups = dict(wo=s_wo_setup, up=s_up_setup, down=n_down_setup)
    a(f's_mov_b32 s{sSub}, s{sWI}')
    for name, n, copies in ROLES:
        sk = a.newlabel('rk')
        a(f's_cmp_ge_u32 s{sSub}, {n*copies}'); a(f's_cbranch_scc1 {sk}')
        a(f's_mov_b32 s{sB}, 0')
        for c in range(1, copies):
            a(f's_cmp_ge_u32 s{sSub}, {n}'); a(f's_cselect_b32 s56, {n}, 0'); a(f's_cselect_b32 s57, 1, 0')
            a(f's_sub_u32 s{sSub}, s{sSub}, s56'); a(f's_add_u32 s{sB}, s{sB}, s57')
        a(f's_mov_b32 s62, s{sSub}')
        if name in setups: setups[name](a)
        lp = a.newlabel('rlp')
        a.label(lp)
        a(f's_mov_b32 s{sSub}, s62')
        fns[name](a, fail)
        a('s_barrier')
        a(f's_add_u32 s{sB}, s{sB}, {copies}')
        a(f's_cmp_lt_u32 s{sB}, {L.NBLK}'); a(f's_cbranch_scc1 {lp}')
        a('s_branch post_done')
        T.tid = 254; T.a = 250; T.b = 251
        a.label(sk)
        a(f's_sub_u32 s{sSub}, s{sSub}, {n*copies}')
    a.label('post_done')
    wstamp(a, 4)
    a('s_endpgm')

def emit_fused(a, kname):
    fail = 'fz_fail'; end = 'fz_end'
    a.label(kname)
    a(f's_cmp_ge_u32 s2, 256'); a(f's_cbranch_scc1 {end}')
    CH.decode_role(a, 'worker')
    CH.emit_chain_body(a, fail, end, CH.Stamps(True) if STAMP else None)
    emit_worker(a, fail, end)
    a.label(fail)
    a(f's_load_dwordx2 s[8:9], s[0:1], {L.KA["dbg"]}'); a('s_mov_b32 s10, 256'); a('s_mov_b32 s11, 0x00020000')
    a('s_waitcnt lgkmcnt(0)')
    a('v_mov_b32 v1, 0xdead'); a('v_mov_b32 v2, 252')
    a(f'buffer_store_dword v1, v2, s[8:11], 0 offen')
    a('s_waitcnt vmcnt(0)')
    a.label(end)
    a('s_endpgm')
```

```python
from asmlib import Asm
import layout as L

MF = 'v_mfma_f32_32x32x16_bf16'

def srd(a, base, ka_off, nbytes, add=0):
    a(f's_load_dwordx2 s[{base}:{base+1}], s[0:1], {ka_off}')
    a(f's_mov_b32 s{base+2}, {nbytes}')
    a(f's_mov_b32 s{base+3}, 0x00020000')

class G:
    SA = 4
    SB = 8
    SB2 = 12
    SO = 16
    SX = 20
    sW = 24; sWM = 25; sWN = 26; sAoff = 27; sBoff = 28; sK = 29; sT0 = 30; sT1 = 31; sT2 = 32; sM0 = 33; sN0 = 34; sLdsA = 35; sLdsB = 36; sTile = 37
    vAe = 1; vAo = 2; vB = 3
    vRA = 4
    vRB = 16
    vT = 22
    FA = 32
    FB = 48
    ACC = 64
    STAGE = 32768
    ABYTES = 16384

def setup_lane_consts(a, lda, ldb, splitB=False):
    g = G
    a(f'v_lshrrev_b32 v{g.vT}, 6, v0'); a(f'v_readfirstlane_b32 s{g.sW}, v{g.vT}'); a('v_and_b32 v0, 63, v0')
    a(f's_lshr_b32 s{g.sWM}, s{g.sW}, 1'); a(f's_and_b32 s{g.sWN}, s{g.sW}, 1')
    t = g.vT
    a(f'v_lshrrev_b32 v{t}, 3, v0'); a(f's_mov_b32 s{g.sT0}, {lda}'); a(f'v_mul_lo_u32 v{t}, v{t}, s{g.sT0}')
    a(f'v_and_b32 v{t+1}, 7, v0'); a(f'v_lshrrev_b32 v{t+2}, 4, v0'); a(f'v_xor_b32 v{t+1}, v{t+1}, v{t+2}')
    a(f'v_lshlrev_b32 v{t+2}, 4, v{t+1}'); a(f'v_add_u32 v{g.vAe}, v{t}, v{t+2}')
    a(f'v_xor_b32 v{t+1}, 4, v{t+1}'); a(f'v_lshlrev_b32 v{t+2}, 4, v{t+1}'); a(f'v_add_u32 v{g.vAo}, v{t}, v{t+2}')
    if not splitB:
        a(f'v_lshrrev_b32 v{t}, 4, v0'); a(f's_mov_b32 s{g.sT0}, {ldb}'); a(f'v_mul_lo_u32 v{t+1}, v{t}, s{g.sT0}')
        a(f'v_bfe_u32 v{t+2}, v0, 2, 2'); a(f'v_xor_b32 v{t+2}, v{t+2}, v{t}'); a(f'v_lshlrev_b32 v{t+2}, 6, v{t+2}')
        a(f'v_add_u32 v{t+1}, v{t+1}, v{t+2}'); a(f'v_and_b32 v{t+2}, 3, v0'); a(f'v_lshlrev_b32 v{t+2}, 4, v{t+2}')
        a(f'v_add_u32 v{g.vB}, v{t+1}, v{t+2}')
    else:
        a(f'v_lshrrev_b32 v{t}, 3, v0'); a(f's_mov_b32 s{g.sT0}, {ldb}'); a(f'v_mul_lo_u32 v{t+1}, v{t}, s{g.sT0}')
        a(f'v_bfe_u32 v{t+2}, v0, 2, 1'); a(f'v_bfe_u32 v{t+3}, v0, 4, 1'); a(f'v_xor_b32 v{t+2}, v{t+2}, v{t+3}'); a(f'v_lshlrev_b32 v{t+2}, 6, v{t+2}')
        a(f'v_add_u32 v{t+1}, v{t+1}, v{t+2}'); a(f'v_and_b32 v{t+2}, 3, v0'); a(f'v_lshlrev_b32 v{t+2}, 4, v{t+2}')
        a(f'v_add_u32 v{g.vB}, v{t+1}, v{t+2}')
    a(f'v_and_b32 v{t}, 31, v0'); a(f's_lshl_b32 s{g.sT0}, s{g.sWM}, 6'); a(f'v_add_u32 v{t+1}, s{g.sT0}, v{t}'); a(f'v_lshlrev_b32 v{t+1}, 7, v{t+1}')
    a(f'v_bfe_u32 v{t+2}, v0, 1, 3'); a(f'v_lshrrev_b32 v{t+3}, 5, v0')
    for j in range(4):
        a(f'v_add_u32 v{t+4}, {2*j}, v{t+3}'); a(f'v_xor_b32 v{t+4}, v{t+4}, v{t+2}'); a(f'v_lshlrev_b32 v{t+4}, 4, v{t+4}')
        for st in range(3):
            a(f'v_add_u32 v{t+5}, v{t+1}, v{t+4}')
            a(f'v_add_u32 v{g.vRA + 4*st + j}, {st*g.STAGE}, v{t+5}')
    if not splitB:
        a(f'v_lshrrev_b32 v{t}, 5, v0'); a(f'v_lshlrev_b32 v{t}, 3, v{t}'); a(f'v_bfe_u32 v{t+1}, v0, 2, 2'); a(f'v_add_u32 v{t}, v{t}, v{t+1}')
        a(f'v_lshlrev_b32 v{t}, 8, v{t}')
        a(f'v_bfe_u32 v{t+2}, v0, 4, 1'); a(f'v_lshlrev_b32 v{t+2}, 5, v{t+2}'); a(f'v_add_u32 v{t}, v{t}, v{t+2}')
        a(f'v_and_b32 v{t+2}, 3, v0'); a(f'v_lshlrev_b32 v{t+2}, 3, v{t+2}'); a(f'v_add_u32 v{t}, v{t}, v{t+2}')
        a(f's_lshl_b32 s{g.sT0}, s{g.sWN}, 1')
        for ct in range(2):
            a(f's_add_u32 s{g.sT1}, s{g.sT0}, {ct}')
            a(f'v_xor_b32 v{t+2}, s{g.sT1}, v{t+1}'); a(f'v_lshlrev_b32 v{t+2}, 6, v{t+2}'); a(f'v_add_u32 v{t+2}, v{t}, v{t+2}')
            for st in range(3):
                a(f'v_add_u32 v{g.vRB + 2*st + ct}, {st*g.STAGE + g.ABYTES}, v{t+2}')
    else:
        a(f'v_lshrrev_b32 v{t}, 5, v0'); a(f'v_lshlrev_b32 v{t}, 3, v{t}'); a(f'v_bfe_u32 v{t+1}, v0, 2, 2'); a(f'v_add_u32 v{t}, v{t}, v{t+1}')
        a(f'v_lshlrev_b32 v{t}, 7, v{t}')
        a(f'v_bfe_u32 v{t+2}, v0, 4, 1'); a(f'v_lshlrev_b32 v{t+2}, 5, v{t+2}'); a(f'v_add_u32 v{t}, v{t}, v{t+2}')
        a(f'v_and_b32 v{t+2}, 3, v0'); a(f'v_lshlrev_b32 v{t+2}, 3, v{t+2}'); a(f'v_add_u32 v{t}, v{t}, v{t+2}')
        a(f'v_bfe_u32 v{t+1}, v0, 3, 1'); a(f'v_xor_b32 v{t+1}, s{g.sWN}, v{t+1}'); a(f'v_lshlrev_b32 v{t+1}, 6, v{t+1}'); a(f'v_add_u32 v{t}, v{t}, v{t+1}')
        for ct in range(2):
            for st in range(3):
                a(f'v_add_u32 v{g.vRB + 2*st + ct}, {st*g.STAGE + g.ABYTES + ct*8192}, v{t}')

def dma_ops(kreg_off_A, kreg_off_B, stage, lda, ldb, splitB):
    g = G; ops = []
    for ii in range(4):
        v = g.vAe if ii % 2 == 0 else g.vAo
        ops.append([f's_add_u32 s{g.sT0}, s{g.sAoff}, {ii*8*lda + kreg_off_A}',
                    f's_add_u32 m0, s{g.sLdsA}, {stage*g.STAGE + ii*1024}',
                    f'buffer_load_dwordx4 v{v}, s[{g.SA}:{g.SA+3}], s{g.sT0} offen lds'])
    for ii in range(4):
        if not splitB:
            ops.append([f's_add_u32 s{g.sT0}, s{g.sBoff}, {ii*4*ldb + kreg_off_B}',
                        f's_add_u32 m0, s{g.sLdsB}, {stage*g.STAGE + g.ABYTES + ii*1024}',
                        f'buffer_load_dwordx4 v{g.vB}, s[{g.SB}:{g.SB+3}], s{g.sT0} offen lds'])
        else:
            sr = g.SB if ii < 2 else g.SB2
            ops.append([f's_add_u32 s{g.sT0}, s{g.sBoff}, {(ii&1)*8*ldb + kreg_off_B}',
                        f's_add_u32 m0, s{g.sLdsB}, {stage*g.STAGE + g.ABYTES + (ii>>1)*8192 + (ii&1)*1024}',
                        f'buffer_load_dwordx4 v{g.vB}, s[{sr}:{sr+3}], s{g.sT0} offen lds'])
    return ops

def frag_reads(stage, j, fs):
    g = G; ops = []
    for rt in range(2):
        b = g.FA + fs*8 + rt*4
        ops.append(f'ds_read_b128 v[{b}:{b+3}], v{g.vRA + 4*stage + j} offset:{rt*4096}')
    return ops
def fragB_reads(stage, j, fs, splitB):
    g = G; ops = []
    rs = 128 if splitB else 256
    for ct in range(2):
        b = g.FB + fs*8 + ct*4
        for q in range(2):
            ops.append(f'ds_read_b64_tr_b16 v[{b+2*q}:{b+2*q+1}], v{g.vRB + 2*stage + ct} offset:{(16*j + 4*q)*rs}')
    return ops

def mainloop(a, nk, lda, ldb, orient, splitB=False):
    g = G
    kA = lambda k: k * 128
    kB = lambda k: k * 64 * ldb
    def emit(x):
        for o in x:
            if isinstance(o, list): emit(o)
            else: a(o)
    for k in range(min(2, nk)):
        emit(dma_ops(kA(k), kB(k), k % 3, lda, ldb, splitB))
    for r in range(g.ACC, g.ACC + 64, 2): a(f'v_mov_b64 v[{r}:{r+1}], 0')
    a(f's_waitcnt vmcnt({8 if nk > 1 else 0})')
    a('s_barrier')
    emit(frag_reads(0, 0, 0)); emit(fragB_reads(0, 0, 0, splitB))
    for k in range(nk):
        st = k % 3
        dm = dma_ops(kA(k+2), kB(k+2), (k+2) % 3, lda, ldb, splitB) if k + 2 < nk else []
        for j in range(4):
            fs = j & 1
            nxt = []
            if j < 3:
                nxt = frag_reads(st, j+1, fs ^ 1) + fragB_reads(st, j+1, fs ^ 1, splitB)
            pre = []
            if j == 3 and k + 1 < nk:
                nd = 8 if k + 2 < nk else 0
                pre = [f's_waitcnt vmcnt({nd}) lgkmcnt(0)', 's_barrier']
                nxt = frag_reads((k+1) % 3, 0, fs ^ 1) + fragB_reads((k+1) % 3, 0, fs ^ 1, splitB)
            if not pre: a('s_waitcnt lgkmcnt(0)')
            emit(pre)
            fill = list(nxt)
            if j in (0, 1, 2) and dm:
                take = 3 if j < 2 else 2
                for _ in range(take):
                    if dm: fill.append(dm.pop(0))
            mf = []
            for rt in range(2):
                for ct in range(2):
                    acc = g.ACC + (rt*2 + ct) * 16
                    A = f'v[{g.FA + fs*8 + rt*4}:{g.FA + fs*8 + rt*4 + 3}]'; B = f'v[{g.FB + fs*8 + ct*4}:{g.FB + fs*8 + ct*4 + 3}]'
                    if orient == 'N': mf.append(f'{MF} v[{acc}:{acc+15}], {A}, {B}, v[{acc}:{acc+15}]')
                    else: mf.append(f'{MF} v[{acc}:{acc+15}], {B}, {A}, v[{acc}:{acc+15}]')
            per = (len(fill) + 3) // 4
            for i, m in enumerate(mf):
                a(m)
                emit(fill[i*per:(i+1)*per])
        assert not dm

NST = 8
ASTAGE = 16384
BTMP = 131072
def breg(k, j, ct):
    idx = (k * 4 + j) * 2 + ct
    r = idx * 4
    if r < 256: return ('a', r)
    return ('v', 128 + r - 256)
def rr4(x): return f'{x[0]}[{x[1]}:{x[1]+3}]'

def set_rt(x):
    global RT
    RT = x
RT = 1
def stat_setup(a, lda, ldb, splitB=False):
    g = G
    a(f'v_lshrrev_b32 v{g.vT}, 6, v0'); a(f'v_readfirstlane_b32 s{g.sW}, v{g.vT}'); a('v_and_b32 v0, 63, v0')
    a(f's_lshr_b32 s{g.sWM}, s{g.sW}, 1'); a(f's_and_b32 s{g.sWN}, s{g.sW}, 1')
    t = g.vT
    a(f'v_lshrrev_b32 v{t}, 3, v0'); a(f's_mov_b32 s{g.sT0}, {lda}'); a(f'v_mul_lo_u32 v{t}, v{t}, s{g.sT0}')
    a(f'v_and_b32 v{t+1}, 7, v0'); a(f'v_lshrrev_b32 v{t+2}, 4, v0'); a(f'v_xor_b32 v{t+1}, v{t+1}, v{t+2}')
    a(f'v_lshlrev_b32 v{t+2}, 4, v{t+1}'); a(f'v_add_u32 v{g.vAe}, v{t}, v{t+2}')
    a(f'v_xor_b32 v{t+1}, 4, v{t+1}'); a(f'v_lshlrev_b32 v{t+2}, 4, v{t+1}'); a(f'v_add_u32 v{g.vAo}, v{t}, v{t+2}')
    if not splitB:
        a(f'v_lshrrev_b32 v{t}, 4, v0'); a(f's_mov_b32 s{g.sT0}, {ldb}'); a(f'v_mul_lo_u32 v{t+1}, v{t}, s{g.sT0}')
        a(f'v_bfe_u32 v{t+2}, v0, 2, 2'); a(f'v_xor_b32 v{t+2}, v{t+2}, v{t}'); a(f'v_lshlrev_b32 v{t+2}, 6, v{t+2}')
        a(f'v_add_u32 v{t+1}, v{t+1}, v{t+2}'); a(f'v_and_b32 v{t+2}, 3, v0'); a(f'v_lshlrev_b32 v{t+2}, 4, v{t+2}')
        a(f'v_add_u32 v{g.vB}, v{t+1}, v{t+2}')
    else:
        a(f'v_lshrrev_b32 v{t}, 3, v0'); a(f's_mov_b32 s{g.sT0}, {ldb}'); a(f'v_mul_lo_u32 v{t+1}, v{t}, s{g.sT0}')
        a(f'v_bfe_u32 v{t+2}, v0, 2, 1'); a(f'v_bfe_u32 v{t+3}, v0, 4, 1'); a(f'v_xor_b32 v{t+2}, v{t+2}, v{t+3}'); a(f'v_lshlrev_b32 v{t+2}, 6, v{t+2}')
        a(f'v_add_u32 v{t+1}, v{t+1}, v{t+2}'); a(f'v_and_b32 v{t+2}, 3, v0'); a(f'v_lshlrev_b32 v{t+2}, 4, v{t+2}')
        a(f'v_add_u32 v{g.vB}, v{t+1}, v{t+2}')
    a(f'v_and_b32 v{t}, 31, v0'); a(f's_lshl_b32 s{g.sT0}, s{g.sWM}, {5 + (RT - 1)}'); a(f'v_add_u32 v{t+1}, s{g.sT0}, v{t}'); a(f'v_lshlrev_b32 v{t+1}, 7, v{t+1}')
    a(f'v_bfe_u32 v{t+2}, v0, 1, 3'); a(f'v_lshrrev_b32 v{t+3}, 5, v0')
    for j in range(4):
        a(f'v_add_u32 v{t+4}, {2*j}, v{t+3}'); a(f'v_xor_b32 v{t+4}, v{t+4}, v{t+2}'); a(f'v_lshlrev_b32 v{t+4}, 4, v{t+4}')
        a(f'v_add_u32 v{g.vRA + j}, v{t+1}, v{t+4}')
        a(f'v_add_u32 v{g.vRA + 4 + j}, 65536, v{g.vRA + j}')
    if not splitB:
        a(f'v_lshrrev_b32 v{t}, 5, v0'); a(f'v_lshlrev_b32 v{t}, 3, v{t}'); a(f'v_bfe_u32 v{t+1}, v0, 2, 2'); a(f'v_add_u32 v{t}, v{t}, v{t+1}')
        a(f'v_lshlrev_b32 v{t}, 8, v{t}')
        a(f'v_bfe_u32 v{t+2}, v0, 4, 1'); a(f'v_lshlrev_b32 v{t+2}, 5, v{t+2}'); a(f'v_add_u32 v{t}, v{t}, v{t+2}')
        a(f'v_and_b32 v{t+2}, 3, v0'); a(f'v_lshlrev_b32 v{t+2}, 3, v{t+2}'); a(f'v_add_u32 v{t}, v{t}, v{t+2}')
        a(f's_lshl_b32 s{g.sT0}, s{g.sWN}, 1')
        for ct in range(2):
            a(f's_add_u32 s{g.sT1}, s{g.sT0}, {ct}')
            a(f'v_xor_b32 v{t+2}, s{g.sT1}, v{t+1}'); a(f'v_lshlrev_b32 v{t+2}, 6, v{t+2}'); a(f'v_add_u32 v{t+2}, v{t}, v{t+2}')
            a(f'v_add_u32 v{g.vRB + ct}, {BTMP}, v{t+2}')
    else:
        a(f'v_lshrrev_b32 v{t}, 5, v0'); a(f'v_lshlrev_b32 v{t}, 3, v{t}'); a(f'v_bfe_u32 v{t+1}, v0, 2, 2'); a(f'v_add_u32 v{t}, v{t}, v{t+1}')
        a(f'v_lshlrev_b32 v{t}, 7, v{t}')
        a(f'v_bfe_u32 v{t+2}, v0, 4, 1'); a(f'v_lshlrev_b32 v{t+2}, 5, v{t+2}'); a(f'v_add_u32 v{t}, v{t}, v{t+2}')
        a(f'v_and_b32 v{t+2}, 3, v0'); a(f'v_lshlrev_b32 v{t+2}, 3, v{t+2}'); a(f'v_add_u32 v{t}, v{t}, v{t+2}')
        a(f'v_bfe_u32 v{t+1}, v0, 3, 1'); a(f'v_xor_b32 v{t+1}, s{g.sWN}, v{t+1}'); a(f'v_lshlrev_b32 v{t+1}, 6, v{t+1}'); a(f'v_add_u32 v{t}, v{t}, v{t+1}')
        for ct in range(2):
            a(f'v_add_u32 v{g.vRB + ct}, {BTMP + ct*8192}, v{t}')
    a(f's_lshl_b32 s{g.sLdsA}, s{g.sW}, {11 + (RT - 1)}')
    a(f's_lshl_b32 s{g.sLdsB}, s{g.sW}, {11 if splitB else 12}'); a(f's_add_u32 s{g.sLdsB}, s{g.sLdsB}, {BTMP}')

def stat_load_B(a, nk, ldb, splitB=False):
    g = G
    assert nk <= 10
    def issue(k):
        st = k * 16384 - BTMP
        for ii in range(4):
            if not splitB:
                a(f's_add_u32 s{g.sT0}, s{g.sBoff}, {ii*4*ldb + k*64*ldb}')
                a(f's_add_u32 m0, s{g.sLdsB}, {st + ii*1024}' if st + ii*1024 >= 0 else f's_sub_u32 m0, s{g.sLdsB}, {-(st + ii*1024)}')
                a(f'buffer_load_dwordx4 v{g.vB}, s[{g.SB}:{g.SB+3}], s{g.sT0} offen lds')
            else:
                sr = g.SB if ii < 2 else g.SB2
                o = st + (ii>>1)*8192 + (ii&1)*1024
                a(f's_add_u32 s{g.sT0}, s{g.sBoff}, {(ii&1)*8*ldb + k*64*ldb}')
                a(f's_add_u32 m0, s{g.sLdsB}, {o}' if o >= 0 else f's_sub_u32 m0, s{g.sLdsB}, {-o}')
                a(f'buffer_load_dwordx4 v{g.vB}, s[{sr}:{sr+3}], s{g.sT0} offen lds')
    rs = 128 if splitB else 256
    a('s_barrier')
    for k in range(nk): issue(k)
    t = g.vT
    for k in range(nk):
        a(f's_waitcnt vmcnt({4*(nk-1-k)})')
        a('s_barrier')
        d_off = k * 16384 - BTMP
        for ct in range(2):
            if d_off >= 0: a(f'v_add_u32 v{t+ct}, {d_off}, v{g.vRB + ct}')
            else: a(f'v_subrev_u32 v{t+ct}, {-d_off}, v{g.vRB + ct}')
        for j in range(4):
            for ct in range(2):
                d = breg(k, j, ct)
                for q in range(2):
                    a(f'ds_read_b64_tr_b16 {d[0]}[{d[1]+2*q}:{d[1]+2*q+1}], v{t+ct} offset:{(16*j + 4*q)*rs}')
    a('s_waitcnt lgkmcnt(0)')
    a('s_barrier')

def stat_nst(): return 10 if RT == 1 else NST
def stat_astage(): return 8192 * RT
def stat_issue_A(a, k, lda):
    g = G; st = k % stat_nst()
    for ii in range(2 * RT):
        v = g.vAe if ii % 2 == 0 else g.vAo
        a(f's_add_u32 s{g.sT0}, s{g.sAoff}, {ii*8*lda + k*128}')
        a(f's_add_u32 m0, s{g.sLdsA}, {st*stat_astage() + ii*1024}')
        a(f'buffer_load_dwordx4 v{v}, s[{g.SA}:{g.SA+3}], s{g.sT0} offen lds')

def stat_pre(a, nk, lda, lo=0, hi=None):
    hi = min(stat_nst(), nk) if hi is None else hi
    for k in range(lo, hi): stat_issue_A(a, k, lda)

def stat_mainloop(a, nk, lda, orient='T', pre=False, younger=0):
    g = G
    NS = stat_nst(); AS = stat_astage(); ND = 2 * RT
    def emit(x):
        for o in x:
            if isinstance(o, list): emit(o)
            else: a(o)
    npre = min(NS, nk)
    if not pre:
        for k in range(npre): stat_issue_A(a, k, lda)
    for r in range(g.ACC, g.ACC + 32 * RT, 2): a(f'v_mov_b64 v[{r}:{r+1}], 0')
    def areads(k, j, fs):
        off = (k % NS) * AS
        base = g.vRA + (4 if off >= 65536 else 0) + j
        return [f'ds_read_b128 v[{g.FA + fs*8 + rt*4}:{g.FA + fs*8 + rt*4 + 3}], v{base} offset:{(off & 65535) + rt*4096}' for rt in range(RT)]
    issued = npre
    def wait_stage(k):
        outstanding_after = (issued - (k + 1)) * ND
        a(f's_waitcnt vmcnt({min(63, outstanding_after)}) lgkmcnt(0)')
        a('s_barrier')
    wait_stage(0)
    emit(areads(0, 0, 0))
    for k in range(nk):
        for j in range(4):
            fs = j & 1
            nxt = []
            if j < 3:
                a('s_waitcnt lgkmcnt(0)')
                nxt = areads(k, j+1, fs ^ 1)
            elif k + 1 < nk:
                wait_stage(k + 1)
                nxt = areads(k+1, 0, fs ^ 1)
            else:
                a('s_waitcnt lgkmcnt(0)')
            mf = []
            for rt in range(RT):
                for ct in range(2):
                    acc = g.ACC + (rt*2 + ct) * 16
                    A = f'v[{g.FA + fs*8 + rt*4}:{g.FA + fs*8 + rt*4 + 3}]'; B = rr4(breg(k, j, ct))
                    if orient == 'N': mf.append(f'{MF} v[{acc}:{acc+15}], {A}, {B}, v[{acc}:{acc+15}]')
                    else: mf.append(f'{MF} v[{acc}:{acc+15}], {B}, {A}, v[{acc}:{acc+15}]')
            fill = list(nxt)
            emit(fill[:1])
            for i, m in enumerate(mf):
                a(m)
                if i + 1 < len(fill): emit([fill[i + 1]])
            if j == 3 and k + 1 < nk and issued < nk and (issued % NS) == (k % NS):
                stat_issue_A(a, issued, lda); issued += 1


def nreg(k, j):
    r = (k * 4 + j) * 4
    if r < 256: return ('a', r)
    return ('v', 80 + r - 256)
N_NS = 16
def narrow_setup(a, lda, ldb):
    global RT
    RT = 1
    stat_setup(a, lda, ldb, splitB=True)
def narrow_load_B(a, nk, ldb):
    g = G
    def issue(k):
        st = (k & 1) * 16384
        for ii in range(2):
            a(f's_add_u32 s{g.sT0}, s{g.sBoff}, {ii*8*ldb + k*64*ldb}'); a(f's_add_u32 m0, s{g.sLdsB}, {st + ii*1024}')
            a(f'buffer_load_dwordx4 v{g.vB}, s[{g.SB}:{g.SB+3}], s{g.sT0} offen lds')
    issue(0)
    for k in range(nk):
        if k + 1 < nk:
            a('s_barrier'); issue(k + 1); a('s_waitcnt vmcnt(2)')
        else:
            a('s_waitcnt vmcnt(0)')
        a('s_barrier')
        st = (k & 1) * 16384
        for j in range(4):
            d = nreg(k, j)
            for q in range(2):
                a(f'ds_read_b64_tr_b16 {d[0]}[{d[1]+2*q}:{d[1]+2*q+1}], v{g.vRB} offset:{st + (16*j + 4*q)*128}')
        a('s_waitcnt lgkmcnt(0)')
def narrow_mainloop(a, nk, lda):
    g = G; NS = N_NS; AS = 8192; ND = 2
    def issueA(k):
        st = k % NS
        for ii in range(2):
            v = g.vAe if ii % 2 == 0 else g.vAo
            a(f's_add_u32 s{g.sT0}, s{g.sAoff}, {ii*8*lda + k*128}'); a(f's_add_u32 m0, s{g.sLdsA}, {st*AS + ii*1024}')
            a(f'buffer_load_dwordx4 v{v}, s[{g.SA}:{g.SA+3}], s{g.sT0} offen lds')
    npre = min(NS, nk)
    for k in range(npre): issueA(k)
    for r in range(g.ACC, g.ACC + 16, 2): a(f'v_mov_b64 v[{r}:{r+1}], 0')
    def areads(k):
        off = (k % NS) * AS
        return [f'ds_read_b128 v[{g.FA + (k & 1)*16 + 4*j}:{g.FA + (k & 1)*16 + 4*j + 3}], v{g.vRA + (4 if off >= 65536 else 0) + j} offset:{off & 65535}' for j in range(4)]
    issued = npre
    def wait_stage(k):
        a(f's_waitcnt vmcnt({min(63, (issued - (k + 1)) * ND)}) lgkmcnt(0)'); a('s_barrier')
    wait_stage(0)
    for x in areads(0): a(x)
    for k in range(nk):
        nxt = []
        if k + 1 < nk:
            wait_stage(k + 1)
            nxt = areads(k + 1)
        else:
            a('s_waitcnt lgkmcnt(0)')
        for j in range(4):
            A = f'v[{g.FA + (k & 1)*16 + 4*j}:{g.FA + (k & 1)*16 + 4*j + 3}]'
            a(f'{MF} v[{g.ACC}:{g.ACC+15}], {rr4(nreg(k, j))}, {A}, v[{g.ACC}:{g.ACC+15}]')
            if j < len(nxt): a(nxt[j])
        if k + 1 < nk and issued < nk and (issued % NS) == (k % NS):
            issueA(issued); issued += 1
```

```python
from asmlib import Asm
import layout as L
import struct

KVB = 0
AFR = 32768
QKX = 45056
OFR = 53248
SEL = 55296
WL  = 65536
GSLEEP = int(__import__('os').environ.get('GSLEEP', 4))
LDS_BYTES = 163840
SPIN_MAX = 1 << 22
OSLEEP = int(__import__('os').environ.get('OSLEEP', 4))
HSLEEP = int(__import__('os').environ.get('HSLEEP', 24))
TRACE = L.TRACE
COARSE = True

S_WS = 4; S_T0 = 8; S_DBG = 12; S_T1 = 20; S_T2 = 24
sH = 16; sW = 17; sS = 18; sSpin = 19
sRdy = 39; sKVr = 32; sP1c = 33; sP1b = 34; sKVw = 35; sPubF = 36; sPubX = 37; sOwnO = 38
sMaskH = 40; sMaskLo = 42; sC = 44
sP1w = 45; sP1r = 46; sMr = 47; sMw = 48; sMz = 49; sTmp = 50; sTmp2 = 51; sTmp3 = 52; sOwn = 53; sKV = 54; sVMo = 55; sKMo = 56
sM2 = 57; sKsrc = 58; sVsrc = 59; sFast = 60; sThr = 61
sT = 64
W = f's[{S_WS}:{S_WS+3}]'
MH = f's[{sMaskH}:{sMaskH+1}]'; ML = f's[{sMaskLo}:{sMaskLo+1}]'
SM = 'v_smfmac_f32_16x16x64_bf16'
MF32 = 'v_mfma_f32_16x16x32_bf16'
MF16 = 'v_mfma_f32_16x16x16_bf16'

def f32bits(x): return struct.unpack('<I', struct.pack('<f', x))[0]
C_SCALE = (128 ** -0.5) * 1.4426950408889634

def srd(a, base, ka_off, nbytes):
    a(f's_load_dwordx2 s[{base}:{base+1}], s[0:1], {ka_off}')
    a(f's_mov_b32 s{base+2}, {nbytes}')
    a(f's_mov_b32 s{base+3}, 0x00020000')

def emit(a, ops):
    for x in ops:
        if isinstance(x, (list, tuple)): emit(a, x)
        else: a(x)

def load_chunks(a, chunks, vaddr, nslots=10):
    N = len(chunks); DEPTH = nslots - 1
    def issue(c):
        ch = chunks[c]; slot = (c % nslots) * 16384
        a(f's_mul_i32 s{sTmp}, s{sW}, {ch["istep"]*4}')
        a(f's_add_u32 s{sTmp}, s{sTmp}, s{ch["sbase"]}')
        a(f's_lshl_b32 s{sTmp2}, s{sW}, 12')
        for j in range(4):
            a(f's_add_u32 s{sTmp3}, s{sTmp}, {ch["soff"] + j*ch["istep"]}')
            a(f's_add_u32 m0, s{sTmp2}, {slot + j*1024}')
            a(f'buffer_load_dwordx4 v{ch["vofs"]}, s[{ch["srd"]}:{ch["srd"]+3}], s{sTmp3} offen lds')
    for c in range(min(DEPTH, N)): issue(c)
    for c in range(N):
        ch = chunks[c]; slot = (c % nslots) * 16384
        inflight = min(N, c + DEPTH) - (c + 1)
        a(f's_waitcnt vmcnt({4*inflight})')
        a('s_barrier')
        if c + DEPTH < N: issue(c + DEPTH)
        a(f'v_add_u32 v{vaddr}, {slot}, v{ch["vtr"]}')
        for o in range(2):
            dest = ch['dests'][o]
            kind, base = dest[0], int(dest[1:])
            for rho in range(4):
                imm = ch['rows'][rho] * 256 + ch['tcol'][o]
                a(f'ds_read_b64_tr_b16 {kind}[{base+2*rho}:{base+2*rho+1}], v{vaddr} offset:{imm}')
        a('s_waitcnt lgkmcnt(0)')

def spin_check(a, lbl_fail):
    a(f's_add_u32 s{sSpin}, s{sSpin}, 1')
    a(f's_cmp_gt_u32 s{sSpin}, {SPIN_MAX}')
    a(f's_cbranch_scc1 {lbl_fail}')

def maxchain(a, dst, regs, op='u32'):
    regs = list(regs)
    a(f'v_max3_{op} v{dst}, v{regs[0]}, v{regs[1]}, v{regs[2]}')
    regs = regs[3:]
    while len(regs) >= 2:
        a(f'v_max3_{op} v{dst}, v{dst}, v{regs[0]}, v{regs[1]}'); regs = regs[2:]
    if regs:
        a(f'v_max_{op} v{dst}, v{dst}, v{regs[0]}')

def gather_pre(a, sOffReg):
    a(f's_sub_u32 s{sTmp}, s{sW}, 2')
    a(f's_mul_i32 s{sTmp}, s{sTmp}, 5120')
    a(f's_add_u32 s{sTmp}, s{sTmp}, s{sOffReg}')
    a(f's_add_u32 s{sTmp2}, s{sTmp}, 4096')

def gather(a, fail, st=None, fl='sc1'):
    fine = st is not None and 'fine' in __import__('os').environ.get('EXP', '')
    lp = a.newlabel('g5')
    a.label(lp)
    for i in range(4):
        a(f'buffer_load_dwordx4 v[{72+4*i}:{75+4*i}], v2, {W}, s{sTmp} offen offset:{i*1024} {fl}')
    a(f'buffer_load_dwordx4 v[88:91], v2, {W}, s{sTmp2} offen {fl}')
    spin_check(a, fail)
    if fine: st(a, 1)
    for i in range(5):
        a(f's_waitcnt vmcnt({4-i})')
        if fine and i == 0: st(a, 2)
        if fine and i == 4: st(a, 3)
        a(f'ds_write_b128 v3, v[{72+4*i}:{75+4*i}] offset:{i*1024}')
        if i == 0:
            a(f'v_max3_u32 v92, v72, v73, v74'); a(f'v_max_u32 v92, v92, v75')
        else:
            a(f'v_max3_u32 v92, v92, v{72+4*i}, v{73+4*i}'); a(f'v_max3_u32 v92, v92, v{74+4*i}, v{75+4*i}')
    if fine: a(f's_add_u32 s{sT+4}, s{sT+4}, 63')
    a('v_cmp_eq_u32 vcc, -1, v92')
    a(f's_cbranch_vccnz {lp}')

def gather2(a, fail, fl='sc1', stag=2, res=None):
    def issue(b):
        for i in range(4):
            a(f'buffer_load_dwordx4 v[{b+4*i}:{b+3+4*i}], v2, {W}, s{sTmp} offen offset:{i*1024} {fl}')
        a(f'buffer_load_dwordx4 v[{b+16}:{b+19}], v2, {W}, s{sTmp2} offen {fl}')
    def consume(b, younger):
        for i in range(5):
            a(f's_waitcnt vmcnt({4-i+younger})')
            a(f'ds_write_b128 v3, v[{b+4*i}:{b+3+4*i}] offset:{i*1024}')
            if i == 0:
                a(f'v_max3_u32 v92, v{b}, v{b+1}, v{b+2}'); a(f'v_max_u32 v92, v92, v{b+3}')
            else:
                a(f'v_max3_u32 v92, v92, v{b+4*i}, v{b+1+4*i}'); a(f'v_max3_u32 v92, v92, v{b+2+4*i}, v{b+3+4*i}')
        a('v_cmp_eq_u32 vcc, -1, v92')
    lp = a.newlabel('g2'); done = a.newlabel('g2d')
    if res is not None: a(f's_mov_b32 s{res}, 0')
    issue(72)
    a(f's_sleep {stag}')
    a.label(lp)
    issue(40)
    spin_check(a, fail)
    consume(72, 5)
    a(f's_cbranch_vccz {done}')
    if res is not None: a(f's_add_u32 s{res}, s{res}, 1')
    issue(72)
    consume(40, 5)
    a(f's_cbranch_vccz {done}')
    if res is not None: a(f's_add_u32 s{res}, s{res}, 1')
    a(f's_branch {lp}')
    a.label(done)

def mem0_load(a, base):
    srd(a, S_T0 + 92 - 8, L.KA['mem0'], 10240) if False else None
def mem0_frags(a, phase=None):
    R = 40 if phase is None else 116
    if phase in (None, 'load'):
        sr = S_T0 if phase is None else 84
        srd(a, sr, L.KA['mem0'], 10240)
        a('v_bfe_u32 v36, v0, 2, 2'); a('v_lshlrev_b32 v36, 1, v36'); a('v_and_b32 v37, 1, v0'); a('v_add_u32 v36, v36, v37')
        a('v_mul_u32_u24 v36, 1280, v36')
        a('v_lshrrev_b32 v37, 4, v0'); a('v_lshlrev_b32 v37, 5, v37'); a('v_add_u32 v36, v36, v37')
        a('v_bfe_u32 v37, v0, 1, 1'); a('v_lshlrev_b32 v37, 2, v37'); a('v_add_u32 v36, v36, v37')
        a(f's_lshl_b32 s{sTmp}, s{sW}, 7')
        a('s_waitcnt lgkmcnt(0)')
        for t in range(3):
            a(f's_add_u32 s{sTmp2}, s{sTmp}, {t*512}')
            for j in range(4):
                a(f'buffer_load_dword v{R+4*t+j}, v36, s[{sr}:{sr+3}], s{sTmp2} offen offset:{8*j}')
        a('s_waitcnt vmcnt(0)')
    if phase in (None, 'write'):
        a(f's_lshl_b32 s{sTmp3}, s{sW}, 10')
        a(f'v_add_u32 v38, s{sTmp3}, v4')
        for t in range(3):
            a(f'ds_write_b128 v38, v[{R+4*t}:{R+3+4*t}] offset:{t*4096}')
        a('s_waitcnt lgkmcnt(0)')

class Stamps:
    sel = 0; trace = False; tstep = 20
    def __init__(self, on): self.on = on
    def val(self, a, i, sreg):
        if not (self.on and self.trace): return
        lb = a.newlabel('tv')
        a(f's_cmp_lg_u32 s{sS}, {self.tstep + 1}'); a(f's_cbranch_scc1 {lb}')
        a(f's_mov_b32 s{sT+i}, s{sreg}')
        a.label(lb)
    def __call__(self, a, i):
        if not self.on: return
        if self.trace:
            a(f's_memrealtime s[{sT+14}:{sT+15}]')
            a('s_waitcnt lgkmcnt(0)')
            lb = a.newlabel('tr')
            a(f's_cmp_lg_u32 s{sS}, {self.tstep + (1 if (i in (10, 11) and not getattr(self, "helper", False)) else 0)}'); a(f's_cbranch_scc1 {lb}')
            a(f's_mov_b32 s{sT+i}, s{sT+14}')
            a.label(lb)
            return
        a(f's_memtime s[{sT+14}:{sT+15}]')
        a('s_waitcnt lgkmcnt(0)')
        a(f's_sub_u32 s{sT+12}, s{sT+14}, s{sT+13}')
        a(f's_add_u32 s{sT+i}, s{sT+i}, s{sT+12}')
        a(f's_mov_b32 s{sT+13}, s{sT+14}')
    def dump(self, a, off):
        if not self.on: return
        if self.trace:
            a(f's_lshl_b32 s{sTmp}, s{sH}, 2'); a(f's_or_b32 s{sTmp}, s{sTmp}, s{sW}'); a(f's_lshl_b32 s{sTmp}, s{sTmp}, 6')
            a(f's_add_u32 s{sTmp}, s{sTmp}, {TRACE + off}')
            a('v_mov_b32 v36, 0')
            for i in range(12):
                a(f'v_mov_b32 v37, s{sT+i}')
                a(f'buffer_store_dword v37, v36, {W}, s{sTmp} offen offset:{4*i}')
            a('s_waitcnt vmcnt(0)')
        elif off == 0:
            sk = a.newlabel('tsk')
            a(f's_lshl_b32 s{sTmp}, s{sH}, 2'); a(f's_or_b32 s{sTmp}, s{sTmp}, s{sW}')
            a(f's_cmp_lg_u32 s{sTmp}, {self.sel}'); a(f's_cbranch_scc1 {sk}')
            a('v_mov_b32 v36, 0')
            for i in range(12):
                a(f'v_mov_b32 v37, s{sT+i}')
                a(f'buffer_store_dword v37, v36, s[{S_DBG}:{S_DBG+3}], 0 offen offset:{64+4*i}')
            a('s_waitcnt vmcnt(0)')
            a.label(sk)

def trbase(a, dst, wo):
    a('v_lshrrev_b32 v36, 4, v0'); a('v_bfe_u32 v37, v0, 2, 2')
    if not wo:
        a('v_lshlrev_b32 v38, 3, v36')
    else:
        a('v_and_b32 v38, 1, v36'); a('v_lshlrev_b32 v38, 5, v38')
        a('v_lshrrev_b32 v39, 1, v36'); a('v_lshlrev_b32 v39, 2, v39'); a('v_add_u32 v38, v38, v39')
    a('v_add_u32 v38, v38, v37'); a('v_lshlrev_b32 v38, 8, v38')
    a('v_and_b32 v39, 3, v0'); a('v_lshlrev_b32 v39, 3, v39')
    a(f'v_add_u32 v{dst}, v38, v39')
    a(f's_lshl_b32 s{sTmp}, s{sW}, {5 if wo else 6}')
    a(f'v_add_u32 v{dst}, s{sTmp}, v{dst}')

def xcc_or(a):
    skip = a.newlabel('xo')
    a(f's_cmp_lg_u32 s{sW}, 0'); a(f's_cbranch_scc1 {skip}')
    a('s_mov_b64 s[62:63], exec'); a('s_mov_b64 exec, 1')
    a('v_mov_b32 v36, 0')
    a(f's_getreg_b32 s{sTmp}, hwreg(HW_REG_XCC_ID)')
    a(f's_and_b32 s{sTmp}, s{sTmp}, 15'); a(f's_lshl_b32 s{sTmp}, 1, s{sTmp}')
    a(f'v_mov_b32 v37, s{sTmp}')
    a(f'buffer_atomic_or v37, v36, s[{S_DBG}:{S_DBG+3}], 0 offen offset:4')
    a('s_waitcnt vmcnt(0)')
    if FUSED:
        a('v_mov_b32 v37, 1')
        a(f'buffer_atomic_add v37, v36, s[{S_DBG}:{S_DBG+3}], 0 offen')
        a('s_waitcnt vmcnt(0)')
    a('s_mov_b64 exec, s[62:63]')
    a.label(skip)

def rendezvous(a, is_main, fail):
    a('s_waitcnt vmcnt(0)')
    a('s_barrier')
    skip = a.newlabel('rz'); lp = a.newlabel('rzp')
    a(f's_cmp_lg_u32 s{sW}, 0'); a(f's_cbranch_scc1 {skip}')
    a('s_mov_b64 s[62:63], exec'); a('s_mov_b64 exec, 1')
    a('v_mov_b32 v36, 0'); a('v_mov_b32 v37, 1')
    if not (FUSED and is_main):
        a(f'buffer_atomic_add v37, v36, s[{S_DBG}:{S_DBG+3}], 0 offen')
    a.label(lp)
    a(f'buffer_load_dwordx2 v[38:39], v36, s[{S_DBG}:{S_DBG+3}], 0 offen sc1')
    a(f'buffer_load_dword v40, v36, s[{S_DBG}:{S_DBG+3}], 0 offen offset:16 sc1')
    spin_check(a, fail)
    a('s_waitcnt vmcnt(0)')
    a(f'v_readfirstlane_b32 s{sTmp}, v38'); a(f'v_readfirstlane_b32 s{sTmp2}, v40')
    a(f's_cmp_lt_u32 s{sTmp}, 64'); a(f's_cbranch_scc1 {lp}')
    if FUSED:
        a(f's_cmp_lt_u32 s{sTmp2}, 64'); a(f's_cbranch_scc1 {lp}')
    a(f'v_mov_b32 v36, {QKX}')
    a('ds_write_b32 v36, v39')
    a('s_waitcnt lgkmcnt(0)')
    a('s_mov_b64 exec, s[62:63]')
    a.label(skip)
    a('s_barrier')
    a(f'v_mov_b32 v36, {QKX}')
    a('ds_read_b32 v39, v36')
    a('s_waitcnt lgkmcnt(0)')
    a(f'v_readfirstlane_b32 s{sTmp}, v39')
    a(f's_bcnt1_i32_b32 s{sTmp}, s{sTmp}')
    a(f's_cmp_eq_u32 s{sTmp}, 1')
    a(f's_cselect_b32 s{sFast}, 1, 0')

FUSED = False
def emit_chain_body(a, fail, end, st=None):
    st = st or Stamps(False)
    srd(a, S_WS, L.KA['ws'], L.WS_BYTES)
    srd(a, S_DBG, L.KA['dbg'], 256)
    if COARSE: a('s_memrealtime s[96:97]')
    a(f'v_lshrrev_b32 v1, 6, v0'); a(f'v_readfirstlane_b32 s{sW}, v1'); a(f'v_and_b32 v0, 63, v0')
    a(f's_mov_b32 s{sMaskH}, 0xCCCCCCCC'); a(f's_mov_b32 s{sMaskH+1}, 0xCCCCCCCC')
    a(f's_mov_b32 s{sMaskLo}, -1'); a(f's_mov_b32 s{sMaskLo+1}, 0')
    a(f'v_mov_b32 v1, 0x4444'); a(f'v_mov_b32 v2, 0xEEEE')
    a(f'v_cndmask_b32 v1, v1, v2, {MH}')
    a(f'v_lshlrev_b32 v2, 4, v0')
    a(f's_mov_b32 s{sC}, {hex(f32bits(C_SCALE))}')
    a(f's_mov_b32 s{sThr}, {hex(f32bits(60.0))}')
    a(f's_mov_b32 s{sSpin}, 0')
    for i in range(14): a(f's_mov_b32 s{sT+i}, 0')
    a(f'v_add_u32 v4, {AFR}, v2')
    a('s_waitcnt lgkmcnt(0)')
    a('s_cmp_eq_u32 s3, 1'); a(f's_cbranch_scc1 chain_helper')
    emit_main(a, st, fail, end)
    emit_helper(a, st, fail, end)

def decode_role(a, worker_label):
    a('s_and_b32 s3, s2, 7')
    a(f's_lshr_b32 s{sH}, s2, 3')
    a(f's_mul_i32 s60, s{sH}, 6'); a('s_add_u32 s60, s60, s3'); a('s_sub_u32 s60, s60, 2')
    a('s_cmp_gt_u32 s3, 1'); a(f's_cbranch_scc1 {worker_label}')

def emit_chain(a, timing=False, kname='chain_kernel'):
    fail = 'chain_fail'; end = 'chain_end'
    st = Stamps(timing)
    a.label(kname)
    a(f's_cmp_ge_u32 s2, 256'); a(f's_cbranch_scc1 {end}')
    decode_role(a, end)
    emit_chain_body(a, fail, end, st)
    a.label(fail)
    a('v_mov_b32 v1, 0xdead'); a('v_mov_b32 v2, 252')
    a(f'buffer_store_dword v1, v2, s[{S_DBG}:{S_DBG+3}], 0 offen')
    a('s_waitcnt vmcnt(0)')
    a.label(end)
    a('s_endpgm')

def qk_home(m, t, kb):
    idx = m * 20 + kb * 2 + t
    if idx < 32: return ('a', idx * 8)
    return ('v', 128 + (idx - 32) * 8)
def rr(home, n=8): return f'{home[0]}[{home[1]}:{home[1]+n-1}]'
def wo_pair(cg, eb):
    if eb == 0 and cg < 4: return None
    if cg < 4: return cg
    return 4 + eb

def interleave(a, mf, fill, start=0, per=1):
    fi = 0
    for i, m in enumerate(mf):
        emit(a, m if isinstance(m, list) else [m])
        if i >= start:
            for _ in range(per):
                if fi < len(fill):
                    g = fill[fi]; fi += 1
                    emit(a, g if isinstance(g, list) else [g])
    while fi < len(fill):
        g = fill[fi]; fi += 1
        emit(a, g if isinstance(g, list) else [g])

def half_add_ops(ra, rb):
    return [f'v_permlane32_swap_b32 v{ra+r}, v{rb+r}' for r in range(4)] + [f'v_add_f32 v{ra+r}, v{ra+r}, v{rb+r}' for r in range(4)]


import os
EXP = os.environ.get('EXP', '')
sTch = 30
sTag = 49; sFlip = 34; sFlipO = 34; sMf = 33; sHs = 36; sHs0 = 37; sHs1 = 38
ADAPT = os.environ.get('ADAPT', '1') == '1'
ADUP = int(os.environ.get('ADUP', 12))
HAB = int(os.environ.get('HAB', 0))
HDN = int(os.environ.get('HDN', 2))
sOwnP = 31
def zero(lo, hi): return [f'v_mov_b64 v[{r}:{r+1}], 0' for r in range(lo, hi, 2)]

def dma_w(a):
    a(f's_mov_b32 m0, s{sKVw}')
    a(f'buffer_load_dwordx4 v10, {W}, s{sKsrc} offen lds')
    a(f'buffer_load_dwordx4 v13, {W}, s{sKsrc} offen offset:1024 lds')
    a(f's_add_u32 m0, s{sKVw}, 8192')
    a(f'buffer_load_dwordx4 v2, {W}, s{sVsrc} offen lds')
    a(f'buffer_load_dwordx4 v2, {W}, s{sVsrc} offen offset:1024 lds')

def km_ops(land):
    return [f's_lshl_b32 s{sTmp3}, s{sW}, 10', f'v_add_u32 v{land+4}, s{sTmp3}, v6',
            f'ds_read_b64_tr_b16 v[{land}:{land+1}], v{land+4} offset:4096', f'ds_read_b64_tr_b16 v[{land+2}:{land+3}], v{land+4} offset:{4096+128}',
            's_waitcnt lgkmcnt(0)',
            f'buffer_store_dwordx4 v[{land}:{land+3}], v2, {W}, s{sKMo} offen sc1',
            f's_add_u32 s{sKMo}, s{sKMo}, {32*4096}']

def advance(a):
    if FUSED:
        a(f'v_readfirstlane_b32 s{sRdy}, v12'); a('v_mov_b32 v12, -1')
    a(f's_add_u32 s{sKsrc}, s{sKsrc}, {32*8192}'); a(f's_add_u32 s{sVsrc}, s{sVsrc}, {32*8192}');
    a(f's_xor_b32 s{sKVw}, s{sKVw}, 16384')
    a('v_xor_b32 v14, 16384, v14')
    a(f's_add_u32 s{sS}, s{sS}, 1')
    a(f's_add_u32 s{sVMo}, s{sVMo}, {32*2048}'); a(f's_add_u32 s{sKMo}, s{sKMo}, {32*4096}')
    a(f's_mov_b32 s{sTmp3}, s{sP1w}'); a(f's_mov_b32 s{sP1w}, s{sP1r}'); a(f's_mov_b32 s{sP1r}, s{sTmp3}')
    a(f's_add_u32 s{sMw}, s{sMw}, {L.MEMSZ}'); a(f's_xor_b32 s{sMf}, s{sMf}, {L.MEMSZ}')
    a(f's_bfe_u32 s{sTag}, s{sS}, {(1 << 16) | 1}'); a(f's_xor_b32 s{sFlip}, s{sTag}, 1')

def emit_main(a, st, fail, end):
    a.comment('======== MAIN ========')
    srd(a, S_T0, L.KA['Wq'], 640*4096*2)
    srd(a, S_T1, L.KA['Wk'], 640*4096*2)
    srd(a, S_T2, L.KA['Wo'], 640*4096*2)
    xcc_or(a)
    mem0_frags(a, 'load')
    a('v_lshrrev_b32 v36, 4, v0'); a('v_and_b32 v37, 15, v0'); a('v_lshlrev_b32 v37, 4, v37')
    a('v_lshlrev_b32 v10, 13, v36'); a('v_add_u32 v10, v10, v37')
    a('v_mul_u32_u24 v11, 1280, v36'); a('v_add_u32 v11, v11, v37')
    trbase(a, 12, False)
    trbase(a, 13, True)
    a(f's_lshl_b32 s28, s{sH}, 8')
    a(f's_mul_i32 s29, s{sH}, {128*1280}')
    a('s_waitcnt lgkmcnt(0)')
    chunks = []
    for m, s_ in ((0, S_T0), (1, S_T1)):
        for kb in range(10):
            d = [qk_home(m, t, kb) for t in range(2)]
            chunks.append(dict(srd=s_, vofs=10, sbase=28, soff=64*kb*8192, istep=4*8192, vtr=12, rows=[0, 4, 32, 36], tcol=[0, 32],
                               dests=[f'{x[0]}{x[1]}' for x in d]))
    for eb in range(2):
        for cg in range(5):
            p = wo_pair(cg, eb)
            d = [f'v{192 + (cg*2+t)*8}' if p is None else f'v{20 + (p*2+t)*8}' for t in range(2)]
            chunks.append(dict(srd=S_T2, vofs=11, sbase=29, soff=64*eb*1280 + cg*256, istep=4*1280, vtr=13, rows=[0, 16, 8, 24], tcol=[0, 128], dests=d))
    load_chunks(a, chunks, 14)
    if COARSE: a('s_memrealtime s[90:91]')
    a('s_barrier')
    a(f's_mul_i32 s{sTmp}, s{sW}, {12*2048}'); a(f's_add_u32 s{sTmp}, s{sTmp}, {WL}')
    a(f'v_add_u32 v15, s{sTmp}, v2')
    for i in range(12):
        a(f'ds_write_b128 v15, v[{20+8*i}:{23+8*i}] offset:{i*2048}')
        a(f'ds_write_b128 v15, v[{24+8*i}:{27+8*i}] offset:{i*2048+1024}')
    a('s_waitcnt lgkmcnt(0)')
    mem0_frags(a, 'write')
    a(f's_sub_u32 s{sTmp}, s{sW}, 2'); a(f's_mul_i32 s{sTmp}, s{sTmp}, 5120'); a(f'v_add_u32 v3, s{sTmp}, v4')
    a('v_and_b32 v36, 15, v0'); a('v_lshlrev_b32 v36, 5, v36'); a('v_lshrrev_b32 v37, 4, v0'); a('v_lshlrev_b32 v37, 3, v37'); a('v_add_u32 v36, v36, v37')
    a(f's_lshl_b32 s{sTmp}, s{sW}, 10'); a(f's_add_u32 s{sTmp}, s{sTmp}, {QKX}'); a(f'v_add_u32 v5, s{sTmp}, v36')
    a('v_lshrrev_b32 v36, 4, v0'); a('v_lshlrev_b32 v36, 3, v36'); a('v_bfe_u32 v37, v0, 2, 2'); a('v_add_u32 v36, v36, v37')
    a('v_lshlrev_b32 v36, 5, v36'); a('v_and_b32 v37, 3, v0'); a('v_lshlrev_b32 v37, 3, v37'); a('v_add_u32 v36, v36, v37')
    a(f'v_add_u32 v6, {QKX}, v36')
    a('v_lshrrev_b32 v36, 4, v0'); a('v_lshlrev_b32 v36, 13, v36'); a('v_and_b32 v37, 15, v0'); a('v_lshlrev_b32 v37, 4, v37'); a('v_add_u32 v7, v36, v37')
    a('v_bfe_u32 v36, v0, 2, 2'); a('v_lshlrev_b32 v36, 10, v36'); a('v_and_b32 v37, 3, v0'); a('v_lshlrev_b32 v37, 4, v37'); a('v_add_u32 v36, v36, v37')
    a('v_lshrrev_b32 v37, 4, v0'); a('v_lshlrev_b32 v37, 2, v37'); a('v_add_u32 v8, v36, v37')
    a('v_lshlrev_b32 v9, 3, v0')
    a(f's_lshr_b32 s{sTmp}, s{sW}, 1'); a(f's_lshl_b32 s{sTmp}, s{sTmp}, 10'); a(f's_and_b32 s{sTmp2}, s{sW}, 1'); a(f's_lshl_b32 s{sTmp2}, s{sTmp2}, 3')
    a(f's_add_u32 s{sTmp}, s{sTmp}, s{sTmp2}'); a(f's_add_u32 s{sTmp}, s{sTmp}, {OFR}'); a(f'v_add_u32 v11, s{sTmp}, v2')
    a('v_bfe_u32 v36, v0, 2, 1'); a('v_lshlrev_b32 v36, 4, v36'); a('v_bfe_u32 v37, v0, 3, 1'); a('v_lshlrev_b32 v37, 2, v37')
    a('v_add_u32 v36, v36, v37'); a('v_and_b32 v37, 3, v0'); a('v_add_u32 v36, v36, v37'); a('v_lshlrev_b32 v36, 13, v36')
    a('v_lshrrev_b32 v37, 4, v0'); a('v_lshlrev_b32 v37, 4, v37'); a('v_add_u32 v10, v36, v37')
    a('v_mov_b32 v12, -1')
    a('v_bfe_u32 v36, v0, 2, 2'); a('v_lshlrev_b32 v36, 1, v36'); a('v_and_b32 v37, 1, v0'); a('v_add_u32 v36, v36, v37')
    for q in range(4):
        a(f'v_mov_b32 v{16+q}, 0'); a(f'v_mov_b32 v37, 0x3F80')
        a(f'v_cmp_eq_u32 vcc, {2*q}, v36'); a(f'v_cndmask_b32 v{16+q}, v{16+q}, v37, vcc')
        a(f'v_mov_b32 v37, 0x3F800000')
        a(f'v_cmp_eq_u32 vcc, {2*q+1}, v36'); a(f'v_cndmask_b32 v{16+q}, v{16+q}, v37, vcc')
    a(f'v_add_u32 v13, {SEL}, v2')
    a('ds_write_b128 v13, v[16:19]')
    a('s_waitcnt lgkmcnt(0)')
    for q in range(4): a(f'v_mov_b32 v{16+q}, 0x3F803F80')
    a(f'v_add_u32 v14, {KVB}, v2')
    a('v_mov_b32 v121, 0'); a('v_mov_b32 v122, 0'); a(f'v_mov_b32 v124, s{sC}')
    a(f's_mov_b32 s{sOwn}, -1')
    a(f's_cmp_eq_u32 s{sW}, 0'); a(f's_cselect_b32 s{sOwn}, s{sH}, s{sOwn}')
    a(f's_add_u32 s{sTmp}, s{sH}, 32'); a(f's_cmp_lt_u32 s{sTmp}, 48'); a(f's_cselect_b32 s{sTmp}, s{sTmp}, -1')
    a(f's_cmp_eq_u32 s{sW}, 1'); a(f's_cselect_b32 s{sOwn}, s{sTmp}, s{sOwn}')
    a(f's_lshr_b32 s{sTmp}, s{sOwn}, 2'); a(f's_and_b32 s{sTmp}, s{sTmp}, 15'); a(f's_mul_i32 s{sTmp2}, s{sTmp}, 11'); a(f's_lshr_b32 s{sTmp2}, s{sTmp2}, 5')
    a(f's_mul_i32 s{sTmp3}, s{sTmp2}, 3'); a(f's_sub_u32 s{sTmp3}, s{sTmp}, s{sTmp3}')
    a(f's_lshl_b32 s{sOwnP}, s{sTmp3}, 12'); a(f's_lshl_b32 s{sTmp2}, s{sTmp2}, 8'); a(f's_add_u32 s{sOwnP}, s{sOwnP}, s{sTmp2}')
    a(f's_and_b32 s{sTmp}, s{sOwn}, 3'); a(f's_lshl_b32 s{sTmp}, s{sTmp}, 6'); a(f's_add_u32 s{sOwnP}, s{sOwnP}, s{sTmp}')
    a(f's_cmp_eq_u32 s{sOwn}, -1'); a(f's_cselect_b32 s{sOwnP}, 24576, s{sOwnP}')
    a(f's_mul_i32 s{sP1w}, s{sW}, {3*32768}'); a(f's_lshl_b32 s{sTmp}, s{sH}, 8')
    a(f's_add_u32 s{sP1w}, s{sP1w}, s{sTmp}'); a(f's_add_u32 s{sP1w}, s{sP1w}, {L.P1}')
    a(f's_add_u32 s{sP1r}, s{sP1w}, {L.P1SZ}')
    a('s_barrier')
    a(f's_lshl_b32 s{sKsrc}, s{sH}, 8'); a(f's_add_u32 s{sKsrc}, s{sKsrc}, {L.K}')
    a(f's_lshl_b32 s{sVsrc}, s{sH}, 13'); a(f's_add_u32 s{sVsrc}, s{sVsrc}, {L.VT}')
    a(f's_lshl_b32 s{sVMo}, s{sH}, 11'); a(f's_add_u32 s{sVMo}, s{sVMo}, {L.VM}'); a(f's_lshl_b32 s{sTmp}, s{sW}, 9'); a(f's_add_u32 s{sVMo}, s{sVMo}, s{sTmp}')
    a(f's_lshl_b32 s{sKMo}, s{sH}, 12'); a(f's_add_u32 s{sKMo}, s{sKMo}, {L.KM}')
    a(f's_lshl_b32 s{sTmp}, s{sW}, 10'); a(f's_add_u32 s{sKMo}, s{sKMo}, s{sTmp}')
    if FUSED:
        lp = a.newlabel('kvw'); lp2 = a.newlabel('kvw2')
        a('v_mov_b32 v36, 0')
        a.label(lp)
        a('s_sleep 2')
        a(f'buffer_load_dword v37, v36, s[{S_DBG}:{S_DBG+3}], 0 offen offset:12 sc1')
        spin_check(a, fail)
        a('s_waitcnt vmcnt(0)')
        a(f'v_readfirstlane_b32 s{sTmp}, v37'); a(f's_cmp_eq_u32 s{sTmp}, 0'); a(f's_cbranch_scc1 {lp}')
        a(f's_mov_b32 s{sTmp2}, {L.ctr(L.C_KV)}')
        a.label(lp2)
        a('s_sleep 2')
        a(f'buffer_load_dword v37, v36, {W}, s{sTmp2} offen sc1')
        spin_check(a, fail)
        a('s_waitcnt vmcnt(0)')
        a('v_cmp_gt_u32 vcc, 64, v37'); a(f's_cbranch_vccnz {lp2}')
        a(f's_mov_b32 s{sRdy}, 64')
    a('v_subrev_u32 v13, 960, v10')
    a(f's_lshr_b32 s{sTmp}, s{sW}, 1'); a(f's_lshl_b32 s{sTmp}, s{sTmp}, 16')
    a(f's_and_b32 s{sTmp2}, s{sW}, 1'); a(f's_lshl_b32 s{sTmp2}, s{sTmp2}, 7')
    a(f's_add_u32 s{sTmp}, s{sTmp}, s{sTmp2}'); a(f's_add_u32 s{sKsrc}, s{sKsrc}, s{sTmp}')
    a(f's_lshl_b32 s{sTmp}, s{sW}, 11'); a(f's_add_u32 s{sVsrc}, s{sVsrc}, s{sTmp}')
    a(f's_add_u32 s{sKVw}, s{sTmp}, {KVB}')
    dma_w(a)
    a(f's_add_u32 s{sKsrc}, s{sKsrc}, {32*8192}'); a(f's_add_u32 s{sVsrc}, s{sVsrc}, {32*8192}'); a(f's_xor_b32 s{sKVw}, s{sKVw}, 16384')
    if COARSE: a('s_memrealtime s[88:89]'); a('s_waitcnt lgkmcnt(0)')
    rendezvous(a, True, fail)
    a(f's_mov_b32 s{sS}, 0')
    a(f's_mov_b32 s{sMw}, {L.MEMSZ}'); a(f's_mov_b32 s{sMf}, {L.MEMSZ}'); a(f's_mov_b32 s{sTag}, 0'); a(f's_mov_b32 s{sFlip}, 1')
    emit(a, zero(20, 36))
    a('s_barrier')
    if st.on and not st.trace:
        a(f's_memtime s[{sT+14}:{sT+15}]'); a('s_waitcnt lgkmcnt(0)'); a(f's_mov_b32 s{sT+13}, s{sT+14}')
    if COARSE:
        a('s_memrealtime s[98:99]'); a('s_memtime s[92:93]'); a('s_waitcnt lgkmcnt(0)')
    a(f's_cmp_eq_u32 s{sFast}, 0'); a('s_cbranch_scc1 main_loop_safe')
    main_loop(a, True, st, fail)
    main_loop(a, False, st, fail)
    a.label('main_last')
    a(f's_lshl_b32 s{sKMo}, s{sH}, 12'); a(f's_add_u32 s{sKMo}, s{sKMo}, {L.KM + 63*32*4096}'); a(f's_lshl_b32 s{sTmp}, s{sW}, 10'); a(f's_add_u32 s{sKMo}, s{sKMo}, s{sTmp}')
    emit(a, km_ops(40))
    st.dump(a, 0)
    if COARSE:
        sk = a.newlabel('csk')
        a('s_memrealtime s[100:101]'); a('s_memtime s[94:95]'); a('s_waitcnt lgkmcnt(0)')
        sk0 = a.newlabel('csk0')
        a(f's_cmp_lg_u32 s{sW}, 0'); a(f's_cbranch_scc1 {sk0}')
        a('v_mov_b32 v36, 0'); a(f's_lshl_b32 s{sTmp}, s{sH}, 5'); a(f's_add_u32 s{sTmp}, s{sTmp}, {TRACE + 32768}')
        for i, r in enumerate((96, 90, 88, 98, 100)):
            a(f'v_mov_b32 v37, s{r}')
            a(f'buffer_store_dword v37, v36, {W}, s{sTmp} offen offset:{4*i}')
        a.label(sk0)
        a(f's_or_b32 s{sTmp}, s{sH}, s{sW}'); a(f's_cmp_lg_u32 s{sTmp}, 0'); a(f's_cbranch_scc1 {sk}')
        a('v_mov_b32 v36, 0')
        a('s_sub_u32 s98, s98, s96'); a('s_sub_u32 s100, s100, s96'); a('s_sub_u32 s94, s94, s92')
        a('s_sub_u32 s90, s90, s96'); a('s_sub_u32 s88, s88, s96')
        for q in range(4): a(f's_sub_u32 s{80+q}, s{80+q}, s96')
        for i, r in enumerate((98, 100, 94, 90, 88, 80, 81, 82, 83)):
            a(f'v_mov_b32 v37, s{r}')
            a(f'buffer_store_dword v37, v36, s[{S_DBG}:{S_DBG+3}], 0 offen offset:{128+4*i}')
        a('s_waitcnt vmcnt(0)')
        a.label(sk)
    a(f's_branch {end}')

def main_loop(a, fast, st, fail):
    sc = ('nt' if 'ntst' in EXP else '') if fast else 'sc1'
    tag = 'fast' if fast else 'safe'
    a.label(f'main_loop_{tag}')
    cold = []
    F = lambda kb: f'v[{72+4*kb}:{75+4*kb}]'
    if COARSE:
        nn = a.newlabel('cs')
        a(f's_and_b32 s{sTmp}, s{sS}, 15'); a(f's_cmp_lg_u32 s{sTmp}, 0'); a(f's_cbranch_scc1 {nn}')
        a('s_memrealtime s[86:87]'); a('s_waitcnt lgkmcnt(0)')
        a(f's_lshr_b32 s{sTmp}, s{sS}, 4')
        for q in range(4):
            a(f's_cmp_eq_u32 s{sTmp}, {q}'); a(f's_cselect_b32 s{80+q}, s86, s{80+q}')
        a.label(nn)
    if 'skel' in EXP:
        a(f's_cmp_ge_u32 s{sS}, 63'); a('s_cbranch_scc1 main_last')
        a(f's_sleep {int(os.environ.get("CSLEEP", 8))}')
        emit(a, zero(28, 40))
        st(a, 0)
        for qq in range(3):
            a(f'v_and_or_b32 v{28+4*qq}, v{28+4*qq}, -2, s{sTag}')
            a(f's_add_u32 s{sTmp}, s{sP1w}, {qq*32768}'); a(f'buffer_store_dwordx4 v[{28+4*qq}:{31+4*qq}], v7, {W}, s{sTmp} offen {sc}')
        a(f's_branch skel_{tag}')
    for kb in range(10):
        a(f'ds_read_b128 {F(kb)}, v4 offset:{kb*1024}')
    if FUSED:
        rok = a.newlabel('rok'); rl = a.newlabel('rl'); rs_ = a.newlabel('rs')
        a(f's_cmp_lt_u32 s{sRdy}, 64'); a(f's_cbranch_scc1 {rs_}')
        a.label(rok)
        def cold_rdy():
            a.label(rs_)
            a(f's_add_u32 s{sTmp}, s{sS}, 1'); a(f's_lshr_b32 s{sTmp}, s{sTmp}, 2'); a(f's_min_u32 s{sTmp}, s{sTmp}, 15'); a(f's_lshl_b32 s{sTmp}, s{sTmp}, 7'); a(f's_add_u32 s{sTmp}, s{sTmp}, {L.ctr(L.C_KV)}')
            a.label(rl)
            a(f'buffer_load_dword v36, v121, {W}, s{sTmp} offen sc1')
            spin_check(a, fail)
            a('s_waitcnt vmcnt(0)')
            a(f'v_readfirstlane_b32 s{sRdy}, v36')
            a(f's_cmp_lt_u32 s{sRdy}, 64'); a(f's_cbranch_scc1 {rl}')
            a(f's_branch {rok}')
        cold.append(cold_rdy)
    if 'nodma' not in EXP: dma_w(a)
    if 'ptv' in EXP:
        a(f'buffer_load_dwordx2 v[114:115], v9, {W}, s{sVMo} offen sc1')
    mf = []
    for kb in range(10):
        for t in range(2):
            ins = f'{SM} v[{20+4*t}:{23+4*t}], {F(kb)}, {rr(qk_home(0, t, kb))}, v1'
            nk = max(0, 2*(kb-6)) if kb >= 6 else 0
            mf.append([f's_waitcnt lgkmcnt({9-kb+nk})', ins] if t == 0 else ins)
    fill = [[]]*11 + [['s_waitcnt vmcnt(4)'] if 'ab' in EXP else []] + [f'ds_read_b128 v[{40+4*i}:{43+4*i}], v14 offset:{i*1024}' for i in range(8)]
    interleave(a, mf, fill)
    st(a, 0)
    mf = [f'{SM} v[{28+4*t}:{31+4*t}], {F(kb)}, {rr(qk_home(1, t, kb))}, v1' for kb in range(10) for t in range(2)]
    if 'nok1' in EXP: mf = ['s_nop 0'] * 20
    if 'halfk1' in EXP: mf = [m if i % 2 == 0 else 's_nop 0' for i, m in enumerate(mf)]
    fill = [[], [], 'v_add_f32 v20, v20, v22', 'v_add_f32 v21, v21, v23', 'v_add_f32 v24, v24, v26', 'v_add_f32 v25, v25, v27',
            'v_cvt_pk_bf16_f32 v36, v20, v21', 'v_cvt_pk_bf16_f32 v37, v24, v25',
            'ds_write2_b32 v5, v36, v36 offset0:0 offset1:1', 'ds_write2_b32 v5, v37, v37 offset0:128 offset1:129', 'v_add_u32 v39, 4096, v5', [],
            ['s_waitcnt lgkmcnt(0)', 's_barrier']]
    fill += [[f'ds_read_b64_tr_b16 v[{72+4*kp}:{73+4*kp}], v6 offset:{kp*1024}', f'ds_read_b64_tr_b16 v[{74+4*kp}:{75+4*kp}], v6 offset:{kp*1024+128}'] for kp in range(4)]
    interleave(a, mf, fill)
    st(a, 1)
    mf = []
    for kp in range(4):
        c1 = '0' if kp == 0 else 'v[20:23]'; c2 = '0' if kp == 0 else 'v[24:27]'
        mf.append((['s_waitcnt lgkmcnt(0)'] if kp == 0 else []) + [f'{MF32} v[20:23], v[{40+4*kp}:{43+4*kp}], v[{72+4*kp}:{75+4*kp}], {c1}'])
        mf.append(f'{MF32} v[24:27], v[{56+4*kp}:{59+4*kp}], v[{72+4*kp}:{75+4*kp}], {c2}')
    fill = [[f's_lshl_b32 s{sTmp}, s{sW}, 11'], ['v_add_f32 v28, v28, v30', 'v_add_f32 v29, v29, v31'], ['v_add_f32 v32, v32, v34', 'v_add_f32 v33, v33, v35'],
            ['v_cvt_pk_bf16_f32 v36, v28, v29', 'v_cvt_pk_bf16_f32 v37, v32, v33'],
            ['ds_write2_b32 v39, v36, v36 offset0:0 offset1:1', 'ds_write2_b32 v39, v37, v37 offset0:128 offset1:129'],
            [f'v_add_u32 v127, s{sTmp}, v14'], [], []]
    interleave(a, mf, fill)
    a('s_waitcnt lgkmcnt(0)')
    a('s_barrier')
    a(f's_cmp_ge_u32 s{sS}, 63'); a('s_cbranch_scc1 main_last')
    for kp in range(4):
        for rho in range(2):
            a(f'ds_read_b64_tr_b16 v[{88+4*kp+2*rho}:{89+4*kp+2*rho}], v6 offset:{4096+kp*1024+rho*128}')
    a('v_max3_f32 v126, v20, v21, v22'); a('v_max3_f32 v125, v23, v24, v25')
    a('ds_read_b128 v[104:107], v127 offset:8192'); a('ds_read_b128 v[108:111], v127 offset:9216')
    a(f'buffer_load_dwordx2 v[112:113], v9, {W}, s{sVMo} offen sc1')
    a('v_max3_f32 v126, v126, v26, v27'); a('v_max_f32 v126, v126, v125')
    a('v_mov_b32 v125, v126')
    if FUSED:
        a(f's_add_u32 s{sTmp}, s{sS}, 2'); a(f's_lshr_b32 s{sTmp}, s{sTmp}, 2'); a(f's_min_u32 s{sTmp}, s{sTmp}, 15'); a(f's_lshl_b32 s{sTmp}, s{sTmp}, 7'); a(f's_add_u32 s{sTmp}, s{sTmp}, {L.ctr(L.C_KV)}')
    else:
        a('s_nop 0')
    a('v_permlane32_swap_b32 v126, v125'); a('v_max_f32 v126, v126, v125')
    a('v_mov_b32 v125, v126')
    if FUSED: a(f'buffer_load_dword v12, v121, {W}, s{sTmp} offen sc1')
    a('v_permlane16_swap_b32 v126, v125'); a('v_max_f32 v126, v126, v125')
    a('v_mul_f32 v127, v124, v126'); a('v_sub_f32 v127, 0, v127')
    st(a, 2)
    wl = []
    for i in range(4):
        wl += [f'ds_read_b128 v[{40+8*i}:{43+8*i}], v15 offset:{i*2048}', f'ds_read_b128 v[{44+8*i}:{47+8*i}], v15 offset:{i*2048+1024}']
    for r in range(20, 28): a(f'v_fma_f32 v{r}, v{r}, v124, v127')
    mfs = []
    for kp in range(4):
        c0 = '0' if kp == 0 else 'v[28:31]'
        mfs.append([f's_waitcnt lgkmcnt({2 + 6 - 2*kp})', f'{MF32} v[28:31], v[{88+4*kp}:{91+4*kp}], v[{72+4*kp}:{75+4*kp}], {c0}'])
    fill = [[f'v_exp_f32 v{r}, v{r}', f'v_exp_f32 v{r+1}, v{r+1}'] for r in range(20, 28, 2)]
    interleave(a, mfs, fill)
    a(f'buffer_load_dwordx2 v[114:115], v9, {W}, s{sVMo} offen sc1')
    a('v_cvt_pk_bf16_f32 v116, v20, v21'); a('v_cvt_pk_bf16_f32 v117, v22, v23')
    a('v_cvt_pk_bf16_f32 v118, v24, v25'); a('v_cvt_pk_bf16_f32 v119, v26, v27')
    a('v_fma_f32 v28, v28, v124, v127'); a('v_fma_f32 v29, v29, v124, v127')
    st(a, 3)
    a('s_waitcnt lgkmcnt(0)')
    a(f'{MF32} v[32:35], v[104:107], v[116:119], 0')
    a('v_max_f32 v126, v28, v29')
    a(f'{MF32} v[36:39], v[108:111], v[116:119], 0')
    a(f'v_cmp_lt_f32 vcc, s{sThr}, v126')
    a(f'{MF32} v[20:23], v[16:19], v[116:119], 0')
    emit(a, wl[:4])
    ok = a.newlabel('thr'); thc = a.newlabel('thc')
    a(f's_cbranch_vccnz {thc}')
    a.label(ok)
    def cold_thr():
        a.label(thc)
        a('v_max_f32 v126, 0, v126')
        a('v_mov_b32 v125, v126'); a('v_permlane32_swap_b32 v126, v125'); a('v_max_f32 v126, v126, v125')
        a('v_mov_b32 v125, v126'); a('v_permlane16_swap_b32 v126, v125'); a('v_max_f32 v126, v126, v125')
        for r in range(28, 30): a(f'v_sub_f32 v{r}, v{r}, v126')
        a('v_sub_f32 v126, 0, v126'); a('v_exp_f32 v126, v126')
        a('s_nop 7')
        for r in list(range(32, 40)) + list(range(20, 24)): a(f'v_mul_f32 v{r}, v{r}, v126')
        a('s_nop 1')
        a(f's_branch {ok}')
    cold.append(cold_thr)
    a('v_exp_f32 v28, v28'); a('v_exp_f32 v29, v29')
    emit(a, wl[4:])
    a('v_cvt_pk_bf16_f32 v120, v28, v29'); a('v_cvt_pk_bf16_f32 v123, v28, v29')
    a(f'{MF16} v[20:23], v[16:17], v[120:121], v[20:23]')
    if 'nokm' not in EXP:
        a(f's_lshl_b32 s{sTmp3}, s{sW}, 10'); a(f'v_add_u32 v125, s{sTmp3}, v6')
        a('ds_read_b64_tr_b16 v[116:117], v125 offset:4096'); a(f'ds_read_b64_tr_b16 v[118:119], v125 offset:{4096+128}')
    emit(a, zero(72, 88))
    st(a, 4)
    vp = a.newlabel('vmp'); vok = a.newlabel('vmok')
    nyoung = 2 if FUSED else 1
    vc = a.newlabel('vmc')
    if 'novm' not in EXP:
        a('s_waitcnt vmcnt(1)')
        a('v_max_u32 v126, v112, v113')
        a('v_cmp_eq_u32 vcc, -1, v126'); a(f's_cbranch_vccnz {vc}')
    def cold_vm():
        a.label(vc)
        a('s_waitcnt vmcnt(0)')
        a('v_mov_b64 v[112:113], v[114:115]')
        a.label(vp)
        a('v_max_u32 v126, v112, v113')
        a('v_cmp_eq_u32 vcc, -1, v126'); a(f's_cbranch_vccz {vok}')
        a(f'buffer_load_dwordx2 v[112:113], v9, {W}, s{sVMo} offen sc1')
        spin_check(a, fail)
        a('s_waitcnt vmcnt(0)')
        a(f's_branch {vp}')
    cold.append(cold_vm)
    a.label(vok)
    st(a, 5)
    a(f'{MF16} v[32:35], v[112:113], v[120:121], v[32:35]')
    a(f'{MF16} v[36:39], v[112:113], v[122:123], v[36:39]')
    a('v_rcp_f32 v126, v20')
    a('v_mov_b32 v127, v126')
    for t, o in ((0, 32), (1, 36)):
        a(f'v_cndmask_b32 v{24+2*t}, v{o}, v{o+2}, {MH}')
        a(f'v_cndmask_b32 v{25+2*t}, v{o+1}, v{o+3}, {MH}')
        a(f'v_pk_mul_f32 v[{24+2*t}:{25+2*t}], v[{24+2*t}:{25+2*t}], v[126:127]')
        a(f'v_cvt_pk_bf16_f32 v{28+t}, v{24+2*t}, v{25+2*t}')
    a('ds_write_b64 v11, v[28:29]')
    if 'nokm' not in EXP:
        a('s_waitcnt lgkmcnt(1)')
        a(f'buffer_store_dwordx4 v[116:119], v2, {W}, s{sKMo} offen sc1')
    emit(a, zero(88, 98))
    a('s_waitcnt lgkmcnt(0)')
    a('s_barrier')
    a(f'v_add_u32 v127, {OFR}, v2')
    a('ds_read_b128 v[20:23], v127'); a('ds_read_b128 v[24:27], v127 offset:1024')
    emit(a, zero(98, 112))
    emit(a, zero(38, 40))
    st(a, 6)
    def epi(cg):
        ops = []
        for t in range(2):
            ac = 72 + 4*(cg*2+t); d = 28 + 4*(cg >> 1) + 2*(cg & 1) + t
            ops += [f'v_add_f32 v{ac}, v{ac}, v{ac+2}', f'v_add_f32 v{ac+1}, v{ac+1}, v{ac+3}', f'v_cvt_pk_bf16_f32 v{d}, v{ac}, v{ac+1}']
        if cg in (1, 3, 4):
            qq = cg >> 1; d = 28 + 4*qq
            ops += [f'v_and_or_b32 v{d}, v{d}, -2, s{sTag}', [f's_add_u32 s{sTmp}, s{sP1w}, {qq*32768}', f'buffer_store_dwordx4 v[{d}:{d+3}], v7, {W}, s{sTmp} offen {sc}']]
        return ops
    def pf(pair):
        sl = (pair & 1) * 2; ops = []
        for t in range(2):
            i = pair * 2 + t; b = 40 + 8 * (sl + t)
            ops += [f'ds_read_b128 v[{b}:{b+3}], v15 offset:{i*2048}', f'ds_read_b128 v[{b+4}:{b+7}], v15 offset:{i*2048+1024}']
        return ops
    a('s_waitcnt lgkmcnt(0)')
    pend = []
    n = 0
    for cg in range(5):
        for eb in range(2):
            p = wo_pair(cg, eb)
            A = 'v[20:23]' if eb == 0 else 'v[24:27]'
            for t in range(2):
                ac = 72 + 4*(cg*2+t)
                b = 192 + (cg*2+t)*8 if p is None else 40 + 8 * ((p & 1) * 2 + t)
                if p is not None and t == 0 and p >= 2:
                    a(f's_waitcnt lgkmcnt({4 if p < 5 else 0})')
                a(f'{SM} v[{ac}:{ac+3}], {A}, v[{b}:{b+7}], v1')
                n += 1
                if p is not None and t == 1 and p + 2 < 6:
                    emit(a, pf(p + 2))
                k = 0
                while pend and pend[0][0] <= n and k < (1 if (p is not None and t == 1 and p + 2 < 6) else 2):
                    emit(a, [pend.pop(0)[1]]); k += 1
        pend += [(n + 3, op_) for op_ in epi(cg)]
    emit(a, [x[1] for x in pend])
    if 'skel' in EXP: a.label(f'skel_{tag}')
    st(a, 7)
    gat = a.newlabel('gat'); join = a.newlabel('join'); op = a.newlabel('ownp'); nown = a.newlabel('nown'); post = a.newlabel('post')
    a(f's_cmp_ge_u32 s{sW}, 2'); a(f's_cbranch_scc1 {gat}')
    a(f's_cmp_eq_u32 s{sOwn}, -1'); a(f's_cbranch_scc1 {nown}')
    a(f'v_add_u32 v127, {SEL}, v2'); a('ds_read_b128 v[36:39], v127')
    a(f's_and_b32 s{sTmp}, s{sS}, 1'); a(f's_mul_i32 s{sTmp}, s{sTmp}, {L.P1SZ}')
    a(f's_lshl_b32 s{sTmp2}, s{sOwn}, 13'); a(f's_add_u32 s{sTmp}, s{sTmp}, s{sTmp2}')
    a(f's_add_u32 s{sTmp}, s{sTmp}, {L.P1}'); a(f's_add_u32 s{sTmp2}, s{sTmp}, 4096')
    a(f's_add_u32 s{sPubX}, s{sOwnP}, s{sMw}'); a(f's_add_u32 s{sPubX}, s{sPubX}, {L.MEMX}')
    a(f's_add_u32 s{sPubF}, s{sOwnP}, s{sMf}'); a(f's_add_u32 s{sPubF}, s{sPubF}, {L.MEMF}')
    if OSLEEP: a(f's_sleep {OSLEEP}')
    a('s_waitcnt lgkmcnt(0)')
    OL = 'nt' if ('ntld' in EXP and fast) else 'sc1'
    def oissue(b):
        for m in range(8):
            so = sTmp if m < 4 else sTmp2
            a(f'buffer_load_dwordx4 v[{b+4*m}:{b+3+4*m}], v2, {W}, s{so} offen offset:{(m&3)*1024} {OL}')
    def oconsume(b, younger):
        for m in range(8):
            a(f's_waitcnt vmcnt({7-m+younger})')
            if 'fine' in EXP and m == 0: st(a, 2)
            if 'fine' in EXP and m == 7: st(a, 3)
            c = '0' if m == 0 else 'v[20:23]'
            a(f'{MF32} v[20:23], v[{b+4*m}:{b+3+4*m}], v[36:39], {c}')
            if m == 0: a(f'v_xor_b32 v28, s{sFlipO}, v{b}')
            else: a(f'v_bitop3_b32 v28, v28, v{b+4*m}, s{sFlipO} bitop3:0x60')
        a('v_and_b32 v28, 1, v28')
        a('v_cmp_eq_u32 vcc, 0, v28')
    if 'ab' in EXP:
        od = a.newlabel('od')
        oissue(40)
        a(f's_sleep {int(os.environ.get("STAG", 2))}')
        a.label(op)
        oissue(72)
        spin_check(a, fail)
        oconsume(40, 8)
        a(f's_cbranch_vccz {od}')
        oissue(40)
        oconsume(72, 8)
        a(f's_cbranch_vccnz {op}')
        a.label(od)
    else:
        opc = a.newlabel('opc')
        a.label(op)
        oissue(40)
        if 'fine' in EXP: st(a, 1)
        oconsume(40, 0)
        if 'fine' in EXP: a(f's_add_u32 s{sT+4}, s{sT+4}, 63')
        if 'noown' not in EXP: a(f's_cbranch_vccnz {opc}')
        def cold_own():
            a.label(opc); spin_check(a, fail); a(f's_branch {op}')
        cold.append(cold_own)
    a(f'v_cndmask_b32 v24, v20, v22, {MH}'); a(f'v_cndmask_b32 v25, v21, v23, {MH}')
    a('v_cvt_pk_bf16_f32 v24, v24, v25')
    if 'nop16' not in EXP:
        a('v_mov_b32 v25, v24'); a('v_permlane16_swap_b32 v24, v25')
        a('v_mov_b32 v26, v24'); a('v_mov_b32 v27, v25')
        a('v_permlane32_swap_b32 v24, v26'); a('v_permlane32_swap_b32 v25, v27')
        a('s_mov_b64 exec, 0xffff')
        if 'xfirst' in EXP: a(f'buffer_store_dwordx4 v[24:27], v8, {W}, s{sPubX} offen sc1')
        a(f'buffer_store_dwordx4 v[24:27], v8, {W}, s{sPubF} offen {sc}')
        if 'xsecond' in EXP: a(f'buffer_store_dwordx4 v[24:27], v8, {W}, s{sPubX} offen sc1')
        a('s_mov_b64 exec, -1')
    else:
        a(f'buffer_store_dword v24, v8, {W}, s{sPubF} offen {sc}')
    st(a, 8)
    a('s_barrier')
    XD = int(os.environ.get('XDELAY', 0))
    if XD: a(f's_sleep {XD}')
    if 'xfirst' in EXP or 'xsecond' in EXP: pass
    elif 'nop16' not in EXP:
        a('s_mov_b64 exec, 0xffff')
        a(f'buffer_store_dwordx4 v[24:27], v8, {W}, s{sPubX} offen sc1')
        a('s_mov_b64 exec, -1')
    elif 'nomemx' not in EXP: a(f'buffer_store_dword v24, v8, {W}, s{sPubX} offen sc1')
    a(f's_xor_b32 s{sTmp}, s{sMf}, {L.MEMSZ}'); a(f's_add_u32 s{sTmp}, s{sTmp}, s{sOwnP}'); a(f's_add_u32 s{sTmp}, s{sTmp}, {L.MEMF}')
    a('v_mov_b32 v28, -1')
    a(f'buffer_store_dword v28, v8, {W}, s{sTmp} offen {sc}')
    a(f's_branch {post}')
    a.label(nown)
    st(a, 8)
    a('s_barrier')
    a.label(post)
    advance(a)
    emit(a, zero(20, 36))
    if 'ab' in EXP: a('s_waitcnt vmcnt(2)')
    a(f's_branch {join}')
    a.label(gat)
    a(f's_add_u32 s{sM2}, s{sMf}, {L.MEMF}')
    advance(a)
    gather_pre(a, sM2)
    emit(a, zero(20, 36))
    a('s_barrier')
    if GSLEEP: a(f's_sleep {GSLEEP}')
    st(a, 10); st.val(a, 2, sSpin)
    LF = ('nt' if ('ntld' in EXP and fast) else 'sc1')
    if 'nogather' not in EXP:
        if 'ab' in EXP: gather2(a, fail, LF, int(os.environ.get('STAG', 2)))
        else: gather(a, fail, st, LF)
    st.val(a, 3, sSpin); st(a, 11)
    a.label(join)
    a('s_waitcnt lgkmcnt(0)')
    a('s_barrier')
    st(a, 9)
    a(f's_branch main_loop_{tag}')
    for c in cold: c()

def emit_helper(a, st, fail, end):
    a.comment('======== HELPER ========')
    a.label('chain_helper')
    srd(a, S_T1, L.KA['Wv'], 640*4096*2)
    a('v_lshrrev_b32 v36, 4, v0'); a('v_and_b32 v37, 15, v0'); a('v_lshlrev_b32 v37, 4, v37')
    a('v_lshlrev_b32 v10, 13, v36'); a('v_add_u32 v10, v10, v37')
    trbase(a, 12, False)
    a(f's_lshl_b32 s30, s{sH}, 8')
    a('s_waitcnt lgkmcnt(0)')
    chunks = []
    for kb in range(10):
        chunks.append(dict(srd=S_T1, vofs=10, sbase=30, soff=64*kb*8192, istep=4*8192, vtr=12, rows=[0, 4, 32, 36], tcol=[0, 32],
                           dests=[f'a{(kb*2)*8}', f'a{(kb*2+1)*8}']))
    load_chunks(a, chunks, 14)
    a('s_barrier')
    a('v_mov_b64 v[12:13], -1'); a('v_mov_b64 v[14:15], -1')
    a('v_lshlrev_b32 v9, 3, v0')
    a(f's_lshl_b32 s{sVMo}, s{sH}, 11'); a(f's_add_u32 s{sVMo}, s{sVMo}, {L.VM}')
    if not FUSED:
        def fill(base, total):
            per = total // 32
            n = per // 4096
            a(f's_mul_i32 s{sTmp}, s{sH}, {per}'); a(f's_lshl_b32 s{sTmp2}, s{sW}, 10'); a(f's_add_u32 s{sTmp}, s{sTmp}, s{sTmp2}'); a(f's_add_u32 s{sTmp}, s{sTmp}, {base}')
            for i in range(n):
                a(f'buffer_store_dwordx4 v[12:15], v2, {W}, s{sTmp} offen sc1')
                if i < n - 1: a(f's_add_u32 s{sTmp}, s{sTmp}, 4096')
        fill(L.VM, 64 * 32 * 2048)
        fill(L.P1, 2 * L.P1SZ)
        fill(L.MEMX, 64 * L.MEMSZ)
        fill(L.MEMF, 131072)
    mem0_frags(a)
    a(f's_sub_u32 s{sTmp}, s{sW}, 2'); a(f's_mul_i32 s{sTmp}, s{sTmp}, 5120'); a(f'v_add_u32 v3, s{sTmp}, v4')
    if COARSE:
        a('s_memrealtime s[90:91]'); a('s_waitcnt lgkmcnt(0)')
        a('v_mov_b32 v36, 0'); a(f's_lshl_b32 s{sTmp}, s{sH}, 5'); a(f's_add_u32 s{sTmp}, s{sTmp}, {TRACE + 32768 + 1024}')
        a('v_mov_b32 v37, s96'); a(f'buffer_store_dword v37, v36, {W}, s{sTmp} offen'); a('v_mov_b32 v37, s90'); a(f'buffer_store_dword v37, v36, {W}, s{sTmp} offen offset:4')
    rendezvous(a, False, fail)
    a(f's_lshl_b32 s{sTmp}, s{sW}, 9'); a(f's_add_u32 s{sVMo}, s{sVMo}, s{sTmp}')
    a(f's_mov_b32 s{sS}, 0')
    a(f's_mov_b32 s{sMr}, {L.MEMX + L.MEMSZ}')
    a(f's_mov_b32 s{sHs}, {int(os.environ.get("HS0", 140))}'); a(f's_mov_b32 s{sHs1}, 1')
    emit(a, zero(28, 36))
    a('s_barrier')
    if 'skel' in EXP: a(f's_branch {end}')
    a.label('helper_loop')
    st(a, 0)
    for kb in range(10):
        a(f'ds_read_b128 v[{72+4*kb}:{75+4*kb}], v4 offset:{kb*1024}')
    for kb in range(10):
        a(f's_waitcnt lgkmcnt({9-kb})')
        for t in range(2):
            acc = 28 + t * 4; b = (kb*2+t)*8
            if 'nov' in EXP and kb > 0: continue
            a(f'{SM} v[{acc}:{acc+3}], v[{72+4*kb}:{75+4*kb}], a[{b}:{b+7}], v1')
    a('v_add_f32 v28, v28, v30'); a('v_add_f32 v29, v29, v31'); a('v_cvt_pk_bf16_f32 v44, v28, v29')
    a('v_add_f32 v32, v32, v34'); a('v_add_f32 v33, v33, v35'); a('v_cvt_pk_bf16_f32 v45, v32, v33')
    a(f'buffer_store_dwordx2 v[44:45], v9, {W}, s{sVMo} offen sc1')
    st(a, 1)
    a(f's_add_u32 s{sVMo}, s{sVMo}, {32*2048}')
    a(f's_cmp_ge_u32 s{sS}, 63'); a(f's_cbranch_scc1 helper_done')
    emit(a, zero(28, 36))
    a('s_barrier')
    hj = a.newlabel('hj')
    a(f's_cmp_lt_u32 s{sW}, 2'); a(f's_cbranch_scc1 {hj}')
    gather_pre(a, sMr)
    if 'ptx' in EXP:
        for i in range(4):
            a(f'buffer_load_dwordx4 v[{40+4*i}:{43+4*i}], v2, {W}, s{sTmp} offen offset:{i*1024} sc1')
        a(f'buffer_load_dwordx4 v[56:59], v2, {W}, s{sTmp2} offen sc1')
    if ADAPT and not HAB:
        a(f's_cmp_gt_u32 s{sHs1}, 1')
        a(f's_cselect_b32 s{sTmp3}, {ADUP + 1}, 0')
        a(f's_add_u32 s{sHs}, s{sHs}, s{sTmp3}')
        a(f's_max_u32 s{sHs}, s{sHs}, 1'); a(f's_sub_u32 s{sHs}, s{sHs}, 1'); a(f's_min_u32 s{sHs}, s{sHs}, 600')
    if ADAPT:
        sl = a.newlabel('hsl'); se = a.newlabel('hse')
        a(f's_lshr_b32 s{sTmp3}, s{sHs}, 2')
        a.label(sl)
        a(f's_cmp_eq_u32 s{sTmp3}, 0'); a(f's_cbranch_scc1 {se}')
        a('s_sleep 1')
        a(f's_sub_u32 s{sTmp3}, s{sTmp3}, 1'); a(f's_branch {sl}')
        a.label(se)
        a(f's_mov_b32 s{sHs0}, s{sSpin}')
    elif HSLEEP: a(f's_sleep {HSLEEP}')
    st(a, 2)
    if ADAPT and HAB:
        gather2(a, fail, 'sc1', HAB, res=sHs0)
        a(f's_cmp_eq_u32 s{sHs0}, 0'); a(f's_cselect_b32 s{sTmp3}, {HDN}, 0'); a(f's_max_u32 s{sHs}, s{sHs}, {HDN}'); a(f's_sub_u32 s{sHs}, s{sHs}, s{sTmp3}')
        a(f's_cmp_ge_u32 s{sHs0}, 2'); a(f's_cselect_b32 s{sTmp3}, {ADUP}, 0'); a(f's_add_u32 s{sHs}, s{sHs}, s{sTmp3}'); a(f's_min_u32 s{sHs}, s{sHs}, 600')
    else:
        gather(a, fail)
    st(a, 3)
    if ADAPT and not HAB: a(f's_sub_u32 s{sHs1}, s{sSpin}, s{sHs0}')
    a.label(hj)
    a('s_waitcnt lgkmcnt(0)')
    a('s_barrier')
    a(f's_add_u32 s{sS}, s{sS}, 1')
    a(f's_add_u32 s{sMr}, s{sMr}, {L.MEMSZ}')
    a('s_branch helper_loop')
    a.label('helper_done')
    st.dump(a, 8192)
    a(f's_branch {end}')
```

```python
from asmlib import Asm
import layout as L
import struct

KVB = 0
AFR = 32768
QKX = 45056
OFR = 53248
SEL = 55296
WL  = 65536
GSLEEP = int(__import__('os').environ.get('GSLEEP', 4))
LDS_BYTES = 163840
SPIN_MAX = 1 << 22
OSLEEP = int(__import__('os').environ.get('OSLEEP', 4))
HSLEEP = int(__import__('os').environ.get('HSLEEP', 24))
TRACE = L.TRACE
COARSE = True

S_WS = 4; S_T0 = 8; S_DBG = 12; S_T1 = 20; S_T2 = 24
sH = 16; sW = 17; sS = 18; sSpin = 19
sRdy = 39; sKVr = 32; sP1c = 33; sP1b = 34; sKVw = 35; sPubF = 36; sPubX = 37; sOwnO = 38
sMaskH = 40; sMaskLo = 42; sC = 44
sP1w = 45; sP1r = 46; sMr = 47; sMw = 48; sMz = 49; sTmp = 50; sTmp2 = 51; sTmp3 = 52; sOwn = 53; sKV = 54; sVMo = 55; sKMo = 56
sM2 = 57; sKsrc = 58; sVsrc = 59; sFast = 60; sThr = 61
sT = 64
W = f's[{S_WS}:{S_WS+3}]'
MH = f's[{sMaskH}:{sMaskH+1}]'; ML = f's[{sMaskLo}:{sMaskLo+1}]'
SM = 'v_smfmac_f32_16x16x64_bf16'
MF32 = 'v_mfma_f32_16x16x32_bf16'
MF16 = 'v_mfma_f32_16x16x16_bf16'

def f32bits(x): return struct.unpack('<I', struct.pack('<f', x))[0]
C_SCALE = (128 ** -0.5) * 1.4426950408889634

def srd(a, base, ka_off, nbytes):
    a(f's_load_dwordx2 s[{base}:{base+1}], s[0:1], {ka_off}')
    a(f's_mov_b32 s{base+2}, {nbytes}')
    a(f's_mov_b32 s{base+3}, 0x00020000')

def emit(a, ops):
    for x in ops:
        if isinstance(x, (list, tuple)): emit(a, x)
        else: a(x)

def load_chunks(a, chunks, vaddr, nslots=10):
    N = len(chunks); DEPTH = nslots - 1
    def issue(c):
        ch = chunks[c]; slot = (c % nslots) * 16384
        a(f's_mul_i32 s{sTmp}, s{sW}, {ch["istep"]*4}')
        a(f's_add_u32 s{sTmp}, s{sTmp}, s{ch["sbase"]}')
        a(f's_lshl_b32 s{sTmp2}, s{sW}, 12')
        for j in range(4):
            a(f's_add_u32 s{sTmp3}, s{sTmp}, {ch["soff"] + j*ch["istep"]}')
            a(f's_add_u32 m0, s{sTmp2}, {slot + j*1024}')
            a(f'buffer_load_dwordx4 v{ch["vofs"]}, s[{ch["srd"]}:{ch["srd"]+3}], s{sTmp3} offen lds')
    for c in range(min(DEPTH, N)): issue(c)
    for c in range(N):
        ch = chunks[c]; slot = (c % nslots) * 16384
        inflight = min(N, c + DEPTH) - (c + 1)
        a(f's_waitcnt vmcnt({4*inflight})')
        a('s_barrier')
        if c + DEPTH < N: issue(c + DEPTH)
        a(f'v_add_u32 v{vaddr}, {slot}, v{ch["vtr"]}')
        for o in range(2):
            dest = ch['dests'][o]
            kind, base = dest[0], int(dest[1:])
            for rho in range(4):
                imm = ch['rows'][rho] * 256 + ch['tcol'][o]
                a(f'ds_read_b64_tr_b16 {kind}[{base+2*rho}:{base+2*rho+1}], v{vaddr} offset:{imm}')
        a('s_waitcnt lgkmcnt(0)')

def spin_check(a, lbl_fail):
    a(f's_add_u32 s{sSpin}, s{sSpin}, 1')
    a(f's_cmp_gt_u32 s{sSpin}, {SPIN_MAX}')
    a(f's_cbranch_scc1 {lbl_fail}')

def maxchain(a, dst, regs, op='u32'):
    regs = list(regs)
    a(f'v_max3_{op} v{dst}, v{regs[0]}, v{regs[1]}, v{regs[2]}')
    regs = regs[3:]
    while len(regs) >= 2:
        a(f'v_max3_{op} v{dst}, v{dst}, v{regs[0]}, v{regs[1]}'); regs = regs[2:]
    if regs:
        a(f'v_max_{op} v{dst}, v{dst}, v{regs[0]}')

def gather_pre(a, sOffReg):
    a(f's_sub_u32 s{sTmp}, s{sW}, 2')
    a(f's_mul_i32 s{sTmp}, s{sTmp}, 5120')
    a(f's_add_u32 s{sTmp}, s{sTmp}, s{sOffReg}')
    a(f's_add_u32 s{sTmp2}, s{sTmp}, 4096')

def gather(a, fail, st=None, fl='sc1'):
    fine = st is not None and 'fine' in __import__('os').environ.get('EXP', '')
    lp = a.newlabel('g5')
    a.label(lp)
    for i in range(4):
        a(f'buffer_load_dwordx4 v[{72+4*i}:{75+4*i}], v2, {W}, s{sTmp} offen offset:{i*1024} {fl}')
    a(f'buffer_load_dwordx4 v[88:91], v2, {W}, s{sTmp2} offen {fl}')
    spin_check(a, fail)
    if fine: st(a, 1)
    for i in range(5):
        a(f's_waitcnt vmcnt({4-i})')
        if fine and i == 0: st(a, 2)
        if fine and i == 4: st(a, 3)
        a(f'ds_write_b128 v3, v[{72+4*i}:{75+4*i}] offset:{i*1024}')
        if i == 0:
            a(f'v_max3_u32 v92, v72, v73, v74'); a(f'v_max_u32 v92, v92, v75')
        else:
            a(f'v_max3_u32 v92, v92, v{72+4*i}, v{73+4*i}'); a(f'v_max3_u32 v92, v92, v{74+4*i}, v{75+4*i}')
    if fine: a(f's_add_u32 s{sT+4}, s{sT+4}, 63')
    a('v_cmp_eq_u32 vcc, -1, v92')
    a(f's_cbranch_vccnz {lp}')

def gather2(a, fail, fl='sc1', stag=2, res=None):
    def issue(b):
        for i in range(4):
            a(f'buffer_load_dwordx4 v[{b+4*i}:{b+3+4*i}], v2, {W}, s{sTmp} offen offset:{i*1024} {fl}')
        a(f'buffer_load_dwordx4 v[{b+16}:{b+19}], v2, {W}, s{sTmp2} offen {fl}')
    def consume(b, younger):
        for i in range(5):
            a(f's_waitcnt vmcnt({4-i+younger})')
            a(f'ds_write_b128 v3, v[{b+4*i}:{b+3+4*i}] offset:{i*1024}')
            if i == 0:
                a(f'v_max3_u32 v92, v{b}, v{b+1}, v{b+2}'); a(f'v_max_u32 v92, v92, v{b+3}')
            else:
                a(f'v_max3_u32 v92, v92, v{b+4*i}, v{b+1+4*i}'); a(f'v_max3_u32 v92, v92, v{b+2+4*i}, v{b+3+4*i}')
        a('v_cmp_eq_u32 vcc, -1, v92')
    lp = a.newlabel('g2'); done = a.newlabel('g2d')
    if res is not None: a(f's_mov_b32 s{res}, 0')
    issue(72)
    a(f's_sleep {stag}')
    a.label(lp)
    issue(40)
    spin_check(a, fail)
    consume(72, 5)
    a(f's_cbranch_vccz {done}')
    if res is not None: a(f's_add_u32 s{res}, s{res}, 1')
    issue(72)
    consume(40, 5)
    a(f's_cbranch_vccz {done}')
    if res is not None: a(f's_add_u32 s{res}, s{res}, 1')
    a(f's_branch {lp}')
    a.label(done)

def mem0_load(a, base):
    srd(a, S_T0 + 92 - 8, L.KA['mem0'], 10240) if False else None
def mem0_frags(a, phase=None):
    R = 40 if phase is None else 116
    if phase in (None, 'load'):
        sr = S_T0 if phase is None else 84
        srd(a, sr, L.KA['mem0'], 10240)
        a('v_bfe_u32 v36, v0, 2, 2'); a('v_lshlrev_b32 v36, 1, v36'); a('v_and_b32 v37, 1, v0'); a('v_add_u32 v36, v36, v37')
        a('v_mul_u32_u24 v36, 1280, v36')
        a('v_lshrrev_b32 v37, 4, v0'); a('v_lshlrev_b32 v37, 5, v37'); a('v_add_u32 v36, v36, v37')
        a('v_bfe_u32 v37, v0, 1, 1'); a('v_lshlrev_b32 v37, 2, v37'); a('v_add_u32 v36, v36, v37')
        a(f's_lshl_b32 s{sTmp}, s{sW}, 7')
        a('s_waitcnt lgkmcnt(0)')
        for t in range(3):
            a(f's_add_u32 s{sTmp2}, s{sTmp}, {t*512}')
            for j in range(4):
                a(f'buffer_load_dword v{R+4*t+j}, v36, s[{sr}:{sr+3}], s{sTmp2} offen offset:{8*j}')
        a('s_waitcnt vmcnt(0)')
    if phase in (None, 'write'):
        a(f's_lshl_b32 s{sTmp3}, s{sW}, 10')
        a(f'v_add_u32 v38, s{sTmp3}, v4')
        for t in range(3):
            a(f'ds_write_b128 v38, v[{R+4*t}:{R+3+4*t}] offset:{t*4096}')
        a('s_waitcnt lgkmcnt(0)')

class Stamps:
    sel = 0; trace = False; tstep = 20
    def __init__(self, on): self.on = on
    def val(self, a, i, sreg):
        if not (self.on and self.trace): return
        lb = a.newlabel('tv')
        a(f's_cmp_lg_u32 s{sS}, {self.tstep + 1}'); a(f's_cbranch_scc1 {lb}')
        a(f's_mov_b32 s{sT+i}, s{sreg}')
        a.label(lb)
    def __call__(self, a, i):
        if not self.on: return
        if self.trace:
            a(f's_memrealtime s[{sT+14}:{sT+15}]')
            a('s_waitcnt lgkmcnt(0)')
            lb = a.newlabel('tr')
            a(f's_cmp_lg_u32 s{sS}, {self.tstep + (1 if (i in (10, 11) and not getattr(self, "helper", False)) else 0)}'); a(f's_cbranch_scc1 {lb}')
            a(f's_mov_b32 s{sT+i}, s{sT+14}')
            a.label(lb)
            return
        a(f's_memtime s[{sT+14}:{sT+15}]')
        a('s_waitcnt lgkmcnt(0)')
        a(f's_sub_u32 s{sT+12}, s{sT+14}, s{sT+13}')
        a(f's_add_u32 s{sT+i}, s{sT+i}, s{sT+12}')
        a(f's_mov_b32 s{sT+13}, s{sT+14}')
    def dump(self, a, off):
        if not self.on: return
        if self.trace:
            a(f's_lshl_b32 s{sTmp}, s{sH}, 2'); a(f's_or_b32 s{sTmp}, s{sTmp}, s{sW}'); a(f's_lshl_b32 s{sTmp}, s{sTmp}, 6')
            a(f's_add_u32 s{sTmp}, s{sTmp}, {TRACE + off}')
            a('v_mov_b32 v36, 0')
            for i in range(12):
                a(f'v_mov_b32 v37, s{sT+i}')
                a(f'buffer_store_dword v37, v36, {W}, s{sTmp} offen offset:{4*i}')
            a('s_waitcnt vmcnt(0)')
        elif off == 0:
            sk = a.newlabel('tsk')
            a(f's_lshl_b32 s{sTmp}, s{sH}, 2'); a(f's_or_b32 s{sTmp}, s{sTmp}, s{sW}')
            a(f's_cmp_lg_u32 s{sTmp}, {self.sel}'); a(f's_cbranch_scc1 {sk}')
            a('v_mov_b32 v36, 0')
            for i in range(12):
                a(f'v_mov_b32 v37, s{sT+i}')
                a(f'buffer_store_dword v37, v36, s[{S_DBG}:{S_DBG+3}], 0 offen offset:{64+4*i}')
            a('s_waitcnt vmcnt(0)')
            a.label(sk)

def trbase(a, dst, wo):
    a('v_lshrrev_b32 v36, 4, v0'); a('v_bfe_u32 v37, v0, 2, 2')
    if not wo:
        a('v_lshlrev_b32 v38, 3, v36')
    else:
        a('v_and_b32 v38, 1, v36'); a('v_lshlrev_b32 v38, 5, v38')
        a('v_lshrrev_b32 v39, 1, v36'); a('v_lshlrev_b32 v39, 2, v39'); a('v_add_u32 v38, v38, v39')
    a('v_add_u32 v38, v38, v37'); a('v_lshlrev_b32 v38, 8, v38')
    a('v_and_b32 v39, 3, v0'); a('v_lshlrev_b32 v39, 3, v39')
    a(f'v_add_u32 v{dst}, v38, v39')
    a(f's_lshl_b32 s{sTmp}, s{sW}, {5 if wo else 6}')
    a(f'v_add_u32 v{dst}, s{sTmp}, v{dst}')

def xcc_or(a):
    skip = a.newlabel('xo')
    a(f's_cmp_lg_u32 s{sW}, 0'); a(f's_cbranch_scc1 {skip}')
    a('s_mov_b64 s[62:63], exec'); a('s_mov_b64 exec, 1')
    a('v_mov_b32 v36, 0')
    a(f's_getreg_b32 s{sTmp}, hwreg(HW_REG_XCC_ID)')
    a(f's_and_b32 s{sTmp}, s{sTmp}, 15'); a(f's_lshl_b32 s{sTmp}, 1, s{sTmp}')
    a(f'v_mov_b32 v37, s{sTmp}')
    a(f'buffer_atomic_or v37, v36, s[{S_DBG}:{S_DBG+3}], 0 offen offset:4')
    a('s_waitcnt vmcnt(0)')
    if FUSED:
        a('v_mov_b32 v37, 1')
        a(f'buffer_atomic_add v37, v36, s[{S_DBG}:{S_DBG+3}], 0 offen')
        a('s_waitcnt vmcnt(0)')
    a('s_mov_b64 exec, s[62:63]')
    a.label(skip)

def rendezvous(a, is_main, fail):
    a('s_waitcnt vmcnt(0)')
    a('s_barrier')
    skip = a.newlabel('rz'); lp = a.newlabel('rzp')
    a(f's_cmp_lg_u32 s{sW}, 0'); a(f's_cbranch_scc1 {skip}')
    a('s_mov_b64 s[62:63], exec'); a('s_mov_b64 exec, 1')
    a('v_mov_b32 v36, 0'); a('v_mov_b32 v37, 1')
    if not (FUSED and is_main):
        a(f'buffer_atomic_add v37, v36, s[{S_DBG}:{S_DBG+3}], 0 offen')
    a.label(lp)
    a(f'buffer_load_dwordx4 v[40:43], v36, s[{S_DBG}:{S_DBG+3}], 0 offen sc1')
    a(f'buffer_load_dword v44, v36, s[{S_DBG}:{S_DBG+3}], 0 offen offset:16 sc1')
    spin_check(a, fail)
    a('s_waitcnt vmcnt(0)')
    a(f'v_readfirstlane_b32 s{sTmp}, v40'); a(f'v_readfirstlane_b32 s{sTmp2}, v44'); a(f'v_readfirstlane_b32 s{sTmp3}, v43')
    a(f's_cmp_lt_u32 s{sTmp}, 64'); a(f's_cbranch_scc1 {lp}')
    if FUSED:
        a(f's_cmp_lt_u32 s{sTmp2}, 64'); a(f's_cbranch_scc1 {lp}')
        a(f's_cmp_lt_u32 s{sTmp3}, 1'); a(f's_cbranch_scc1 {lp}')
    a('v_mov_b32 v39, v41')
    a(f'v_mov_b32 v36, {QKX}')
    a('ds_write_b32 v36, v39')
    a('s_waitcnt lgkmcnt(0)')
    a('s_mov_b64 exec, s[62:63]')
    a.label(skip)
    a('s_barrier')
    a(f'v_mov_b32 v36, {QKX}')
    a('ds_read_b32 v39, v36')
    a('s_waitcnt lgkmcnt(0)')
    a(f'v_readfirstlane_b32 s{sTmp}, v39')
    a(f's_bcnt1_i32_b32 s{sTmp}, s{sTmp}')
    a(f's_cmp_eq_u32 s{sTmp}, 1')
    a(f's_cselect_b32 s{sFast}, 1, 0')

FUSED = False
def emit_chain_body(a, fail, end, st=None):
    st = st or Stamps(False)
    srd(a, S_WS, L.KA['ws'], L.WS_BYTES)
    srd(a, S_DBG, L.KA['dbg'], 256)
    if COARSE: a('s_memrealtime s[96:97]')
    a(f'v_lshrrev_b32 v1, 6, v0'); a(f'v_readfirstlane_b32 s{sW}, v1'); a(f'v_and_b32 v0, 63, v0')
    a(f's_mov_b32 s{sMaskH}, 0xCCCCCCCC'); a(f's_mov_b32 s{sMaskH+1}, 0xCCCCCCCC')
    a(f's_mov_b32 s{sMaskLo}, -1'); a(f's_mov_b32 s{sMaskLo+1}, 0')
    a(f'v_mov_b32 v1, 0x4444'); a(f'v_mov_b32 v2, 0xEEEE')
    a(f'v_cndmask_b32 v1, v1, v2, {MH}')
    a(f'v_lshlrev_b32 v2, 4, v0')
    a(f's_mov_b32 s{sC}, {hex(f32bits(C_SCALE))}')
    a(f's_mov_b32 s{sThr}, {hex(f32bits(60.0))}')
    a(f's_mov_b32 s{sSpin}, 0')
    for i in range(14): a(f's_mov_b32 s{sT+i}, 0')
    a(f'v_add_u32 v4, {AFR}, v2')
    a('s_waitcnt lgkmcnt(0)')
    a('s_cmp_eq_u32 s3, 1'); a(f's_cbranch_scc1 chain_helper')
    emit_main(a, st, fail, end)
    emit_helper(a, st, fail, end)

def decode_role(a, worker_label):
    a('s_and_b32 s3, s2, 7')
    a(f's_lshr_b32 s{sH}, s2, 3')
    a(f's_mul_i32 s60, s{sH}, 6'); a('s_add_u32 s60, s60, s3'); a('s_sub_u32 s60, s60, 2')
    a('s_cmp_gt_u32 s3, 1'); a(f's_cbranch_scc1 {worker_label}')

def emit_chain(a, timing=False, kname='chain_kernel'):
    fail = 'chain_fail'; end = 'chain_end'
    st = Stamps(timing)
    a.label(kname)
    a(f's_cmp_ge_u32 s2, 256'); a(f's_cbranch_scc1 {end}')
    decode_role(a, end)
    emit_chain_body(a, fail, end, st)
    a.label(fail)
    a('v_mov_b32 v1, 0xdead'); a('v_mov_b32 v2, 252')
    a(f'buffer_store_dword v1, v2, s[{S_DBG}:{S_DBG+3}], 0 offen')
    a('s_waitcnt vmcnt(0)')
    a.label(end)
    a('s_endpgm')

def qk_home(m, t, kb):
    idx = m * 20 + kb * 2 + t
    if idx < 32: return ('a', idx * 8)
    return ('v', 128 + (idx - 32) * 8)
def rr(home, n=8): return f'{home[0]}[{home[1]}:{home[1]+n-1}]'
def wo_pair(cg, eb):
    if eb == 0 and cg < 4: return None
    if cg < 4: return cg
    return 4 + eb

def interleave(a, mf, fill, start=0, per=1):
    fi = 0
    for i, m in enumerate(mf):
        emit(a, m if isinstance(m, list) else [m])
        if i >= start:
            for _ in range(per):
                if fi < len(fill):
                    g = fill[fi]; fi += 1
                    emit(a, g if isinstance(g, list) else [g])
    while fi < len(fill):
        g = fill[fi]; fi += 1
        emit(a, g if isinstance(g, list) else [g])

def half_add_ops(ra, rb):
    return [f'v_permlane32_swap_b32 v{ra+r}, v{rb+r}' for r in range(4)] + [f'v_add_f32 v{ra+r}, v{ra+r}, v{rb+r}' for r in range(4)]


import os
EXP = os.environ.get('EXP', '')
sTch = 30
sTag = 49; sFlip = 34; sFlipO = 34; sMf = 33; sHs = 36; sHs0 = 37; sHs1 = 38
ADAPT = os.environ.get('ADAPT', '1') == '1'
ADUP = int(os.environ.get('ADUP', 12))
HAB = int(os.environ.get('HAB', 0))
HDN = int(os.environ.get('HDN', 2))
sOwnP = 31
def zero(lo, hi): return [f'v_mov_b64 v[{r}:{r+1}], 0' for r in range(lo, hi, 2)]

def dma_w(a):
    a(f's_mov_b32 m0, s{sKVw}')
    a(f'buffer_load_dwordx4 v10, {W}, s{sKsrc} offen lds')
    a(f'buffer_load_dwordx4 v13, {W}, s{sKsrc} offen offset:1024 lds')
    a(f's_add_u32 m0, s{sKVw}, 8192')
    a(f'buffer_load_dwordx4 v2, {W}, s{sVsrc} offen lds')
    a(f'buffer_load_dwordx4 v2, {W}, s{sVsrc} offen offset:1024 lds')

def km_ops(land):
    return [f's_lshl_b32 s{sTmp3}, s{sW}, 10', f'v_add_u32 v{land+4}, s{sTmp3}, v6',
            f'ds_read_b64_tr_b16 v[{land}:{land+1}], v{land+4} offset:4096', f'ds_read_b64_tr_b16 v[{land+2}:{land+3}], v{land+4} offset:{4096+128}',
            's_waitcnt lgkmcnt(0)',
            f'buffer_store_dwordx4 v[{land}:{land+3}], v2, {W}, s{sKMo} offen sc1',
            f's_add_u32 s{sKMo}, s{sKMo}, {32*4096}']

def advance(a):
    if FUSED:
        a(f'v_readfirstlane_b32 s{sRdy}, v12'); a('v_mov_b32 v12, -1')
    a(f's_add_u32 s{sKsrc}, s{sKsrc}, {32*8192}'); a(f's_add_u32 s{sVsrc}, s{sVsrc}, {32*8192}');
    a(f's_xor_b32 s{sKVw}, s{sKVw}, 16384')
    a('v_xor_b32 v14, 16384, v14')
    a(f's_add_u32 s{sS}, s{sS}, 1')
    a(f's_add_u32 s{sVMo}, s{sVMo}, {32*2048}'); a(f's_add_u32 s{sKMo}, s{sKMo}, {32*4096}')
    a(f's_mov_b32 s{sTmp3}, s{sP1w}'); a(f's_mov_b32 s{sP1w}, s{sP1r}'); a(f's_mov_b32 s{sP1r}, s{sTmp3}')
    a(f's_add_u32 s{sMw}, s{sMw}, {L.MEMSZ}'); a(f's_xor_b32 s{sMf}, s{sMf}, {L.MEMSZ}')
    a(f's_bfe_u32 s{sTag}, s{sS}, {(1 << 16) | 1}'); a(f's_xor_b32 s{sFlip}, s{sTag}, 1')

def emit_main(a, st, fail, end):
    a.comment('======== MAIN ========')
    srd(a, S_T0, L.KA['Wq'], 640*4096*2)
    srd(a, S_T1, L.KA['Wk'], 640*4096*2)
    srd(a, S_T2, L.KA['Wo'], 640*4096*2)
    xcc_or(a)
    mem0_frags(a, 'load')
    a('v_lshrrev_b32 v36, 4, v0'); a('v_and_b32 v37, 15, v0'); a('v_lshlrev_b32 v37, 4, v37')
    a('v_lshlrev_b32 v10, 13, v36'); a('v_add_u32 v10, v10, v37')
    a('v_mul_u32_u24 v11, 1280, v36'); a('v_add_u32 v11, v11, v37')
    trbase(a, 12, False)
    trbase(a, 13, True)
    a(f's_lshl_b32 s28, s{sH}, 8')
    a(f's_mul_i32 s29, s{sH}, {128*1280}')
    a('s_waitcnt lgkmcnt(0)')
    chunks = []
    for m, s_ in ((0, S_T0), (1, S_T1)):
        for kb in range(10):
            d = [qk_home(m, t, kb) for t in range(2)]
            chunks.append(dict(srd=s_, vofs=10, sbase=28, soff=64*kb*8192, istep=4*8192, vtr=12, rows=[0, 4, 32, 36], tcol=[0, 32],
                               dests=[f'{x[0]}{x[1]}' for x in d]))
    for eb in range(2):
        for cg in range(5):
            p = wo_pair(cg, eb)
            d = [f'v{192 + (cg*2+t)*8}' if p is None else f'v{20 + (p*2+t)*8}' for t in range(2)]
            chunks.append(dict(srd=S_T2, vofs=11, sbase=29, soff=64*eb*1280 + cg*256, istep=4*1280, vtr=13, rows=[0, 16, 8, 24], tcol=[0, 128], dests=d))
    load_chunks(a, chunks, 14)
    if COARSE: a('s_memrealtime s[90:91]')
    a('s_barrier')
    a(f's_mul_i32 s{sTmp}, s{sW}, {12*2048}'); a(f's_add_u32 s{sTmp}, s{sTmp}, {WL}')
    a(f'v_add_u32 v15, s{sTmp}, v2')
    for i in range(12):
        a(f'ds_write_b128 v15, v[{20+8*i}:{23+8*i}] offset:{i*2048}')
        a(f'ds_write_b128 v15, v[{24+8*i}:{27+8*i}] offset:{i*2048+1024}')
    a('s_waitcnt lgkmcnt(0)')
    mem0_frags(a, 'write')
    a(f's_sub_u32 s{sTmp}, s{sW}, 2'); a(f's_mul_i32 s{sTmp}, s{sTmp}, 5120'); a(f'v_add_u32 v3, s{sTmp}, v4')
    a('v_and_b32 v36, 15, v0'); a('v_lshlrev_b32 v36, 5, v36'); a('v_lshrrev_b32 v37, 4, v0'); a('v_lshlrev_b32 v37, 3, v37'); a('v_add_u32 v36, v36, v37')
    a(f's_lshl_b32 s{sTmp}, s{sW}, 10'); a(f's_add_u32 s{sTmp}, s{sTmp}, {QKX}'); a(f'v_add_u32 v5, s{sTmp}, v36')
    a('v_lshrrev_b32 v36, 4, v0'); a('v_lshlrev_b32 v36, 3, v36'); a('v_bfe_u32 v37, v0, 2, 2'); a('v_add_u32 v36, v36, v37')
    a('v_lshlrev_b32 v36, 5, v36'); a('v_and_b32 v37, 3, v0'); a('v_lshlrev_b32 v37, 3, v37'); a('v_add_u32 v36, v36, v37')
    a(f'v_add_u32 v6, {QKX}, v36')
    a('v_lshrrev_b32 v36, 4, v0'); a('v_lshlrev_b32 v36, 13, v36'); a('v_and_b32 v37, 15, v0'); a('v_lshlrev_b32 v37, 4, v37'); a('v_add_u32 v7, v36, v37')
    a('v_bfe_u32 v36, v0, 2, 2'); a('v_lshlrev_b32 v36, 10, v36'); a('v_and_b32 v37, 3, v0'); a('v_lshlrev_b32 v37, 4, v37'); a('v_add_u32 v36, v36, v37')
    a('v_lshrrev_b32 v37, 4, v0'); a('v_lshlrev_b32 v37, 2, v37'); a('v_add_u32 v8, v36, v37')
    a('v_lshlrev_b32 v9, 3, v0')
    a(f's_lshr_b32 s{sTmp}, s{sW}, 1'); a(f's_lshl_b32 s{sTmp}, s{sTmp}, 10'); a(f's_and_b32 s{sTmp2}, s{sW}, 1'); a(f's_lshl_b32 s{sTmp2}, s{sTmp2}, 3')
    a(f's_add_u32 s{sTmp}, s{sTmp}, s{sTmp2}'); a(f's_add_u32 s{sTmp}, s{sTmp}, {OFR}'); a(f'v_add_u32 v11, s{sTmp}, v2')
    a('v_bfe_u32 v36, v0, 2, 1'); a('v_lshlrev_b32 v36, 4, v36'); a('v_bfe_u32 v37, v0, 3, 1'); a('v_lshlrev_b32 v37, 2, v37')
    a('v_add_u32 v36, v36, v37'); a('v_and_b32 v37, 3, v0'); a('v_add_u32 v36, v36, v37'); a('v_lshlrev_b32 v36, 13, v36')
    a('v_lshrrev_b32 v37, 4, v0'); a('v_lshlrev_b32 v37, 4, v37'); a('v_add_u32 v10, v36, v37')
    a('v_mov_b32 v12, -1')
    a('v_bfe_u32 v36, v0, 2, 2'); a('v_lshlrev_b32 v36, 1, v36'); a('v_and_b32 v37, 1, v0'); a('v_add_u32 v36, v36, v37')
    for q in range(4):
        a(f'v_mov_b32 v{16+q}, 0'); a(f'v_mov_b32 v37, 0x3F80')
        a(f'v_cmp_eq_u32 vcc, {2*q}, v36'); a(f'v_cndmask_b32 v{16+q}, v{16+q}, v37, vcc')
        a(f'v_mov_b32 v37, 0x3F800000')
        a(f'v_cmp_eq_u32 vcc, {2*q+1}, v36'); a(f'v_cndmask_b32 v{16+q}, v{16+q}, v37, vcc')
    a(f'v_add_u32 v13, {SEL}, v2')
    a('ds_write_b128 v13, v[16:19]')
    a('s_waitcnt lgkmcnt(0)')
    for q in range(4): a(f'v_mov_b32 v{16+q}, 0x3F803F80')
    a(f'v_add_u32 v14, {KVB}, v2')
    a('v_mov_b32 v121, 0'); a('v_mov_b32 v122, 0'); a(f'v_mov_b32 v124, s{sC}')
    a(f's_mov_b32 s{sOwn}, -1')
    a(f's_cmp_eq_u32 s{sW}, 0'); a(f's_cselect_b32 s{sOwn}, s{sH}, s{sOwn}')
    a(f's_add_u32 s{sTmp}, s{sH}, 32'); a(f's_cmp_lt_u32 s{sTmp}, 48'); a(f's_cselect_b32 s{sTmp}, s{sTmp}, -1')
    a(f's_cmp_eq_u32 s{sW}, 1'); a(f's_cselect_b32 s{sOwn}, s{sTmp}, s{sOwn}')
    a(f's_lshr_b32 s{sTmp}, s{sOwn}, 2'); a(f's_and_b32 s{sTmp}, s{sTmp}, 15'); a(f's_mul_i32 s{sTmp2}, s{sTmp}, 11'); a(f's_lshr_b32 s{sTmp2}, s{sTmp2}, 5')
    a(f's_mul_i32 s{sTmp3}, s{sTmp2}, 3'); a(f's_sub_u32 s{sTmp3}, s{sTmp}, s{sTmp3}')
    a(f's_lshl_b32 s{sOwnP}, s{sTmp3}, 12'); a(f's_lshl_b32 s{sTmp2}, s{sTmp2}, 8'); a(f's_add_u32 s{sOwnP}, s{sOwnP}, s{sTmp2}')
    a(f's_and_b32 s{sTmp}, s{sOwn}, 3'); a(f's_lshl_b32 s{sTmp}, s{sTmp}, 6'); a(f's_add_u32 s{sOwnP}, s{sOwnP}, s{sTmp}')
    a(f's_cmp_eq_u32 s{sOwn}, -1'); a(f's_cselect_b32 s{sOwnP}, 24576, s{sOwnP}')
    a(f's_mul_i32 s{sP1w}, s{sW}, {3*32768}'); a(f's_lshl_b32 s{sTmp}, s{sH}, 8')
    a(f's_add_u32 s{sP1w}, s{sP1w}, s{sTmp}'); a(f's_add_u32 s{sP1w}, s{sP1w}, {L.P1}')
    a(f's_add_u32 s{sP1r}, s{sP1w}, {L.P1SZ}')
    a('s_barrier')
    a(f's_lshl_b32 s{sKsrc}, s{sH}, 8'); a(f's_add_u32 s{sKsrc}, s{sKsrc}, {L.K}')
    a(f's_lshl_b32 s{sVsrc}, s{sH}, 13'); a(f's_add_u32 s{sVsrc}, s{sVsrc}, {L.VT}')
    a(f's_lshl_b32 s{sVMo}, s{sH}, 11'); a(f's_add_u32 s{sVMo}, s{sVMo}, {L.VM}'); a(f's_lshl_b32 s{sTmp}, s{sW}, 9'); a(f's_add_u32 s{sVMo}, s{sVMo}, s{sTmp}')
    a(f's_lshl_b32 s{sKMo}, s{sH}, 12'); a(f's_add_u32 s{sKMo}, s{sKMo}, {L.KM}')
    a(f's_lshl_b32 s{sTmp}, s{sW}, 10'); a(f's_add_u32 s{sKMo}, s{sKMo}, s{sTmp}')
    if FUSED:
        lp = a.newlabel('kvw'); lp2 = a.newlabel('kvw2')
        a('v_mov_b32 v36, 0')
        a.label(lp)
        a('s_sleep 2')
        a(f'buffer_load_dword v37, v36, s[{S_DBG}:{S_DBG+3}], 0 offen offset:12 sc1')
        spin_check(a, fail)
        a('s_waitcnt vmcnt(0)')
        a(f'v_readfirstlane_b32 s{sTmp}, v37'); a(f's_cmp_eq_u32 s{sTmp}, 0'); a(f's_cbranch_scc1 {lp}')
        a(f's_mov_b32 s{sTmp2}, {L.ctr(L.C_KV)}')
        a.label(lp2)
        a('s_sleep 2')
        a(f'buffer_load_dword v37, v36, {W}, s{sTmp2} offen sc1')
        spin_check(a, fail)
        a('s_waitcnt vmcnt(0)')
        a('v_cmp_gt_u32 vcc, 64, v37'); a(f's_cbranch_vccnz {lp2}')
        a(f's_mov_b32 s{sRdy}, 64')
    a('v_subrev_u32 v13, 960, v10')
    a(f's_lshr_b32 s{sTmp}, s{sW}, 1'); a(f's_lshl_b32 s{sTmp}, s{sTmp}, 16')
    a(f's_and_b32 s{sTmp2}, s{sW}, 1'); a(f's_lshl_b32 s{sTmp2}, s{sTmp2}, 7')
    a(f's_add_u32 s{sTmp}, s{sTmp}, s{sTmp2}'); a(f's_add_u32 s{sKsrc}, s{sKsrc}, s{sTmp}')
    a(f's_lshl_b32 s{sTmp}, s{sW}, 11'); a(f's_add_u32 s{sVsrc}, s{sVsrc}, s{sTmp}')
    a(f's_add_u32 s{sKVw}, s{sTmp}, {KVB}')
    dma_w(a)
    a(f's_add_u32 s{sKsrc}, s{sKsrc}, {32*8192}'); a(f's_add_u32 s{sVsrc}, s{sVsrc}, {32*8192}'); a(f's_xor_b32 s{sKVw}, s{sKVw}, 16384')
    if COARSE: a('s_memrealtime s[88:89]'); a('s_waitcnt lgkmcnt(0)')
    rendezvous(a, True, fail)
    a(f's_mov_b32 s{sS}, 0')
    a(f's_mov_b32 s{sMw}, {L.MEMSZ}'); a(f's_mov_b32 s{sMf}, {L.MEMSZ}'); a(f's_mov_b32 s{sTag}, 0'); a(f's_mov_b32 s{sFlip}, 1')
    emit(a, zero(20, 36))
    a('s_barrier')
    if st.on and not st.trace:
        a(f's_memtime s[{sT+14}:{sT+15}]'); a('s_waitcnt lgkmcnt(0)'); a(f's_mov_b32 s{sT+13}, s{sT+14}')
    if COARSE:
        a('s_memrealtime s[98:99]'); a('s_memtime s[92:93]'); a('s_waitcnt lgkmcnt(0)')
    a(f's_cmp_eq_u32 s{sFast}, 0'); a('s_cbranch_scc1 main_loop_safe')
    main_loop(a, True, st, fail)
    main_loop(a, False, st, fail)
    a.label('main_last')
    a(f's_lshl_b32 s{sKMo}, s{sH}, 12'); a(f's_add_u32 s{sKMo}, s{sKMo}, {L.KM + 63*32*4096}'); a(f's_lshl_b32 s{sTmp}, s{sW}, 10'); a(f's_add_u32 s{sKMo}, s{sKMo}, s{sTmp}')
    emit(a, km_ops(40))
    st.dump(a, 0)
    if COARSE:
        sk = a.newlabel('csk')
        a('s_memrealtime s[100:101]'); a('s_memtime s[94:95]'); a('s_waitcnt lgkmcnt(0)')
        sk0 = a.newlabel('csk0')
        a(f's_cmp_lg_u32 s{sW}, 0'); a(f's_cbranch_scc1 {sk0}')
        a('v_mov_b32 v36, 0'); a(f's_lshl_b32 s{sTmp}, s{sH}, 5'); a(f's_add_u32 s{sTmp}, s{sTmp}, {TRACE + 32768}')
        for i, r in enumerate((96, 90, 88, 98, 100)):
            a(f'v_mov_b32 v37, s{r}')
            a(f'buffer_store_dword v37, v36, {W}, s{sTmp} offen offset:{4*i}')
        a.label(sk0)
        a(f's_or_b32 s{sTmp}, s{sH}, s{sW}'); a(f's_cmp_lg_u32 s{sTmp}, 0'); a(f's_cbranch_scc1 {sk}')
        a('v_mov_b32 v36, 0')
        a('s_sub_u32 s98, s98, s96'); a('s_sub_u32 s100, s100, s96'); a('s_sub_u32 s94, s94, s92')
        a('s_sub_u32 s90, s90, s96'); a('s_sub_u32 s88, s88, s96')
        for q in range(4): a(f's_sub_u32 s{80+q}, s{80+q}, s96')
        for i, r in enumerate((98, 100, 94, 90, 88, 80, 81, 82, 83)):
            a(f'v_mov_b32 v37, s{r}')
            a(f'buffer_store_dword v37, v36, s[{S_DBG}:{S_DBG+3}], 0 offen offset:{128+4*i}')
        a('s_waitcnt vmcnt(0)')
        a.label(sk)
    a(f's_branch {end}')

def main_loop(a, fast, st, fail):
    sc = ('nt' if 'ntst' in EXP else '') if fast else 'sc1'
    tag = 'fast' if fast else 'safe'
    a.label(f'main_loop_{tag}')
    cold = []
    F = lambda kb: f'v[{72+4*kb}:{75+4*kb}]'
    if COARSE:
        nn = a.newlabel('cs')
        a(f's_and_b32 s{sTmp}, s{sS}, 15'); a(f's_cmp_lg_u32 s{sTmp}, 0'); a(f's_cbranch_scc1 {nn}')
        a('s_memrealtime s[86:87]'); a('s_waitcnt lgkmcnt(0)')
        a(f's_lshr_b32 s{sTmp}, s{sS}, 4')
        for q in range(4):
            a(f's_cmp_eq_u32 s{sTmp}, {q}'); a(f's_cselect_b32 s{80+q}, s86, s{80+q}')
        a.label(nn)
    if 'skel' in EXP:
        a(f's_cmp_ge_u32 s{sS}, 63'); a('s_cbranch_scc1 main_last')
        a(f's_sleep {int(os.environ.get("CSLEEP", 8))}')
        emit(a, zero(28, 40))
        st(a, 0)
        for qq in range(3):
            a(f'v_and_or_b32 v{28+4*qq}, v{28+4*qq}, -2, s{sTag}')
            a(f's_add_u32 s{sTmp}, s{sP1w}, {qq*32768}'); a(f'buffer_store_dwordx4 v[{28+4*qq}:{31+4*qq}], v7, {W}, s{sTmp} offen {sc}')
        a(f's_branch skel_{tag}')
    for kb in range(10):
        a(f'ds_read_b128 {F(kb)}, v4 offset:{kb*1024}')
    if FUSED:
        rok = a.newlabel('rok'); rl = a.newlabel('rl'); rs_ = a.newlabel('rs')
        a(f's_cmp_lt_u32 s{sRdy}, 64'); a(f's_cbranch_scc1 {rs_}')
        a.label(rok)
        def cold_rdy():
            a.label(rs_)
            a(f's_add_u32 s{sTmp}, s{sS}, 1'); a(f's_lshr_b32 s{sTmp}, s{sTmp}, 2'); a(f's_min_u32 s{sTmp}, s{sTmp}, 15'); a(f's_lshl_b32 s{sTmp}, s{sTmp}, 7'); a(f's_add_u32 s{sTmp}, s{sTmp}, {L.ctr(L.C_KV)}')
            a.label(rl)
            a(f'buffer_load_dword v36, v121, {W}, s{sTmp} offen sc1')
            spin_check(a, fail)
            a('s_waitcnt vmcnt(0)')
            a(f'v_readfirstlane_b32 s{sRdy}, v36')
            a(f's_cmp_lt_u32 s{sRdy}, 64'); a(f's_cbranch_scc1 {rl}')
            a(f's_branch {rok}')
        cold.append(cold_rdy)
    if 'nodma' not in EXP: dma_w(a)
    if 'ptv' in EXP:
        a(f'buffer_load_dwordx2 v[114:115], v9, {W}, s{sVMo} offen sc1')
    mf = []
    for kb in range(10):
        for t in range(2):
            ins = f'{SM} v[{20+4*t}:{23+4*t}], {F(kb)}, {rr(qk_home(0, t, kb))}, v1'
            nk = max(0, 2*(kb-6)) if kb >= 6 else 0
            mf.append([f's_waitcnt lgkmcnt({9-kb+nk})', ins] if t == 0 else ins)
    fill = [[]]*11 + [['s_waitcnt vmcnt(4)'] if 'ab' in EXP else []] + [f'ds_read_b128 v[{40+4*i}:{43+4*i}], v14 offset:{i*1024}' for i in range(8)]
    interleave(a, mf, fill)
    st(a, 0)
    mf = [f'{SM} v[{28+4*t}:{31+4*t}], {F(kb)}, {rr(qk_home(1, t, kb))}, v1' for kb in range(10) for t in range(2)]
    if 'nok1' in EXP: mf = ['s_nop 0'] * 20
    if 'halfk1' in EXP: mf = [m if i % 2 == 0 else 's_nop 0' for i, m in enumerate(mf)]
    fill = [[], [], 'v_add_f32 v20, v20, v22', 'v_add_f32 v21, v21, v23', 'v_add_f32 v24, v24, v26', 'v_add_f32 v25, v25, v27',
            'v_cvt_pk_bf16_f32 v36, v20, v21', 'v_cvt_pk_bf16_f32 v37, v24, v25',
            'ds_write2_b32 v5, v36, v36 offset0:0 offset1:1', 'ds_write2_b32 v5, v37, v37 offset0:128 offset1:129', 'v_add_u32 v39, 4096, v5', [],
            ['s_waitcnt lgkmcnt(0)', 's_barrier']]
    fill += [[f'ds_read_b64_tr_b16 v[{72+4*kp}:{73+4*kp}], v6 offset:{kp*1024}', f'ds_read_b64_tr_b16 v[{74+4*kp}:{75+4*kp}], v6 offset:{kp*1024+128}'] for kp in range(4)]
    interleave(a, mf, fill)
    st(a, 1)
    mf = []
    for kp in range(4):
        c1 = '0' if kp == 0 else 'v[20:23]'; c2 = '0' if kp == 0 else 'v[24:27]'
        mf.append((['s_waitcnt lgkmcnt(0)'] if kp == 0 else []) + [f'{MF32} v[20:23], v[{40+4*kp}:{43+4*kp}], v[{72+4*kp}:{75+4*kp}], {c1}'])
        mf.append(f'{MF32} v[24:27], v[{56+4*kp}:{59+4*kp}], v[{72+4*kp}:{75+4*kp}], {c2}')
    fill = [[f's_lshl_b32 s{sTmp}, s{sW}, 11'], ['v_add_f32 v28, v28, v30', 'v_add_f32 v29, v29, v31'], ['v_add_f32 v32, v32, v34', 'v_add_f32 v33, v33, v35'],
            ['v_cvt_pk_bf16_f32 v36, v28, v29', 'v_cvt_pk_bf16_f32 v37, v32, v33'],
            ['ds_write2_b32 v39, v36, v36 offset0:0 offset1:1', 'ds_write2_b32 v39, v37, v37 offset0:128 offset1:129'],
            [f'v_add_u32 v127, s{sTmp}, v14'], [], []]
    interleave(a, mf, fill)
    a('s_waitcnt lgkmcnt(0)')
    a('s_barrier')
    a(f's_cmp_ge_u32 s{sS}, 63'); a('s_cbranch_scc1 main_last')
    for kp in range(4):
        for rho in range(2):
            a(f'ds_read_b64_tr_b16 v[{88+4*kp+2*rho}:{89+4*kp+2*rho}], v6 offset:{4096+kp*1024+rho*128}')
    a('v_max3_f32 v126, v20, v21, v22'); a('v_max3_f32 v125, v23, v24, v25')
    a('ds_read_b128 v[104:107], v127 offset:8192'); a('ds_read_b128 v[108:111], v127 offset:9216')
    a(f'buffer_load_dwordx2 v[112:113], v9, {W}, s{sVMo} offen sc1')
    a('v_max3_f32 v126, v126, v26, v27'); a('v_max_f32 v126, v126, v125')
    a('v_mov_b32 v125, v126')
    if FUSED:
        a(f's_add_u32 s{sTmp}, s{sS}, 2'); a(f's_lshr_b32 s{sTmp}, s{sTmp}, 2'); a(f's_min_u32 s{sTmp}, s{sTmp}, 15'); a(f's_lshl_b32 s{sTmp}, s{sTmp}, 7'); a(f's_add_u32 s{sTmp}, s{sTmp}, {L.ctr(L.C_KV)}')
    else:
        a('s_nop 0')
    a('v_permlane32_swap_b32 v126, v125'); a('v_max_f32 v126, v126, v125')
    a('v_mov_b32 v125, v126')
    if FUSED: a(f'buffer_load_dword v12, v121, {W}, s{sTmp} offen sc1')
    a('v_permlane16_swap_b32 v126, v125'); a('v_max_f32 v126, v126, v125')
    a('v_mul_f32 v127, v124, v126'); a('v_sub_f32 v127, 0, v127')
    st(a, 2)
    wl = []
    for i in range(4):
        wl += [f'ds_read_b128 v[{40+8*i}:{43+8*i}], v15 offset:{i*2048}', f'ds_read_b128 v[{44+8*i}:{47+8*i}], v15 offset:{i*2048+1024}']
    for r in range(20, 28): a(f'v_fma_f32 v{r}, v{r}, v124, v127')
    mfs = []
    for kp in range(4):
        c0 = '0' if kp == 0 else 'v[28:31]'
        mfs.append([f's_waitcnt lgkmcnt({2 + 6 - 2*kp})', f'{MF32} v[28:31], v[{88+4*kp}:{91+4*kp}], v[{72+4*kp}:{75+4*kp}], {c0}'])
    fill = [[f'v_exp_f32 v{r}, v{r}', f'v_exp_f32 v{r+1}, v{r+1}'] for r in range(20, 28, 2)]
    interleave(a, mfs, fill)
    a(f'buffer_load_dwordx2 v[114:115], v9, {W}, s{sVMo} offen sc1')
    a('v_cvt_pk_bf16_f32 v116, v20, v21'); a('v_cvt_pk_bf16_f32 v117, v22, v23')
    a('v_cvt_pk_bf16_f32 v118, v24, v25'); a('v_cvt_pk_bf16_f32 v119, v26, v27')
    a('v_fma_f32 v28, v28, v124, v127'); a('v_fma_f32 v29, v29, v124, v127')
    st(a, 3)
    a('s_waitcnt lgkmcnt(0)')
    a(f'{MF32} v[32:35], v[104:107], v[116:119], 0')
    a('v_max_f32 v126, v28, v29')
    a(f'{MF32} v[36:39], v[108:111], v[116:119], 0')
    a(f'v_cmp_lt_f32 vcc, s{sThr}, v126')
    a(f'{MF32} v[20:23], v[16:19], v[116:119], 0')
    emit(a, wl[:4])
    ok = a.newlabel('thr'); thc = a.newlabel('thc')
    a(f's_cbranch_vccnz {thc}')
    a.label(ok)
    def cold_thr():
        a.label(thc)
        a('v_max_f32 v126, 0, v126')
        a('v_mov_b32 v125, v126'); a('v_permlane32_swap_b32 v126, v125'); a('v_max_f32 v126, v126, v125')
        a('v_mov_b32 v125, v126'); a('v_permlane16_swap_b32 v126, v125'); a('v_max_f32 v126, v126, v125')
        for r in range(28, 30): a(f'v_sub_f32 v{r}, v{r}, v126')
        a('v_sub_f32 v126, 0, v126'); a('v_exp_f32 v126, v126')
        a('s_nop 7')
        for r in list(range(32, 40)) + list(range(20, 24)): a(f'v_mul_f32 v{r}, v{r}, v126')
        a('s_nop 1')
        a(f's_branch {ok}')
    cold.append(cold_thr)
    a('v_exp_f32 v28, v28'); a('v_exp_f32 v29, v29')
    emit(a, wl[4:])
    a('v_cvt_pk_bf16_f32 v120, v28, v29'); a('v_cvt_pk_bf16_f32 v123, v28, v29')
    a(f'{MF16} v[20:23], v[16:17], v[120:121], v[20:23]')
    if 'nokm' not in EXP:
        a(f's_lshl_b32 s{sTmp3}, s{sW}, 10'); a(f'v_add_u32 v125, s{sTmp3}, v6')
        a('ds_read_b64_tr_b16 v[116:117], v125 offset:4096'); a(f'ds_read_b64_tr_b16 v[118:119], v125 offset:{4096+128}')
    emit(a, zero(72, 88))
    st(a, 4)
    vp = a.newlabel('vmp'); vok = a.newlabel('vmok')
    nyoung = 2 if FUSED else 1
    vc = a.newlabel('vmc')
    if 'novm' not in EXP:
        a('s_waitcnt vmcnt(1)')
        a('v_max_u32 v126, v112, v113')
        a('v_cmp_eq_u32 vcc, -1, v126'); a(f's_cbranch_vccnz {vc}')
    def cold_vm():
        a.label(vc)
        a('s_waitcnt vmcnt(0)')
        a('v_mov_b64 v[112:113], v[114:115]')
        a.label(vp)
        a('v_max_u32 v126, v112, v113')
        a('v_cmp_eq_u32 vcc, -1, v126'); a(f's_cbranch_vccz {vok}')
        a(f'buffer_load_dwordx2 v[112:113], v9, {W}, s{sVMo} offen sc1')
        spin_check(a, fail)
        a('s_waitcnt vmcnt(0)')
        a(f's_branch {vp}')
    cold.append(cold_vm)
    a.label(vok)
    st(a, 5)
    a(f'{MF16} v[32:35], v[112:113], v[120:121], v[32:35]')
    a(f'{MF16} v[36:39], v[112:113], v[122:123], v[36:39]')
    a('v_rcp_f32 v126, v20')
    a('v_mov_b32 v127, v126')
    for t, o in ((0, 32), (1, 36)):
        a(f'v_cndmask_b32 v{24+2*t}, v{o}, v{o+2}, {MH}')
        a(f'v_cndmask_b32 v{25+2*t}, v{o+1}, v{o+3}, {MH}')
        a(f'v_pk_mul_f32 v[{24+2*t}:{25+2*t}], v[{24+2*t}:{25+2*t}], v[126:127]')
        a(f'v_cvt_pk_bf16_f32 v{28+t}, v{24+2*t}, v{25+2*t}')
    a('ds_write_b64 v11, v[28:29]')
    if 'nokm' not in EXP:
        a('s_waitcnt lgkmcnt(1)')
        a(f'buffer_store_dwordx4 v[116:119], v2, {W}, s{sKMo} offen sc1')
    emit(a, zero(88, 98))
    a('s_waitcnt lgkmcnt(0)')
    a('s_barrier')
    a(f'v_add_u32 v127, {OFR}, v2')
    a('ds_read_b128 v[20:23], v127'); a('ds_read_b128 v[24:27], v127 offset:1024')
    emit(a, zero(98, 112))
    emit(a, zero(38, 40))
    st(a, 6)
    def epi(cg):
        ops = []
        for t in range(2):
            ac = 72 + 4*(cg*2+t); d = 28 + 4*(cg >> 1) + 2*(cg & 1) + t
            ops += [f'v_add_f32 v{ac}, v{ac}, v{ac+2}', f'v_add_f32 v{ac+1}, v{ac+1}, v{ac+3}', f'v_cvt_pk_bf16_f32 v{d}, v{ac}, v{ac+1}']
        if cg in (1, 3, 4):
            qq = cg >> 1; d = 28 + 4*qq
            ops += [f'v_and_or_b32 v{d}, v{d}, -2, s{sTag}', [f's_add_u32 s{sTmp}, s{sP1w}, {qq*32768}', f'buffer_store_dwordx4 v[{d}:{d+3}], v7, {W}, s{sTmp} offen {sc}']]
        return ops
    def pf(pair):
        sl = (pair & 1) * 2; ops = []
        for t in range(2):
            i = pair * 2 + t; b = 40 + 8 * (sl + t)
            ops += [f'ds_read_b128 v[{b}:{b+3}], v15 offset:{i*2048}', f'ds_read_b128 v[{b+4}:{b+7}], v15 offset:{i*2048+1024}']
        return ops
    a('s_waitcnt lgkmcnt(0)')
    pend = []
    n = 0
    for cg in range(5):
        for eb in range(2):
            p = wo_pair(cg, eb)
            A = 'v[20:23]' if eb == 0 else 'v[24:27]'
            for t in range(2):
                ac = 72 + 4*(cg*2+t)
                b = 192 + (cg*2+t)*8 if p is None else 40 + 8 * ((p & 1) * 2 + t)
                if p is not None and t == 0 and p >= 2:
                    a(f's_waitcnt lgkmcnt({4 if p < 5 else 0})')
                a(f'{SM} v[{ac}:{ac+3}], {A}, v[{b}:{b+7}], v1')
                n += 1
                if p is not None and t == 1 and p + 2 < 6:
                    emit(a, pf(p + 2))
                k = 0
                while pend and pend[0][0] <= n and k < (1 if (p is not None and t == 1 and p + 2 < 6) else 2):
                    emit(a, [pend.pop(0)[1]]); k += 1
        pend += [(n + 3, op_) for op_ in epi(cg)]
    emit(a, [x[1] for x in pend])
    if 'skel' in EXP: a.label(f'skel_{tag}')
    st(a, 7)
    gat = a.newlabel('gat'); join = a.newlabel('join'); op = a.newlabel('ownp'); nown = a.newlabel('nown'); post = a.newlabel('post')
    a(f's_cmp_ge_u32 s{sW}, 2'); a(f's_cbranch_scc1 {gat}')
    a(f's_cmp_eq_u32 s{sOwn}, -1'); a(f's_cbranch_scc1 {nown}')
    a(f'v_add_u32 v127, {SEL}, v2'); a('ds_read_b128 v[36:39], v127')
    a(f's_and_b32 s{sTmp}, s{sS}, 1'); a(f's_mul_i32 s{sTmp}, s{sTmp}, {L.P1SZ}')
    a(f's_lshl_b32 s{sTmp2}, s{sOwn}, 13'); a(f's_add_u32 s{sTmp}, s{sTmp}, s{sTmp2}')
    a(f's_add_u32 s{sTmp}, s{sTmp}, {L.P1}'); a(f's_add_u32 s{sTmp2}, s{sTmp}, 4096')
    a(f's_add_u32 s{sPubX}, s{sOwnP}, s{sMw}'); a(f's_add_u32 s{sPubX}, s{sPubX}, {L.MEMX}')
    a(f's_add_u32 s{sPubF}, s{sOwnP}, s{sMf}'); a(f's_add_u32 s{sPubF}, s{sPubF}, {L.MEMF}')
    if OSLEEP: a(f's_sleep {OSLEEP}')
    a('s_waitcnt lgkmcnt(0)')
    OL = 'nt' if ('ntld' in EXP and fast) else 'sc1'
    def oissue(b):
        for m in range(8):
            so = sTmp if m < 4 else sTmp2
            a(f'buffer_load_dwordx4 v[{b+4*m}:{b+3+4*m}], v2, {W}, s{so} offen offset:{(m&3)*1024} {OL}')
    def oconsume(b, younger):
        for m in range(8):
            a(f's_waitcnt vmcnt({7-m+younger})')
            if 'fine' in EXP and m == 0: st(a, 2)
            if 'fine' in EXP and m == 7: st(a, 3)
            c = '0' if m == 0 else 'v[20:23]'
            a(f'{MF32} v[20:23], v[{b+4*m}:{b+3+4*m}], v[36:39], {c}')
            if m == 0: a(f'v_xor_b32 v28, s{sFlipO}, v{b}')
            else: a(f'v_bitop3_b32 v28, v28, v{b+4*m}, s{sFlipO} bitop3:0x60')
        a('v_and_b32 v28, 1, v28')
        a('v_cmp_eq_u32 vcc, 0, v28')
    if 'ab' in EXP:
        od = a.newlabel('od')
        oissue(40)
        a(f's_sleep {int(os.environ.get("STAG", 2))}')
        a.label(op)
        oissue(72)
        spin_check(a, fail)
        oconsume(40, 8)
        a(f's_cbranch_vccz {od}')
        oissue(40)
        oconsume(72, 8)
        a(f's_cbranch_vccnz {op}')
        a.label(od)
    else:
        opc = a.newlabel('opc')
        a.label(op)
        oissue(40)
        if 'fine' in EXP: st(a, 1)
        oconsume(40, 0)
        if 'fine' in EXP: a(f's_add_u32 s{sT+4}, s{sT+4}, 63')
        if 'noown' not in EXP: a(f's_cbranch_vccnz {opc}')
        def cold_own():
            a.label(opc); spin_check(a, fail); a(f's_branch {op}')
        cold.append(cold_own)
    a(f'v_cndmask_b32 v24, v20, v22, {MH}'); a(f'v_cndmask_b32 v25, v21, v23, {MH}')
    a('v_cvt_pk_bf16_f32 v24, v24, v25')
    if 'nop16' not in EXP:
        if 'atomx' in EXP: a('v_mov_b32 v29, v24')
        a('v_mov_b32 v25, v24'); a('v_permlane16_swap_b32 v24, v25')
        a('v_mov_b32 v26, v24'); a('v_mov_b32 v27, v25')
        a('v_permlane32_swap_b32 v24, v26'); a('v_permlane32_swap_b32 v25, v27')
        a('s_mov_b64 exec, 0xffff')
        if 'xfirst' in EXP: a(f'buffer_store_dwordx4 v[24:27], v8, {W}, s{sPubX} offen sc1')
        a(f'buffer_store_dwordx4 v[24:27], v8, {W}, s{sPubF} offen {sc}')
        if 'xsecond' in EXP: a(f'buffer_store_dwordx4 v[24:27], v8, {W}, s{sPubX} offen sc1')
        a('s_mov_b64 exec, -1')
    else:
        a(f'buffer_store_dword v24, v8, {W}, s{sPubF} offen {sc}')
    st(a, 8)
    a('s_barrier')
    XD = int(os.environ.get('XDELAY', 0))
    if XD: a(f's_sleep {XD}')
    if 'atomx' in EXP: a(f'buffer_atomic_and v29, v8, {W}, s{sPubX} offen')
    elif 'atomx2' in EXP: pass
    elif 'xfirst' in EXP or 'xsecond' in EXP: pass
    elif 'nop16' not in EXP:
        a('s_mov_b64 exec, 0xffff')
        a(f'buffer_store_dwordx4 v[24:27], v8, {W}, s{sPubX} offen sc1')
        a('s_mov_b64 exec, -1')
    elif 'nomemx' not in EXP: a(f'buffer_store_dword v24, v8, {W}, s{sPubX} offen sc1')
    a(f's_xor_b32 s{sTmp}, s{sMf}, {L.MEMSZ}'); a(f's_add_u32 s{sTmp}, s{sTmp}, s{sOwnP}'); a(f's_add_u32 s{sTmp}, s{sTmp}, {L.MEMF}')
    a('v_mov_b32 v28, -1')
    a(f'buffer_store_dword v28, v8, {W}, s{sTmp} offen {sc}')
    a(f's_branch {post}')
    a.label(nown)
    st(a, 8)
    a('s_barrier')
    a.label(post)
    advance(a)
    emit(a, zero(20, 36))
    if 'ab' in EXP: a('s_waitcnt vmcnt(2)')
    a(f's_branch {join}')
    a.label(gat)
    a(f's_add_u32 s{sM2}, s{sMf}, {L.MEMF}')
    advance(a)
    gather_pre(a, sM2)
    emit(a, zero(20, 36))
    a('s_barrier')
    if GSLEEP: a(f's_sleep {GSLEEP}')
    st(a, 10); st.val(a, 2, sSpin)
    LF = ('nt' if ('ntld' in EXP and fast) else 'sc1')
    if 'nogather' not in EXP:
        if 'ab' in EXP: gather2(a, fail, LF, int(os.environ.get('STAG', 2)))
        else: gather(a, fail, st, LF)
    st.val(a, 3, sSpin); st(a, 11)
    a.label(join)
    a('s_waitcnt lgkmcnt(0)')
    a('s_barrier')
    st(a, 9)
    a(f's_branch main_loop_{tag}')
    for c in cold: c()

def emit_helper(a, st, fail, end):
    a.comment('======== HELPER ========')
    a.label('chain_helper')
    srd(a, S_T1, L.KA['Wv'], 640*4096*2)
    a('v_lshrrev_b32 v36, 4, v0'); a('v_and_b32 v37, 15, v0'); a('v_lshlrev_b32 v37, 4, v37')
    a('v_lshlrev_b32 v10, 13, v36'); a('v_add_u32 v10, v10, v37')
    trbase(a, 12, False)
    a(f's_lshl_b32 s30, s{sH}, 8')
    a('s_waitcnt lgkmcnt(0)')
    chunks = []
    for kb in range(10):
        chunks.append(dict(srd=S_T1, vofs=10, sbase=30, soff=64*kb*8192, istep=4*8192, vtr=12, rows=[0, 4, 32, 36], tcol=[0, 32],
                           dests=[f'a{(kb*2)*8}', f'a{(kb*2+1)*8}']))
    load_chunks(a, chunks, 14)
    a('s_barrier')
    a('v_mov_b64 v[12:13], -1'); a('v_mov_b64 v[14:15], -1')
    a('v_lshlrev_b32 v9, 3, v0')
    a(f's_lshl_b32 s{sVMo}, s{sH}, 11'); a(f's_add_u32 s{sVMo}, s{sVMo}, {L.VM}')
    if not FUSED:
        def fill(base, total):
            per = total // 32
            n = per // 4096
            a(f's_mul_i32 s{sTmp}, s{sH}, {per}'); a(f's_lshl_b32 s{sTmp2}, s{sW}, 10'); a(f's_add_u32 s{sTmp}, s{sTmp}, s{sTmp2}'); a(f's_add_u32 s{sTmp}, s{sTmp}, {base}')
            for i in range(n):
                a(f'buffer_store_dwordx4 v[12:15], v2, {W}, s{sTmp} offen sc1')
                if i < n - 1: a(f's_add_u32 s{sTmp}, s{sTmp}, 4096')
        fill(L.VM, 64 * 32 * 2048)
        fill(L.P1, 2 * L.P1SZ)
        fill(L.MEMX, 64 * L.MEMSZ)
        fill(L.MEMF, 131072)
    mem0_frags(a)
    a(f's_sub_u32 s{sTmp}, s{sW}, 2'); a(f's_mul_i32 s{sTmp}, s{sTmp}, 5120'); a(f'v_add_u32 v3, s{sTmp}, v4')
    if COARSE:
        a('s_memrealtime s[90:91]'); a('s_waitcnt lgkmcnt(0)')
        a('v_mov_b32 v36, 0'); a(f's_lshl_b32 s{sTmp}, s{sH}, 5'); a(f's_add_u32 s{sTmp}, s{sTmp}, {TRACE + 32768 + 1024}')
        a('v_mov_b32 v37, s96'); a(f'buffer_store_dword v37, v36, {W}, s{sTmp} offen'); a('v_mov_b32 v37, s90'); a(f'buffer_store_dword v37, v36, {W}, s{sTmp} offen offset:4')
    rendezvous(a, False, fail)
    a(f's_lshl_b32 s{sTmp}, s{sW}, 9'); a(f's_add_u32 s{sVMo}, s{sVMo}, s{sTmp}')
    a(f's_mov_b32 s{sS}, 0')
    a(f's_mov_b32 s{sMr}, {L.MEMX + L.MEMSZ}')
    a(f's_mov_b32 s{sHs}, {int(os.environ.get("HS0", 140))}'); a(f's_mov_b32 s{sHs1}, 1')
    emit(a, zero(28, 36))
    a('s_barrier')
    if 'skel' in EXP: a(f's_branch {end}')
    a.label('helper_loop')
    st(a, 0)
    for kb in range(10):
        a(f'ds_read_b128 v[{72+4*kb}:{75+4*kb}], v4 offset:{kb*1024}')
    for kb in range(10):
        a(f's_waitcnt lgkmcnt({9-kb})')
        for t in range(2):
            acc = 28 + t * 4; b = (kb*2+t)*8
            if 'nov' in EXP and kb > 0: continue
            a(f'{SM} v[{acc}:{acc+3}], v[{72+4*kb}:{75+4*kb}], a[{b}:{b+7}], v1')
    a('v_add_f32 v28, v28, v30'); a('v_add_f32 v29, v29, v31'); a('v_cvt_pk_bf16_f32 v44, v28, v29')
    a('v_add_f32 v32, v32, v34'); a('v_add_f32 v33, v33, v35'); a('v_cvt_pk_bf16_f32 v45, v32, v33')
    a(f'buffer_store_dwordx2 v[44:45], v9, {W}, s{sVMo} offen sc1')
    if FUSED:
        np_ = a.newlabel('np')
        a(f's_or_b32 s{sTmp3}, s{sH}, s{sW}'); a(f's_cmp_lg_u32 s{sTmp3}, 0'); a(f's_cbranch_scc1 {np_}')
        a(f's_add_u32 s{sTmp3}, s{sS}, 1'); a(f'v_mov_b32 v46, s{sTmp3}'); a('v_mov_b32 v47, 0'); a(f's_mov_b32 s{sTmp3}, {L.PROG}')
        a('s_mov_b64 exec, 1')
        a(f'buffer_store_dword v46, v47, {W}, s{sTmp3} offen sc1')
        a('s_mov_b64 exec, -1')
        a.label(np_)
    st(a, 1)
    a(f's_add_u32 s{sVMo}, s{sVMo}, {32*2048}')
    a(f's_cmp_ge_u32 s{sS}, 63'); a(f's_cbranch_scc1 helper_done')
    emit(a, zero(28, 36))
    a('s_barrier')
    hj = a.newlabel('hj')
    a(f's_cmp_lt_u32 s{sW}, 2'); a(f's_cbranch_scc1 {hj}')
    gather_pre(a, sMr)
    if 'ptx' in EXP:
        for i in range(4):
            a(f'buffer_load_dwordx4 v[{40+4*i}:{43+4*i}], v2, {W}, s{sTmp} offen offset:{i*1024} sc1')
        a(f'buffer_load_dwordx4 v[56:59], v2, {W}, s{sTmp2} offen sc1')
    if ADAPT and not HAB:
        a(f's_cmp_gt_u32 s{sHs1}, 1')
        a(f's_cselect_b32 s{sTmp3}, {ADUP + 1}, 0')
        a(f's_add_u32 s{sHs}, s{sHs}, s{sTmp3}')
        a(f's_max_u32 s{sHs}, s{sHs}, 1'); a(f's_sub_u32 s{sHs}, s{sHs}, 1'); a(f's_min_u32 s{sHs}, s{sHs}, 600')
    if ADAPT:
        sl = a.newlabel('hsl'); se = a.newlabel('hse')
        a(f's_lshr_b32 s{sTmp3}, s{sHs}, 2')
        a.label(sl)
        a(f's_cmp_eq_u32 s{sTmp3}, 0'); a(f's_cbranch_scc1 {se}')
        a('s_sleep 1')
        a(f's_sub_u32 s{sTmp3}, s{sTmp3}, 1'); a(f's_branch {sl}')
        a.label(se)
        a(f's_mov_b32 s{sHs0}, s{sSpin}')
    elif HSLEEP: a(f's_sleep {HSLEEP}')
    st(a, 2)
    if ADAPT and HAB:
        gather2(a, fail, 'sc1', HAB, res=sHs0)
        a(f's_cmp_eq_u32 s{sHs0}, 0'); a(f's_cselect_b32 s{sTmp3}, {HDN}, 0'); a(f's_max_u32 s{sHs}, s{sHs}, {HDN}'); a(f's_sub_u32 s{sHs}, s{sHs}, s{sTmp3}')
        a(f's_cmp_ge_u32 s{sHs0}, 2'); a(f's_cselect_b32 s{sTmp3}, {ADUP}, 0'); a(f's_add_u32 s{sHs}, s{sHs}, s{sTmp3}'); a(f's_min_u32 s{sHs}, s{sHs}, 600')
    else:
        gather(a, fail)
    st(a, 3)
    if ADAPT and not HAB: a(f's_sub_u32 s{sHs1}, s{sSpin}, s{sHs0}')
    a.label(hj)
    a('s_waitcnt lgkmcnt(0)')
    a('s_barrier')
    a(f's_add_u32 s{sS}, s{sS}, 1')
    a(f's_add_u32 s{sMr}, s{sMr}, {L.MEMSZ}')
    a('s_branch helper_loop')
    a.label('helper_done')
    st.dump(a, 8192)
    a(f's_branch {end}')
```

```python
from asmlib import Asm
import layout as L
import gemm as GM
from gemm import G, MF
import kernels as KN
from kernels import f32bits, pack_T, unpack, row_reduce16, MF32, MF16, C_SCALE
import chain5 as CH

sWI = 60; sJ = 61; sSpin = 63; sB = 38; sSub = 39
S_DBG = 84
WS = 's[4:7]'; DBG = f's[{S_DBG}:{S_DBG+3}]'
WOS = 8
DNS = 3
SPIN_MAX = 1 << 22
SC = 'sc1'
STAMP = False

def emit(a, ops):
    for x in ops:
        if isinstance(x, (list, tuple)): emit(a, x)
        else: a(x)

class T: tid = 254; a = 250; b = 251
def tid(a): a(f'v_mov_b32 v0, v{T.tid}')

def signal(a, off_sreg=None, off_imm=None, dbg=False, younger=0):
    a(f's_waitcnt vmcnt({younger})')
    a('s_barrier')
    sk = a.newlabel('sig')
    a(f'v_cmp_eq_u32 vcc, 0, v{T.tid}')
    a('s_and_saveexec_b64 s[56:57], vcc')
    a(f's_cbranch_execz {sk}')
    a(f'v_mov_b32 v{T.a}, 1'); a(f'v_mov_b32 v{T.b}, 0')
    if dbg:
        a(f'buffer_atomic_add v{T.a}, v{T.b}, {DBG}, 0 offen offset:{off_imm}')
    else:
        a(f'buffer_atomic_add v{T.a}, v{T.b}, {WS}, s{off_sreg} offen')
    a.label(sk)
    a('s_mov_b64 exec, s[56:57]')

def nap(a, short=None):
    sh = a.newlabel('nap'); e = a.newlabel('nape')
    a(f's_cmp_ge_u32 s{sB}, {L.NBLK - 1}'); a(f's_cbranch_scc1 {sh}')
    a('s_sleep 24'); a(f's_branch {e}')
    a.label(sh); a('s_sleep ' + (str(short) if short is not None else __import__('os').environ.get('NAPS', '12')))
    a.label(e)

def wait_ctr(a, off_sreg, target, fail):
    lp = a.newlabel('wc'); ok = a.newlabel('wok')
    a(f'v_readfirstlane_b32 s56, v{T.tid}')
    a(f's_cmp_ge_u32 s56, 64'); a(f's_cbranch_scc1 {ok}')
    a(f'v_mov_b32 v{T.b}, 0')
    a.label(lp)
    a(f'buffer_load_dword v{T.a}, v{T.b}, {WS}, s{off_sreg} offen sc1')
    a('s_waitcnt vmcnt(0)')
    a(f'v_readfirstlane_b32 s56, v{T.a}')
    a(f's_cmp_ge_u32 s56, {target}'); a(f's_cbranch_scc1 {ok}')
    a(f's_add_u32 s{sSpin}, s{sSpin}, 1'); a(f's_cmp_gt_u32 s{sSpin}, {SPIN_MAX}'); a(f's_cbranch_scc1 {fail}')
    nap(a)
    a(f's_branch {lp}')
    a.label(ok)
    a('s_barrier')

def ctr_addr(a, dst, kind, breg):
    a(f's_lshl_b32 s{dst}, s{breg}, 7'); a(f's_add_u32 s{dst}, s{dst}, {L.ctr(kind)}')

def gemm_common(a, lda, ldb, splitB=False):
    g = G
    tid(a)
    GM.setup_lane_consts(a, lda, ldb, splitB)
    a(f's_lshl_b32 s{g.sLdsA}, s{g.sW}, 12')
    a(f's_lshl_b32 s{g.sLdsB}, s{g.sW}, {11 if splitB else 12}')

def load_ptr(a, base, key, nbytes):
    a(f's_load_dwordx2 s[{base}:{base+1}], s[0:1], {L.KA[key]}')
    a(f's_mov_b32 s{base+2}, {nbytes}'); a(f's_mov_b32 s{base+3}, 0x00020000')


EPI = 98304
def epi_T_bf16(a, accs, ld, sbase, ncol_tiles=2, epi=None):
    epi = EPI if epi is None else epi
    g = G; t = g.vT
    a(f'v_and_b32 v{t}, 31, v0'); a(f'v_lshlrev_b32 v{t+1}, 7, v{t}'); a(f'v_and_b32 v{t+2}, 7, v0'); a(f'v_lshrrev_b32 v{t+3}, 5, v0')
    a(f's_lshl_b32 s46, s{g.sW}, 13'); a(f's_add_u32 s46, s46, {epi}'); a(f'v_add_u32 v{t+1}, s46, v{t+1}')
    for rt in range(2):
        for ct in range(2):
            dst = g.FA + ((rt*2+ct) & 1) * 8
            pack_T(a, accs[rt][ct], dst)
            for kk in range(2):
                c0 = 4*ct + 2*kk
                a(f'v_add_u32 v{t+4}, {c0}, v{t+3}'); a(f'v_xor_b32 v{t+4}, v{t+4}, v{t+2}'); a(f'v_lshlrev_b32 v{t+4}, 4, v{t+4}'); a(f'v_add_u32 v{t+4}, v{t+4}, v{t+1}')
                a(f'ds_write_b128 v{t+4}, v[{dst+4*kk}:{dst+4*kk+3}] offset:{rt*4096}')
    a(f'v_lshrrev_b32 v{t}, 3, v0'); a(f'v_and_b32 v{t+2}, 7, v0'); a(f'v_xor_b32 v{t+3}, v{t+2}, v{t}'); a(f'v_lshlrev_b32 v{t+3}, 4, v{t+3}')
    a(f'v_lshlrev_b32 v{t+4}, 7, v{t}'); a(f'v_add_u32 v{t+3}, v{t+3}, v{t+4}'); a(f'v_add_u32 v{t+3}, s46, v{t+3}')
    a(f's_mov_b32 s47, {ld}'); a(f'v_mul_lo_u32 v{t}, v{t}, s47'); a(f'v_lshlrev_b32 v{t+2}, 4, v{t+2}'); a(f'v_add_u32 v{t}, v{t}, v{t+2}')
    a('s_waitcnt lgkmcnt(0)')
    for i in range(8): a(f'ds_read_b128 v[{g.FA+4*i}:{g.FA+4*i+3}], v{t+3} offset:{i*1024}')
    for i in range(8):
        a(f's_waitcnt lgkmcnt({7-i})')
        a(f's_add_u32 s47, s{sbase}, {i*8*ld}')
        a(f'buffer_store_dwordx4 v[{g.FA+4*i}:{g.FA+4*i+3}], v{t}, {WS}, s47 offen {SC}')

def epi_T_f32(a, ld, sbase, epi=None, RT=2):
    epi = EPI if epi is None else epi
    g = G; t = g.vT
    a(f'v_and_b32 v{t}, 31, v0'); a(f'v_lshlrev_b32 v{t+1}, 8, v{t}'); a(f'v_and_b32 v{t+2}, 7, v0'); a(f'v_lshrrev_b32 v{t+3}, 5, v0')
    a(f's_lshl_b32 s46, s{g.sW}, {13 + RT - 1}'); a(f's_add_u32 s46, s46, {epi}'); a(f'v_add_u32 v{t+1}, s46, v{t+1}')
    for ct in range(2):
        for q in range(4):
            c0 = 8*ct + 2*q
            a(f'v_add_u32 v{t+4}, {c0}, v{t+3}'); a(f'v_xor_b32 v{t+4}, v{t+4}, v{t+2}'); a(f'v_lshlrev_b32 v{t+4}, 4, v{t+4}'); a(f'v_add_u32 v{t+4}, v{t+4}, v{t+1}')
            for rt in range(RT):
                acc = g.ACC + (rt*2+ct)*16 + 4*q
                a(f'ds_write_b128 v{t+4}, v[{acc}:{acc+3}] offset:{rt*8192}')
    a(f'v_lshrrev_b32 v{t}, 4, v0'); a(f'v_and_b32 v{t+2}, 15, v0')
    a(f'v_xor_b32 v{t+3}, v{t+2}, v{t}'); a(f'v_xor_b32 v{t+5}, 4, v{t+3}')
    a(f'v_lshlrev_b32 v{t+3}, 4, v{t+3}'); a(f'v_lshlrev_b32 v{t+5}, 4, v{t+5}'); a(f'v_lshlrev_b32 v{t+4}, 8, v{t}'); a(f'v_add_u32 v{t+4}, s46, v{t+4}')
    a(f'v_add_u32 v{t+3}, v{t+3}, v{t+4}'); a(f'v_add_u32 v{t+5}, v{t+5}, v{t+4}')
    a(f's_mov_b32 s47, {ld}'); a(f'v_mul_lo_u32 v{t}, v{t}, s47'); a(f'v_lshlrev_b32 v{t+2}, 4, v{t+2}'); a(f'v_add_u32 v{t}, v{t}, v{t+2}')
    a('s_waitcnt lgkmcnt(0)')
    for half in range(RT):
        for i in range(8):
            ii = half*8 + i
            a(f'ds_read_b128 v[{g.ACC+4*ii}:{g.ACC+4*ii+3}], v{t+3 if ii % 2 == 0 else t+5} offset:{ii*1024}')
        for i in range(8):
            ii = half*8 + i
            a(f's_waitcnt lgkmcnt({7-i})')
            a(f's_add_u32 s47, s{sbase}, {ii*4*ld}')
            a(f'buffer_store_dwordx4 v[{g.ACC+4*ii}:{g.ACC+4*ii+3}], v{t}, {WS}, s47 offen {SC}')

def task_ln1(a):
    tid(a)
    load_ptr(a, 8, 'x', 2048*640*2)
    a('v_lshrrev_b32 v1, 4, v0'); a('s_lshl_b32 s41, s40, 4'); a('v_add_u32 v1, s41, v1')
    a('v_mul_u32_u24 v1, 1280, v1'); a('v_and_b32 v5, 15, v0'); a('v_lshlrev_b32 v5, 4, v5'); a('v_add_u32 v1, v1, v5')
    a('s_waitcnt lgkmcnt(0)')
    for c in range(5): a(f'buffer_load_dwordx4 v[{8+4*c}:{11+4*c}], v1, s[8:11], 0 offen offset:{c*256}')
    a('s_waitcnt vmcnt(0)')
    unpack(a, 8, 32, 20)
    KN.ln_core(a, 32, 8)
    a(f's_mov_b32 s41, {L.XN}')
    for c in range(5): a(f'buffer_store_dwordx4 v[{8+4*c}:{11+4*c}], v1, {WS}, s41 offen offset:{c*256} {SC}')

def task_qkv(a, matrix):
    g = G
    key = ('Wq', 'Wk', 'Wv')[matrix]
    a(f's_lshl_b32 s{g.sT0}, s40, 7'); a(f's_lshl_b32 s{g.sT1}, s{g.sW}, 5'); a(f's_add_u32 s{g.sT0}, s{g.sT0}, s{g.sT1}')
    a(f's_mul_i32 s{g.sAoff}, s{g.sT0}, 1280'); a(f's_add_u32 s{g.sAoff}, s{g.sAoff}, {L.XN}')
    a(f's_lshl_b32 s{g.sBoff}, s43, 8'); a(f's_lshl_b32 s{g.sT1}, s{g.sW}, 17'); a(f's_add_u32 s{g.sBoff}, s{g.sBoff}, s{g.sT1}')
    a('s_barrier')
    GM.mainloop(a, 10, 1280, 8192, 'N' if matrix == 2 else 'T')
    t = g.vT
    if matrix != 2:
        a(f's_mov_b32 s45, {L.Q if matrix == 0 else L.K}')
        a(f's_lshl_b32 s46, s40, 7'); a(f's_lshl_b32 s47, s{g.sWM}, 6'); a('s_add_u32 s46, s46, s47'); a('s_lshl_b32 s46, s46, 13'); a('s_add_u32 s45, s45, s46')
        a(f's_lshl_b32 s46, s43, 8'); a('s_add_u32 s45, s45, s46'); a(f's_lshl_b32 s46, s{g.sWN}, 7'); a('s_add_u32 s45, s45, s46')
        epi_T_bf16(a, [[g.ACC, g.ACC+16], [g.ACC+32, g.ACC+48]], 8192, 45)
    else:
        a(f'v_bfe_u32 v{t}, v0, 4, 1'); a(f'v_lshlrev_b32 v{t}, 10, v{t}'); a(f'v_and_b32 v{t+1}, 15, v0'); a(f'v_lshlrev_b32 v{t+1}, 4, v{t+1}'); a(f'v_add_u32 v{t}, v{t}, v{t+1}')
        a(f'v_lshrrev_b32 v{t+1}, 5, v0'); a(f'v_lshlrev_b32 v{t+1}, 9, v{t+1}'); a(f'v_add_u32 v{t}, v{t}, v{t+1}')
        a(f's_lshl_b32 s45, s40, 2'); a(f's_lshl_b32 s46, s{g.sWM}, 1'); a('s_add_u32 s45, s45, s46'); a('s_lshl_b32 s45, s45, 18')
        a(f's_lshl_b32 s46, s43, 13'); a('s_add_u32 s45, s45, s46'); a(f's_lshl_b32 s46, s{g.sWN}, 12'); a('s_add_u32 s45, s45, s46'); a(f's_add_u32 s45, s45, {L.VT}')
        for rt in range(2):
            for ct in range(2):
                acc = g.ACC + (rt*2+ct)*16; dst = g.FA + ((rt*2+ct) & 1) * 8
                for i in range(8): a(f'v_cvt_pk_bf16_f32 v{dst+i}, v{acc+2*i}, v{acc+2*i+1}')
                a(f's_add_u32 s47, s45, {rt*262144 + ct*2048}')
                a(f'buffer_store_dwordx4 v[{dst}:{dst+3}], v{t}, {WS}, s47 offen {SC}')
                a(f'buffer_store_dwordx4 v[{dst+4}:{dst+7}], v{t}, {WS}, s47 offen offset:256 {SC}')

def qkv_loop(a, name, matrix, start_reg, stride, kind, fail):
    lp = a.newlabel(name); done = a.newlabel(name + 'd')
    gemm_common(a, 1280, 8192)
    load_ptr(a, G.SB, ('Wq', 'Wk', 'Wv')[matrix], 640*4096*2)
    a('s_waitcnt lgkmcnt(0)')
    a(f's_mov_b32 s{sJ}, s{start_reg}')
    a.label(lp)
    a(f's_cmp_ge_u32 s{sJ}, 512'); a(f's_cbranch_scc1 {done}')
    a(f's_lshr_b32 s40, s{sJ}, 5'); a(f's_and_b32 s43, s{sJ}, 31')
    if True:
        wl = a.newlabel('l1b'); wk = a.newlabel('l1bok')
        a('s_lshl_b32 s49, s40, 2'); a('s_add_u32 s49, s49, 128'); a('v_mov_b32 v251, 0')
        a.label(wl)
        a(f'buffer_load_dword v250, v251, {DBG}, s49 offen sc1')
        a('s_waitcnt vmcnt(0)')
        a('v_readfirstlane_b32 s56, v250')
        a(f's_cmp_ge_u32 s56, 8'); a(f's_cbranch_scc1 {wk}')
        a(f's_add_u32 s{sSpin}, s{sSpin}, 1'); a(f's_cmp_gt_u32 s{sSpin}, {SPIN_MAX}'); a(f's_cbranch_scc1 {fail}')
        a('s_sleep 3')
        a(f's_branch {wl}')
        a.label(wk)
    task_qkv(a, matrix)
    ctr_addr(a, 49, kind, 40)
    signal(a, off_sreg=49)
    a(f's_add_u32 s{sJ}, s{sJ}, {stride}')
    a(f's_branch {lp}')
    a.label(done)


def qkv_stat(a, matrix, fail):
    g = G
    GM.set_rt(2)
    load_ptr(a, g.SB, ('Wq', 'Wk', 'Wv')[matrix], 640*4096*2)
    tid(a); GM.stat_setup(a, 1280, 8192)
    a(f's_lshl_b32 s{g.sBoff}, s43, 8'); a(f's_lshl_b32 s{g.sT1}, s{g.sW}, 17'); a(f's_add_u32 s{g.sBoff}, s{g.sBoff}, s{g.sT1}')
    a('s_waitcnt lgkmcnt(0)')
    GM.stat_load_B(a, 10, 8192)
    wl = a.newlabel('l1b'); wk = a.newlabel('l1bok')
    a('v_and_b32 v251, 15, v0'); a('v_lshlrev_b32 v251, 2, v251')
    a.label(wl)
    a(f'buffer_load_dword v250, v251, {DBG}, 0 offen offset:128 sc1')
    a('s_waitcnt vmcnt(0)')
    a('v_cmp_gt_u32 vcc, 8, v250'); a(f's_cbranch_vccz {wk}')
    a(f's_add_u32 s{sSpin}, s{sSpin}, 1'); a(f's_cmp_gt_u32 s{sSpin}, {SPIN_MAX}'); a(f's_cbranch_scc1 {fail}')
    a('s_sleep 3')
    a(f's_branch {wl}')
    a.label(wk)
    def aoff():
        a(f's_lshl_b32 s{g.sT0}, s40, 7'); a(f's_lshl_b32 s{g.sT1}, s{g.sW}, 5'); a(f's_add_u32 s{g.sT0}, s{g.sT0}, s{g.sT1}')
        a(f's_mul_i32 s{g.sAoff}, s{g.sT0}, 1280'); a(f's_add_u32 s{g.sAoff}, s{g.sAoff}, {L.XN}')
    a('s_barrier')
    aoff()
    GM.stat_pre(a, 10, 1280)
    lp = a.newlabel('qs')
    a.label(lp)
    GM.stat_mainloop(a, 10, 1280, 'N' if matrix == 2 else 'T', pre=True)
    a('s_barrier')
    a('s_mov_b32 s50, s40'); a('s_add_u32 s40, s40, 2'); a('s_min_u32 s40, s40, 15')
    aoff()
    GM.stat_pre(a, 10, 1280, 0, 4)
    a('s_mov_b32 s40, s50')
    t = g.vT
    if matrix != 2:
        a(f's_mov_b32 s45, {L.Q if matrix == 0 else L.K}')
        a(f's_lshl_b32 s46, s40, 7'); a(f's_lshl_b32 s47, s{g.sWM}, 6'); a('s_add_u32 s46, s46, s47'); a('s_lshl_b32 s46, s46, 13'); a('s_add_u32 s45, s45, s46')
        a(f's_lshl_b32 s46, s43, 8'); a('s_add_u32 s45, s45, s46'); a(f's_lshl_b32 s46, s{g.sWN}, 7'); a('s_add_u32 s45, s45, s46')
        epi_T_bf16(a, [[g.ACC, g.ACC+16], [g.ACC+32, g.ACC+48]], 8192, 45, epi=GM.BTMP)
    else:
        a(f'v_bfe_u32 v{t}, v0, 4, 1'); a(f'v_lshlrev_b32 v{t}, 10, v{t}'); a(f'v_and_b32 v{t+1}, 15, v0'); a(f'v_lshlrev_b32 v{t+1}, 4, v{t+1}'); a(f'v_add_u32 v{t}, v{t}, v{t+1}')
        a(f'v_lshrrev_b32 v{t+1}, 5, v0'); a(f'v_lshlrev_b32 v{t+1}, 9, v{t+1}'); a(f'v_add_u32 v{t}, v{t}, v{t+1}')
        a(f's_lshl_b32 s45, s40, 2'); a(f's_lshl_b32 s46, s{g.sWM}, 1'); a('s_add_u32 s45, s45, s46'); a('s_lshl_b32 s45, s45, 18')
        a(f's_lshl_b32 s46, s43, 13'); a('s_add_u32 s45, s45, s46'); a(f's_lshl_b32 s46, s{g.sWN}, 12'); a('s_add_u32 s45, s45, s46'); a(f's_add_u32 s45, s45, {L.VT}')
        for rt in range(2):
            for ct in range(2):
                acc = g.ACC + (rt*2+ct)*16; dst = g.FA + ((rt*2+ct) & 1) * 8
                for i in range(8): a(f'v_cvt_pk_bf16_f32 v{dst+i}, v{acc+2*i}, v{acc+2*i+1}')
                a(f's_add_u32 s47, s45, {rt*262144 + ct*2048}')
                a(f'buffer_store_dwordx4 v[{dst}:{dst+3}], v{t}, {WS}, s47 offen {SC}')
                a(f'buffer_store_dwordx4 v[{dst+4}:{dst+7}], v{t}, {WS}, s47 offen offset:256 {SC}')
    ctr_addr(a, 49, L.C_Q if matrix == 0 else L.C_KV, 40)
    GM.stat_pre(a, 10, 1280, 4, 8)
    signal(a, off_sreg=49, younger=16)
    a('s_add_u32 s40, s40, 2')
    a('s_cmp_lt_u32 s40, 16'); a(f's_cbranch_scc1 {lp}')
    a('s_waitcnt vmcnt(0)')
    a('s_barrier')
    GM.set_rt(1)

def task_attn(a, fail):
    tid(a)
    a(f's_lshr_b32 s48, s{sB}, 1'); ctr_addr(a, 49, L.C_Q, 48); wait_ctr(a, 49, 32, fail)
    Wd = WS
    a('v_lshrrev_b32 v1, 6, v0'); a('v_readfirstlane_b32 s8, v1'); a('v_and_b32 v0, 63, v0')
    a(f's_lshl_b32 s10, s{sB}, 1'); a(f's_lshr_b32 s9, s{sSub}, 3'); a('s_add_u32 s10, s10, s9')
    a(f's_and_b32 s11, s{sSub}, 7'); a('s_lshl_b32 s11, s11, 2'); a('s_add_u32 s11, s11, s8')
    a('v_and_b32 v6, 15, v0'); a('v_lshlrev_b32 v1, 13, v6'); a('v_lshrrev_b32 v7, 4, v0'); a('v_lshlrev_b32 v8, 4, v7'); a('v_add_u32 v1, v1, v8')
    a('v_bfe_u32 v2, v0, 2, 1'); a('v_lshlrev_b32 v2, 4, v2'); a('v_bfe_u32 v9, v0, 3, 1'); a('v_lshlrev_b32 v9, 2, v9'); a('v_add_u32 v2, v2, v9')
    a('v_and_b32 v9, 3, v0'); a('v_add_u32 v2, v2, v9'); a('v_lshlrev_b32 v2, 13, v2'); a('v_add_u32 v2, v2, v8')
    a('v_lshlrev_b32 v3, 4, v0'); a('v_lshlrev_b32 v4, 3, v0')
    a('v_lshlrev_b32 v5, 13, v6'); a('v_bfe_u32 v9, v0, 4, 1'); a('v_lshlrev_b32 v9, 5, v9'); a('v_add_u32 v5, v5, v9'); a('v_lshrrev_b32 v9, 5, v0'); a('v_lshlrev_b32 v9, 4, v9'); a('v_add_u32 v5, v5, v9')
    a('v_and_b32 v9, 1, v7'); a('v_lshlrev_b32 v9, 4, v9'); a('v_lshrrev_b32 v10, 1, v7'); a('v_lshlrev_b32 v10, 2, v10'); a('v_add_u32 v9, v9, v10'); a('v_sub_u32 v10, v6, v9')
    a('s_lshl_b32 s12, s10, 18'); a('s_lshl_b32 s13, s11, 8'); a('s_add_u32 s12, s12, s13')
    a(f's_add_u32 s14, s12, {L.Q}'); a(f's_add_u32 s15, s12, {L.K}'); a(f's_add_u32 s16, s12, {L.O}')
    a('s_lshl_b32 s17, s10, 5'); a('s_add_u32 s17, s17, s11')
    a('s_lshl_b32 s18, s17, 12'); a(f's_add_u32 s18, s18, {L.KM}')
    a('s_lshl_b32 s19, s17, 13'); a(f's_add_u32 s19, s19, {L.VT}')
    a('s_lshl_b32 s20, s17, 11'); a(f's_add_u32 s20, s20, {L.VM}')
    a(f's_mov_b32 s21, {hex(f32bits(C_SCALE))}')
    QF = 16; KX = 48; KMf = 80; S = 96; VT = 120; VMf = 152; P = 160; O = 176
    for qt in range(2):
        a(f's_add_u32 s22, s14, {qt*16*8192}')
        for kp in range(4): a(f'buffer_load_dwordx4 v[{QF+(qt*4+kp)*4}:{QF+(qt*4+kp)*4+3}], v1, {Wd}, s22 offen offset:{kp*64}')
    for kt in range(2):
        a(f's_add_u32 s22, s15, {kt*8*8192}')
        for kp in range(4): a(f'buffer_load_dwordx4 v[{KX+(kt*4+kp)*4}:{KX+(kt*4+kp)*4+3}], v2, {Wd}, s22 offen offset:{kp*64}')
    for et in range(8):
        a(f's_add_u32 s22, s19, {(et>>2)*4096}')
        a(f'buffer_load_dwordx4 v[{VT+et*4}:{VT+et*4+3}], v3, {Wd}, s22 offen offset:{(et&3)*1024}')
    pw = a.newlabel('pw'); pk_ = a.newlabel('pwok')
    a('s_add_u32 s23, s10, 2'); a('s_min_u32 s23, s23, 64'); a(f's_mov_b32 s22, {L.PROG}'); a('v_mov_b32 v11, 0')
    a.label(pw)
    a(f'buffer_load_dword v12, v11, {Wd}, s22 offen sc1')
    a('s_waitcnt vmcnt(0)')
    a('v_readfirstlane_b32 s56, v12')
    a('s_cmp_ge_u32 s56, s23'); a(f's_cbranch_scc1 {pk_}')
    a(f's_add_u32 s{sSpin}, s{sSpin}, 1'); a(f's_cmp_gt_u32 s{sSpin}, {SPIN_MAX}'); a(f's_cbranch_scc1 {fail}')
    nap(a, 2)
    a(f's_branch {pw}')
    a.label(pk_)
    lp = a.newlabel('atp'); ok = a.newlabel('atok')
    a.label(lp)
    for kp in range(4): a(f'buffer_load_dwordx4 v[{KMf+kp*4}:{KMf+kp*4+3}], v3, {Wd}, s18 offen offset:{kp*1024} sc1')
    for p in range(4): a(f'buffer_load_dwordx2 v[{VMf+2*p}:{VMf+2*p+1}], v4, {Wd}, s20 offen offset:{p*512} sc1')
    a('s_waitcnt vmcnt(0)')
    CH.maxchain(a, 11, list(range(KMf, KMf+16)) + list(range(VMf, VMf+8)))
    a('v_cmp_eq_u32 vcc, -1, v11'); a(f's_cbranch_vccz {ok}')
    a(f's_add_u32 s{sSpin}, s{sSpin}, 1'); a(f's_cmp_gt_u32 s{sSpin}, {SPIN_MAX}'); a(f's_cbranch_scc1 {fail}')
    nap(a, 2)
    a(f's_branch {lp}')
    a.label(ok)
    Sreg = lambda kt, qt: S + (kt*2+qt)*4
    for kp in range(4):
        for qt in range(2):
            B = f'v[{QF+(qt*4+kp)*4}:{QF+(qt*4+kp)*4+3}]'
            for kt in range(3):
                A = f'v[{KMf+kp*4}:{KMf+kp*4+3}]' if kt == 0 else f'v[{KX+((kt-1)*4+kp)*4}:{KX+((kt-1)*4+kp)*4+3}]'
                d = Sreg(kt, qt); c = '0' if kp == 0 else f'v[{d}:{d+3}]'
                a(f'{MF32} v[{d}:{d+3}], {A}, {B}, {c}')
    a('v_mov_b32 v11, 0xff800000')
    for qt in range(2):
        for kt in (1, 2):
            for r in range(4):
                cst = 8*(kt-1) + r - 16*qt
                reg = Sreg(kt, qt) + r
                a(f'v_cmp_le_i32 vcc, {cst}, v10')
                a(f'v_cndmask_b32 v{reg}, v11, v{reg}, vcc')
        m = 12; t2 = 13
        s0 = Sreg(0, qt); s1 = Sreg(1, qt); s2 = Sreg(2, qt)
        a(f'v_max3_f32 v{m}, v{s0}, v{s0+1}, v{s1}'); a(f'v_max3_f32 v{m}, v{m}, v{s1+1}, v{s1+2}'); a(f'v_max3_f32 v{m}, v{m}, v{s1+3}, v{s2}')
        a(f'v_max3_f32 v{m}, v{m}, v{s2+1}, v{s2+2}'); a(f'v_max_f32 v{m}, v{m}, v{s2+3}')
        a(f'v_mov_b32 v{t2}, v{m}'); a(f'v_permlane32_swap_b32 v{m}, v{t2}'); a(f'v_max_f32 v{m}, v{m}, v{t2}')
        a(f'v_mov_b32 v{t2}, v{m}'); a(f'v_permlane16_swap_b32 v{m}, v{t2}'); a(f'v_max_f32 v{m}, v{m}, v{t2}')
        a(f'v_mul_f32 v{m}, s21, v{m}')
        vals = [s0, s0+1] + [s1+i for i in range(4)] + [s2+i for i in range(4)]
        for r in vals: a(f'v_fma_f32 v{r}, v{r}, s21, -v{m}')
        for r in vals: a(f'v_exp_f32 v{r}, v{r}')
        pb = P + qt*8
        a(f'v_cvt_pk_bf16_f32 v{pb}, v{s1}, v{s1+1}'); a(f'v_cvt_pk_bf16_f32 v{pb+1}, v{s1+2}, v{s1+3}')
        a(f'v_cvt_pk_bf16_f32 v{pb+2}, v{s2}, v{s2+1}'); a(f'v_cvt_pk_bf16_f32 v{pb+3}, v{s2+2}, v{s2+3}')
        a(f'v_cvt_pk_bf16_f32 v{pb+4}, v{s0}, v{s0+1}'); a(f'v_mov_b32 v{pb+5}, 0'); a(f'v_mov_b32 v{pb+6}, 0'); a(f'v_mov_b32 v{pb+7}, v{pb+4}')
        l = 14 + qt
        a(f'v_add_f32 v{l}, v{vals[0]}, v{vals[1]}')
        for r in vals[2:]: a(f'v_add_f32 v{l}, v{l}, v{r}')
        a(f'v_mov_b32 v{t2}, v{l}'); a(f'v_permlane32_swap_b32 v{l}, v{t2}'); a(f'v_add_f32 v{l}, v{l}, v{t2}')
        a(f'v_mov_b32 v{t2}, v{l}'); a(f'v_permlane16_swap_b32 v{l}, v{t2}'); a(f'v_add_f32 v{l}, v{l}, v{t2}')
        a(f'v_rcp_f32 v{l}, v{l}')
    Oreg = lambda et, qt: O + (qt*8+et)*4
    for qt in range(2):
        pb = P + qt*8
        for et in range(8):
            o = Oreg(et, qt)
            a(f'{MF32} v[{o}:{o+3}], v[{VT+et*4}:{VT+et*4+3}], v[{pb}:{pb+3}], 0')
        for et in range(8):
            o = Oreg(et, qt); p = et >> 1
            b = f'v[{pb+6}:{pb+7}]' if et & 1 else f'v[{pb+4}:{pb+5}]'
            a(f'{MF16} v[{o}:{o+3}], v[{VMf+2*p}:{VMf+2*p+1}], {b}, v[{o}:{o+3}]')
    a('s_lshl_b32 s22, s8, 13'); a(f's_add_u32 s22, s22, {EPI}')
    a('v_lshlrev_b32 v1, 8, v6'); a('v_add_u32 v1, s22, v1')
    a('v_bfe_u32 v2, v0, 4, 1'); a('v_lshlrev_b32 v2, 1, v2'); a('v_lshrrev_b32 v3, 5, v0'); a('v_add_u32 v2, v2, v3')
    a('v_and_b32 v3, 7, v0')
    for qt in range(2):
        l = 14 + qt
        for ep in range(4):
            e0 = Oreg(2*ep, qt); e1 = Oreg(2*ep+1, qt); d = QF + (ep & 1) * 4
            for r in range(4):
                a(f'v_mul_f32 v{e0+r}, v{e0+r}, v{l}'); a(f'v_mul_f32 v{e1+r}, v{e1+r}, v{l}')
            a(f'v_cvt_pk_bf16_f32 v{d}, v{e0}, v{e0+1}'); a(f'v_cvt_pk_bf16_f32 v{d+1}, v{e0+2}, v{e0+3}')
            a(f'v_cvt_pk_bf16_f32 v{d+2}, v{e1}, v{e1+1}'); a(f'v_cvt_pk_bf16_f32 v{d+3}, v{e1+2}, v{e1+3}')
            a(f'v_permlane16_swap_b32 v{d}, v{d+2}'); a(f'v_permlane16_swap_b32 v{d+1}, v{d+3}')
            a(f'v_add_u32 v4, {4*ep}, v2'); a('v_xor_b32 v4, v4, v3'); a('v_lshlrev_b32 v4, 4, v4'); a('v_add_u32 v4, v4, v1')
            a(f'ds_write_b128 v4, v[{d}:{d+3}] offset:{qt*4096}')
    a('v_lshrrev_b32 v7, 4, v0'); a('v_xor_b32 v2, v6, v7'); a('v_xor_b32 v3, 4, v2')
    a('v_lshlrev_b32 v2, 4, v2'); a('v_lshlrev_b32 v3, 4, v3'); a('v_lshlrev_b32 v4, 8, v7'); a('v_add_u32 v4, s22, v4'); a('v_add_u32 v2, v2, v4'); a('v_add_u32 v3, v3, v4')
    a('v_lshlrev_b32 v5, 13, v7'); a('v_lshlrev_b32 v4, 4, v6'); a('v_add_u32 v5, v5, v4')
    a('s_waitcnt lgkmcnt(0)')
    for i in range(8): a(f'ds_read_b128 v[{KX+4*i}:{KX+4*i+3}], v{2 if i % 2 == 0 else 3} offset:{i*1024}')
    for i in range(8):
        a(f's_waitcnt lgkmcnt({7-i})')
        a(f's_add_u32 s22, s16, {i*4*8192}')
        a(f'buffer_store_dwordx4 v[{KX+4*i}:{KX+4*i+3}], v5, {Wd}, s22 offen {SC}')
    ctr_addr(a, 49, L.C_AT, sB); signal(a, off_sreg=49)

def part_store(a, base, ks_reg, m_reg, n_reg, epi=None, RT=2):
    g = G
    a(f's_mul_i32 s45, s{ks_reg}, {2048*640*4}'); a(f's_add_u32 s45, s45, {base}')
    a(f's_lshl_b32 s46, s{m_reg}, {6 + RT - 1}'); a(f's_lshl_b32 s47, s{g.sWM}, {5 + RT - 1}'); a('s_add_u32 s46, s46, s47'); a('s_mul_i32 s46, s46, 2560'); a('s_add_u32 s45, s45, s46')
    a(f's_lshl_b32 s46, s{n_reg}, 9'); a('s_add_u32 s45, s45, s46'); a(f's_lshl_b32 s46, s{g.sWN}, 8'); a('s_add_u32 s45, s45, s46')
    epi_T_f32(a, 2560, 45, epi, RT)

def task_wo(a, fail):
    g = G
    ctr_addr(a, 49, L.C_AT, sB); wait_ctr(a, 49, 32, fail)
    load_ptr(a, g.SB, 'Wo', 4096*640*2)
    a(f's_and_b32 s42, s{sSub}, {WOS-1}'); a(f's_lshr_b32 s41, s{sSub}, {WOS.bit_length()-1}')
    gemm_common(a, 8192, 1280)
    KS = 4096 // WOS
    a(f's_lshl_b32 s{g.sT0}, s{sB}, 7'); a(f's_lshl_b32 s{g.sT1}, s{g.sW}, 5'); a(f's_add_u32 s{g.sT0}, s{g.sT0}, s{g.sT1}')
    a(f's_lshl_b32 s{g.sAoff}, s{g.sT0}, 13'); a(f's_add_u32 s{g.sAoff}, s{g.sAoff}, {L.O}')
    a(f's_mul_i32 s{g.sT1}, s42, {KS*2}'); a(f's_add_u32 s{g.sAoff}, s{g.sAoff}, s{g.sT1}')
    a(f's_mul_i32 s{g.sBoff}, s42, {KS*1280}'); a(f's_lshl_b32 s{g.sT1}, s41, 8'); a(f's_add_u32 s{g.sBoff}, s{g.sBoff}, s{g.sT1}')
    a(f's_mul_i32 s{g.sT1}, s{g.sW}, {16*1280}'); a(f's_add_u32 s{g.sBoff}, s{g.sBoff}, s{g.sT1}')
    a('s_waitcnt lgkmcnt(0)')
    a('s_barrier')
    GM.mainloop(a, KS // 64, 8192, 1280, 'T')
    part_store(a, L.PART, 42, sB, 41)
    ctr_addr(a, 49, L.C_WO, sB); signal(a, off_sreg=49)

def rows16_setup(a):
    tid(a)
    a('v_lshrrev_b32 v1, 6, v0'); a('v_and_b32 v0, 63, v0')
    a(f's_lshl_b32 s41, s{sB}, 6'); a(f's_lshl_b32 s42, s{sSub}, 2'); a('s_add_u32 s41, s41, s42'); a('v_add_u32 v1, s41, v1')
    a('v_mul_u32_u24 v1, 1280, v1'); a('v_lshlrev_b32 v5, 2, v0'); a('v_add_u32 v1, v1, v5')
    a('v_lshlrev_b32 v6, 1, v1')

def wave_reduce(a, v, t):
    for sh in (8, 4, 2, 1):
        a(f'v_add_f32_dpp v{v}, v{v}, v{v} row_ror:{sh} row_mask:0xf bank_mask:0xf')
    a(f'v_mov_b32 v{t}, v{v}'); a(f'v_permlane16_swap_b32 v{v}, v{t}'); a(f'v_add_f32 v{v}, v{v}, v{t}')
    a(f'v_mov_b32 v{t}, v{v}'); a(f'v_permlane32_swap_b32 v{v}, v{t}'); a(f'v_add_f32 v{v}, v{v}, v{t}')

def ln_row(a, X, out_pack):
    a(f'v_add_f32 v2, v{X}, v{X+1}')
    for i in range(2, 10): a(f'v_add_f32 v2, v2, v{X+i}')
    wave_reduce(a, 2, 3)
    a(f'v_mul_f32 v2, {hex(f32bits(1.0/640))}, v2')
    for i in range(10): a(f'v_sub_f32 v{X+i}, v{X+i}, v2')
    a(f'v_mul_f32 v3, v{X}, v{X}')
    for i in range(1, 10): a(f'v_fmac_f32 v3, v{X+i}, v{X+i}')
    wave_reduce(a, 3, 4)
    a(f'v_mov_b32 v4, {hex(f32bits(1e-5))}')
    a(f'v_mul_f32 v3, {hex(f32bits(1.0/640))}, v3'); a('v_add_f32 v3, v3, v4'); a('v_rsq_f32 v3, v3')
    for i in range(10): a(f'v_mul_f32 v{X+i}, v{X+i}, v3')
    for i in range(5): a(f'v_cvt_pk_bf16_f32 v{out_pack+i}, v{X+2*i}, v{X+2*i+1}')

def task_ln2(a, fail):
    ctr_addr(a, 49, L.C_WO, sB); wait_ctr(a, 49, 5*WOS, fail)
    load_ptr(a, 8, 'x', 2048*640*2)
    rows16_setup(a)
    a('s_waitcnt lgkmcnt(0)')
    X = 32; PB = 48
    for c in range(5): a(f'buffer_load_dword v{8+c}, v1, s[8:11], 0 offen offset:{c*256}')
    for sp in range(WOS):
        a(f's_mov_b32 s41, {L.PART + sp*2048*640*4}')
        for c in range(5):
            b = PB + sp*10 + c*2
            a(f'buffer_load_dwordx2 v[{b}:{b+1}], v6, {WS}, s41 offen offset:{c*512}')
    a(f's_waitcnt vmcnt({5*WOS})')
    unpack(a, 8, X, 5)
    for sp in range(WOS):
        a(f's_waitcnt vmcnt({5*(WOS-1-sp)})')
        for i in range(10): a(f'v_add_f32 v{X+i}, v{X+i}, v{PB+sp*10+i}')
    a(f's_mov_b32 s41, {L.H}')
    for c in range(5): a(f'buffer_store_dwordx2 v[{X+2*c}:{X+2*c+1}], v6, {WS}, s41 offen offset:{c*512} {SC}')
    for i in range(10): a(f'v_mov_b32 v{PB+i}, v{X+i}')
    ln_row(a, PB, 8)
    a(f's_mov_b32 s41, {L.HN}')
    for c in range(5): a(f'buffer_store_dword v{8+c}, v1, {WS}, s41 offen offset:{c*256} {SC}')
    ctr_addr(a, 49, L.C_LN2, sB); signal(a, off_sreg=49)

def up_epilogue(a):
    g = G; t = g.vT
    a('s_barrier')
    a(f's_mov_b32 s48, {hex(f32bits(-1.4426950408889634))}')
    a(f'v_and_b32 v{t}, 31, v0'); a(f's_lshl_b32 s46, s{g.sWM}, 5'); a(f'v_add_u32 v{t+1}, s46, v{t}'); a(f'v_lshlrev_b32 v{t+1}, 7, v{t+1}')
    a(f'v_and_b32 v{t+6}, 7, v0'); a(f'v_lshrrev_b32 v{t+7}, 5, v0'); a(f's_lshl_b32 s47, s{g.sWN}, 2'); a(f'v_add_u32 v{t+7}, s47, v{t+7}')
    ag = g.ACC; au = g.ACC + 16
    for i in range(16):
        x = t + 2 + (i & 3)
        a(f'v_mul_f32 v{x}, s48, v{ag+i}'); a(f'v_exp_f32 v{x}, v{x}'); a(f'v_add_f32 v{x}, 1.0, v{x}'); a(f'v_rcp_f32 v{x}, v{x}')
        a(f'v_mul_f32 v{ag+i}, v{ag+i}, v{x}'); a(f'v_mul_f32 v{ag+i}, v{ag+i}, v{au+i}')
    dst = g.FA
    pack_T(a, ag, dst)
    for kk in range(2):
        a(f'v_add_u32 v{t+8}, {2*kk}, v{t+7}'); a(f'v_xor_b32 v{t+8}, v{t+8}, v{t+6}'); a(f'v_lshlrev_b32 v{t+8}, 4, v{t+8}'); a(f'v_add_u32 v{t+8}, v{t+8}, v{t+1}')
        a(f'ds_write_b128 v{t+8}, v[{dst+4*kk}:{dst+4*kk+3}]')
    a('s_waitcnt lgkmcnt(0)'); a('s_barrier')
    a(f'v_lshrrev_b32 v{t}, 3, v0'); a(f'v_and_b32 v{t+2}, 7, v0'); a(f'v_xor_b32 v{t+3}, v{t+2}, v{t}'); a(f'v_lshlrev_b32 v{t+3}, 4, v{t+3}')
    a(f'v_lshlrev_b32 v{t+4}, 7, v{t}'); a(f'v_add_u32 v{t+3}, v{t+3}, v{t+4}'); a(f's_lshl_b32 s46, s{g.sW}, 11'); a(f'v_add_u32 v{t+3}, s46, v{t+3}')
    a(f's_mov_b32 s47, 3456'); a(f'v_mul_lo_u32 v{t}, v{t}, s47'); a(f'v_lshlrev_b32 v{t+2}, 4, v{t+2}'); a(f'v_add_u32 v{t}, v{t}, v{t+2}')
    a(f's_lshl_b32 s46, s{sB}, 6'); a(f's_lshl_b32 s47, s{g.sW}, 4'); a('s_add_u32 s46, s46, s47'); a('s_mul_i32 s45, s46, 3456'); a(f's_add_u32 s45, s45, {L.ACT}')
    a(f's_lshl_b32 s46, s{sSub}, 7'); a('s_add_u32 s45, s45, s46')
    for i in range(2): a(f'ds_read_b128 v[{g.FA+4*i}:{g.FA+4*i+3}], v{t+3} offset:{i*1024}')
    for i in range(2):
        a(f's_waitcnt lgkmcnt({1-i})')
        a(f's_add_u32 s47, s45, {i*8*3456}')
        a(f'buffer_store_dwordx4 v[{g.FA+4*i}:{g.FA+4*i+3}], v{t}, {WS}, s47 offen {SC}')

def task_up(a, fail):
    g = G
    ctr_addr(a, 49, L.C_LN2, sB); wait_ctr(a, 49, 32, fail)
    load_ptr(a, g.SB, 'Wg', 640*1728*2); load_ptr(a, g.SB2, 'Wu', 640*1728*2)
    gemm_common(a, 1280, 3456, splitB=True)
    a(f's_lshl_b32 s{g.sT0}, s{sB}, 7'); a(f's_lshl_b32 s{g.sT1}, s{g.sW}, 5'); a(f's_add_u32 s{g.sT0}, s{g.sT0}, s{g.sT1}')
    a(f's_mul_i32 s{g.sAoff}, s{g.sT0}, 1280'); a(f's_add_u32 s{g.sAoff}, s{g.sAoff}, {L.HN}')
    a(f's_lshl_b32 s{g.sBoff}, s{sSub}, 7'); a(f's_mul_i32 s{g.sT1}, s{g.sW}, {16*3456}'); a(f's_add_u32 s{g.sBoff}, s{g.sBoff}, s{g.sT1}')
    a('s_waitcnt lgkmcnt(0)')
    a('s_barrier')
    GM.mainloop(a, 10, 1280, 3456, 'T', splitB=True)
    t = g.vT
    up_epilogue(a)
    ctr_addr(a, 49, L.C_UP, sB); signal(a, off_sreg=49)

def task_down(a, fail):
    g = G
    ctr_addr(a, 49, L.C_UP, sB); wait_ctr(a, 49, 27, fail)
    load_ptr(a, g.SB, 'Wd', 1728*640*2)
    a(f's_mul_i32 s41, s{sSub}, 43691'); a('s_lshr_b32 s41, s41, 17'); a('s_mul_i32 s42, s41, 3'); a(f's_sub_u32 s42, s{sSub}, s42')
    gemm_common(a, 3456, 1280)
    KS = 1728 // DNS
    a(f's_lshl_b32 s{g.sT0}, s{sB}, 7'); a(f's_lshl_b32 s{g.sT1}, s{g.sW}, 5'); a(f's_add_u32 s{g.sT0}, s{g.sT0}, s{g.sT1}')
    a(f's_mul_i32 s{g.sAoff}, s{g.sT0}, 3456'); a(f's_add_u32 s{g.sAoff}, s{g.sAoff}, {L.ACT}')
    a(f's_mul_i32 s{g.sT1}, s42, {KS*2}'); a(f's_add_u32 s{g.sAoff}, s{g.sAoff}, s{g.sT1}')
    a(f's_mul_i32 s{g.sBoff}, s42, {KS*1280}'); a(f's_lshl_b32 s{g.sT1}, s41, 8'); a(f's_add_u32 s{g.sBoff}, s{g.sBoff}, s{g.sT1}')
    a(f's_mul_i32 s{g.sT1}, s{g.sW}, {16*1280}'); a(f's_add_u32 s{g.sBoff}, s{g.sBoff}, s{g.sT1}')
    a('s_waitcnt lgkmcnt(0)')
    a('s_barrier')
    GM.mainloop(a, KS // 64, 3456, 1280, 'T')
    part_store(a, L.PART2, 42, sB, 41)
    ctr_addr(a, 49, L.C_DN, sB); signal(a, off_sreg=49)

def task_fin(a, fail):
    ctr_addr(a, 49, L.C_DN, sB); wait_ctr(a, 49, 5*DNS, fail)
    load_ptr(a, 8, 'out', 2048*640*2)
    rows16_setup(a)
    X = 32; PB = 48
    a(f's_mov_b32 s41, {L.H}')
    for c in range(5): a(f'buffer_load_dwordx2 v[{X+2*c}:{X+2*c+1}], v6, {WS}, s41 offen offset:{c*512}')
    for sp in range(DNS):
        a(f's_mov_b32 s41, {L.PART2 + sp*2048*640*4}')
        for c in range(5):
            b = PB + sp*10 + c*2
            a(f'buffer_load_dwordx2 v[{b}:{b+1}], v6, {WS}, s41 offen offset:{c*512}')
    a('s_waitcnt vmcnt(0) lgkmcnt(0)')
    for sp in range(DNS):
        for i in range(10): a(f'v_add_f32 v{X+i}, v{X+i}, v{PB+sp*10+i}')
    for i in range(5): a(f'v_cvt_pk_bf16_f32 v{8+i}, v{X+2*i}, v{X+2*i+1}')
    for c in range(5): a(f'buffer_store_dword v{8+c}, v1, s[8:11], 0 offen offset:{c*256}')


def s_wo_setup(a):
    g = G
    load_ptr(a, g.SB, 'Wo', 4096*640*2)
    a(f's_and_b32 s42, s{sSub}, {WOS-1}'); a(f's_lshr_b32 s41, s{sSub}, {WOS.bit_length()-1}')
    tid(a); GM.stat_setup(a, 8192, 1280)
    KS = 4096 // WOS
    a(f's_mul_i32 s{g.sBoff}, s42, {KS*1280}'); a(f's_lshl_b32 s{g.sT1}, s41, 8'); a(f's_add_u32 s{g.sBoff}, s{g.sBoff}, s{g.sT1}')
    a(f's_mul_i32 s{g.sT1}, s{g.sW}, {16*1280}'); a(f's_add_u32 s{g.sBoff}, s{g.sBoff}, s{g.sT1}')
    a('s_waitcnt lgkmcnt(0)')
    GM.stat_load_B(a, KS // 64, 1280)
def s_wo(a, fail):
    g = G; KS = 4096 // WOS
    ctr_addr(a, 49, L.C_AT, sB); wait_ctr(a, 49, 16, fail)
    bstamp(a, 5)
    a(f's_lshl_b32 s{g.sT0}, s{sB}, 6'); a(f's_lshl_b32 s{g.sT1}, s{g.sW}, 4'); a(f's_add_u32 s{g.sT0}, s{g.sT0}, s{g.sT1}')
    a(f's_lshl_b32 s{g.sAoff}, s{g.sT0}, 13'); a(f's_add_u32 s{g.sAoff}, s{g.sAoff}, {L.O}')
    a(f's_mul_i32 s{g.sT1}, s42, {KS*2}'); a(f's_add_u32 s{g.sAoff}, s{g.sAoff}, s{g.sT1}')
    GM.stat_mainloop(a, KS // 64, 8192)
    bstamp(a, 6)
    a('s_barrier')
    part_store(a, L.PART, 42, sB, 41, epi=0, RT=1)
    bstamp(a, 7)
    ctr_addr(a, 49, L.C_WO, sB); signal(a, off_sreg=49)
    bstamp(a, 8)

def s_up_setup(a):
    g = G
    load_ptr(a, g.SB, 'Wg', 640*1728*2); load_ptr(a, g.SB2, 'Wu', 640*1728*2)
    tid(a); GM.stat_setup(a, 1280, 3456, splitB=True)
    a(f's_lshl_b32 s{g.sBoff}, s{sSub}, 7'); a(f's_mul_i32 s{g.sT1}, s{g.sW}, {16*3456}'); a(f's_add_u32 s{g.sBoff}, s{g.sBoff}, s{g.sT1}')
    a('s_waitcnt lgkmcnt(0)')
    GM.stat_load_B(a, 10, 3456, splitB=True)
def s_up(a, fail):
    g = G
    ctr_addr(a, 49, L.C_LN2, sB); wait_ctr(a, 49, 16, fail)
    bstamp(a, 5)
    a(f's_lshl_b32 s{g.sT0}, s{sB}, 6'); a(f's_lshl_b32 s{g.sT1}, s{g.sW}, 4'); a(f's_add_u32 s{g.sT0}, s{g.sT0}, s{g.sT1}')
    a(f's_mul_i32 s{g.sAoff}, s{g.sT0}, 1280'); a(f's_add_u32 s{g.sAoff}, s{g.sAoff}, {L.HN}')
    GM.stat_mainloop(a, 10, 1280)
    bstamp(a, 6)
    up_epilogue(a)
    bstamp(a, 7)
    ctr_addr(a, 49, L.C_UP, sB); signal(a, off_sreg=49)
    bstamp(a, 8)

def s_down_setup(a):
    g = G
    load_ptr(a, g.SB, 'Wd', 1728*640*2)
    a(f's_mul_i32 s41, s{sSub}, 43691'); a('s_lshr_b32 s41, s41, 17'); a('s_mul_i32 s42, s41, 3'); a(f's_sub_u32 s42, s{sSub}, s42')
    tid(a); GM.stat_setup(a, 3456, 1280)
    KS = 1728 // DNS
    a(f's_mul_i32 s{g.sBoff}, s42, {KS*1280}'); a(f's_lshl_b32 s{g.sT1}, s41, 8'); a(f's_add_u32 s{g.sBoff}, s{g.sBoff}, s{g.sT1}')
    a(f's_mul_i32 s{g.sT1}, s{g.sW}, {16*1280}'); a(f's_add_u32 s{g.sBoff}, s{g.sBoff}, s{g.sT1}')
    a('s_waitcnt lgkmcnt(0)')
    GM.stat_load_B(a, KS // 64, 1280)
def s_down(a, fail):
    g = G; KS = 1728 // DNS
    ctr_addr(a, 49, L.C_UP, sB); wait_ctr(a, 49, 27, fail)
    bstamp(a, 5)
    a(f's_lshl_b32 s{g.sT0}, s{sB}, 6'); a(f's_lshl_b32 s{g.sT1}, s{g.sW}, 4'); a(f's_add_u32 s{g.sT0}, s{g.sT0}, s{g.sT1}')
    a(f's_mul_i32 s{g.sAoff}, s{g.sT0}, 3456'); a(f's_add_u32 s{g.sAoff}, s{g.sAoff}, {L.ACT}')
    a(f's_mul_i32 s{g.sT1}, s42, {KS*2}'); a(f's_add_u32 s{g.sAoff}, s{g.sAoff}, s{g.sT1}')
    GM.stat_mainloop(a, KS // 64, 3456)
    bstamp(a, 6)
    a('s_barrier')
    part_store(a, L.PART2, 42, sB, 41, epi=0, RT=1)
    bstamp(a, 7)
    ctr_addr(a, 49, L.C_DN, sB); signal(a, off_sreg=49)
    bstamp(a, 8)


def n_down_setup(a):
    g = G
    load_ptr(a, g.SB, 'Wd', 1728*640*2); load_ptr(a, g.SO, 'out', 2048*640*2)
    a('v_mov_b32 v31, v254')
    T.tid = 31; T.a = 29; T.b = 30
    tid(a); GM.narrow_setup(a, 3456, 1280)
    a(f's_lshl_b32 s{g.sBoff}, s{sSub}, 7'); a(f's_mul_i32 s{g.sT1}, s{g.sW}, {16*1280}'); a(f's_add_u32 s{g.sBoff}, s{g.sBoff}, s{g.sT1}')
    a('s_waitcnt lgkmcnt(0)')
    GM.narrow_load_B(a, 27, 1280)
def n_down(a, fail):
    g = G; t = g.vT
    ctr_addr(a, 49, L.C_UP, sB); wait_ctr(a, 49, 27, fail)
    bstamp(a, 5)
    a(f's_lshl_b32 s{g.sT0}, s{sB}, 6'); a(f's_lshl_b32 s{g.sT1}, s{g.sW}, 4'); a(f's_add_u32 s{g.sT0}, s{g.sT0}, s{g.sT1}')
    a(f's_mul_i32 s{g.sAoff}, s{g.sT0}, 3456'); a(f's_add_u32 s{g.sAoff}, s{g.sAoff}, {L.ACT}')
    GM.narrow_mainloop(a, 27, 3456)
    bstamp(a, 6)
    a(f'v_and_b32 v{t}, 31, v0'); a(f'v_mul_u32_u24 v{t+2}, 2560, v{t}'); a(f'v_lshrrev_b32 v{t+1}, 5, v0'); a(f'v_lshlrev_b32 v{t+3}, 4, v{t+1}'); a(f'v_add_u32 v{t+2}, v{t+2}, v{t+3}')
    a(f'v_mul_u32_u24 v{t}, 1280, v{t}'); a(f'v_add_u32 v{t}, v{t}, v{t+3}')
    a(f's_lshl_b32 s46, s{sB}, 6'); a(f's_lshl_b32 s47, s{g.sWM}, 5'); a('s_add_u32 s46, s46, s47')
    a('s_mul_i32 s45, s46, 2560'); a(f's_add_u32 s45, s45, {L.H}'); a(f's_lshl_b32 s47, s{sSub}, 8'); a('s_add_u32 s45, s45, s47'); a(f's_lshl_b32 s47, s{g.sWN}, 7'); a('s_add_u32 s45, s45, s47')
    a('s_mul_i32 s44, s46, 1280'); a(f's_lshl_b32 s47, s{sSub}, 7'); a('s_add_u32 s44, s44, s47'); a(f's_lshl_b32 s47, s{g.sWN}, 6'); a('s_add_u32 s44, s44, s47')
    hb = g.FA
    for q in range(4): a(f'buffer_load_dwordx4 v[{hb+4*q}:{hb+4*q+3}], v{t+2}, {WS}, s45 offen offset:{q*32}')
    a('s_waitcnt vmcnt(0)')
    for i in range(16): a(f'v_add_f32 v{g.ACC+i}, v{g.ACC+i}, v{hb+i}')
    pack_T(a, g.ACC, g.FA + 16)
    d = g.FA + 16
    a(f'buffer_store_dwordx4 v[{d}:{d+3}], v{t}, s[{g.SO}:{g.SO+3}], s44 offen')
    a(f'buffer_store_dwordx4 v[{d+4}:{d+7}], v{t}, s[{g.SO}:{g.SO+3}], s44 offen offset:32')
    bstamp(a, 7)

TASKS = [('attn', 32), ('wo', 5*WOS), ('ln2', 8), ('up', 27), ('down', 5*DNS), ('fin', 8)]
PERB = sum(n for _, n in TASKS)
ROLES = [('attn', 16, 2), ('wo', 40, 1), ('ln2', 16, 1), ('up', 27, 2), ('down', 10, 4)]

WTRACE = False
def wstamp(a, i):
    if not WTRACE: return
    a('s_memrealtime s[58:59]'); a('s_waitcnt lgkmcnt(0)')
    a(f's_lshl_b32 s56, s{sWI}, 6'); a(f's_add_u32 s56, s56, {L.TRACE + 16384 + 4*i}')
    a(f'v_mov_b32 v{T.a}, s58'); a(f'v_mov_b32 v{T.b}, 0')
    a(f'buffer_store_dword v{T.a}, v{T.b}, {WS}, s56 offen')

def bstamp(a, i):
    if not WTRACE: return
    sk = a.newlabel('bs')
    a(f's_cmp_lg_u32 s{sB}, {L.NBLK - 1}'); a(f's_cbranch_scc1 {sk}')
    wstamp(a, i)
    a.label(sk)

def emit_worker(a, fail, end):
    a.label('worker')

    a('v_mov_b32 v254, v0')
    load_ptr(a, 4, 'ws', L.WS_BYTES)
    load_ptr(a, S_DBG, 'dbg', 256)
    a(f's_mov_b32 s{sSpin}, 0')
    a('s_waitcnt lgkmcnt(0)')
    wstamp(a, 0)
    nz = a.newlabel('nz')
    a(f's_cmp_lg_u32 s{sWI}, 0'); a(f's_cbranch_scc1 {nz}')
    a('v_lshlrev_b32 v1, 4, v0'); a('v_mov_b64 v[4:5], 0'); a('v_mov_b64 v[6:7], 0')
    for i in range(8):
        a(f's_mov_b32 s41, {L.SYNC + i*4096}')
        a(f'buffer_store_dwordx4 v[4:7], v1, {WS}, s41 offen sc1')
    signal(a, off_imm=12, dbg=True)
    a.label(nz)
    nl = a.newlabel('nl'); nf = a.newlabel('nf')
    a(f's_cmp_ge_u32 s{sWI}, 128'); a(f's_cbranch_scc1 {nl}')
    a(f's_mov_b32 s40, s{sWI}')
    task_ln1(a)
    a('s_waitcnt vmcnt(0)'); a('s_barrier')
    sk = a.newlabel('l1s')
    a('v_cmp_eq_u32 vcc, 0, v254'); a('s_and_saveexec_b64 s[56:57], vcc'); a(f's_cbranch_execz {sk}')
    a(f's_lshr_b32 s41, s{sWI}, 3'); a('s_lshl_b32 s41, s41, 2'); a('s_add_u32 s41, s41, 128')
    a('v_mov_b32 v250, 1'); a('v_mov_b32 v251, 0')
    a(f'buffer_atomic_add v250, v251, {DBG}, s41 offen')
    a.label(sk)
    a('s_mov_b64 exec, s[56:57]')
    a(f's_branch {nf}')
    a.label(nl)
    a('v_lshlrev_b32 v1, 4, v254'); a('v_mov_b64 v[4:5], -1'); a('v_mov_b64 v[6:7], -1')
    for base, total in ((L.P1, 2*L.P1SZ), (L.MEMF, 2*L.MEMSZ), (L.MEMX, 64*L.MEMSZ), (L.VM, 64*32*2048), (L.KM, 64*32*4096)):
        nchunk = total // 4096
        lp_ = a.newlabel('fl'); dn_ = a.newlabel('fd')
        a(f's_sub_u32 s40, s{sWI}, 128')
        a.label(lp_)
        a(f's_cmp_ge_u32 s40, {nchunk}'); a(f's_cbranch_scc1 {dn_}')
        a('s_lshl_b32 s41, s40, 12'); a(f's_add_u32 s41, s41, {base}')
        a(f'buffer_store_dwordx4 v[4:7], v1, {WS}, s41 offen sc1')
        a('s_add_u32 s40, s40, 64'); a(f's_branch {lp_}')
        a.label(dn_)
    signal(a, off_imm=16, dbg=True)
    a.label(nf)
    lp = a.newlabel('l1w'); ok = a.newlabel('l1ok')
    a('v_mov_b32 v251, 0')
    a.label(lp)
    a(f'buffer_load_dword v248, v251, {DBG}, 0 offen offset:12 sc1')
    a('s_waitcnt vmcnt(0)')
    a('v_readfirstlane_b32 s57, v248')
    a('s_cmp_ge_u32 s57, 1'); a(f's_cbranch_scc1 {ok}')
    a(f's_add_u32 s{sSpin}, s{sSpin}, 1'); a(f's_cmp_gt_u32 s{sSpin}, {SPIN_MAX}'); a(f's_cbranch_scc1 {fail}')
    a('s_sleep 4')
    a(f's_branch {lp}')
    a.label(ok)
    wstamp(a, 1)
    a(f's_cmp_ge_u32 s{sWI}, 96'); a('s_cselect_b32 s40, 1, 0'); a('s_cselect_b32 s41, 96, 0'); a(f's_sub_u32 s41, s{sWI}, s41')
    a('s_and_b32 s43, s41, 31'); a('s_lshr_b32 s44, s41, 5')
    qv = a.newlabel('qv'); qq = a.newlabel('qq'); qd = a.newlabel('qd')
    a('s_cmp_eq_u32 s44, 1'); a(f's_cbranch_scc1 {qv}')
    a('s_cmp_eq_u32 s44, 2'); a(f's_cbranch_scc1 {qq}')
    qkv_stat(a, 1, fail); a(f's_branch {qd}')
    a.label(qv); qkv_stat(a, 2, fail); a(f's_branch {qd}')
    a.label(qq); qkv_stat(a, 0, fail)
    a.label(qd)
    wstamp(a, 2)
    wstamp(a, 3)
    lp = a.newlabel('rzw'); ok = a.newlabel('rzok')
    a('v_mov_b32 v251, 0')
    a.label(lp)
    a(f'buffer_load_dword v248, v251, {DBG}, 0 offen offset:16 sc1')
    a('s_waitcnt vmcnt(0)')
    a('v_readfirstlane_b32 s56, v248')
    a('s_cmp_ge_u32 s56, 64'); a(f's_cbranch_scc1 {ok}')
    a(f's_add_u32 s{sSpin}, s{sSpin}, 1'); a(f's_cmp_gt_u32 s{sSpin}, {SPIN_MAX}'); a(f's_cbranch_scc1 {fail}')
    a('s_sleep 8')
    a(f's_branch {lp}')
    a.label(ok)
    fns = dict(attn=task_attn, wo=s_wo, ln2=task_ln2, up=s_up, down=n_down, fin=task_fin)
    setups = dict(wo=s_wo_setup, up=s_up_setup, down=n_down_setup)
    a(f's_mov_b32 s{sSub}, s{sWI}')
    for name, n, copies in ROLES:
        sk = a.newlabel('rk')
        a(f's_cmp_ge_u32 s{sSub}, {n*copies}'); a(f's_cbranch_scc1 {sk}')
        a(f's_mov_b32 s{sB}, 0')
        for c in range(1, copies):
            a(f's_cmp_ge_u32 s{sSub}, {n}'); a(f's_cselect_b32 s56, {n}, 0'); a(f's_cselect_b32 s57, 1, 0')
            a(f's_sub_u32 s{sSub}, s{sSub}, s56'); a(f's_add_u32 s{sB}, s{sB}, s57')
        a(f's_mov_b32 s62, s{sSub}')
        if name in setups: setups[name](a)
        lp = a.newlabel('rlp')
        a.label(lp)
        a(f's_mov_b32 s{sSub}, s62')
        fns[name](a, fail)
        a('s_barrier')
        a(f's_add_u32 s{sB}, s{sB}, {copies}')
        a(f's_cmp_lt_u32 s{sB}, {L.NBLK}'); a(f's_cbranch_scc1 {lp}')
        a('s_branch post_done')
        T.tid = 254; T.a = 250; T.b = 251
        a.label(sk)
        a(f's_sub_u32 s{sSub}, s{sSub}, {n*copies}')
    a.label('post_done')
    wstamp(a, 4)
    a('s_endpgm')

def emit_fused(a, kname):
    fail = 'fz_fail'; end = 'fz_end'
    a.label(kname)
    a(f's_cmp_ge_u32 s2, 256'); a(f's_cbranch_scc1 {end}')
    CH.decode_role(a, 'worker')
    CH.emit_chain_body(a, fail, end, CH.Stamps(True) if STAMP else None)
    emit_worker(a, fail, end)
    a.label(fail)
    a(f's_load_dwordx2 s[8:9], s[0:1], {L.KA["dbg"]}'); a('s_mov_b32 s10, 256'); a('s_mov_b32 s11, 0x00020000')
    a('s_waitcnt lgkmcnt(0)')
    a('v_mov_b32 v1, 0xdead'); a('v_mov_b32 v2, 252')
    a(f'buffer_store_dword v1, v2, s[8:11], 0 offen')
    a('s_waitcnt vmcnt(0)')
    a.label(end)
    a('s_endpgm')
```

```python
from asmlib import Asm
import layout as L
import struct

KVB = 0
AFR = 32768
QKX = 45056
OFR = 53248
SEL = 55296
WL  = 65536
GSLEEP = int(__import__('os').environ.get('GSLEEP', 4))
LDS_BYTES = 163840
SPIN_MAX = 1 << 22
OSLEEP = int(__import__('os').environ.get('OSLEEP', 4))
HSLEEP = int(__import__('os').environ.get('HSLEEP', 24))
TRACE = L.TRACE
COARSE = True

S_WS = 4; S_T0 = 8; S_DBG = 12; S_T1 = 20; S_T2 = 24
sH = 16; sW = 17; sS = 18; sSpin = 19
sRdy = 39; sKVr = 32; sP1c = 33; sP1b = 34; sKVw = 35; sPubF = 36; sPubX = 37; sOwnO = 38
sMaskH = 40; sMaskLo = 42; sC = 44
sP1w = 45; sP1r = 46; sMr = 47; sMw = 48; sMz = 49; sTmp = 50; sTmp2 = 51; sTmp3 = 52; sOwn = 53; sKV = 54; sVMo = 55; sKMo = 56
sM2 = 57; sKsrc = 58; sVsrc = 59; sFast = 60; sThr = 61
sT = 64
W = f's[{S_WS}:{S_WS+3}]'
MH = f's[{sMaskH}:{sMaskH+1}]'; ML = f's[{sMaskLo}:{sMaskLo+1}]'
SM = 'v_smfmac_f32_16x16x64_bf16'
MF32 = 'v_mfma_f32_16x16x32_bf16'
MF16 = 'v_mfma_f32_16x16x16_bf16'

def f32bits(x): return struct.unpack('<I', struct.pack('<f', x))[0]
C_SCALE = (128 ** -0.5) * 1.4426950408889634

def srd(a, base, ka_off, nbytes):
    a(f's_load_dwordx2 s[{base}:{base+1}], s[0:1], {ka_off}')
    a(f's_mov_b32 s{base+2}, {nbytes}')
    a(f's_mov_b32 s{base+3}, 0x00020000')

def emit(a, ops):
    for x in ops:
        if isinstance(x, (list, tuple)): emit(a, x)
        else: a(x)

def load_chunks(a, chunks, vaddr, nslots=10):
    N = len(chunks); DEPTH = nslots - 1
    def issue(c):
        ch = chunks[c]; slot = (c % nslots) * 16384
        a(f's_mul_i32 s{sTmp}, s{sW}, {ch["istep"]*4}')
        a(f's_add_u32 s{sTmp}, s{sTmp}, s{ch["sbase"]}')
        a(f's_lshl_b32 s{sTmp2}, s{sW}, 12')
        for j in range(4):
            a(f's_add_u32 s{sTmp3}, s{sTmp}, {ch["soff"] + j*ch["istep"]}')
            a(f's_add_u32 m0, s{sTmp2}, {slot + j*1024}')
            a(f'buffer_load_dwordx4 v{ch["vofs"]}, s[{ch["srd"]}:{ch["srd"]+3}], s{sTmp3} offen lds')
    for c in range(min(DEPTH, N)): issue(c)
    for c in range(N):
        ch = chunks[c]; slot = (c % nslots) * 16384
        inflight = min(N, c + DEPTH) - (c + 1)
        a(f's_waitcnt vmcnt({4*inflight})')
        a('s_barrier')
        if c + DEPTH < N: issue(c + DEPTH)
        a(f'v_add_u32 v{vaddr}, {slot}, v{ch["vtr"]}')
        for o in range(2):
            dest = ch['dests'][o]
            kind, base = dest[0], int(dest[1:])
            for rho in range(4):
                imm = ch['rows'][rho] * 256 + ch['tcol'][o]
                a(f'ds_read_b64_tr_b16 {kind}[{base+2*rho}:{base+2*rho+1}], v{vaddr} offset:{imm}')
        a('s_waitcnt lgkmcnt(0)')

def spin_check(a, lbl_fail):
    a(f's_add_u32 s{sSpin}, s{sSpin}, 1')
    a(f's_cmp_gt_u32 s{sSpin}, {SPIN_MAX}')
    a(f's_cbranch_scc1 {lbl_fail}')

def maxchain(a, dst, regs, op='u32'):
    regs = list(regs)
    a(f'v_max3_{op} v{dst}, v{regs[0]}, v{regs[1]}, v{regs[2]}')
    regs = regs[3:]
    while len(regs) >= 2:
        a(f'v_max3_{op} v{dst}, v{dst}, v{regs[0]}, v{regs[1]}'); regs = regs[2:]
    if regs:
        a(f'v_max_{op} v{dst}, v{dst}, v{regs[0]}')

def gather_pre(a, sOffReg):
    a(f's_sub_u32 s{sTmp}, s{sW}, 2')
    a(f's_mul_i32 s{sTmp}, s{sTmp}, 5120')
    a(f's_add_u32 s{sTmp}, s{sTmp}, s{sOffReg}')
    a(f's_add_u32 s{sTmp2}, s{sTmp}, 4096')

def gather(a, fail, st=None, fl='sc1'):
    fine = st is not None and 'fine' in __import__('os').environ.get('EXP', '')
    lp = a.newlabel('g5')
    a.label(lp)
    for i in range(4):
        a(f'buffer_load_dwordx4 v[{72+4*i}:{75+4*i}], v2, {W}, s{sTmp} offen offset:{i*1024} {fl}')
    a(f'buffer_load_dwordx4 v[88:91], v2, {W}, s{sTmp2} offen {fl}')
    spin_check(a, fail)
    if fine: st(a, 1)
    for i in range(5):
        a(f's_waitcnt vmcnt({4-i})')
        if fine and i == 0: st(a, 2)
        if fine and i == 4: st(a, 3)
        a(f'ds_write_b128 v3, v[{72+4*i}:{75+4*i}] offset:{i*1024}')
        if i == 0:
            a(f'v_max3_u32 v92, v72, v73, v74'); a(f'v_max_u32 v92, v92, v75')
        else:
            a(f'v_max3_u32 v92, v92, v{72+4*i}, v{73+4*i}'); a(f'v_max3_u32 v92, v92, v{74+4*i}, v{75+4*i}')
    if fine: a(f's_add_u32 s{sT+4}, s{sT+4}, 63')
    a('v_cmp_eq_u32 vcc, -1, v92')
    a(f's_cbranch_vccnz {lp}')

def gather2(a, fail, fl='sc1', stag=2, res=None):
    def issue(b):
        for i in range(4):
            a(f'buffer_load_dwordx4 v[{b+4*i}:{b+3+4*i}], v2, {W}, s{sTmp} offen offset:{i*1024} {fl}')
        a(f'buffer_load_dwordx4 v[{b+16}:{b+19}], v2, {W}, s{sTmp2} offen {fl}')
    def consume(b, younger):
        for i in range(5):
            a(f's_waitcnt vmcnt({4-i+younger})')
            a(f'ds_write_b128 v3, v[{b+4*i}:{b+3+4*i}] offset:{i*1024}')
            if i == 0:
                a(f'v_max3_u32 v92, v{b}, v{b+1}, v{b+2}'); a(f'v_max_u32 v92, v92, v{b+3}')
            else:
                a(f'v_max3_u32 v92, v92, v{b+4*i}, v{b+1+4*i}'); a(f'v_max3_u32 v92, v92, v{b+2+4*i}, v{b+3+4*i}')
        a('v_cmp_eq_u32 vcc, -1, v92')
    lp = a.newlabel('g2'); done = a.newlabel('g2d')
    if res is not None: a(f's_mov_b32 s{res}, 0')
    issue(72)
    a(f's_sleep {stag}')
    a.label(lp)
    issue(40)
    spin_check(a, fail)
    consume(72, 5)
    a(f's_cbranch_vccz {done}')
    if res is not None: a(f's_add_u32 s{res}, s{res}, 1')
    issue(72)
    consume(40, 5)
    a(f's_cbranch_vccz {done}')
    if res is not None: a(f's_add_u32 s{res}, s{res}, 1')
    a(f's_branch {lp}')
    a.label(done)

def mem0_load(a, base):
    srd(a, S_T0 + 92 - 8, L.KA['mem0'], 10240) if False else None
def mem0_frags(a, phase=None):
    R = 40 if phase is None else 116
    if phase in (None, 'load'):
        sr = S_T0 if phase is None else 84
        srd(a, sr, L.KA['mem0'], 10240)
        a('v_bfe_u32 v36, v0, 2, 2'); a('v_lshlrev_b32 v36, 1, v36'); a('v_and_b32 v37, 1, v0'); a('v_add_u32 v36, v36, v37')
        a('v_mul_u32_u24 v36, 1280, v36')
        a('v_lshrrev_b32 v37, 4, v0'); a('v_lshlrev_b32 v37, 5, v37'); a('v_add_u32 v36, v36, v37')
        a('v_bfe_u32 v37, v0, 1, 1'); a('v_lshlrev_b32 v37, 2, v37'); a('v_add_u32 v36, v36, v37')
        a(f's_lshl_b32 s{sTmp}, s{sW}, 7')
        a('s_waitcnt lgkmcnt(0)')
        for t in range(3):
            a(f's_add_u32 s{sTmp2}, s{sTmp}, {t*512}')
            for j in range(4):
                a(f'buffer_load_dword v{R+4*t+j}, v36, s[{sr}:{sr+3}], s{sTmp2} offen offset:{8*j}')
        a('s_waitcnt vmcnt(0)')
    if phase in (None, 'write'):
        a(f's_lshl_b32 s{sTmp3}, s{sW}, 10')
        a(f'v_add_u32 v38, s{sTmp3}, v4')
        for t in range(3):
            a(f'ds_write_b128 v38, v[{R+4*t}:{R+3+4*t}] offset:{t*4096}')
        a('s_waitcnt lgkmcnt(0)')

class Stamps:
    sel = 0; trace = False; tstep = 20
    def __init__(self, on): self.on = on
    def val(self, a, i, sreg):
        if not (self.on and self.trace): return
        lb = a.newlabel('tv')
        a(f's_cmp_lg_u32 s{sS}, {self.tstep + 1}'); a(f's_cbranch_scc1 {lb}')
        a(f's_mov_b32 s{sT+i}, s{sreg}')
        a.label(lb)
    def __call__(self, a, i):
        if not self.on: return
        if self.trace:
            a(f's_memrealtime s[{sT+14}:{sT+15}]')
            a('s_waitcnt lgkmcnt(0)')
            lb = a.newlabel('tr')
            a(f's_cmp_lg_u32 s{sS}, {self.tstep + (1 if (i in (10, 11) and not getattr(self, "helper", False)) else 0)}'); a(f's_cbranch_scc1 {lb}')
            a(f's_mov_b32 s{sT+i}, s{sT+14}')
            a.label(lb)
            return
        a(f's_memtime s[{sT+14}:{sT+15}]')
        a('s_waitcnt lgkmcnt(0)')
        a(f's_sub_u32 s{sT+12}, s{sT+14}, s{sT+13}')
        a(f's_add_u32 s{sT+i}, s{sT+i}, s{sT+12}')
        a(f's_mov_b32 s{sT+13}, s{sT+14}')
    def dump(self, a, off):
        if not self.on: return
        if self.trace:
            a(f's_lshl_b32 s{sTmp}, s{sH}, 2'); a(f's_or_b32 s{sTmp}, s{sTmp}, s{sW}'); a(f's_lshl_b32 s{sTmp}, s{sTmp}, 6')
            a(f's_add_u32 s{sTmp}, s{sTmp}, {TRACE + off}')
            a('v_mov_b32 v36, 0')
            for i in range(12):
                a(f'v_mov_b32 v37, s{sT+i}')
                a(f'buffer_store_dword v37, v36, {W}, s{sTmp} offen offset:{4*i}')
            a('s_waitcnt vmcnt(0)')
        elif off == 0:
            sk = a.newlabel('tsk')
            a(f's_lshl_b32 s{sTmp}, s{sH}, 2'); a(f's_or_b32 s{sTmp}, s{sTmp}, s{sW}')
            a(f's_cmp_lg_u32 s{sTmp}, {self.sel}'); a(f's_cbranch_scc1 {sk}')
            a('v_mov_b32 v36, 0')
            for i in range(12):
                a(f'v_mov_b32 v37, s{sT+i}')
                a(f'buffer_store_dword v37, v36, s[{S_DBG}:{S_DBG+3}], 0 offen offset:{64+4*i}')
            a('s_waitcnt vmcnt(0)')
            a.label(sk)

def trbase(a, dst, wo):
    a('v_lshrrev_b32 v36, 4, v0'); a('v_bfe_u32 v37, v0, 2, 2')
    if not wo:
        a('v_lshlrev_b32 v38, 3, v36')
    else:
        a('v_and_b32 v38, 1, v36'); a('v_lshlrev_b32 v38, 5, v38')
        a('v_lshrrev_b32 v39, 1, v36'); a('v_lshlrev_b32 v39, 2, v39'); a('v_add_u32 v38, v38, v39')
    a('v_add_u32 v38, v38, v37'); a('v_lshlrev_b32 v38, 8, v38')
    a('v_and_b32 v39, 3, v0'); a('v_lshlrev_b32 v39, 3, v39')
    a(f'v_add_u32 v{dst}, v38, v39')
    a(f's_lshl_b32 s{sTmp}, s{sW}, {5 if wo else 6}')
    a(f'v_add_u32 v{dst}, s{sTmp}, v{dst}')

def xcc_or(a):
    skip = a.newlabel('xo')
    a(f's_cmp_lg_u32 s{sW}, 0'); a(f's_cbranch_scc1 {skip}')
    a('s_mov_b64 s[62:63], exec'); a('s_mov_b64 exec, 1')
    a('v_mov_b32 v36, 0')
    a(f's_getreg_b32 s{sTmp}, hwreg(HW_REG_XCC_ID)')
    a(f's_and_b32 s{sTmp}, s{sTmp}, 15'); a(f's_lshl_b32 s{sTmp}, 1, s{sTmp}')
    a(f'v_mov_b32 v37, s{sTmp}')
    a(f'buffer_atomic_or v37, v36, s[{S_DBG}:{S_DBG+3}], 0 offen offset:4')
    a('s_waitcnt vmcnt(0)')
    if FUSED:
        a('v_mov_b32 v37, 1')
        a(f'buffer_atomic_add v37, v36, s[{S_DBG}:{S_DBG+3}], 0 offen')
        a('s_waitcnt vmcnt(0)')
    a('s_mov_b64 exec, s[62:63]')
    a.label(skip)

def rendezvous(a, is_main, fail):
    a('s_waitcnt vmcnt(0)')
    a('s_barrier')
    skip = a.newlabel('rz'); lp = a.newlabel('rzp')
    a(f's_cmp_lg_u32 s{sW}, 0'); a(f's_cbranch_scc1 {skip}')
    a('s_mov_b64 s[62:63], exec'); a('s_mov_b64 exec, 1')
    a('v_mov_b32 v36, 0'); a('v_mov_b32 v37, 1')
    if not (FUSED and is_main):
        a(f'buffer_atomic_add v37, v36, s[{S_DBG}:{S_DBG+3}], 0 offen')
    a.label(lp)
    a(f'buffer_load_dwordx4 v[40:43], v36, s[{S_DBG}:{S_DBG+3}], 0 offen sc1')
    a(f'buffer_load_dword v44, v36, s[{S_DBG}:{S_DBG+3}], 0 offen offset:16 sc1')
    spin_check(a, fail)
    a('s_waitcnt vmcnt(0)')
    a(f'v_readfirstlane_b32 s{sTmp}, v40'); a(f'v_readfirstlane_b32 s{sTmp2}, v44'); a(f'v_readfirstlane_b32 s{sTmp3}, v43')
    a(f's_cmp_lt_u32 s{sTmp}, 64'); a(f's_cbranch_scc1 {lp}')
    if FUSED:
        a(f's_cmp_lt_u32 s{sTmp2}, 64'); a(f's_cbranch_scc1 {lp}')
        a(f's_cmp_lt_u32 s{sTmp3}, 1'); a(f's_cbranch_scc1 {lp}')
    a('v_mov_b32 v39, v41')
    a(f'v_mov_b32 v36, {QKX}')
    a('ds_write_b32 v36, v39')
    a('s_waitcnt lgkmcnt(0)')
    a('s_mov_b64 exec, s[62:63]')
    a.label(skip)
    a('s_barrier')
    a(f'v_mov_b32 v36, {QKX}')
    a('ds_read_b32 v39, v36')
    a('s_waitcnt lgkmcnt(0)')
    a(f'v_readfirstlane_b32 s{sTmp}, v39')
    a(f's_bcnt1_i32_b32 s{sTmp}, s{sTmp}')
    a(f's_cmp_eq_u32 s{sTmp}, 1')
    a(f's_cselect_b32 s{sFast}, 1, 0')

FUSED = False
def emit_chain_body(a, fail, end, st=None):
    st = st or Stamps(False)
    srd(a, S_WS, L.KA['ws'], L.WS_BYTES)
    srd(a, S_DBG, L.KA['dbg'], 256)
    if COARSE: a('s_memrealtime s[96:97]')
    a(f'v_lshrrev_b32 v1, 6, v0'); a(f'v_readfirstlane_b32 s{sW}, v1'); a(f'v_and_b32 v0, 63, v0')
    a(f's_mov_b32 s{sMaskH}, 0xCCCCCCCC'); a(f's_mov_b32 s{sMaskH+1}, 0xCCCCCCCC')
    a(f's_mov_b32 s{sMaskLo}, -1'); a(f's_mov_b32 s{sMaskLo+1}, 0')
    a(f'v_mov_b32 v1, 0x4444'); a(f'v_mov_b32 v2, 0xEEEE')
    a(f'v_cndmask_b32 v1, v1, v2, {MH}')
    a(f'v_lshlrev_b32 v2, 4, v0')
    a(f's_mov_b32 s{sC}, {hex(f32bits(C_SCALE))}')
    a(f's_mov_b32 s{sThr}, {hex(f32bits(60.0))}')
    a(f's_mov_b32 s{sSpin}, 0')
    for i in range(14): a(f's_mov_b32 s{sT+i}, 0')
    a(f'v_add_u32 v4, {AFR}, v2')
    a('s_waitcnt lgkmcnt(0)')
    a('s_cmp_eq_u32 s3, 1'); a(f's_cbranch_scc1 chain_helper')
    emit_main(a, st, fail, end)
    emit_helper(a, st, fail, end)

def decode_role(a, worker_label):
    a('s_and_b32 s3, s2, 7')
    a(f's_lshr_b32 s{sH}, s2, 3')
    a(f's_mul_i32 s60, s{sH}, 6'); a('s_add_u32 s60, s60, s3'); a('s_sub_u32 s60, s60, 2')
    a('s_cmp_gt_u32 s3, 1'); a(f's_cbranch_scc1 {worker_label}')

def emit_chain(a, timing=False, kname='chain_kernel'):
    fail = 'chain_fail'; end = 'chain_end'
    st = Stamps(timing)
    a.label(kname)
    a(f's_cmp_ge_u32 s2, 256'); a(f's_cbranch_scc1 {end}')
    decode_role(a, end)
    emit_chain_body(a, fail, end, st)
    a.label(fail)
    a('v_mov_b32 v1, 0xdead'); a('v_mov_b32 v2, 124')
    a(f'buffer_store_dword v1, v2, s[{S_DBG}:{S_DBG+3}], 0 offen')
    a('s_waitcnt vmcnt(0)')
    a.label(end)
    a('s_endpgm')

def qk_home(m, t, kb):
    idx = m * 20 + kb * 2 + t
    if idx < 32: return ('a', idx * 8)
    return ('v', 128 + (idx - 32) * 8)
def rr(home, n=8): return f'{home[0]}[{home[1]}:{home[1]+n-1}]'
def wo_pair(cg, eb):
    if eb == 0 and cg < 4: return None
    if cg < 4: return cg
    return 4 + eb

def interleave(a, mf, fill, start=0, per=1):
    fi = 0
    for i, m in enumerate(mf):
        emit(a, m if isinstance(m, list) else [m])
        if i >= start:
            for _ in range(per):
                if fi < len(fill):
                    g = fill[fi]; fi += 1
                    emit(a, g if isinstance(g, list) else [g])
    while fi < len(fill):
        g = fill[fi]; fi += 1
        emit(a, g if isinstance(g, list) else [g])

def half_add_ops(ra, rb):
    return [f'v_permlane32_swap_b32 v{ra+r}, v{rb+r}' for r in range(4)] + [f'v_add_f32 v{ra+r}, v{ra+r}, v{rb+r}' for r in range(4)]


import os
EXP = os.environ.get('EXP', '')
sTch = 30
sTag = 49; sFlip = 34; sFlipO = 34; sMf = 33; sHs = 36; sHs0 = 37; sHs1 = 38
ADAPT = os.environ.get('ADAPT', '1') == '1'
ADUP = int(os.environ.get('ADUP', 12))
HAB = int(os.environ.get('HAB', 0))
HDN = int(os.environ.get('HDN', 2))
sOwnP = 31
def zero(lo, hi): return [f'v_mov_b64 v[{r}:{r+1}], 0' for r in range(lo, hi, 2)]

def dma_w(a):
    a(f's_mov_b32 m0, s{sKVw}')
    a(f'buffer_load_dwordx4 v10, {W}, s{sKsrc} offen lds')
    a(f'buffer_load_dwordx4 v13, {W}, s{sKsrc} offen offset:1024 lds')
    a(f's_add_u32 m0, s{sKVw}, 8192')
    a(f'buffer_load_dwordx4 v2, {W}, s{sVsrc} offen lds')
    a(f'buffer_load_dwordx4 v2, {W}, s{sVsrc} offen offset:1024 lds')

def km_ops(land):
    return [f's_lshl_b32 s{sTmp3}, s{sW}, 10', f'v_add_u32 v{land+4}, s{sTmp3}, v6',
            f'ds_read_b64_tr_b16 v[{land}:{land+1}], v{land+4} offset:4096', f'ds_read_b64_tr_b16 v[{land+2}:{land+3}], v{land+4} offset:{4096+128}',
            's_waitcnt lgkmcnt(0)',
            f'buffer_store_dwordx4 v[{land}:{land+3}], v2, {W}, s{sKMo} offen sc1',
            f's_add_u32 s{sKMo}, s{sKMo}, {32*4096}']

def advance(a):
    if FUSED:
        a(f'v_readfirstlane_b32 s{sRdy}, v12'); a('v_mov_b32 v12, -1')
    a(f's_add_u32 s{sKsrc}, s{sKsrc}, {32*8192}'); a(f's_add_u32 s{sVsrc}, s{sVsrc}, {32*8192}');
    a(f's_xor_b32 s{sKVw}, s{sKVw}, 16384')
    a('v_xor_b32 v14, 16384, v14')
    a(f's_add_u32 s{sS}, s{sS}, 1')
    a(f's_add_u32 s{sVMo}, s{sVMo}, {32*2048}'); a(f's_add_u32 s{sKMo}, s{sKMo}, {32*4096}')
    a(f's_mov_b32 s{sTmp3}, s{sP1w}'); a(f's_mov_b32 s{sP1w}, s{sP1r}'); a(f's_mov_b32 s{sP1r}, s{sTmp3}')
    a(f's_add_u32 s{sMw}, s{sMw}, {L.MEMSZ}'); a(f's_xor_b32 s{sMf}, s{sMf}, {L.MEMSZ}')
    a(f's_bfe_u32 s{sTag}, s{sS}, {(1 << 16) | 1}'); a(f's_xor_b32 s{sFlip}, s{sTag}, 1')

def emit_main(a, st, fail, end):
    a.comment('======== MAIN ========')
    srd(a, S_T0, L.KA['Wq'], 640*4096*2)
    srd(a, S_T1, L.KA['Wk'], 640*4096*2)
    srd(a, S_T2, L.KA['Wo'], 640*4096*2)
    xcc_or(a)
    mem0_frags(a, 'load')
    a('v_lshrrev_b32 v36, 4, v0'); a('v_and_b32 v37, 15, v0'); a('v_lshlrev_b32 v37, 4, v37')
    a('v_lshlrev_b32 v10, 13, v36'); a('v_add_u32 v10, v10, v37')
    a('v_mul_u32_u24 v11, 1280, v36'); a('v_add_u32 v11, v11, v37')
    trbase(a, 12, False)
    trbase(a, 13, True)
    a(f's_lshl_b32 s28, s{sH}, 8')
    a(f's_mul_i32 s29, s{sH}, {128*1280}')
    a('s_waitcnt lgkmcnt(0)')
    chunks = []
    for m, s_ in ((0, S_T0), (1, S_T1)):
        for kb in range(10):
            d = [qk_home(m, t, kb) for t in range(2)]
            chunks.append(dict(srd=s_, vofs=10, sbase=28, soff=64*kb*8192, istep=4*8192, vtr=12, rows=[0, 4, 32, 36], tcol=[0, 32],
                               dests=[f'{x[0]}{x[1]}' for x in d]))
    for eb in range(2):
        for cg in range(5):
            p = wo_pair(cg, eb)
            d = [f'v{192 + (cg*2+t)*8}' if p is None else f'v{20 + (p*2+t)*8}' for t in range(2)]
            chunks.append(dict(srd=S_T2, vofs=11, sbase=29, soff=64*eb*1280 + cg*256, istep=4*1280, vtr=13, rows=[0, 16, 8, 24], tcol=[0, 128], dests=d))
    load_chunks(a, chunks, 14)
    if COARSE: a('s_memrealtime s[90:91]')
    a('s_barrier')
    a(f's_mul_i32 s{sTmp}, s{sW}, {12*2048}'); a(f's_add_u32 s{sTmp}, s{sTmp}, {WL}')
    a(f'v_add_u32 v15, s{sTmp}, v2')
    for i in range(12):
        a(f'ds_write_b128 v15, v[{20+8*i}:{23+8*i}] offset:{i*2048}')
        a(f'ds_write_b128 v15, v[{24+8*i}:{27+8*i}] offset:{i*2048+1024}')
    a('s_waitcnt lgkmcnt(0)')
    mem0_frags(a, 'write')
    a(f's_sub_u32 s{sTmp}, s{sW}, 2'); a(f's_mul_i32 s{sTmp}, s{sTmp}, 5120'); a(f'v_add_u32 v3, s{sTmp}, v4')
    a('v_and_b32 v36, 15, v0'); a('v_lshlrev_b32 v36, 5, v36'); a('v_lshrrev_b32 v37, 4, v0'); a('v_lshlrev_b32 v37, 3, v37'); a('v_add_u32 v36, v36, v37')
    a(f's_lshl_b32 s{sTmp}, s{sW}, 10'); a(f's_add_u32 s{sTmp}, s{sTmp}, {QKX}'); a(f'v_add_u32 v5, s{sTmp}, v36')
    a('v_lshrrev_b32 v36, 4, v0'); a('v_lshlrev_b32 v36, 3, v36'); a('v_bfe_u32 v37, v0, 2, 2'); a('v_add_u32 v36, v36, v37')
    a('v_lshlrev_b32 v36, 5, v36'); a('v_and_b32 v37, 3, v0'); a('v_lshlrev_b32 v37, 3, v37'); a('v_add_u32 v36, v36, v37')
    a(f'v_add_u32 v6, {QKX}, v36')
    a('v_lshrrev_b32 v36, 4, v0'); a('v_lshlrev_b32 v36, 13, v36'); a('v_and_b32 v37, 15, v0'); a('v_lshlrev_b32 v37, 4, v37'); a('v_add_u32 v7, v36, v37')
    a('v_bfe_u32 v36, v0, 2, 2'); a('v_lshlrev_b32 v36, 10, v36'); a('v_and_b32 v37, 3, v0'); a('v_lshlrev_b32 v37, 4, v37'); a('v_add_u32 v36, v36, v37')
    a('v_lshrrev_b32 v37, 4, v0'); a('v_lshlrev_b32 v37, 2, v37'); a('v_add_u32 v8, v36, v37')
    a('v_lshlrev_b32 v9, 3, v0')
    a(f's_lshr_b32 s{sTmp}, s{sW}, 1'); a(f's_lshl_b32 s{sTmp}, s{sTmp}, 10'); a(f's_and_b32 s{sTmp2}, s{sW}, 1'); a(f's_lshl_b32 s{sTmp2}, s{sTmp2}, 3')
    a(f's_add_u32 s{sTmp}, s{sTmp}, s{sTmp2}'); a(f's_add_u32 s{sTmp}, s{sTmp}, {OFR}'); a(f'v_add_u32 v11, s{sTmp}, v2')
    a('v_bfe_u32 v36, v0, 2, 1'); a('v_lshlrev_b32 v36, 4, v36'); a('v_bfe_u32 v37, v0, 3, 1'); a('v_lshlrev_b32 v37, 2, v37')
    a('v_add_u32 v36, v36, v37'); a('v_and_b32 v37, 3, v0'); a('v_add_u32 v36, v36, v37'); a('v_lshlrev_b32 v36, 13, v36')
    a('v_lshrrev_b32 v37, 4, v0'); a('v_lshlrev_b32 v37, 4, v37'); a('v_add_u32 v10, v36, v37')
    a('v_mov_b32 v12, -1')
    a('v_bfe_u32 v36, v0, 2, 2'); a('v_lshlrev_b32 v36, 1, v36'); a('v_and_b32 v37, 1, v0'); a('v_add_u32 v36, v36, v37')
    for q in range(4):
        a(f'v_mov_b32 v{16+q}, 0'); a(f'v_mov_b32 v37, 0x3F80')
        a(f'v_cmp_eq_u32 vcc, {2*q}, v36'); a(f'v_cndmask_b32 v{16+q}, v{16+q}, v37, vcc')
        a(f'v_mov_b32 v37, 0x3F800000')
        a(f'v_cmp_eq_u32 vcc, {2*q+1}, v36'); a(f'v_cndmask_b32 v{16+q}, v{16+q}, v37, vcc')
    a(f'v_add_u32 v13, {SEL}, v2')
    a('ds_write_b128 v13, v[16:19]')
    a('s_waitcnt lgkmcnt(0)')
    for q in range(4): a(f'v_mov_b32 v{16+q}, 0x3F803F80')
    a(f'v_add_u32 v14, {KVB}, v2')
    a('v_mov_b32 v121, 0'); a('v_mov_b32 v122, 0'); a(f'v_mov_b32 v124, s{sC}')
    a(f's_mov_b32 s{sOwn}, -1')
    a(f's_cmp_eq_u32 s{sW}, 0'); a(f's_cselect_b32 s{sOwn}, s{sH}, s{sOwn}')
    a(f's_add_u32 s{sTmp}, s{sH}, 32'); a(f's_cmp_lt_u32 s{sTmp}, 48'); a(f's_cselect_b32 s{sTmp}, s{sTmp}, -1')
    a(f's_cmp_eq_u32 s{sW}, 1'); a(f's_cselect_b32 s{sOwn}, s{sTmp}, s{sOwn}')
    a(f's_lshr_b32 s{sTmp}, s{sOwn}, 2'); a(f's_and_b32 s{sTmp}, s{sTmp}, 15'); a(f's_mul_i32 s{sTmp2}, s{sTmp}, 11'); a(f's_lshr_b32 s{sTmp2}, s{sTmp2}, 5')
    a(f's_mul_i32 s{sTmp3}, s{sTmp2}, 3'); a(f's_sub_u32 s{sTmp3}, s{sTmp}, s{sTmp3}')
    a(f's_lshl_b32 s{sOwnP}, s{sTmp3}, 12'); a(f's_lshl_b32 s{sTmp2}, s{sTmp2}, 8'); a(f's_add_u32 s{sOwnP}, s{sOwnP}, s{sTmp2}')
    a(f's_and_b32 s{sTmp}, s{sOwn}, 3'); a(f's_lshl_b32 s{sTmp}, s{sTmp}, 6'); a(f's_add_u32 s{sOwnP}, s{sOwnP}, s{sTmp}')
    a(f's_cmp_eq_u32 s{sOwn}, -1'); a(f's_cselect_b32 s{sOwnP}, 24576, s{sOwnP}')
    a(f's_mul_i32 s{sP1w}, s{sW}, {3*32768}'); a(f's_lshl_b32 s{sTmp}, s{sH}, 8')
    a(f's_add_u32 s{sP1w}, s{sP1w}, s{sTmp}'); a(f's_add_u32 s{sP1w}, s{sP1w}, {L.P1}')
    a(f's_add_u32 s{sP1r}, s{sP1w}, {L.P1SZ}')
    a('s_barrier')
    a(f's_lshl_b32 s{sKsrc}, s{sH}, 8'); a(f's_add_u32 s{sKsrc}, s{sKsrc}, {L.K}')
    a(f's_lshl_b32 s{sVsrc}, s{sH}, 13'); a(f's_add_u32 s{sVsrc}, s{sVsrc}, {L.VT}')
    a(f's_lshl_b32 s{sVMo}, s{sH}, 11'); a(f's_add_u32 s{sVMo}, s{sVMo}, {L.VM}'); a(f's_lshl_b32 s{sTmp}, s{sW}, 9'); a(f's_add_u32 s{sVMo}, s{sVMo}, s{sTmp}')
    a(f's_lshl_b32 s{sKMo}, s{sH}, 12'); a(f's_add_u32 s{sKMo}, s{sKMo}, {L.KM}')
    a(f's_lshl_b32 s{sTmp}, s{sW}, 10'); a(f's_add_u32 s{sKMo}, s{sKMo}, s{sTmp}')
    if FUSED:
        lp = a.newlabel('kvw'); lp2 = a.newlabel('kvw2')
        a('v_mov_b32 v36, 0')
        a.label(lp)
        a(f'buffer_load_dwordx4 v[40:43], v36, s[{S_DBG}:{S_DBG+3}], 0 offen sc1')
        a(f'buffer_load_dword v44, v36, s[{S_DBG}:{S_DBG+3}], 0 offen offset:16 sc1')
        spin_check(a, fail)
        a('s_waitcnt vmcnt(0)')
        a(f'v_readfirstlane_b32 s{sTmp}, v40'); a(f's_cmp_lt_u32 s{sTmp}, 64'); a(f's_cbranch_scc1 {lp}')
        a(f'v_readfirstlane_b32 s{sTmp}, v44'); a(f's_cmp_lt_u32 s{sTmp}, 64'); a(f's_cbranch_scc1 {lp}')
        a(f'v_readfirstlane_b32 s{sTmp}, v43'); a(f's_cmp_lt_u32 s{sTmp}, 1'); a(f's_cbranch_scc1 {lp}')
        a(f'v_readfirstlane_b32 s{sTmp}, v41'); a(f's_bcnt1_i32_b32 s{sTmp}, s{sTmp}'); a(f's_cmp_eq_u32 s{sTmp}, 1'); a(f's_cselect_b32 s{sFast}, 1, 0')
        a(f's_mov_b32 s{sTmp2}, {L.ctr(L.C_KV)}')
        a.label(lp2)
        a(f'buffer_load_dword v41, v36, {W}, s{sTmp2} offen sc1')
        spin_check(a, fail)
        a('s_waitcnt vmcnt(0)')
        a(f'v_readfirstlane_b32 s{sTmp}, v41'); a(f's_cmp_ge_u32 s{sTmp}, 64'); a(f's_cbranch_scc1 {lp2}_ok')
        a('s_sleep 3'); a(f's_branch {lp2}')
        a.label(f'{lp2}_ok')
        a(f's_mov_b32 s{sRdy}, 64')
    a('v_subrev_u32 v13, 960, v10')
    a(f's_lshr_b32 s{sTmp}, s{sW}, 1'); a(f's_lshl_b32 s{sTmp}, s{sTmp}, 16')
    a(f's_and_b32 s{sTmp2}, s{sW}, 1'); a(f's_lshl_b32 s{sTmp2}, s{sTmp2}, 7')
    a(f's_add_u32 s{sTmp}, s{sTmp}, s{sTmp2}'); a(f's_add_u32 s{sKsrc}, s{sKsrc}, s{sTmp}')
    a(f's_lshl_b32 s{sTmp}, s{sW}, 11'); a(f's_add_u32 s{sVsrc}, s{sVsrc}, s{sTmp}')
    a(f's_add_u32 s{sKVw}, s{sTmp}, {KVB}')
    dma_w(a)
    a(f's_add_u32 s{sKsrc}, s{sKsrc}, {32*8192}'); a(f's_add_u32 s{sVsrc}, s{sVsrc}, {32*8192}'); a(f's_xor_b32 s{sKVw}, s{sKVw}, 16384')
    if COARSE: a('s_memrealtime s[88:89]'); a('s_waitcnt lgkmcnt(0)')
    if FUSED: a('s_waitcnt vmcnt(0)')
    else: rendezvous(a, True, fail)
    a(f's_mov_b32 s{sS}, 0')
    a(f's_mov_b32 s{sMw}, {L.MEMSZ}'); a(f's_mov_b32 s{sMf}, {L.MEMSZ}'); a(f's_mov_b32 s{sTag}, 0'); a(f's_mov_b32 s{sFlip}, 1')
    emit(a, zero(20, 36))
    a('s_barrier')
    if st.on and not st.trace:
        a(f's_memtime s[{sT+14}:{sT+15}]'); a('s_waitcnt lgkmcnt(0)'); a(f's_mov_b32 s{sT+13}, s{sT+14}')
    if COARSE:
        a('s_memrealtime s[98:99]'); a('s_memtime s[92:93]'); a('s_waitcnt lgkmcnt(0)')
    a(f's_cmp_eq_u32 s{sFast}, 0'); a('s_cbranch_scc1 main_loop_safe')
    main_loop(a, True, st, fail)
    main_loop(a, False, st, fail)
    a.label('main_last')
    a(f's_lshl_b32 s{sKMo}, s{sH}, 12'); a(f's_add_u32 s{sKMo}, s{sKMo}, {L.KM + 63*32*4096}'); a(f's_lshl_b32 s{sTmp}, s{sW}, 10'); a(f's_add_u32 s{sKMo}, s{sKMo}, s{sTmp}')
    emit(a, km_ops(40))
    st.dump(a, 0)
    if COARSE:
        sk = a.newlabel('csk')
        a('s_memrealtime s[100:101]'); a('s_memtime s[94:95]'); a('s_waitcnt lgkmcnt(0)')
        sk0 = a.newlabel('csk0')
        a(f's_cmp_lg_u32 s{sW}, 0'); a(f's_cbranch_scc1 {sk0}')
        a('v_mov_b32 v36, 0'); a(f's_lshl_b32 s{sTmp}, s{sH}, 5'); a(f's_add_u32 s{sTmp}, s{sTmp}, {TRACE + 32768}')
        for i, r in enumerate((96, 90, 88, 98, 100)):
            a(f'v_mov_b32 v37, s{r}')
            a(f'buffer_store_dword v37, v36, {W}, s{sTmp} offen offset:{4*i}')
        a.label(sk0)
        a(f's_or_b32 s{sTmp}, s{sH}, s{sW}'); a(f's_cmp_lg_u32 s{sTmp}, 0'); a(f's_cbranch_scc1 {sk}')
        a('v_mov_b32 v36, 0')
        a('s_sub_u32 s98, s98, s96'); a('s_sub_u32 s100, s100, s96'); a('s_sub_u32 s94, s94, s92')
        a('s_sub_u32 s90, s90, s96'); a('s_sub_u32 s88, s88, s96')
        for q in range(4): a(f's_sub_u32 s{80+q}, s{80+q}, s96')
        for i, r in enumerate((98, 100, 94, 90, 88, 80, 81, 82, 83)):
            a(f'v_mov_b32 v37, s{r}')
            a(f'buffer_store_dword v37, v36, s[{S_DBG}:{S_DBG+3}], 0 offen offset:{128+4*i}')
        a('s_waitcnt vmcnt(0)')
        a.label(sk)
    a(f's_branch {end}')

def main_loop(a, fast, st, fail):
    sc = ('nt' if 'ntst' in EXP else '') if fast else 'sc1'
    tag = 'fast' if fast else 'safe'
    a.label(f'main_loop_{tag}')
    cold = []
    F = lambda kb: f'v[{72+4*kb}:{75+4*kb}]'
    if COARSE:
        nn = a.newlabel('cs')
        a(f's_and_b32 s{sTmp}, s{sS}, 15'); a(f's_cmp_lg_u32 s{sTmp}, 0'); a(f's_cbranch_scc1 {nn}')
        a('s_memrealtime s[86:87]'); a('s_waitcnt lgkmcnt(0)')
        a(f's_lshr_b32 s{sTmp}, s{sS}, 4')
        for q in range(4):
            a(f's_cmp_eq_u32 s{sTmp}, {q}'); a(f's_cselect_b32 s{80+q}, s86, s{80+q}')
        a.label(nn)
    if 'skel' in EXP:
        a(f's_cmp_ge_u32 s{sS}, 63'); a('s_cbranch_scc1 main_last')
        a(f's_sleep {int(os.environ.get("CSLEEP", 8))}')
        emit(a, zero(28, 40))
        st(a, 0)
        for qq in range(3):
            a(f'v_and_or_b32 v{28+4*qq}, v{28+4*qq}, -2, s{sTag}')
            a(f's_add_u32 s{sTmp}, s{sP1w}, {qq*32768}'); a(f'buffer_store_dwordx4 v[{28+4*qq}:{31+4*qq}], v7, {W}, s{sTmp} offen {sc}')
        a(f's_branch skel_{tag}')
    for kb in range(10):
        a(f'ds_read_b128 {F(kb)}, v4 offset:{kb*1024}')
    if FUSED:
        rok = a.newlabel('rok'); rl = a.newlabel('rl'); rs_ = a.newlabel('rs')
        a(f's_cmp_lt_u32 s{sRdy}, 64'); a(f's_cbranch_scc1 {rs_}')
        a.label(rok)
        def cold_rdy():
            a.label(rs_)
            a(f's_add_u32 s{sTmp}, s{sS}, 1'); a(f's_lshr_b32 s{sTmp}, s{sTmp}, 2'); a(f's_min_u32 s{sTmp}, s{sTmp}, 15'); a(f's_lshl_b32 s{sTmp}, s{sTmp}, 7'); a(f's_add_u32 s{sTmp}, s{sTmp}, {L.ctr(L.C_KV)}')
            a.label(rl)
            a(f'buffer_load_dword v36, v121, {W}, s{sTmp} offen sc1')
            spin_check(a, fail)
            a('s_waitcnt vmcnt(0)')
            a(f'v_readfirstlane_b32 s{sRdy}, v36')
            a(f's_cmp_lt_u32 s{sRdy}, 64'); a(f's_cbranch_scc1 {rl}')
            a(f's_branch {rok}')
        cold.append(cold_rdy)
    if 'nodma' not in EXP: dma_w(a)
    if 'ptv' in EXP:
        a(f'buffer_load_dwordx2 v[114:115], v9, {W}, s{sVMo} offen sc1')
    mf = []
    for kb in range(10):
        for t in range(2):
            ins = f'{SM} v[{20+4*t}:{23+4*t}], {F(kb)}, {rr(qk_home(0, t, kb))}, v1'
            nk = max(0, 2*(kb-6)) if kb >= 6 else 0
            mf.append([f's_waitcnt lgkmcnt({9-kb+nk})', ins] if t == 0 else ins)
    fill = [[]]*11 + [['s_waitcnt vmcnt(4)'] if 'ab' in EXP else []] + [f'ds_read_b128 v[{40+4*i}:{43+4*i}], v14 offset:{i*1024}' for i in range(8)]
    interleave(a, mf, fill)
    st(a, 0)
    mf = [f'{SM} v[{28+4*t}:{31+4*t}], {F(kb)}, {rr(qk_home(1, t, kb))}, v1' for kb in range(10) for t in range(2)]
    if 'nok1' in EXP: mf = ['s_nop 0'] * 20
    if 'halfk1' in EXP: mf = [m if i % 2 == 0 else 's_nop 0' for i, m in enumerate(mf)]
    fill = [[], [], 'v_add_f32 v20, v20, v22', 'v_add_f32 v21, v21, v23', 'v_add_f32 v24, v24, v26', 'v_add_f32 v25, v25, v27',
            'v_cvt_pk_bf16_f32 v36, v20, v21', 'v_cvt_pk_bf16_f32 v37, v24, v25',
            'ds_write2_b32 v5, v36, v36 offset0:0 offset1:1', 'ds_write2_b32 v5, v37, v37 offset0:128 offset1:129', 'v_add_u32 v39, 4096, v5', [],
            ['s_waitcnt lgkmcnt(0)', 's_barrier']]
    fill += [[f'ds_read_b64_tr_b16 v[{72+4*kp}:{73+4*kp}], v6 offset:{kp*1024}', f'ds_read_b64_tr_b16 v[{74+4*kp}:{75+4*kp}], v6 offset:{kp*1024+128}'] for kp in range(4)]
    interleave(a, mf, fill)
    st(a, 1)
    mf = []
    for kp in range(4):
        c1 = '0' if kp == 0 else 'v[20:23]'; c2 = '0' if kp == 0 else 'v[24:27]'
        mf.append((['s_waitcnt lgkmcnt(0)'] if kp == 0 else []) + [f'{MF32} v[20:23], v[{40+4*kp}:{43+4*kp}], v[{72+4*kp}:{75+4*kp}], {c1}'])
        mf.append(f'{MF32} v[24:27], v[{56+4*kp}:{59+4*kp}], v[{72+4*kp}:{75+4*kp}], {c2}')
    fill = [[f's_lshl_b32 s{sTmp}, s{sW}, 11'], ['v_add_f32 v28, v28, v30', 'v_add_f32 v29, v29, v31'], ['v_add_f32 v32, v32, v34', 'v_add_f32 v33, v33, v35'],
            ['v_cvt_pk_bf16_f32 v36, v28, v29', 'v_cvt_pk_bf16_f32 v37, v32, v33'],
            ['ds_write2_b32 v39, v36, v36 offset0:0 offset1:1', 'ds_write2_b32 v39, v37, v37 offset0:128 offset1:129'],
            [f'v_add_u32 v127, s{sTmp}, v14'], [], []]
    interleave(a, mf, fill)
    a('s_waitcnt lgkmcnt(0)')
    a('s_barrier')
    a(f's_cmp_ge_u32 s{sS}, 63'); a('s_cbranch_scc1 main_last')
    for kp in range(4):
        for rho in range(2):
            a(f'ds_read_b64_tr_b16 v[{88+4*kp+2*rho}:{89+4*kp+2*rho}], v6 offset:{4096+kp*1024+rho*128}')
    a('v_max3_f32 v126, v20, v21, v22'); a('v_max3_f32 v125, v23, v24, v25')
    a('ds_read_b128 v[104:107], v127 offset:8192'); a('ds_read_b128 v[108:111], v127 offset:9216')
    a(f'buffer_load_dwordx2 v[112:113], v9, {W}, s{sVMo} offen sc1')
    a('v_max3_f32 v126, v126, v26, v27'); a('v_max_f32 v126, v126, v125')
    a('v_mov_b32 v125, v126')
    if FUSED:
        a(f's_add_u32 s{sTmp}, s{sS}, 2'); a(f's_lshr_b32 s{sTmp}, s{sTmp}, 2'); a(f's_min_u32 s{sTmp}, s{sTmp}, 15'); a(f's_lshl_b32 s{sTmp}, s{sTmp}, 7'); a(f's_add_u32 s{sTmp}, s{sTmp}, {L.ctr(L.C_KV)}')
    else:
        a('s_nop 0')
    a('v_permlane32_swap_b32 v126, v125'); a('v_max_f32 v126, v126, v125')
    a('v_mov_b32 v125, v126')
    if FUSED: a(f'buffer_load_dword v12, v121, {W}, s{sTmp} offen sc1')
    a('v_permlane16_swap_b32 v126, v125'); a('v_max_f32 v126, v126, v125')
    a('v_mul_f32 v127, v124, v126'); a('v_sub_f32 v127, 0, v127')
    st(a, 2)
    wl = []
    for i in range(4):
        wl += [f'ds_read_b128 v[{40+8*i}:{43+8*i}], v15 offset:{i*2048}', f'ds_read_b128 v[{44+8*i}:{47+8*i}], v15 offset:{i*2048+1024}']
    for r in range(20, 28): a(f'v_fma_f32 v{r}, v{r}, v124, v127')
    mfs = []
    for kp in range(4):
        c0 = '0' if kp == 0 else 'v[28:31]'
        mfs.append([f's_waitcnt lgkmcnt({2 + 6 - 2*kp})', f'{MF32} v[28:31], v[{88+4*kp}:{91+4*kp}], v[{72+4*kp}:{75+4*kp}], {c0}'])
    fill = [[f'v_exp_f32 v{r}, v{r}', f'v_exp_f32 v{r+1}, v{r+1}'] for r in range(20, 28, 2)]
    interleave(a, mfs, fill)
    a(f'buffer_load_dwordx2 v[114:115], v9, {W}, s{sVMo} offen sc1')
    a('v_cvt_pk_bf16_f32 v116, v20, v21'); a('v_cvt_pk_bf16_f32 v117, v22, v23')
    a('v_cvt_pk_bf16_f32 v118, v24, v25'); a('v_cvt_pk_bf16_f32 v119, v26, v27')
    a('v_fma_f32 v28, v28, v124, v127'); a('v_fma_f32 v29, v29, v124, v127')
    st(a, 3)
    a('s_waitcnt lgkmcnt(0)')
    a(f'{MF32} v[32:35], v[104:107], v[116:119], 0')
    a('v_max_f32 v126, v28, v29')
    a(f'{MF32} v[36:39], v[108:111], v[116:119], 0')
    a(f'v_cmp_lt_f32 vcc, s{sThr}, v126')
    a(f'{MF32} v[20:23], v[16:19], v[116:119], 0')
    emit(a, wl[:4])
    ok = a.newlabel('thr'); thc = a.newlabel('thc')
    a(f's_cbranch_vccnz {thc}')
    a.label(ok)
    def cold_thr():
        a.label(thc)
        a('v_max_f32 v126, 0, v126')
        a('v_mov_b32 v125, v126'); a('v_permlane32_swap_b32 v126, v125'); a('v_max_f32 v126, v126, v125')
        a('v_mov_b32 v125, v126'); a('v_permlane16_swap_b32 v126, v125'); a('v_max_f32 v126, v126, v125')
        for r in range(28, 30): a(f'v_sub_f32 v{r}, v{r}, v126')
        a('v_sub_f32 v126, 0, v126'); a('v_exp_f32 v126, v126')
        a('s_nop 7')
        for r in list(range(32, 40)) + list(range(20, 24)): a(f'v_mul_f32 v{r}, v{r}, v126')
        a('s_nop 1')
        a(f's_branch {ok}')
    cold.append(cold_thr)
    a('v_exp_f32 v28, v28'); a('v_exp_f32 v29, v29')
    emit(a, wl[4:])
    a('v_cvt_pk_bf16_f32 v120, v28, v29'); a('v_cvt_pk_bf16_f32 v123, v28, v29')
    a(f'{MF16} v[20:23], v[16:17], v[120:121], v[20:23]')
    if 'nokm' not in EXP:
        a(f's_lshl_b32 s{sTmp3}, s{sW}, 10'); a(f'v_add_u32 v125, s{sTmp3}, v6')
        a('ds_read_b64_tr_b16 v[116:117], v125 offset:4096'); a(f'ds_read_b64_tr_b16 v[118:119], v125 offset:{4096+128}')
    emit(a, zero(72, 88))
    st(a, 4)
    vp = a.newlabel('vmp'); vok = a.newlabel('vmok')
    nyoung = 2 if FUSED else 1
    vc = a.newlabel('vmc')
    if 'novm' not in EXP:
        a('s_waitcnt vmcnt(1)')
        a('v_max_u32 v126, v112, v113')
        a('v_cmp_eq_u32 vcc, -1, v126'); a(f's_cbranch_vccnz {vc}')
    def cold_vm():
        a.label(vc)
        a('s_waitcnt vmcnt(0)')
        a('v_mov_b64 v[112:113], v[114:115]')
        a.label(vp)
        a('v_max_u32 v126, v112, v113')
        a('v_cmp_eq_u32 vcc, -1, v126'); a(f's_cbranch_vccz {vok}')
        a(f'buffer_load_dwordx2 v[112:113], v9, {W}, s{sVMo} offen sc1')
        spin_check(a, fail)
        a('s_waitcnt vmcnt(0)')
        a(f's_branch {vp}')
    cold.append(cold_vm)
    a.label(vok)
    st(a, 5)
    a(f'{MF16} v[32:35], v[112:113], v[120:121], v[32:35]')
    a(f'{MF16} v[36:39], v[112:113], v[122:123], v[36:39]')
    a('v_rcp_f32 v126, v20')
    a('v_mov_b32 v127, v126')
    for t, o in ((0, 32), (1, 36)):
        a(f'v_cndmask_b32 v{24+2*t}, v{o}, v{o+2}, {MH}')
        a(f'v_cndmask_b32 v{25+2*t}, v{o+1}, v{o+3}, {MH}')
        a(f'v_pk_mul_f32 v[{24+2*t}:{25+2*t}], v[{24+2*t}:{25+2*t}], v[126:127]')
        a(f'v_cvt_pk_bf16_f32 v{28+t}, v{24+2*t}, v{25+2*t}')
    a('ds_write_b64 v11, v[28:29]')
    if 'nokm' not in EXP:
        a('s_waitcnt lgkmcnt(1)')
        a(f'buffer_store_dwordx4 v[116:119], v2, {W}, s{sKMo} offen sc1')
    emit(a, zero(88, 98))
    a('s_waitcnt lgkmcnt(0)')
    a('s_barrier')
    a(f'v_add_u32 v127, {OFR}, v2')
    a('ds_read_b128 v[20:23], v127'); a('ds_read_b128 v[24:27], v127 offset:1024')
    emit(a, zero(98, 112))
    emit(a, zero(38, 40))
    st(a, 6)
    def epi(cg):
        ops = []
        for t in range(2):
            ac = 72 + 4*(cg*2+t); d = 28 + 4*(cg >> 1) + 2*(cg & 1) + t
            ops += [f'v_add_f32 v{ac}, v{ac}, v{ac+2}', f'v_add_f32 v{ac+1}, v{ac+1}, v{ac+3}', f'v_cvt_pk_bf16_f32 v{d}, v{ac}, v{ac+1}']
        if cg in (1, 3, 4):
            qq = cg >> 1; d = 28 + 4*qq
            ops += [f'v_and_or_b32 v{d}, v{d}, -2, s{sTag}', [f's_add_u32 s{sTmp}, s{sP1w}, {qq*32768}', f'buffer_store_dwordx4 v[{d}:{d+3}], v7, {W}, s{sTmp} offen {sc}']]
        return ops
    def pf(pair):
        sl = (pair & 1) * 2; ops = []
        for t in range(2):
            i = pair * 2 + t; b = 40 + 8 * (sl + t)
            ops += [f'ds_read_b128 v[{b}:{b+3}], v15 offset:{i*2048}', f'ds_read_b128 v[{b+4}:{b+7}], v15 offset:{i*2048+1024}']
        return ops
    a('s_waitcnt lgkmcnt(0)')
    pend = []
    n = 0
    for cg in range(5):
        for eb in range(2):
            p = wo_pair(cg, eb)
            A = 'v[20:23]' if eb == 0 else 'v[24:27]'
            for t in range(2):
                ac = 72 + 4*(cg*2+t)
                b = 192 + (cg*2+t)*8 if p is None else 40 + 8 * ((p & 1) * 2 + t)
                if p is not None and t == 0 and p >= 2:
                    a(f's_waitcnt lgkmcnt({4 if p < 5 else 0})')
                a(f'{SM} v[{ac}:{ac+3}], {A}, v[{b}:{b+7}], v1')
                n += 1
                if p is not None and t == 1 and p + 2 < 6:
                    emit(a, pf(p + 2))
                k = 0
                while pend and pend[0][0] <= n and k < (1 if (p is not None and t == 1 and p + 2 < 6) else 2):
                    emit(a, [pend.pop(0)[1]]); k += 1
        pend += [(n + 3, op_) for op_ in epi(cg)]
    emit(a, [x[1] for x in pend])
    if 'skel' in EXP: a.label(f'skel_{tag}')
    st(a, 7)
    gat = a.newlabel('gat'); join = a.newlabel('join'); op = a.newlabel('ownp'); nown = a.newlabel('nown'); post = a.newlabel('post')
    a(f's_cmp_ge_u32 s{sW}, 2'); a(f's_cbranch_scc1 {gat}')
    a(f's_cmp_eq_u32 s{sOwn}, -1'); a(f's_cbranch_scc1 {nown}')
    a(f'v_add_u32 v127, {SEL}, v2'); a('ds_read_b128 v[36:39], v127')
    a(f's_and_b32 s{sTmp}, s{sS}, 1'); a(f's_mul_i32 s{sTmp}, s{sTmp}, {L.P1SZ}')
    a(f's_lshl_b32 s{sTmp2}, s{sOwn}, 13'); a(f's_add_u32 s{sTmp}, s{sTmp}, s{sTmp2}')
    a(f's_add_u32 s{sTmp}, s{sTmp}, {L.P1}'); a(f's_add_u32 s{sTmp2}, s{sTmp}, 4096')
    a(f's_add_u32 s{sPubX}, s{sOwnP}, s{sMw}'); a(f's_add_u32 s{sPubX}, s{sPubX}, {L.MEMX}')
    a(f's_add_u32 s{sPubF}, s{sOwnP}, s{sMf}'); a(f's_add_u32 s{sPubF}, s{sPubF}, {L.MEMF}')
    if OSLEEP: a(f's_sleep {OSLEEP}')
    a('s_waitcnt lgkmcnt(0)')
    OL = 'nt' if ('ntld' in EXP and fast) else 'sc1'
    def oissue(b):
        for m in range(8):
            so = sTmp if m < 4 else sTmp2
            a(f'buffer_load_dwordx4 v[{b+4*m}:{b+3+4*m}], v2, {W}, s{so} offen offset:{(m&3)*1024} {OL}')
    def oconsume(b, younger):
        for m in range(8):
            a(f's_waitcnt vmcnt({7-m+younger})')
            if 'fine' in EXP and m == 0: st(a, 2)
            if 'fine' in EXP and m == 7: st(a, 3)
            c = '0' if m == 0 else 'v[20:23]'
            a(f'{MF32} v[20:23], v[{b+4*m}:{b+3+4*m}], v[36:39], {c}')
            if m == 0: a(f'v_xor_b32 v28, s{sFlipO}, v{b}')
            else: a(f'v_bitop3_b32 v28, v28, v{b+4*m}, s{sFlipO} bitop3:0x60')
        a('v_and_b32 v28, 1, v28')
        a('v_cmp_eq_u32 vcc, 0, v28')
    if 'ab' in EXP:
        od = a.newlabel('od')
        oissue(40)
        a(f's_sleep {int(os.environ.get("STAG", 2))}')
        a.label(op)
        oissue(72)
        spin_check(a, fail)
        oconsume(40, 8)
        a(f's_cbranch_vccz {od}')
        oissue(40)
        oconsume(72, 8)
        a(f's_cbranch_vccnz {op}')
        a.label(od)
    else:
        opc = a.newlabel('opc')
        a.label(op)
        oissue(40)
        if 'fine' in EXP: st(a, 1)
        oconsume(40, 0)
        if 'fine' in EXP: a(f's_add_u32 s{sT+4}, s{sT+4}, 63')
        if 'noown' not in EXP: a(f's_cbranch_vccnz {opc}')
        def cold_own():
            a.label(opc); spin_check(a, fail); a(f's_branch {op}')
        cold.append(cold_own)
    a(f'v_cndmask_b32 v24, v20, v22, {MH}'); a(f'v_cndmask_b32 v25, v21, v23, {MH}')
    a('v_cvt_pk_bf16_f32 v24, v24, v25')
    if 'nop16' not in EXP:
        if 'atomx' in EXP: a('v_mov_b32 v29, v24')
        a('v_mov_b32 v25, v24'); a('v_permlane16_swap_b32 v24, v25')
        a('v_mov_b32 v26, v24'); a('v_mov_b32 v27, v25')
        a('v_permlane32_swap_b32 v24, v26'); a('v_permlane32_swap_b32 v25, v27')
        a('s_mov_b64 exec, 0xffff')
        if 'xfirst' in EXP: a(f'buffer_store_dwordx4 v[24:27], v8, {W}, s{sPubX} offen sc1')
        a(f'buffer_store_dwordx4 v[24:27], v8, {W}, s{sPubF} offen {sc}')
        if 'xsecond' in EXP: a(f'buffer_store_dwordx4 v[24:27], v8, {W}, s{sPubX} offen sc1')
        a('s_mov_b64 exec, -1')
    else:
        a(f'buffer_store_dword v24, v8, {W}, s{sPubF} offen {sc}')
    st(a, 8)
    a('s_barrier')
    XD = int(os.environ.get('XDELAY', 0))
    if XD: a(f's_sleep {XD}')
    if 'atomx' in EXP: a(f'buffer_atomic_and v29, v8, {W}, s{sPubX} offen')
    elif 'atomx2' in EXP: pass
    elif 'xfirst' in EXP or 'xsecond' in EXP: pass
    elif 'nop16' not in EXP:
        a('s_mov_b64 exec, 0xffff')
        a(f'buffer_store_dwordx4 v[24:27], v8, {W}, s{sPubX} offen sc1')
        a('s_mov_b64 exec, -1')
    elif 'nomemx' not in EXP: a(f'buffer_store_dword v24, v8, {W}, s{sPubX} offen sc1')
    a(f's_xor_b32 s{sTmp}, s{sMf}, {L.MEMSZ}'); a(f's_add_u32 s{sTmp}, s{sTmp}, s{sOwnP}'); a(f's_add_u32 s{sTmp}, s{sTmp}, {L.MEMF}')
    a('v_mov_b32 v28, -1')
    a(f'buffer_store_dword v28, v8, {W}, s{sTmp} offen {sc}')
    a(f's_branch {post}')
    a.label(nown)
    st(a, 8)
    a('s_barrier')
    a.label(post)
    advance(a)
    emit(a, zero(20, 36))
    if 'ab' in EXP: a('s_waitcnt vmcnt(2)')
    a(f's_branch {join}')
    a.label(gat)
    a(f's_add_u32 s{sM2}, s{sMf}, {L.MEMF}')
    advance(a)
    gather_pre(a, sM2)
    emit(a, zero(20, 36))
    a('s_barrier')
    if GSLEEP: a(f's_sleep {GSLEEP}')
    st(a, 10); st.val(a, 2, sSpin)
    LF = ('nt' if ('ntld' in EXP and fast) else 'sc1')
    if 'nogather' not in EXP:
        if 'ab' in EXP: gather2(a, fail, LF, int(os.environ.get('STAG', 2)))
        else: gather(a, fail, st, LF)
    st.val(a, 3, sSpin); st(a, 11)
    a.label(join)
    a('s_waitcnt lgkmcnt(0)')
    a('s_barrier')
    st(a, 9)
    a(f's_branch main_loop_{tag}')
    for c in cold: c()

def emit_helper(a, st, fail, end):
    a.comment('======== HELPER ========')
    a.label('chain_helper')
    srd(a, S_T1, L.KA['Wv'], 640*4096*2)
    a('v_lshrrev_b32 v36, 4, v0'); a('v_and_b32 v37, 15, v0'); a('v_lshlrev_b32 v37, 4, v37')
    a('v_lshlrev_b32 v10, 13, v36'); a('v_add_u32 v10, v10, v37')
    trbase(a, 12, False)
    a(f's_lshl_b32 s30, s{sH}, 8')
    a('s_waitcnt lgkmcnt(0)')
    chunks = []
    for kb in range(10):
        chunks.append(dict(srd=S_T1, vofs=10, sbase=30, soff=64*kb*8192, istep=4*8192, vtr=12, rows=[0, 4, 32, 36], tcol=[0, 32],
                           dests=[f'a{(kb*2)*8}', f'a{(kb*2+1)*8}']))
    load_chunks(a, chunks, 14)
    a('s_barrier')
    a('v_mov_b64 v[12:13], -1'); a('v_mov_b64 v[14:15], -1')
    a('v_lshlrev_b32 v9, 3, v0')
    a(f's_lshl_b32 s{sVMo}, s{sH}, 11'); a(f's_add_u32 s{sVMo}, s{sVMo}, {L.VM}')
    if not FUSED:
        def fill(base, total):
            per = total // 32
            n = per // 4096
            a(f's_mul_i32 s{sTmp}, s{sH}, {per}'); a(f's_lshl_b32 s{sTmp2}, s{sW}, 10'); a(f's_add_u32 s{sTmp}, s{sTmp}, s{sTmp2}'); a(f's_add_u32 s{sTmp}, s{sTmp}, {base}')
            for i in range(n):
                a(f'buffer_store_dwordx4 v[12:15], v2, {W}, s{sTmp} offen sc1')
                if i < n - 1: a(f's_add_u32 s{sTmp}, s{sTmp}, 4096')
        fill(L.VM, 64 * 32 * 2048)
        fill(L.P1, 2 * L.P1SZ)
        fill(L.MEMX, 64 * L.MEMSZ)
        fill(L.MEMF, 131072)
    mem0_frags(a)
    a(f's_sub_u32 s{sTmp}, s{sW}, 2'); a(f's_mul_i32 s{sTmp}, s{sTmp}, 5120'); a(f'v_add_u32 v3, s{sTmp}, v4')
    if COARSE:
        a('s_memrealtime s[90:91]'); a('s_waitcnt lgkmcnt(0)')
        a('v_mov_b32 v36, 0'); a(f's_lshl_b32 s{sTmp}, s{sH}, 5'); a(f's_add_u32 s{sTmp}, s{sTmp}, {TRACE + 32768 + 1024}')
        a('v_mov_b32 v37, s96'); a(f'buffer_store_dword v37, v36, {W}, s{sTmp} offen'); a('v_mov_b32 v37, s90'); a(f'buffer_store_dword v37, v36, {W}, s{sTmp} offen offset:4')
    rendezvous(a, False, fail)
    a(f's_lshl_b32 s{sTmp}, s{sW}, 9'); a(f's_add_u32 s{sVMo}, s{sVMo}, s{sTmp}')
    a(f's_mov_b32 s{sS}, 0')
    a(f's_mov_b32 s{sMr}, {L.MEMX + L.MEMSZ}')
    a(f's_mov_b32 s{sHs}, {int(os.environ.get("HS0", 140))}'); a(f's_mov_b32 s{sHs1}, 1')
    emit(a, zero(28, 36))
    a('s_barrier')
    if 'skel' in EXP: a(f's_branch {end}')
    a.label('helper_loop')
    st(a, 0)
    for kb in range(10):
        a(f'ds_read_b128 v[{72+4*kb}:{75+4*kb}], v4 offset:{kb*1024}')
    for kb in range(10):
        a(f's_waitcnt lgkmcnt({9-kb})')
        for t in range(2):
            acc = 28 + t * 4; b = (kb*2+t)*8
            if 'nov' in EXP and kb > 0: continue
            a(f'{SM} v[{acc}:{acc+3}], v[{72+4*kb}:{75+4*kb}], a[{b}:{b+7}], v1')
    a('v_add_f32 v28, v28, v30'); a('v_add_f32 v29, v29, v31'); a('v_cvt_pk_bf16_f32 v44, v28, v29')
    a('v_add_f32 v32, v32, v34'); a('v_add_f32 v33, v33, v35'); a('v_cvt_pk_bf16_f32 v45, v32, v33')
    a(f'buffer_store_dwordx2 v[44:45], v9, {W}, s{sVMo} offen sc1')
    if FUSED:
        np_ = a.newlabel('np')
        a(f's_or_b32 s{sTmp3}, s{sH}, s{sW}'); a(f's_cmp_lg_u32 s{sTmp3}, 0'); a(f's_cbranch_scc1 {np_}')
        a(f's_add_u32 s{sTmp3}, s{sS}, 1'); a(f'v_mov_b32 v46, s{sTmp3}'); a('v_mov_b32 v47, 0'); a(f's_mov_b32 s{sTmp3}, {L.PROG}')
        a('s_mov_b64 exec, 1')
        a(f'buffer_store_dword v46, v47, {W}, s{sTmp3} offen sc1')
        a('s_mov_b64 exec, -1')
        a.label(np_)
    st(a, 1)
    a(f's_add_u32 s{sVMo}, s{sVMo}, {32*2048}')
    a(f's_cmp_ge_u32 s{sS}, 63'); a(f's_cbranch_scc1 helper_done')
    emit(a, zero(28, 36))
    a('s_barrier')
    hj = a.newlabel('hj')
    a(f's_cmp_lt_u32 s{sW}, 2'); a(f's_cbranch_scc1 {hj}')
    gather_pre(a, sMr)
    if 'ptx' in EXP:
        for i in range(4):
            a(f'buffer_load_dwordx4 v[{40+4*i}:{43+4*i}], v2, {W}, s{sTmp} offen offset:{i*1024} sc1')
        a(f'buffer_load_dwordx4 v[56:59], v2, {W}, s{sTmp2} offen sc1')
    if ADAPT and not HAB:
        a(f's_cmp_gt_u32 s{sHs1}, 1')
        a(f's_cselect_b32 s{sTmp3}, {ADUP + 1}, 0')
        a(f's_add_u32 s{sHs}, s{sHs}, s{sTmp3}')
        a(f's_max_u32 s{sHs}, s{sHs}, 1'); a(f's_sub_u32 s{sHs}, s{sHs}, 1'); a(f's_min_u32 s{sHs}, s{sHs}, 600')
    if ADAPT:
        sl = a.newlabel('hsl'); se = a.newlabel('hse')
        a(f's_lshr_b32 s{sTmp3}, s{sHs}, 2')
        a.label(sl)
        a(f's_cmp_eq_u32 s{sTmp3}, 0'); a(f's_cbranch_scc1 {se}')
        a('s_sleep 1')
        a(f's_sub_u32 s{sTmp3}, s{sTmp3}, 1'); a(f's_branch {sl}')
        a.label(se)
        a(f's_mov_b32 s{sHs0}, s{sSpin}')
    elif HSLEEP: a(f's_sleep {HSLEEP}')
    st(a, 2)
    if ADAPT and HAB:
        gather2(a, fail, 'sc1', HAB, res=sHs0)
        a(f's_cmp_eq_u32 s{sHs0}, 0'); a(f's_cselect_b32 s{sTmp3}, {HDN}, 0'); a(f's_max_u32 s{sHs}, s{sHs}, {HDN}'); a(f's_sub_u32 s{sHs}, s{sHs}, s{sTmp3}')
        a(f's_cmp_ge_u32 s{sHs0}, 2'); a(f's_cselect_b32 s{sTmp3}, {ADUP}, 0'); a(f's_add_u32 s{sHs}, s{sHs}, s{sTmp3}'); a(f's_min_u32 s{sHs}, s{sHs}, 600')
    else:
        gather(a, fail)
    st(a, 3)
    if ADAPT and not HAB: a(f's_sub_u32 s{sHs1}, s{sSpin}, s{sHs0}')
    a.label(hj)
    a('s_waitcnt lgkmcnt(0)')
    a('s_barrier')
    a(f's_add_u32 s{sS}, s{sS}, 1')
    a(f's_add_u32 s{sMr}, s{sMr}, {L.MEMSZ}')
    a('s_branch helper_loop')
    a.label('helper_done')
    st.dump(a, 8192)
    a(f's_branch {end}')
```

```python
from asmlib import Asm
import layout as L
import gemm as GM
from gemm import G, MF
import kernels as KN
from kernels import f32bits, pack_T, unpack, row_reduce16, MF32, MF16, C_SCALE
import chain5 as CH

sWI = 60; sJ = 61; sSpin = 63; sB = 38; sSub = 39
S_DBG = 84
WS = 's[4:7]'; DBG = f's[{S_DBG}:{S_DBG+3}]'
WOS = 8
DNS = 3
SPIN_MAX = 1 << 22
SC = 'sc1'
STAMP = False

def emit(a, ops):
    for x in ops:
        if isinstance(x, (list, tuple)): emit(a, x)
        else: a(x)

class T: tid = 254; a = 250; b = 251
def tid(a): a(f'v_mov_b32 v0, v{T.tid}')

def signal(a, off_sreg=None, off_imm=None, dbg=False, younger=0, dbgs=False):
    a(f's_waitcnt vmcnt({younger})')
    a('s_barrier')
    sk = a.newlabel('sig')
    a(f'v_cmp_eq_u32 vcc, 0, v{T.tid}')
    a('s_and_saveexec_b64 s[56:57], vcc')
    a(f's_cbranch_execz {sk}')
    a(f'v_mov_b32 v{T.a}, 1'); a(f'v_mov_b32 v{T.b}, 0')
    if dbgs:
        a(f'buffer_atomic_add v{T.a}, v{T.b}, {DBG}, s{off_sreg} offen')
    elif dbg:
        a(f'buffer_atomic_add v{T.a}, v{T.b}, {DBG}, 0 offen offset:{off_imm}')
    else:
        a(f'buffer_atomic_add v{T.a}, v{T.b}, {WS}, s{off_sreg} offen')
    a.label(sk)
    a('s_mov_b64 exec, s[56:57]')

def nap(a, short=None):
    sh = a.newlabel('nap'); e = a.newlabel('nape')
    a(f's_cmp_ge_u32 s{sB}, {L.NBLK - 1}'); a(f's_cbranch_scc1 {sh}')
    a('s_sleep 24'); a(f's_branch {e}')
    a.label(sh); a('s_sleep ' + (str(short) if short is not None else __import__('os').environ.get('NAPS', '12')))
    a.label(e)

def wait_ctr(a, off_sreg, target, fail):
    lp = a.newlabel('wc'); ok = a.newlabel('wok')
    a(f'v_readfirstlane_b32 s56, v{T.tid}')
    a(f's_cmp_ge_u32 s56, 64'); a(f's_cbranch_scc1 {ok}')
    a(f'v_mov_b32 v{T.b}, 0')
    a.label(lp)
    a(f'buffer_load_dword v{T.a}, v{T.b}, {WS}, s{off_sreg} offen sc1')
    a('s_waitcnt vmcnt(0)')
    a(f'v_readfirstlane_b32 s56, v{T.a}')
    a(f's_cmp_ge_u32 s56, {target}'); a(f's_cbranch_scc1 {ok}')
    a(f's_add_u32 s{sSpin}, s{sSpin}, 1'); a(f's_cmp_gt_u32 s{sSpin}, {SPIN_MAX}'); a(f's_cbranch_scc1 {fail}')
    nap(a)
    a(f's_branch {lp}')
    a.label(ok)
    a('s_barrier')

def ctr_addr(a, dst, kind, breg):
    a(f's_lshl_b32 s{dst}, s{breg}, 7'); a(f's_add_u32 s{dst}, s{dst}, {L.ctr(kind)}')

def gemm_common(a, lda, ldb, splitB=False):
    g = G
    tid(a)
    GM.setup_lane_consts(a, lda, ldb, splitB)
    a(f's_lshl_b32 s{g.sLdsA}, s{g.sW}, 12')
    a(f's_lshl_b32 s{g.sLdsB}, s{g.sW}, {11 if splitB else 12}')

def load_ptr(a, base, key, nbytes):
    a(f's_load_dwordx2 s[{base}:{base+1}], s[0:1], {L.KA[key]}')
    a(f's_mov_b32 s{base+2}, {nbytes}'); a(f's_mov_b32 s{base+3}, 0x00020000')


EPI = 98304
def epi_T_bf16(a, accs, ld, sbase, ncol_tiles=2, epi=None):
    epi = EPI if epi is None else epi
    g = G; t = g.vT
    a(f'v_and_b32 v{t}, 31, v0'); a(f'v_lshlrev_b32 v{t+1}, 7, v{t}'); a(f'v_and_b32 v{t+2}, 7, v0'); a(f'v_lshrrev_b32 v{t+3}, 5, v0')
    a(f's_lshl_b32 s46, s{g.sW}, 13'); a(f's_add_u32 s46, s46, {epi}'); a(f'v_add_u32 v{t+1}, s46, v{t+1}')
    for rt in range(2):
        for ct in range(2):
            dst = g.FA + ((rt*2+ct) & 1) * 8
            pack_T(a, accs[rt][ct], dst)
            for kk in range(2):
                c0 = 4*ct + 2*kk
                a(f'v_add_u32 v{t+4}, {c0}, v{t+3}'); a(f'v_xor_b32 v{t+4}, v{t+4}, v{t+2}'); a(f'v_lshlrev_b32 v{t+4}, 4, v{t+4}'); a(f'v_add_u32 v{t+4}, v{t+4}, v{t+1}')
                a(f'ds_write_b128 v{t+4}, v[{dst+4*kk}:{dst+4*kk+3}] offset:{rt*4096}')
    a(f'v_lshrrev_b32 v{t}, 3, v0'); a(f'v_and_b32 v{t+2}, 7, v0'); a(f'v_xor_b32 v{t+3}, v{t+2}, v{t}'); a(f'v_lshlrev_b32 v{t+3}, 4, v{t+3}')
    a(f'v_lshlrev_b32 v{t+4}, 7, v{t}'); a(f'v_add_u32 v{t+3}, v{t+3}, v{t+4}'); a(f'v_add_u32 v{t+3}, s46, v{t+3}')
    a(f's_mov_b32 s47, {ld}'); a(f'v_mul_lo_u32 v{t}, v{t}, s47'); a(f'v_lshlrev_b32 v{t+2}, 4, v{t+2}'); a(f'v_add_u32 v{t}, v{t}, v{t+2}')
    a('s_waitcnt lgkmcnt(0)')
    for i in range(8): a(f'ds_read_b128 v[{g.FA+4*i}:{g.FA+4*i+3}], v{t+3} offset:{i*1024}')
    for i in range(8):
        a(f's_waitcnt lgkmcnt({7-i})')
        a(f's_add_u32 s47, s{sbase}, {i*8*ld}')
        a(f'buffer_store_dwordx4 v[{g.FA+4*i}:{g.FA+4*i+3}], v{t}, {WS}, s47 offen {SC}')

def epi_T_f32(a, ld, sbase, epi=None, RT=2):
    epi = EPI if epi is None else epi
    g = G; t = g.vT
    a(f'v_and_b32 v{t}, 31, v0'); a(f'v_lshlrev_b32 v{t+1}, 8, v{t}'); a(f'v_and_b32 v{t+2}, 7, v0'); a(f'v_lshrrev_b32 v{t+3}, 5, v0')
    a(f's_lshl_b32 s46, s{g.sW}, {13 + RT - 1}'); a(f's_add_u32 s46, s46, {epi}'); a(f'v_add_u32 v{t+1}, s46, v{t+1}')
    for ct in range(2):
        for q in range(4):
            c0 = 8*ct + 2*q
            a(f'v_add_u32 v{t+4}, {c0}, v{t+3}'); a(f'v_xor_b32 v{t+4}, v{t+4}, v{t+2}'); a(f'v_lshlrev_b32 v{t+4}, 4, v{t+4}'); a(f'v_add_u32 v{t+4}, v{t+4}, v{t+1}')
            for rt in range(RT):
                acc = g.ACC + (rt*2+ct)*16 + 4*q
                a(f'ds_write_b128 v{t+4}, v[{acc}:{acc+3}] offset:{rt*8192}')
    a(f'v_lshrrev_b32 v{t}, 4, v0'); a(f'v_and_b32 v{t+2}, 15, v0')
    a(f'v_xor_b32 v{t+3}, v{t+2}, v{t}'); a(f'v_xor_b32 v{t+5}, 4, v{t+3}')
    a(f'v_lshlrev_b32 v{t+3}, 4, v{t+3}'); a(f'v_lshlrev_b32 v{t+5}, 4, v{t+5}'); a(f'v_lshlrev_b32 v{t+4}, 8, v{t}'); a(f'v_add_u32 v{t+4}, s46, v{t+4}')
    a(f'v_add_u32 v{t+3}, v{t+3}, v{t+4}'); a(f'v_add_u32 v{t+5}, v{t+5}, v{t+4}')
    a(f's_mov_b32 s47, {ld}'); a(f'v_mul_lo_u32 v{t}, v{t}, s47'); a(f'v_lshlrev_b32 v{t+2}, 4, v{t+2}'); a(f'v_add_u32 v{t}, v{t}, v{t+2}')
    a('s_waitcnt lgkmcnt(0)')
    for half in range(RT):
        for i in range(8):
            ii = half*8 + i
            a(f'ds_read_b128 v[{g.ACC+4*ii}:{g.ACC+4*ii+3}], v{t+3 if ii % 2 == 0 else t+5} offset:{ii*1024}')
        for i in range(8):
            ii = half*8 + i
            a(f's_waitcnt lgkmcnt({7-i})')
            a(f's_add_u32 s47, s{sbase}, {ii*4*ld}')
            a(f'buffer_store_dwordx4 v[{g.ACC+4*ii}:{g.ACC+4*ii+3}], v{t}, {WS}, s47 offen {SC}')

def task_ln1(a):
    tid(a)
    load_ptr(a, 8, 'x', 2048*640*2)
    a('v_lshrrev_b32 v1, 4, v0'); a('s_lshl_b32 s41, s40, 4'); a('v_add_u32 v1, s41, v1')
    a('v_mul_u32_u24 v1, 1280, v1'); a('v_and_b32 v5, 15, v0'); a('v_lshlrev_b32 v5, 4, v5'); a('v_add_u32 v1, v1, v5')
    a('s_waitcnt lgkmcnt(0)')
    for c in range(5): a(f'buffer_load_dwordx4 v[{8+4*c}:{11+4*c}], v1, s[8:11], 0 offen offset:{c*256}')
    a('s_waitcnt vmcnt(0)')
    unpack(a, 8, 32, 20)
    KN.ln_core(a, 32, 8)
    a(f's_mov_b32 s41, {L.XN}')
    for c in range(5): a(f'buffer_store_dwordx4 v[{8+4*c}:{11+4*c}], v1, {WS}, s41 offen offset:{c*256} {SC}')

def task_qkv(a, matrix):
    g = G
    key = ('Wq', 'Wk', 'Wv')[matrix]
    a(f's_lshl_b32 s{g.sT0}, s40, 7'); a(f's_lshl_b32 s{g.sT1}, s{g.sW}, 5'); a(f's_add_u32 s{g.sT0}, s{g.sT0}, s{g.sT1}')
    a(f's_mul_i32 s{g.sAoff}, s{g.sT0}, 1280'); a(f's_add_u32 s{g.sAoff}, s{g.sAoff}, {L.XN}')
    a(f's_lshl_b32 s{g.sBoff}, s43, 8'); a(f's_lshl_b32 s{g.sT1}, s{g.sW}, 17'); a(f's_add_u32 s{g.sBoff}, s{g.sBoff}, s{g.sT1}')
    a('s_barrier')
    GM.mainloop(a, 10, 1280, 8192, 'N' if matrix == 2 else 'T')
    t = g.vT
    if matrix != 2:
        a(f's_mov_b32 s45, {L.Q if matrix == 0 else L.K}')
        a(f's_lshl_b32 s46, s40, 7'); a(f's_lshl_b32 s47, s{g.sWM}, 6'); a('s_add_u32 s46, s46, s47'); a('s_lshl_b32 s46, s46, 13'); a('s_add_u32 s45, s45, s46')
        a(f's_lshl_b32 s46, s43, 8'); a('s_add_u32 s45, s45, s46'); a(f's_lshl_b32 s46, s{g.sWN}, 7'); a('s_add_u32 s45, s45, s46')
        epi_T_bf16(a, [[g.ACC, g.ACC+16], [g.ACC+32, g.ACC+48]], 8192, 45)
    else:
        a(f'v_bfe_u32 v{t}, v0, 4, 1'); a(f'v_lshlrev_b32 v{t}, 10, v{t}'); a(f'v_and_b32 v{t+1}, 15, v0'); a(f'v_lshlrev_b32 v{t+1}, 4, v{t+1}'); a(f'v_add_u32 v{t}, v{t}, v{t+1}')
        a(f'v_lshrrev_b32 v{t+1}, 5, v0'); a(f'v_lshlrev_b32 v{t+1}, 9, v{t+1}'); a(f'v_add_u32 v{t}, v{t}, v{t+1}')
        a(f's_lshl_b32 s45, s40, 2'); a(f's_lshl_b32 s46, s{g.sWM}, 1'); a('s_add_u32 s45, s45, s46'); a('s_lshl_b32 s45, s45, 18')
        a(f's_lshl_b32 s46, s43, 13'); a('s_add_u32 s45, s45, s46'); a(f's_lshl_b32 s46, s{g.sWN}, 12'); a('s_add_u32 s45, s45, s46'); a(f's_add_u32 s45, s45, {L.VT}')
        for rt in range(2):
            for ct in range(2):
                acc = g.ACC + (rt*2+ct)*16; dst = g.FA + ((rt*2+ct) & 1) * 8
                for i in range(8): a(f'v_cvt_pk_bf16_f32 v{dst+i}, v{acc+2*i}, v{acc+2*i+1}')
                a(f's_add_u32 s47, s45, {rt*262144 + ct*2048}')
                a(f'buffer_store_dwordx4 v[{dst}:{dst+3}], v{t}, {WS}, s47 offen {SC}')
                a(f'buffer_store_dwordx4 v[{dst+4}:{dst+7}], v{t}, {WS}, s47 offen offset:256 {SC}')

def qkv_loop(a, name, matrix, start_reg, stride, kind, fail):
    lp = a.newlabel(name); done = a.newlabel(name + 'd')
    gemm_common(a, 1280, 8192)
    load_ptr(a, G.SB, ('Wq', 'Wk', 'Wv')[matrix], 640*4096*2)
    a('s_waitcnt lgkmcnt(0)')
    a(f's_mov_b32 s{sJ}, s{start_reg}')
    a.label(lp)
    a(f's_cmp_ge_u32 s{sJ}, 512'); a(f's_cbranch_scc1 {done}')
    a(f's_lshr_b32 s40, s{sJ}, 5'); a(f's_and_b32 s43, s{sJ}, 31')
    if True:
        wl = a.newlabel('l1b'); wk = a.newlabel('l1bok')
        a('s_lshl_b32 s49, s40, 2'); a('s_add_u32 s49, s49, 128'); a('v_mov_b32 v251, 0')
        a.label(wl)
        a(f'buffer_load_dword v250, v251, {DBG}, s49 offen sc1')
        a('s_waitcnt vmcnt(0)')
        a('v_readfirstlane_b32 s56, v250')
        a(f's_cmp_ge_u32 s56, 8'); a(f's_cbranch_scc1 {wk}')
        a(f's_add_u32 s{sSpin}, s{sSpin}, 1'); a(f's_cmp_gt_u32 s{sSpin}, {SPIN_MAX}'); a(f's_cbranch_scc1 {fail}')
        a('s_sleep 3')
        a(f's_branch {wl}')
        a.label(wk)
    task_qkv(a, matrix)
    ctr_addr(a, 49, kind, 40)
    signal(a, off_sreg=49)
    a(f's_add_u32 s{sJ}, s{sJ}, {stride}')
    a(f's_branch {lp}')
    a.label(done)


def qkv_stat(a, matrix, fail):
    g = G
    GM.set_rt(2)
    load_ptr(a, g.SB, ('Wq', 'Wk', 'Wv')[matrix], 640*4096*2)
    tid(a); GM.stat_setup(a, 1280, 8192)
    a(f's_lshl_b32 s{g.sBoff}, s43, 8'); a(f's_lshl_b32 s{g.sT1}, s{g.sW}, 17'); a(f's_add_u32 s{g.sBoff}, s{g.sBoff}, s{g.sT1}')
    a('s_waitcnt lgkmcnt(0)')
    GM.stat_load_B(a, 10, 8192)
    wl = a.newlabel('l1b'); wk = a.newlabel('l1bok')
    a('v_and_b32 v251, 15, v0'); a('v_lshlrev_b32 v251, 2, v251')
    a.label(wl)
    a(f'buffer_load_dword v250, v251, {DBG}, 0 offen offset:128 sc1')
    a('s_waitcnt vmcnt(0)')
    a('v_cmp_gt_u32 vcc, 8, v250'); a(f's_cbranch_vccz {wk}')
    a(f's_add_u32 s{sSpin}, s{sSpin}, 1'); a(f's_cmp_gt_u32 s{sSpin}, {SPIN_MAX}'); a(f's_cbranch_scc1 {fail}')
    a('s_sleep 3')
    a(f's_branch {wl}')
    a.label(wk)
    def aoff():
        a(f's_lshl_b32 s{g.sT0}, s40, 7'); a(f's_lshl_b32 s{g.sT1}, s{g.sW}, 5'); a(f's_add_u32 s{g.sT0}, s{g.sT0}, s{g.sT1}')
        a(f's_mul_i32 s{g.sAoff}, s{g.sT0}, 1280'); a(f's_add_u32 s{g.sAoff}, s{g.sAoff}, {L.XN}')
    a('s_barrier')
    aoff()
    GM.stat_pre(a, 10, 1280)
    lp = a.newlabel('qs')
    a.label(lp)
    GM.stat_mainloop(a, 10, 1280, 'N' if matrix == 2 else 'T', pre=True)
    a('s_barrier')
    a('s_mov_b32 s50, s40'); a('s_add_u32 s40, s40, 2'); a('s_min_u32 s40, s40, 15')
    aoff()
    GM.stat_pre(a, 10, 1280, 0, 4)
    a('s_mov_b32 s40, s50')
    t = g.vT
    if matrix != 2:
        a(f's_mov_b32 s45, {L.Q if matrix == 0 else L.K}')
        a(f's_lshl_b32 s46, s40, 7'); a(f's_lshl_b32 s47, s{g.sWM}, 6'); a('s_add_u32 s46, s46, s47'); a('s_lshl_b32 s46, s46, 13'); a('s_add_u32 s45, s45, s46')
        a(f's_lshl_b32 s46, s43, 8'); a('s_add_u32 s45, s45, s46'); a(f's_lshl_b32 s46, s{g.sWN}, 7'); a('s_add_u32 s45, s45, s46')
        epi_T_bf16(a, [[g.ACC, g.ACC+16], [g.ACC+32, g.ACC+48]], 8192, 45, epi=GM.BTMP)
    else:
        a(f'v_bfe_u32 v{t}, v0, 4, 1'); a(f'v_lshlrev_b32 v{t}, 10, v{t}'); a(f'v_and_b32 v{t+1}, 15, v0'); a(f'v_lshlrev_b32 v{t+1}, 4, v{t+1}'); a(f'v_add_u32 v{t}, v{t}, v{t+1}')
        a(f'v_lshrrev_b32 v{t+1}, 5, v0'); a(f'v_lshlrev_b32 v{t+1}, 9, v{t+1}'); a(f'v_add_u32 v{t}, v{t}, v{t+1}')
        a(f's_lshl_b32 s45, s40, 2'); a(f's_lshl_b32 s46, s{g.sWM}, 1'); a('s_add_u32 s45, s45, s46'); a('s_lshl_b32 s45, s45, 18')
        a(f's_lshl_b32 s46, s43, 13'); a('s_add_u32 s45, s45, s46'); a(f's_lshl_b32 s46, s{g.sWN}, 12'); a('s_add_u32 s45, s45, s46'); a(f's_add_u32 s45, s45, {L.VT}')
        for rt in range(2):
            for ct in range(2):
                acc = g.ACC + (rt*2+ct)*16; dst = g.FA + ((rt*2+ct) & 1) * 8
                for i in range(8): a(f'v_cvt_pk_bf16_f32 v{dst+i}, v{acc+2*i}, v{acc+2*i+1}')
                a(f's_add_u32 s47, s45, {rt*262144 + ct*2048}')
                a(f'buffer_store_dwordx4 v[{dst}:{dst+3}], v{t}, {WS}, s47 offen {SC}')
                a(f'buffer_store_dwordx4 v[{dst+4}:{dst+7}], v{t}, {WS}, s47 offen offset:256 {SC}')
    GM.stat_pre(a, 10, 1280, 4, 8)
    ctr_addr(a, 49, L.C_Q if matrix == 0 else L.C_KV, 40)
    signal(a, off_sreg=49, younger=16)
    a('s_add_u32 s40, s40, 2')
    a('s_cmp_lt_u32 s40, 16'); a(f's_cbranch_scc1 {lp}')
    a('s_waitcnt vmcnt(0)')
    a('s_barrier')
    GM.set_rt(1)

def task_attn(a, fail):
    tid(a)
    a(f's_lshr_b32 s48, s{sB}, 1'); ctr_addr(a, 49, L.C_Q, 48); wait_ctr(a, 49, 32, fail)
    Wd = WS
    a('v_lshrrev_b32 v1, 6, v0'); a('v_readfirstlane_b32 s8, v1'); a('v_and_b32 v0, 63, v0')
    a(f's_lshl_b32 s10, s{sB}, 1'); a(f's_lshr_b32 s9, s{sSub}, 3'); a('s_add_u32 s10, s10, s9')
    a(f's_and_b32 s11, s{sSub}, 7'); a('s_lshl_b32 s11, s11, 2'); a('s_add_u32 s11, s11, s8')
    a('v_and_b32 v6, 15, v0'); a('v_lshlrev_b32 v1, 13, v6'); a('v_lshrrev_b32 v7, 4, v0'); a('v_lshlrev_b32 v8, 4, v7'); a('v_add_u32 v1, v1, v8')
    a('v_bfe_u32 v2, v0, 2, 1'); a('v_lshlrev_b32 v2, 4, v2'); a('v_bfe_u32 v9, v0, 3, 1'); a('v_lshlrev_b32 v9, 2, v9'); a('v_add_u32 v2, v2, v9')
    a('v_and_b32 v9, 3, v0'); a('v_add_u32 v2, v2, v9'); a('v_lshlrev_b32 v2, 13, v2'); a('v_add_u32 v2, v2, v8')
    a('v_lshlrev_b32 v3, 4, v0'); a('v_lshlrev_b32 v4, 3, v0')
    a('v_lshlrev_b32 v5, 13, v6'); a('v_bfe_u32 v9, v0, 4, 1'); a('v_lshlrev_b32 v9, 5, v9'); a('v_add_u32 v5, v5, v9'); a('v_lshrrev_b32 v9, 5, v0'); a('v_lshlrev_b32 v9, 4, v9'); a('v_add_u32 v5, v5, v9')
    a('v_and_b32 v9, 1, v7'); a('v_lshlrev_b32 v9, 4, v9'); a('v_lshrrev_b32 v10, 1, v7'); a('v_lshlrev_b32 v10, 2, v10'); a('v_add_u32 v9, v9, v10'); a('v_sub_u32 v10, v6, v9')
    a('s_lshl_b32 s12, s10, 18'); a('s_lshl_b32 s13, s11, 8'); a('s_add_u32 s12, s12, s13')
    a(f's_add_u32 s14, s12, {L.Q}'); a(f's_add_u32 s15, s12, {L.K}'); a(f's_add_u32 s16, s12, {L.O}')
    a('s_lshl_b32 s17, s10, 5'); a('s_add_u32 s17, s17, s11')
    a('s_lshl_b32 s18, s17, 12'); a(f's_add_u32 s18, s18, {L.KM}')
    a('s_lshl_b32 s19, s17, 13'); a(f's_add_u32 s19, s19, {L.VT}')
    a('s_lshl_b32 s20, s17, 11'); a(f's_add_u32 s20, s20, {L.VM}')
    a(f's_mov_b32 s21, {hex(f32bits(C_SCALE))}')
    QF = 16; KX = 48; KMf = 80; S = 96; VT = 120; VMf = 152; P = 160; O = 176
    for qt in range(2):
        a(f's_add_u32 s22, s14, {qt*16*8192}')
        for kp in range(4): a(f'buffer_load_dwordx4 v[{QF+(qt*4+kp)*4}:{QF+(qt*4+kp)*4+3}], v1, {Wd}, s22 offen offset:{kp*64}')
    for kt in range(2):
        a(f's_add_u32 s22, s15, {kt*8*8192}')
        for kp in range(4): a(f'buffer_load_dwordx4 v[{KX+(kt*4+kp)*4}:{KX+(kt*4+kp)*4+3}], v2, {Wd}, s22 offen offset:{kp*64}')
    for et in range(8):
        a(f's_add_u32 s22, s19, {(et>>2)*4096}')
        a(f'buffer_load_dwordx4 v[{VT+et*4}:{VT+et*4+3}], v3, {Wd}, s22 offen offset:{(et&3)*1024}')
    pw = a.newlabel('pw'); pk_ = a.newlabel('pwok')
    a('s_add_u32 s23, s10, 2'); a('s_min_u32 s23, s23, 64'); a(f's_mov_b32 s22, {L.PROG}'); a('v_mov_b32 v11, 0')
    a.label(pw)
    a(f'buffer_load_dword v12, v11, {Wd}, s22 offen sc1')
    a('s_waitcnt vmcnt(0)')
    a('v_readfirstlane_b32 s56, v12')
    a('s_cmp_ge_u32 s56, s23'); a(f's_cbranch_scc1 {pk_}')
    a(f's_add_u32 s{sSpin}, s{sSpin}, 1'); a(f's_cmp_gt_u32 s{sSpin}, {SPIN_MAX}'); a(f's_cbranch_scc1 {fail}')
    nap(a, 2)
    a(f's_branch {pw}')
    a.label(pk_)
    lp = a.newlabel('atp'); ok = a.newlabel('atok')
    a.label(lp)
    for kp in range(4): a(f'buffer_load_dwordx4 v[{KMf+kp*4}:{KMf+kp*4+3}], v3, {Wd}, s18 offen offset:{kp*1024} sc1')
    for p in range(4): a(f'buffer_load_dwordx2 v[{VMf+2*p}:{VMf+2*p+1}], v4, {Wd}, s20 offen offset:{p*512} sc1')
    a('s_waitcnt vmcnt(0)')
    CH.maxchain(a, 11, list(range(KMf, KMf+16)) + list(range(VMf, VMf+8)))
    a('v_cmp_eq_u32 vcc, -1, v11'); a(f's_cbranch_vccz {ok}')
    a(f's_add_u32 s{sSpin}, s{sSpin}, 1'); a(f's_cmp_gt_u32 s{sSpin}, {SPIN_MAX}'); a(f's_cbranch_scc1 {fail}')
    nap(a, 2)
    a(f's_branch {lp}')
    a.label(ok)
    Sreg = lambda kt, qt: S + (kt*2+qt)*4
    for kp in range(4):
        for qt in range(2):
            B = f'v[{QF+(qt*4+kp)*4}:{QF+(qt*4+kp)*4+3}]'
            for kt in range(3):
                A = f'v[{KMf+kp*4}:{KMf+kp*4+3}]' if kt == 0 else f'v[{KX+((kt-1)*4+kp)*4}:{KX+((kt-1)*4+kp)*4+3}]'
                d = Sreg(kt, qt); c = '0' if kp == 0 else f'v[{d}:{d+3}]'
                a(f'{MF32} v[{d}:{d+3}], {A}, {B}, {c}')
    a('v_mov_b32 v11, 0xff800000')
    for qt in range(2):
        for kt in (1, 2):
            for r in range(4):
                cst = 8*(kt-1) + r - 16*qt
                reg = Sreg(kt, qt) + r
                a(f'v_cmp_le_i32 vcc, {cst}, v10')
                a(f'v_cndmask_b32 v{reg}, v11, v{reg}, vcc')
        m = 12; t2 = 13
        s0 = Sreg(0, qt); s1 = Sreg(1, qt); s2 = Sreg(2, qt)
        a(f'v_max3_f32 v{m}, v{s0}, v{s0+1}, v{s1}'); a(f'v_max3_f32 v{m}, v{m}, v{s1+1}, v{s1+2}'); a(f'v_max3_f32 v{m}, v{m}, v{s1+3}, v{s2}')
        a(f'v_max3_f32 v{m}, v{m}, v{s2+1}, v{s2+2}'); a(f'v_max_f32 v{m}, v{m}, v{s2+3}')
        a(f'v_mov_b32 v{t2}, v{m}'); a(f'v_permlane32_swap_b32 v{m}, v{t2}'); a(f'v_max_f32 v{m}, v{m}, v{t2}')
        a(f'v_mov_b32 v{t2}, v{m}'); a(f'v_permlane16_swap_b32 v{m}, v{t2}'); a(f'v_max_f32 v{m}, v{m}, v{t2}')
        a(f'v_mul_f32 v{m}, s21, v{m}')
        vals = [s0, s0+1] + [s1+i for i in range(4)] + [s2+i for i in range(4)]
        for r in vals: a(f'v_fma_f32 v{r}, v{r}, s21, -v{m}')
        for r in vals: a(f'v_exp_f32 v{r}, v{r}')
        pb = P + qt*8
        a(f'v_cvt_pk_bf16_f32 v{pb}, v{s1}, v{s1+1}'); a(f'v_cvt_pk_bf16_f32 v{pb+1}, v{s1+2}, v{s1+3}')
        a(f'v_cvt_pk_bf16_f32 v{pb+2}, v{s2}, v{s2+1}'); a(f'v_cvt_pk_bf16_f32 v{pb+3}, v{s2+2}, v{s2+3}')
        a(f'v_cvt_pk_bf16_f32 v{pb+4}, v{s0}, v{s0+1}'); a(f'v_mov_b32 v{pb+5}, 0'); a(f'v_mov_b32 v{pb+6}, 0'); a(f'v_mov_b32 v{pb+7}, v{pb+4}')
        l = 14 + qt
        a(f'v_add_f32 v{l}, v{vals[0]}, v{vals[1]}')
        for r in vals[2:]: a(f'v_add_f32 v{l}, v{l}, v{r}')
        a(f'v_mov_b32 v{t2}, v{l}'); a(f'v_permlane32_swap_b32 v{l}, v{t2}'); a(f'v_add_f32 v{l}, v{l}, v{t2}')
        a(f'v_mov_b32 v{t2}, v{l}'); a(f'v_permlane16_swap_b32 v{l}, v{t2}'); a(f'v_add_f32 v{l}, v{l}, v{t2}')
        a(f'v_rcp_f32 v{l}, v{l}')
    Oreg = lambda et, qt: O + (qt*8+et)*4
    for qt in range(2):
        pb = P + qt*8
        for et in range(8):
            o = Oreg(et, qt)
            a(f'{MF32} v[{o}:{o+3}], v[{VT+et*4}:{VT+et*4+3}], v[{pb}:{pb+3}], 0')
        for et in range(8):
            o = Oreg(et, qt); p = et >> 1
            b = f'v[{pb+6}:{pb+7}]' if et & 1 else f'v[{pb+4}:{pb+5}]'
            a(f'{MF16} v[{o}:{o+3}], v[{VMf+2*p}:{VMf+2*p+1}], {b}, v[{o}:{o+3}]')
    a('s_lshl_b32 s22, s8, 13'); a(f's_add_u32 s22, s22, {EPI}')
    a('v_lshlrev_b32 v1, 8, v6'); a('v_add_u32 v1, s22, v1')
    a('v_bfe_u32 v2, v0, 4, 1'); a('v_lshlrev_b32 v2, 1, v2'); a('v_lshrrev_b32 v3, 5, v0'); a('v_add_u32 v2, v2, v3')
    a('v_and_b32 v3, 7, v0')
    for qt in range(2):
        l = 14 + qt
        for ep in range(4):
            e0 = Oreg(2*ep, qt); e1 = Oreg(2*ep+1, qt); d = QF + (ep & 1) * 4
            for r in range(4):
                a(f'v_mul_f32 v{e0+r}, v{e0+r}, v{l}'); a(f'v_mul_f32 v{e1+r}, v{e1+r}, v{l}')
            a(f'v_cvt_pk_bf16_f32 v{d}, v{e0}, v{e0+1}'); a(f'v_cvt_pk_bf16_f32 v{d+1}, v{e0+2}, v{e0+3}')
            a(f'v_cvt_pk_bf16_f32 v{d+2}, v{e1}, v{e1+1}'); a(f'v_cvt_pk_bf16_f32 v{d+3}, v{e1+2}, v{e1+3}')
            a(f'v_permlane16_swap_b32 v{d}, v{d+2}'); a(f'v_permlane16_swap_b32 v{d+1}, v{d+3}')
            a(f'v_add_u32 v4, {4*ep}, v2'); a('v_xor_b32 v4, v4, v3'); a('v_lshlrev_b32 v4, 4, v4'); a('v_add_u32 v4, v4, v1')
            a(f'ds_write_b128 v4, v[{d}:{d+3}] offset:{qt*4096}')
    a('v_lshrrev_b32 v7, 4, v0'); a('v_xor_b32 v2, v6, v7'); a('v_xor_b32 v3, 4, v2')
    a('v_lshlrev_b32 v2, 4, v2'); a('v_lshlrev_b32 v3, 4, v3'); a('v_lshlrev_b32 v4, 8, v7'); a('v_add_u32 v4, s22, v4'); a('v_add_u32 v2, v2, v4'); a('v_add_u32 v3, v3, v4')
    a('v_lshlrev_b32 v5, 13, v7'); a('v_lshlrev_b32 v4, 4, v6'); a('v_add_u32 v5, v5, v4')
    a('s_waitcnt lgkmcnt(0)')
    for i in range(8): a(f'ds_read_b128 v[{KX+4*i}:{KX+4*i+3}], v{2 if i % 2 == 0 else 3} offset:{i*1024}')
    for i in range(8):
        a(f's_waitcnt lgkmcnt({7-i})')
        a(f's_add_u32 s22, s16, {i*4*8192}')
        a(f'buffer_store_dwordx4 v[{KX+4*i}:{KX+4*i+3}], v5, {Wd}, s22 offen {SC}')
    ctr_addr(a, 49, L.C_AT, sB); signal(a, off_sreg=49)

def part_store(a, base, ks_reg, m_reg, n_reg, epi=None, RT=2):
    g = G
    a(f's_mul_i32 s45, s{ks_reg}, {2048*640*4}'); a(f's_add_u32 s45, s45, {base}')
    a(f's_lshl_b32 s46, s{m_reg}, {6 + RT - 1}'); a(f's_lshl_b32 s47, s{g.sWM}, {5 + RT - 1}'); a('s_add_u32 s46, s46, s47'); a('s_mul_i32 s46, s46, 2560'); a('s_add_u32 s45, s45, s46')
    a(f's_lshl_b32 s46, s{n_reg}, 9'); a('s_add_u32 s45, s45, s46'); a(f's_lshl_b32 s46, s{g.sWN}, 8'); a('s_add_u32 s45, s45, s46')
    epi_T_f32(a, 2560, 45, epi, RT)

def task_wo(a, fail):
    g = G
    ctr_addr(a, 49, L.C_AT, sB); wait_ctr(a, 49, 32, fail)
    load_ptr(a, g.SB, 'Wo', 4096*640*2)
    a(f's_and_b32 s42, s{sSub}, {WOS-1}'); a(f's_lshr_b32 s41, s{sSub}, {WOS.bit_length()-1}')
    gemm_common(a, 8192, 1280)
    KS = 4096 // WOS
    a(f's_lshl_b32 s{g.sT0}, s{sB}, 7'); a(f's_lshl_b32 s{g.sT1}, s{g.sW}, 5'); a(f's_add_u32 s{g.sT0}, s{g.sT0}, s{g.sT1}')
    a(f's_lshl_b32 s{g.sAoff}, s{g.sT0}, 13'); a(f's_add_u32 s{g.sAoff}, s{g.sAoff}, {L.O}')
    a(f's_mul_i32 s{g.sT1}, s42, {KS*2}'); a(f's_add_u32 s{g.sAoff}, s{g.sAoff}, s{g.sT1}')
    a(f's_mul_i32 s{g.sBoff}, s42, {KS*1280}'); a(f's_lshl_b32 s{g.sT1}, s41, 8'); a(f's_add_u32 s{g.sBoff}, s{g.sBoff}, s{g.sT1}')
    a(f's_mul_i32 s{g.sT1}, s{g.sW}, {16*1280}'); a(f's_add_u32 s{g.sBoff}, s{g.sBoff}, s{g.sT1}')
    a('s_waitcnt lgkmcnt(0)')
    a('s_barrier')
    GM.mainloop(a, KS // 64, 8192, 1280, 'T')
    part_store(a, L.PART, 42, sB, 41)
    ctr_addr(a, 49, L.C_WO, sB); signal(a, off_sreg=49)

def rows16_setup(a):
    tid(a)
    a('v_lshrrev_b32 v1, 6, v0'); a('v_and_b32 v0, 63, v0')
    a(f's_lshl_b32 s41, s{sB}, 6'); a(f's_lshl_b32 s42, s{sSub}, 2'); a('s_add_u32 s41, s41, s42'); a('v_add_u32 v1, s41, v1')
    a('v_mul_u32_u24 v1, 1280, v1'); a('v_lshlrev_b32 v5, 2, v0'); a('v_add_u32 v1, v1, v5')
    a('v_lshlrev_b32 v6, 1, v1')

def wave_reduce(a, v, t):
    for sh in (8, 4, 2, 1):
        a(f'v_add_f32_dpp v{v}, v{v}, v{v} row_ror:{sh} row_mask:0xf bank_mask:0xf')
    a(f'v_mov_b32 v{t}, v{v}'); a(f'v_permlane16_swap_b32 v{v}, v{t}'); a(f'v_add_f32 v{v}, v{v}, v{t}')
    a(f'v_mov_b32 v{t}, v{v}'); a(f'v_permlane32_swap_b32 v{v}, v{t}'); a(f'v_add_f32 v{v}, v{v}, v{t}')

def ln_row(a, X, out_pack):
    a(f'v_add_f32 v2, v{X}, v{X+1}')
    for i in range(2, 10): a(f'v_add_f32 v2, v2, v{X+i}')
    wave_reduce(a, 2, 3)
    a(f'v_mul_f32 v2, {hex(f32bits(1.0/640))}, v2')
    for i in range(10): a(f'v_sub_f32 v{X+i}, v{X+i}, v2')
    a(f'v_mul_f32 v3, v{X}, v{X}')
    for i in range(1, 10): a(f'v_fmac_f32 v3, v{X+i}, v{X+i}')
    wave_reduce(a, 3, 4)
    a(f'v_mov_b32 v4, {hex(f32bits(1e-5))}')
    a(f'v_mul_f32 v3, {hex(f32bits(1.0/640))}, v3'); a('v_add_f32 v3, v3, v4'); a('v_rsq_f32 v3, v3')
    for i in range(10): a(f'v_mul_f32 v{X+i}, v{X+i}, v3')
    for i in range(5): a(f'v_cvt_pk_bf16_f32 v{out_pack+i}, v{X+2*i}, v{X+2*i+1}')

def task_ln2(a, fail):
    ctr_addr(a, 49, L.C_WO, sB); wait_ctr(a, 49, 5*WOS, fail)
    load_ptr(a, 8, 'x', 2048*640*2)
    rows16_setup(a)
    a('s_waitcnt lgkmcnt(0)')
    X = 32; PB = 48
    for c in range(5): a(f'buffer_load_dword v{8+c}, v1, s[8:11], 0 offen offset:{c*256}')
    for sp in range(WOS):
        a(f's_mov_b32 s41, {L.PART + sp*2048*640*4}')
        for c in range(5):
            b = PB + sp*10 + c*2
            a(f'buffer_load_dwordx2 v[{b}:{b+1}], v6, {WS}, s41 offen offset:{c*512}')
    a(f's_waitcnt vmcnt({5*WOS})')
    unpack(a, 8, X, 5)
    for sp in range(WOS):
        a(f's_waitcnt vmcnt({5*(WOS-1-sp)})')
        for i in range(10): a(f'v_add_f32 v{X+i}, v{X+i}, v{PB+sp*10+i}')
    a(f's_mov_b32 s41, {L.H}')
    for c in range(5): a(f'buffer_store_dwordx2 v[{X+2*c}:{X+2*c+1}], v6, {WS}, s41 offen offset:{c*512} {SC}')
    for i in range(10): a(f'v_mov_b32 v{PB+i}, v{X+i}')
    ln_row(a, PB, 8)
    a(f's_mov_b32 s41, {L.HN}')
    for c in range(5): a(f'buffer_store_dword v{8+c}, v1, {WS}, s41 offen offset:{c*256} {SC}')
    ctr_addr(a, 49, L.C_LN2, sB); signal(a, off_sreg=49)

def up_epilogue(a):
    g = G; t = g.vT
    a('s_barrier')
    a(f's_mov_b32 s48, {hex(f32bits(-1.4426950408889634))}')
    a(f'v_and_b32 v{t}, 31, v0'); a(f's_lshl_b32 s46, s{g.sWM}, 5'); a(f'v_add_u32 v{t+1}, s46, v{t}'); a(f'v_lshlrev_b32 v{t+1}, 7, v{t+1}')
    a(f'v_and_b32 v{t+6}, 7, v0'); a(f'v_lshrrev_b32 v{t+7}, 5, v0'); a(f's_lshl_b32 s47, s{g.sWN}, 2'); a(f'v_add_u32 v{t+7}, s47, v{t+7}')
    ag = g.ACC; au = g.ACC + 16
    for i in range(16):
        x = t + 2 + (i & 3)
        a(f'v_mul_f32 v{x}, s48, v{ag+i}'); a(f'v_exp_f32 v{x}, v{x}'); a(f'v_add_f32 v{x}, 1.0, v{x}'); a(f'v_rcp_f32 v{x}, v{x}')
        a(f'v_mul_f32 v{ag+i}, v{ag+i}, v{x}'); a(f'v_mul_f32 v{ag+i}, v{ag+i}, v{au+i}')
    dst = g.FA
    pack_T(a, ag, dst)
    for kk in range(2):
        a(f'v_add_u32 v{t+8}, {2*kk}, v{t+7}'); a(f'v_xor_b32 v{t+8}, v{t+8}, v{t+6}'); a(f'v_lshlrev_b32 v{t+8}, 4, v{t+8}'); a(f'v_add_u32 v{t+8}, v{t+8}, v{t+1}')
        a(f'ds_write_b128 v{t+8}, v[{dst+4*kk}:{dst+4*kk+3}]')
    a('s_waitcnt lgkmcnt(0)'); a('s_barrier')
    a(f'v_lshrrev_b32 v{t}, 3, v0'); a(f'v_and_b32 v{t+2}, 7, v0'); a(f'v_xor_b32 v{t+3}, v{t+2}, v{t}'); a(f'v_lshlrev_b32 v{t+3}, 4, v{t+3}')
    a(f'v_lshlrev_b32 v{t+4}, 7, v{t}'); a(f'v_add_u32 v{t+3}, v{t+3}, v{t+4}'); a(f's_lshl_b32 s46, s{g.sW}, 11'); a(f'v_add_u32 v{t+3}, s46, v{t+3}')
    a(f's_mov_b32 s47, 3456'); a(f'v_mul_lo_u32 v{t}, v{t}, s47'); a(f'v_lshlrev_b32 v{t+2}, 4, v{t+2}'); a(f'v_add_u32 v{t}, v{t}, v{t+2}')
    a(f's_lshl_b32 s46, s{sB}, 6'); a(f's_lshl_b32 s47, s{g.sW}, 4'); a('s_add_u32 s46, s46, s47'); a('s_mul_i32 s45, s46, 3456'); a(f's_add_u32 s45, s45, {L.ACT}')
    a(f's_lshl_b32 s46, s{sSub}, 7'); a('s_add_u32 s45, s45, s46')
    for i in range(2): a(f'ds_read_b128 v[{g.FA+4*i}:{g.FA+4*i+3}], v{t+3} offset:{i*1024}')
    for i in range(2):
        a(f's_waitcnt lgkmcnt({1-i})')
        a(f's_add_u32 s47, s45, {i*8*3456}')
        a(f'buffer_store_dwordx4 v[{g.FA+4*i}:{g.FA+4*i+3}], v{t}, {WS}, s47 offen {SC}')

def task_up(a, fail):
    g = G
    ctr_addr(a, 49, L.C_LN2, sB); wait_ctr(a, 49, 32, fail)
    load_ptr(a, g.SB, 'Wg', 640*1728*2); load_ptr(a, g.SB2, 'Wu', 640*1728*2)
    gemm_common(a, 1280, 3456, splitB=True)
    a(f's_lshl_b32 s{g.sT0}, s{sB}, 7'); a(f's_lshl_b32 s{g.sT1}, s{g.sW}, 5'); a(f's_add_u32 s{g.sT0}, s{g.sT0}, s{g.sT1}')
    a(f's_mul_i32 s{g.sAoff}, s{g.sT0}, 1280'); a(f's_add_u32 s{g.sAoff}, s{g.sAoff}, {L.HN}')
    a(f's_lshl_b32 s{g.sBoff}, s{sSub}, 7'); a(f's_mul_i32 s{g.sT1}, s{g.sW}, {16*3456}'); a(f's_add_u32 s{g.sBoff}, s{g.sBoff}, s{g.sT1}')
    a('s_waitcnt lgkmcnt(0)')
    a('s_barrier')
    GM.mainloop(a, 10, 1280, 3456, 'T', splitB=True)
    t = g.vT
    up_epilogue(a)
    ctr_addr(a, 49, L.C_UP, sB); signal(a, off_sreg=49)

def task_down(a, fail):
    g = G
    ctr_addr(a, 49, L.C_UP, sB); wait_ctr(a, 49, 27, fail)
    load_ptr(a, g.SB, 'Wd', 1728*640*2)
    a(f's_mul_i32 s41, s{sSub}, 43691'); a('s_lshr_b32 s41, s41, 17'); a('s_mul_i32 s42, s41, 3'); a(f's_sub_u32 s42, s{sSub}, s42')
    gemm_common(a, 3456, 1280)
    KS = 1728 // DNS
    a(f's_lshl_b32 s{g.sT0}, s{sB}, 7'); a(f's_lshl_b32 s{g.sT1}, s{g.sW}, 5'); a(f's_add_u32 s{g.sT0}, s{g.sT0}, s{g.sT1}')
    a(f's_mul_i32 s{g.sAoff}, s{g.sT0}, 3456'); a(f's_add_u32 s{g.sAoff}, s{g.sAoff}, {L.ACT}')
    a(f's_mul_i32 s{g.sT1}, s42, {KS*2}'); a(f's_add_u32 s{g.sAoff}, s{g.sAoff}, s{g.sT1}')
    a(f's_mul_i32 s{g.sBoff}, s42, {KS*1280}'); a(f's_lshl_b32 s{g.sT1}, s41, 8'); a(f's_add_u32 s{g.sBoff}, s{g.sBoff}, s{g.sT1}')
    a(f's_mul_i32 s{g.sT1}, s{g.sW}, {16*1280}'); a(f's_add_u32 s{g.sBoff}, s{g.sBoff}, s{g.sT1}')
    a('s_waitcnt lgkmcnt(0)')
    a('s_barrier')
    GM.mainloop(a, KS // 64, 3456, 1280, 'T')
    part_store(a, L.PART2, 42, sB, 41)
    ctr_addr(a, 49, L.C_DN, sB); signal(a, off_sreg=49)

def task_fin(a, fail):
    ctr_addr(a, 49, L.C_DN, sB); wait_ctr(a, 49, 5*DNS, fail)
    load_ptr(a, 8, 'out', 2048*640*2)
    rows16_setup(a)
    X = 32; PB = 48
    a(f's_mov_b32 s41, {L.H}')
    for c in range(5): a(f'buffer_load_dwordx2 v[{X+2*c}:{X+2*c+1}], v6, {WS}, s41 offen offset:{c*512}')
    for sp in range(DNS):
        a(f's_mov_b32 s41, {L.PART2 + sp*2048*640*4}')
        for c in range(5):
            b = PB + sp*10 + c*2
            a(f'buffer_load_dwordx2 v[{b}:{b+1}], v6, {WS}, s41 offen offset:{c*512}')
    a('s_waitcnt vmcnt(0) lgkmcnt(0)')
    for sp in range(DNS):
        for i in range(10): a(f'v_add_f32 v{X+i}, v{X+i}, v{PB+sp*10+i}')
    for i in range(5): a(f'v_cvt_pk_bf16_f32 v{8+i}, v{X+2*i}, v{X+2*i+1}')
    for c in range(5): a(f'buffer_store_dword v{8+c}, v1, s[8:11], 0 offen offset:{c*256}')


def s_wo_setup(a):
    g = G
    load_ptr(a, g.SB, 'Wo', 4096*640*2)
    a(f's_and_b32 s42, s{sSub}, {WOS-1}'); a(f's_lshr_b32 s41, s{sSub}, {WOS.bit_length()-1}')
    tid(a); GM.stat_setup(a, 8192, 1280)
    KS = 4096 // WOS
    a(f's_mul_i32 s{g.sBoff}, s42, {KS*1280}'); a(f's_lshl_b32 s{g.sT1}, s41, 8'); a(f's_add_u32 s{g.sBoff}, s{g.sBoff}, s{g.sT1}')
    a(f's_mul_i32 s{g.sT1}, s{g.sW}, {16*1280}'); a(f's_add_u32 s{g.sBoff}, s{g.sBoff}, s{g.sT1}')
    a('s_waitcnt lgkmcnt(0)')
    GM.stat_load_B(a, KS // 64, 1280)
def s_wo(a, fail):
    g = G; KS = 4096 // WOS
    ctr_addr(a, 49, L.C_AT, sB); wait_ctr(a, 49, 16, fail)
    bstamp(a, 5)
    a(f's_lshl_b32 s{g.sT0}, s{sB}, 6'); a(f's_lshl_b32 s{g.sT1}, s{g.sW}, 4'); a(f's_add_u32 s{g.sT0}, s{g.sT0}, s{g.sT1}')
    a(f's_lshl_b32 s{g.sAoff}, s{g.sT0}, 13'); a(f's_add_u32 s{g.sAoff}, s{g.sAoff}, {L.O}')
    a(f's_mul_i32 s{g.sT1}, s42, {KS*2}'); a(f's_add_u32 s{g.sAoff}, s{g.sAoff}, s{g.sT1}')
    GM.stat_mainloop(a, KS // 64, 8192)
    bstamp(a, 6)
    a('s_barrier')
    part_store(a, L.PART, 42, sB, 41, epi=0, RT=1)
    bstamp(a, 7)
    ctr_addr(a, 49, L.C_WO, sB); signal(a, off_sreg=49)
    bstamp(a, 8)

def s_up_setup(a):
    g = G
    load_ptr(a, g.SB, 'Wg', 640*1728*2); load_ptr(a, g.SB2, 'Wu', 640*1728*2)
    tid(a); GM.stat_setup(a, 1280, 3456, splitB=True)
    a(f's_lshl_b32 s{g.sBoff}, s{sSub}, 7'); a(f's_mul_i32 s{g.sT1}, s{g.sW}, {16*3456}'); a(f's_add_u32 s{g.sBoff}, s{g.sBoff}, s{g.sT1}')
    a('s_waitcnt lgkmcnt(0)')
    GM.stat_load_B(a, 10, 3456, splitB=True)
def s_up(a, fail):
    g = G
    ctr_addr(a, 49, L.C_LN2, sB); wait_ctr(a, 49, 16, fail)
    bstamp(a, 5)
    a(f's_lshl_b32 s{g.sT0}, s{sB}, 6'); a(f's_lshl_b32 s{g.sT1}, s{g.sW}, 4'); a(f's_add_u32 s{g.sT0}, s{g.sT0}, s{g.sT1}')
    a(f's_mul_i32 s{g.sAoff}, s{g.sT0}, 1280'); a(f's_add_u32 s{g.sAoff}, s{g.sAoff}, {L.HN}')
    GM.stat_mainloop(a, 10, 1280)
    bstamp(a, 6)
    up_epilogue(a)
    bstamp(a, 7)
    ctr_addr(a, 49, L.C_UP, sB); signal(a, off_sreg=49)
    bstamp(a, 8)

def s_down_setup(a):
    g = G
    load_ptr(a, g.SB, 'Wd', 1728*640*2)
    a(f's_mul_i32 s41, s{sSub}, 43691'); a('s_lshr_b32 s41, s41, 17'); a('s_mul_i32 s42, s41, 3'); a(f's_sub_u32 s42, s{sSub}, s42')
    tid(a); GM.stat_setup(a, 3456, 1280)
    KS = 1728 // DNS
    a(f's_mul_i32 s{g.sBoff}, s42, {KS*1280}'); a(f's_lshl_b32 s{g.sT1}, s41, 8'); a(f's_add_u32 s{g.sBoff}, s{g.sBoff}, s{g.sT1}')
    a(f's_mul_i32 s{g.sT1}, s{g.sW}, {16*1280}'); a(f's_add_u32 s{g.sBoff}, s{g.sBoff}, s{g.sT1}')
    a('s_waitcnt lgkmcnt(0)')
    GM.stat_load_B(a, KS // 64, 1280)
def s_down(a, fail):
    g = G; KS = 1728 // DNS
    ctr_addr(a, 49, L.C_UP, sB); wait_ctr(a, 49, 27, fail)
    bstamp(a, 5)
    a(f's_lshl_b32 s{g.sT0}, s{sB}, 6'); a(f's_lshl_b32 s{g.sT1}, s{g.sW}, 4'); a(f's_add_u32 s{g.sT0}, s{g.sT0}, s{g.sT1}')
    a(f's_mul_i32 s{g.sAoff}, s{g.sT0}, 3456'); a(f's_add_u32 s{g.sAoff}, s{g.sAoff}, {L.ACT}')
    a(f's_mul_i32 s{g.sT1}, s42, {KS*2}'); a(f's_add_u32 s{g.sAoff}, s{g.sAoff}, s{g.sT1}')
    GM.stat_mainloop(a, KS // 64, 3456)
    bstamp(a, 6)
    a('s_barrier')
    part_store(a, L.PART2, 42, sB, 41, epi=0, RT=1)
    bstamp(a, 7)
    ctr_addr(a, 49, L.C_DN, sB); signal(a, off_sreg=49)
    bstamp(a, 8)


def n_down_setup(a):
    g = G
    load_ptr(a, g.SB, 'Wd', 1728*640*2); load_ptr(a, g.SO, 'out', 2048*640*2)
    a('v_mov_b32 v31, v254')
    T.tid = 31; T.a = 29; T.b = 30
    tid(a); GM.narrow_setup(a, 3456, 1280)
    a(f's_lshl_b32 s{g.sBoff}, s{sSub}, 7'); a(f's_mul_i32 s{g.sT1}, s{g.sW}, {16*1280}'); a(f's_add_u32 s{g.sBoff}, s{g.sBoff}, s{g.sT1}')
    a('s_waitcnt lgkmcnt(0)')
    GM.narrow_load_B(a, 27, 1280)
def n_down(a, fail):
    g = G; t = g.vT
    ctr_addr(a, 49, L.C_UP, sB); wait_ctr(a, 49, 27, fail)
    bstamp(a, 5)
    a(f's_lshl_b32 s{g.sT0}, s{sB}, 6'); a(f's_lshl_b32 s{g.sT1}, s{g.sW}, 4'); a(f's_add_u32 s{g.sT0}, s{g.sT0}, s{g.sT1}')
    a(f's_mul_i32 s{g.sAoff}, s{g.sT0}, 3456'); a(f's_add_u32 s{g.sAoff}, s{g.sAoff}, {L.ACT}')
    GM.narrow_mainloop(a, 27, 3456)
    bstamp(a, 6)
    a(f'v_and_b32 v{t}, 31, v0'); a(f'v_mul_u32_u24 v{t+2}, 2560, v{t}'); a(f'v_lshrrev_b32 v{t+1}, 5, v0'); a(f'v_lshlrev_b32 v{t+3}, 4, v{t+1}'); a(f'v_add_u32 v{t+2}, v{t+2}, v{t+3}')
    a(f'v_mul_u32_u24 v{t}, 1280, v{t}'); a(f'v_add_u32 v{t}, v{t}, v{t+3}')
    a(f's_lshl_b32 s46, s{sB}, 6'); a(f's_lshl_b32 s47, s{g.sWM}, 5'); a('s_add_u32 s46, s46, s47')
    a('s_mul_i32 s45, s46, 2560'); a(f's_add_u32 s45, s45, {L.H}'); a(f's_lshl_b32 s47, s{sSub}, 8'); a('s_add_u32 s45, s45, s47'); a(f's_lshl_b32 s47, s{g.sWN}, 7'); a('s_add_u32 s45, s45, s47')
    a('s_mul_i32 s44, s46, 1280'); a(f's_lshl_b32 s47, s{sSub}, 7'); a('s_add_u32 s44, s44, s47'); a(f's_lshl_b32 s47, s{g.sWN}, 6'); a('s_add_u32 s44, s44, s47')
    hb = g.FA
    for q in range(4): a(f'buffer_load_dwordx4 v[{hb+4*q}:{hb+4*q+3}], v{t+2}, {WS}, s45 offen offset:{q*32}')
    a('s_waitcnt vmcnt(0)')
    for i in range(16): a(f'v_add_f32 v{g.ACC+i}, v{g.ACC+i}, v{hb+i}')
    pack_T(a, g.ACC, g.FA + 16)
    d = g.FA + 16
    a(f'buffer_store_dwordx4 v[{d}:{d+3}], v{t}, s[{g.SO}:{g.SO+3}], s44 offen')
    a(f'buffer_store_dwordx4 v[{d+4}:{d+7}], v{t}, s[{g.SO}:{g.SO+3}], s44 offen offset:32')
    bstamp(a, 7)

TASKS = [('attn', 32), ('wo', 5*WOS), ('ln2', 8), ('up', 27), ('down', 5*DNS), ('fin', 8)]
PERB = sum(n for _, n in TASKS)
ROLES = [('attn', 16, 2), ('wo', 40, 1), ('ln2', 16, 1), ('up', 27, 2), ('down', 10, 4)]

WTRACE = False
def wstamp(a, i):
    if not WTRACE: return
    a('s_memrealtime s[58:59]'); a('s_waitcnt lgkmcnt(0)')
    a(f's_lshl_b32 s56, s{sWI}, 6'); a(f's_add_u32 s56, s56, {L.TRACE + 16384 + 4*i}')
    a(f'v_mov_b32 v{T.a}, s58'); a(f'v_mov_b32 v{T.b}, 0')
    a(f'buffer_store_dword v{T.a}, v{T.b}, {WS}, s56 offen')

def bstamp(a, i):
    if not WTRACE: return
    sk = a.newlabel('bs')
    a(f's_cmp_lg_u32 s{sB}, {L.NBLK - 1}'); a(f's_cbranch_scc1 {sk}')
    wstamp(a, i)
    a.label(sk)

def emit_worker(a, fail, end):
    a.label('worker')

    a('v_mov_b32 v254, v0')
    load_ptr(a, 4, 'ws', L.WS_BYTES)
    load_ptr(a, S_DBG, 'dbg', 256)
    a(f's_mov_b32 s{sSpin}, 0')
    a('s_waitcnt lgkmcnt(0)')
    wstamp(a, 0)
    nz = a.newlabel('nz')
    a(f's_cmp_lg_u32 s{sWI}, 0'); a(f's_cbranch_scc1 {nz}')
    a('v_lshlrev_b32 v1, 4, v0'); a('v_mov_b64 v[4:5], 0'); a('v_mov_b64 v[6:7], 0')
    for i in range(8):
        a(f's_mov_b32 s41, {L.SYNC + i*4096}')
        a(f'buffer_store_dwordx4 v[4:7], v1, {WS}, s41 offen sc1')
    signal(a, off_imm=12, dbg=True)
    a.label(nz)
    nl = a.newlabel('nl'); nf = a.newlabel('nf')
    a(f's_cmp_ge_u32 s{sWI}, 128'); a(f's_cbranch_scc1 {nl}')
    a(f's_mov_b32 s40, s{sWI}')
    task_ln1(a)
    a('s_waitcnt vmcnt(0)'); a('s_barrier')
    sk = a.newlabel('l1s')
    a('v_cmp_eq_u32 vcc, 0, v254'); a('s_and_saveexec_b64 s[56:57], vcc'); a(f's_cbranch_execz {sk}')
    a(f's_lshr_b32 s41, s{sWI}, 3'); a('s_lshl_b32 s41, s41, 2'); a('s_add_u32 s41, s41, 128')
    a('v_mov_b32 v250, 1'); a('v_mov_b32 v251, 0')
    a(f'buffer_atomic_add v250, v251, {DBG}, s41 offen')
    a.label(sk)
    a('s_mov_b64 exec, s[56:57]')
    a(f's_branch {nf}')
    a.label(nl)
    a('v_lshlrev_b32 v1, 4, v254'); a('v_mov_b64 v[4:5], -1'); a('v_mov_b64 v[6:7], -1')
    for base, total in ((L.P1, 2*L.P1SZ), (L.MEMF, 2*L.MEMSZ), (L.MEMX, 64*L.MEMSZ), (L.VM, 64*32*2048), (L.KM, 64*32*4096)):
        nchunk = total // 4096
        lp_ = a.newlabel('fl'); dn_ = a.newlabel('fd')
        a(f's_sub_u32 s40, s{sWI}, 128')
        a.label(lp_)
        a(f's_cmp_ge_u32 s40, {nchunk}'); a(f's_cbranch_scc1 {dn_}')
        a('s_lshl_b32 s41, s40, 12'); a(f's_add_u32 s41, s41, {base}')
        a(f'buffer_store_dwordx4 v[4:7], v1, {WS}, s41 offen sc1')
        a('s_add_u32 s40, s40, 64'); a(f's_branch {lp_}')
        a.label(dn_)
    signal(a, off_imm=16, dbg=True)
    a.label(nf)
    lp = a.newlabel('l1w'); ok = a.newlabel('l1ok')
    a('v_mov_b32 v251, 0')
    a.label(lp)
    a(f'buffer_load_dword v248, v251, {DBG}, 0 offen offset:12 sc1')
    a('s_waitcnt vmcnt(0)')
    a('v_readfirstlane_b32 s57, v248')
    a('s_cmp_ge_u32 s57, 1'); a(f's_cbranch_scc1 {ok}')
    a(f's_add_u32 s{sSpin}, s{sSpin}, 1'); a(f's_cmp_gt_u32 s{sSpin}, {SPIN_MAX}'); a(f's_cbranch_scc1 {fail}')
    a('s_sleep 4')
    a(f's_branch {lp}')
    a.label(ok)
    wstamp(a, 1)
    a(f's_cmp_ge_u32 s{sWI}, 96'); a('s_cselect_b32 s40, 1, 0'); a('s_cselect_b32 s41, 96, 0'); a(f's_sub_u32 s41, s{sWI}, s41')
    a('s_and_b32 s43, s41, 31'); a('s_lshr_b32 s44, s41, 5')
    qv = a.newlabel('qv'); qq = a.newlabel('qq'); qd = a.newlabel('qd')
    a('s_cmp_eq_u32 s44, 1'); a(f's_cbranch_scc1 {qv}')
    a('s_cmp_eq_u32 s44, 2'); a(f's_cbranch_scc1 {qq}')
    qkv_stat(a, 1, fail); a(f's_branch {qd}')
    a.label(qv); qkv_stat(a, 2, fail); a(f's_branch {qd}')
    a.label(qq); qkv_stat(a, 0, fail)
    a.label(qd)
    wstamp(a, 2)
    wstamp(a, 3)
    lp = a.newlabel('rzw'); ok = a.newlabel('rzok')
    a('v_mov_b32 v251, 0')
    a.label(lp)
    a(f'buffer_load_dword v248, v251, {DBG}, 0 offen offset:16 sc1')
    a('s_waitcnt vmcnt(0)')
    a('v_readfirstlane_b32 s56, v248')
    a('s_cmp_ge_u32 s56, 64'); a(f's_cbranch_scc1 {ok}')
    a(f's_add_u32 s{sSpin}, s{sSpin}, 1'); a(f's_cmp_gt_u32 s{sSpin}, {SPIN_MAX}'); a(f's_cbranch_scc1 {fail}')
    a('s_sleep 8')
    a(f's_branch {lp}')
    a.label(ok)
    fns = dict(attn=task_attn, wo=s_wo, ln2=task_ln2, up=s_up, down=n_down, fin=task_fin)
    setups = dict(wo=s_wo_setup, up=s_up_setup, down=n_down_setup)
    a(f's_mov_b32 s{sSub}, s{sWI}')
    for name, n, copies in ROLES:
        sk = a.newlabel('rk')
        a(f's_cmp_ge_u32 s{sSub}, {n*copies}'); a(f's_cbranch_scc1 {sk}')
        a(f's_mov_b32 s{sB}, 0')
        for c in range(1, copies):
            a(f's_cmp_ge_u32 s{sSub}, {n}'); a(f's_cselect_b32 s56, {n}, 0'); a(f's_cselect_b32 s57, 1, 0')
            a(f's_sub_u32 s{sSub}, s{sSub}, s56'); a(f's_add_u32 s{sB}, s{sB}, s57')
        a(f's_mov_b32 s62, s{sSub}')
        if name in setups: setups[name](a)
        lp = a.newlabel('rlp')
        a.label(lp)
        a(f's_mov_b32 s{sSub}, s62')
        fns[name](a, fail)
        a('s_barrier')
        a(f's_add_u32 s{sB}, s{sB}, {copies}')
        a(f's_cmp_lt_u32 s{sB}, {L.NBLK}'); a(f's_cbranch_scc1 {lp}')
        a('s_branch post_done')
        T.tid = 254; T.a = 250; T.b = 251
        a.label(sk)
        a(f's_sub_u32 s{sSub}, s{sSub}, {n*copies}')
    a.label('post_done')
    wstamp(a, 4)
    a('s_endpgm')

def emit_fused(a, kname):
    fail = 'fz_fail'; end = 'fz_end'
    a.label(kname)
    a(f's_cmp_ge_u32 s2, 256'); a(f's_cbranch_scc1 {end}')
    CH.decode_role(a, 'worker')
    CH.emit_chain_body(a, fail, end, CH.Stamps(True) if STAMP else None)
    emit_worker(a, fail, end)
    a.label(fail)
    a(f's_load_dwordx2 s[8:9], s[0:1], {L.KA["dbg"]}'); a('s_mov_b32 s10, 256'); a('s_mov_b32 s11, 0x00020000')
    a('s_waitcnt lgkmcnt(0)')
    a('v_mov_b32 v1, 0xdead'); a('v_mov_b32 v2, 124')
    a(f'buffer_store_dword v1, v2, s[8:11], 0 offen')
    a('s_waitcnt vmcnt(0)')
    a.label(end)
    a('s_endpgm')
```

```python
from asmlib import Asm
import layout as L
import struct

KVB = 0
AFR = 32768
QKX = 45056
OFR = 53248
SEL = 55296
WL  = 65536
GSLEEP = int(__import__('os').environ.get('GSLEEP', 4))
LDS_BYTES = 163840
SPIN_MAX = 1 << 22
OSLEEP = int(__import__('os').environ.get('OSLEEP', 4))
HSLEEP = int(__import__('os').environ.get('HSLEEP', 24))
TRACE = L.TRACE
COARSE = True

S_WS = 4; S_T0 = 8; S_DBG = 12; S_T1 = 20; S_T2 = 24
sH = 16; sW = 17; sS = 18; sSpin = 19
sRdy = 39; sKVr = 32; sP1c = 33; sP1b = 34; sKVw = 35; sPubF = 36; sPubX = 37; sOwnO = 38
sMaskH = 40; sMaskLo = 42; sC = 44
sP1w = 45; sP1r = 46; sMr = 47; sMw = 48; sMz = 49; sTmp = 50; sTmp2 = 51; sTmp3 = 52; sOwn = 53; sKV = 54; sVMo = 55; sKMo = 56
sM2 = 57; sKsrc = 58; sVsrc = 59; sFast = 60; sThr = 61
sT = 64
W = f's[{S_WS}:{S_WS+3}]'
MH = f's[{sMaskH}:{sMaskH+1}]'; ML = f's[{sMaskLo}:{sMaskLo+1}]'
SM = 'v_smfmac_f32_16x16x64_bf16'
MF32 = 'v_mfma_f32_16x16x32_bf16'
MF16 = 'v_mfma_f32_16x16x16_bf16'

def f32bits(x): return struct.unpack('<I', struct.pack('<f', x))[0]
C_SCALE = (128 ** -0.5) * 1.4426950408889634

def srd(a, base, ka_off, nbytes):
    a(f's_load_dwordx2 s[{base}:{base+1}], s[0:1], {ka_off}')
    a(f's_mov_b32 s{base+2}, {nbytes}')
    a(f's_mov_b32 s{base+3}, 0x00020000')

def emit(a, ops):
    for x in ops:
        if isinstance(x, (list, tuple)): emit(a, x)
        else: a(x)

def load_chunks(a, chunks, vaddr, nslots=10):
    N = len(chunks); DEPTH = nslots - 1
    def issue(c):
        ch = chunks[c]; slot = (c % nslots) * 16384
        a(f's_mul_i32 s{sTmp}, s{sW}, {ch["istep"]*4}')
        a(f's_add_u32 s{sTmp}, s{sTmp}, s{ch["sbase"]}')
        a(f's_lshl_b32 s{sTmp2}, s{sW}, 12')
        for j in range(4):
            a(f's_add_u32 s{sTmp3}, s{sTmp}, {ch["soff"] + j*ch["istep"]}')
            a(f's_add_u32 m0, s{sTmp2}, {slot + j*1024}')
            a(f'buffer_load_dwordx4 v{ch["vofs"]}, s[{ch["srd"]}:{ch["srd"]+3}], s{sTmp3} offen lds')
    for c in range(min(DEPTH, N)): issue(c)
    for c in range(N):
        ch = chunks[c]; slot = (c % nslots) * 16384
        inflight = min(N, c + DEPTH) - (c + 1)
        a(f's_waitcnt vmcnt({4*inflight})')
        a('s_barrier')
        if c + DEPTH < N: issue(c + DEPTH)
        a(f'v_add_u32 v{vaddr}, {slot}, v{ch["vtr"]}')
        for o in range(2):
            dest = ch['dests'][o]
            kind, base = dest[0], int(dest[1:])
            for rho in range(4):
                imm = ch['rows'][rho] * 256 + ch['tcol'][o]
                a(f'ds_read_b64_tr_b16 {kind}[{base+2*rho}:{base+2*rho+1}], v{vaddr} offset:{imm}')
        a('s_waitcnt lgkmcnt(0)')

def spin_check(a, lbl_fail):
    a(f's_add_u32 s{sSpin}, s{sSpin}, 1')
    a(f's_cmp_gt_u32 s{sSpin}, {SPIN_MAX}')
    a(f's_cbranch_scc1 {lbl_fail}')

def maxchain(a, dst, regs, op='u32'):
    regs = list(regs)
    a(f'v_max3_{op} v{dst}, v{regs[0]}, v{regs[1]}, v{regs[2]}')
    regs = regs[3:]
    while len(regs) >= 2:
        a(f'v_max3_{op} v{dst}, v{dst}, v{regs[0]}, v{regs[1]}'); regs = regs[2:]
    if regs:
        a(f'v_max_{op} v{dst}, v{dst}, v{regs[0]}')

def gather_pre(a, sOffReg):
    a(f's_sub_u32 s{sTmp}, s{sW}, 2')
    a(f's_mul_i32 s{sTmp}, s{sTmp}, 5120')
    a(f's_add_u32 s{sTmp}, s{sTmp}, s{sOffReg}')
    a(f's_add_u32 s{sTmp2}, s{sTmp}, 4096')

def gather(a, fail, st=None, fl='sc1'):
    fine = st is not None and 'fine' in __import__('os').environ.get('EXP', '')
    lp = a.newlabel('g5')
    a.label(lp)
    for i in range(4):
        a(f'buffer_load_dwordx4 v[{72+4*i}:{75+4*i}], v2, {W}, s{sTmp} offen offset:{i*1024} {fl}')
    a(f'buffer_load_dwordx4 v[88:91], v2, {W}, s{sTmp2} offen {fl}')
    spin_check(a, fail)
    if fine: st(a, 1)
    for i in range(5):
        a(f's_waitcnt vmcnt({4-i})')
        if fine and i == 0: st(a, 2)
        if fine and i == 4: st(a, 3)
        a(f'ds_write_b128 v3, v[{72+4*i}:{75+4*i}] offset:{i*1024}')
        if i == 0:
            a(f'v_max3_u32 v92, v72, v73, v74'); a(f'v_max_u32 v92, v92, v75')
        else:
            a(f'v_max3_u32 v92, v92, v{72+4*i}, v{73+4*i}'); a(f'v_max3_u32 v92, v92, v{74+4*i}, v{75+4*i}')
    if fine: a(f's_add_u32 s{sT+4}, s{sT+4}, 63')
    a('v_cmp_eq_u32 vcc, -1, v92')
    if 'nodep' not in __import__('os').environ.get('EXP', ''): a(f's_cbranch_vccnz {lp}')

def gather2(a, fail, fl='sc1', stag=2, res=None):
    def issue(b):
        for i in range(4):
            a(f'buffer_load_dwordx4 v[{b+4*i}:{b+3+4*i}], v2, {W}, s{sTmp} offen offset:{i*1024} {fl}')
        a(f'buffer_load_dwordx4 v[{b+16}:{b+19}], v2, {W}, s{sTmp2} offen {fl}')
    def consume(b, younger):
        for i in range(5):
            a(f's_waitcnt vmcnt({4-i+younger})')
            a(f'ds_write_b128 v3, v[{b+4*i}:{b+3+4*i}] offset:{i*1024}')
            if i == 0:
                a(f'v_max3_u32 v92, v{b}, v{b+1}, v{b+2}'); a(f'v_max_u32 v92, v92, v{b+3}')
            else:
                a(f'v_max3_u32 v92, v92, v{b+4*i}, v{b+1+4*i}'); a(f'v_max3_u32 v92, v92, v{b+2+4*i}, v{b+3+4*i}')
        a('v_cmp_eq_u32 vcc, -1, v92')
    lp = a.newlabel('g2'); done = a.newlabel('g2d')
    if res is not None: a(f's_mov_b32 s{res}, 0')
    issue(72)
    a(f's_sleep {stag}')
    a.label(lp)
    issue(40)
    spin_check(a, fail)
    consume(72, 5)
    a(f's_cbranch_vccz {done}')
    if res is not None: a(f's_add_u32 s{res}, s{res}, 1')
    issue(72)
    consume(40, 5)
    a(f's_cbranch_vccz {done}')
    if res is not None: a(f's_add_u32 s{res}, s{res}, 1')
    a(f's_branch {lp}')
    a.label(done)

def mem0_load(a, base):
    srd(a, S_T0 + 92 - 8, L.KA['mem0'], 10240) if False else None
def mem0_frags(a, phase=None):
    R = 40 if phase is None else 116
    if phase in (None, 'load'):
        sr = S_T0 if phase is None else 84
        srd(a, sr, L.KA['mem0'], 10240)
        a('v_bfe_u32 v36, v0, 2, 2'); a('v_lshlrev_b32 v36, 1, v36'); a('v_and_b32 v37, 1, v0'); a('v_add_u32 v36, v36, v37')
        a('v_mul_u32_u24 v36, 1280, v36')
        a('v_lshrrev_b32 v37, 4, v0'); a('v_lshlrev_b32 v37, 5, v37'); a('v_add_u32 v36, v36, v37')
        a('v_bfe_u32 v37, v0, 1, 1'); a('v_lshlrev_b32 v37, 2, v37'); a('v_add_u32 v36, v36, v37')
        a(f's_lshl_b32 s{sTmp}, s{sW}, 7')
        a('s_waitcnt lgkmcnt(0)')
        for t in range(3):
            a(f's_add_u32 s{sTmp2}, s{sTmp}, {t*512}')
            for j in range(4):
                a(f'buffer_load_dword v{R+4*t+j}, v36, s[{sr}:{sr+3}], s{sTmp2} offen offset:{8*j}')
        a('s_waitcnt vmcnt(0)')
    if phase in (None, 'write'):
        a(f's_lshl_b32 s{sTmp3}, s{sW}, 10')
        a(f'v_add_u32 v38, s{sTmp3}, v4')
        for t in range(3):
            a(f'ds_write_b128 v38, v[{R+4*t}:{R+3+4*t}] offset:{t*4096}')
        a('s_waitcnt lgkmcnt(0)')

class Stamps:
    sel = 0; trace = False; tstep = 20
    def __init__(self, on): self.on = on
    def val(self, a, i, sreg):
        if not (self.on and self.trace): return
        lb = a.newlabel('tv')
        a(f's_cmp_lg_u32 s{sS}, {self.tstep + 1}'); a(f's_cbranch_scc1 {lb}')
        a(f's_mov_b32 s{sT+i}, s{sreg}')
        a.label(lb)
    def __call__(self, a, i):
        if not self.on: return
        if self.trace:
            a(f's_memrealtime s[{sT+14}:{sT+15}]')
            a('s_waitcnt lgkmcnt(0)')
            lb = a.newlabel('tr')
            a(f's_cmp_lg_u32 s{sS}, {self.tstep + (1 if (i in (10, 11) and not getattr(self, "helper", False)) else 0)}'); a(f's_cbranch_scc1 {lb}')
            a(f's_mov_b32 s{sT+i}, s{sT+14}')
            a.label(lb)
            return
        a(f's_memtime s[{sT+14}:{sT+15}]')
        a('s_waitcnt lgkmcnt(0)')
        a(f's_sub_u32 s{sT+12}, s{sT+14}, s{sT+13}')
        a(f's_add_u32 s{sT+i}, s{sT+i}, s{sT+12}')
        a(f's_mov_b32 s{sT+13}, s{sT+14}')
    def dump(self, a, off):
        if not self.on: return
        if self.trace:
            a(f's_lshl_b32 s{sTmp}, s{sH}, 2'); a(f's_or_b32 s{sTmp}, s{sTmp}, s{sW}'); a(f's_lshl_b32 s{sTmp}, s{sTmp}, 6')
            a(f's_add_u32 s{sTmp}, s{sTmp}, {TRACE + off}')
            a('v_mov_b32 v36, 0')
            for i in range(12):
                a(f'v_mov_b32 v37, s{sT+i}')
                a(f'buffer_store_dword v37, v36, {W}, s{sTmp} offen offset:{4*i}')
            a('s_waitcnt vmcnt(0)')
        elif off == 0:
            sk = a.newlabel('tsk')
            a(f's_lshl_b32 s{sTmp}, s{sH}, 2'); a(f's_or_b32 s{sTmp}, s{sTmp}, s{sW}')
            a(f's_cmp_lg_u32 s{sTmp}, {self.sel}'); a(f's_cbranch_scc1 {sk}')
            a('v_mov_b32 v36, 0')
            for i in range(12):
                a(f'v_mov_b32 v37, s{sT+i}')
                a(f'buffer_store_dword v37, v36, s[{S_DBG}:{S_DBG+3}], 0 offen offset:{64+4*i}')
            a('s_waitcnt vmcnt(0)')
            a.label(sk)

def trbase(a, dst, wo):
    a('v_lshrrev_b32 v36, 4, v0'); a('v_bfe_u32 v37, v0, 2, 2')
    if not wo:
        a('v_lshlrev_b32 v38, 3, v36')
    else:
        a('v_and_b32 v38, 1, v36'); a('v_lshlrev_b32 v38, 5, v38')
        a('v_lshrrev_b32 v39, 1, v36'); a('v_lshlrev_b32 v39, 2, v39'); a('v_add_u32 v38, v38, v39')
    a('v_add_u32 v38, v38, v37'); a('v_lshlrev_b32 v38, 8, v38')
    a('v_and_b32 v39, 3, v0'); a('v_lshlrev_b32 v39, 3, v39')
    a(f'v_add_u32 v{dst}, v38, v39')
    a(f's_lshl_b32 s{sTmp}, s{sW}, {5 if wo else 6}')
    a(f'v_add_u32 v{dst}, s{sTmp}, v{dst}')

def xcc_or(a):
    skip = a.newlabel('xo')
    a(f's_cmp_lg_u32 s{sW}, 0'); a(f's_cbranch_scc1 {skip}')
    a('s_mov_b64 s[62:63], exec'); a('s_mov_b64 exec, 1')
    a('v_mov_b32 v36, 0')
    a(f's_getreg_b32 s{sTmp}, hwreg(HW_REG_XCC_ID)')
    a(f's_and_b32 s{sTmp}, s{sTmp}, 15'); a(f's_lshl_b32 s{sTmp}, 1, s{sTmp}')
    a(f'v_mov_b32 v37, s{sTmp}')
    a(f'buffer_atomic_or v37, v36, s[{S_DBG}:{S_DBG+3}], 0 offen offset:4')
    a('s_waitcnt vmcnt(0)')
    if FUSED:
        a('v_mov_b32 v37, 1')
        a(f'buffer_atomic_add v37, v36, s[{S_DBG}:{S_DBG+3}], 0 offen')
        a('s_waitcnt vmcnt(0)')
    a('s_mov_b64 exec, s[62:63]')
    a.label(skip)

def rendezvous(a, is_main, fail):
    a('s_waitcnt vmcnt(0)')
    a('s_barrier')
    skip = a.newlabel('rz'); lp = a.newlabel('rzp')
    a(f's_cmp_lg_u32 s{sW}, 0'); a(f's_cbranch_scc1 {skip}')
    a('s_mov_b64 s[62:63], exec'); a('s_mov_b64 exec, 1')
    a('v_mov_b32 v36, 0'); a('v_mov_b32 v37, 1')
    if not (FUSED and is_main):
        a(f'buffer_atomic_add v37, v36, s[{S_DBG}:{S_DBG+3}], 0 offen')
    a.label(lp)
    a(f'buffer_load_dwordx4 v[40:43], v36, s[{S_DBG}:{S_DBG+3}], 0 offen sc1')
    a(f'buffer_load_dword v44, v36, s[{S_DBG}:{S_DBG+3}], 0 offen offset:16 sc1')
    spin_check(a, fail)
    a('s_waitcnt vmcnt(0)')
    a(f'v_readfirstlane_b32 s{sTmp}, v40'); a(f'v_readfirstlane_b32 s{sTmp2}, v44'); a(f'v_readfirstlane_b32 s{sTmp3}, v43')
    a(f's_cmp_lt_u32 s{sTmp}, 64'); a(f's_cbranch_scc1 {lp}')
    if FUSED:
        a(f's_cmp_lt_u32 s{sTmp2}, 64'); a(f's_cbranch_scc1 {lp}')
        a(f's_cmp_lt_u32 s{sTmp3}, 1'); a(f's_cbranch_scc1 {lp}')
    a('v_mov_b32 v39, v41')
    a(f'v_mov_b32 v36, {QKX}')
    a('ds_write_b32 v36, v39')
    a('s_waitcnt lgkmcnt(0)')
    a('s_mov_b64 exec, s[62:63]')
    a.label(skip)
    a('s_barrier')
    a(f'v_mov_b32 v36, {QKX}')
    a('ds_read_b32 v39, v36')
    a('s_waitcnt lgkmcnt(0)')
    a(f'v_readfirstlane_b32 s{sTmp}, v39')
    a(f's_bcnt1_i32_b32 s{sTmp}, s{sTmp}')
    a(f's_cmp_eq_u32 s{sTmp}, 1')
    a(f's_cselect_b32 s{sFast}, 1, 0')

FUSED = False
def emit_chain_body(a, fail, end, st=None):
    st = st or Stamps(False)
    srd(a, S_WS, L.KA['ws'], L.WS_BYTES)
    srd(a, S_DBG, L.KA['dbg'], 256)
    if COARSE: a('s_memrealtime s[96:97]')
    a(f'v_lshrrev_b32 v1, 6, v0'); a(f'v_readfirstlane_b32 s{sW}, v1'); a(f'v_and_b32 v0, 63, v0')
    a(f's_mov_b32 s{sMaskH}, 0xCCCCCCCC'); a(f's_mov_b32 s{sMaskH+1}, 0xCCCCCCCC')
    a(f's_mov_b32 s{sMaskLo}, -1'); a(f's_mov_b32 s{sMaskLo+1}, 0')
    a(f'v_mov_b32 v1, 0x4444'); a(f'v_mov_b32 v2, 0xEEEE')
    a(f'v_cndmask_b32 v1, v1, v2, {MH}')
    a(f'v_lshlrev_b32 v2, 4, v0')
    a(f's_mov_b32 s{sC}, {hex(f32bits(C_SCALE))}')
    a(f's_mov_b32 s{sThr}, {hex(f32bits(60.0))}')
    a(f's_mov_b32 s{sSpin}, 0')
    for i in range(14): a(f's_mov_b32 s{sT+i}, 0')
    a(f'v_add_u32 v4, {AFR}, v2')
    a('s_waitcnt lgkmcnt(0)')
    a('s_cmp_eq_u32 s3, 1'); a(f's_cbranch_scc1 chain_helper')
    emit_main(a, st, fail, end)
    emit_helper(a, st, fail, end)

def decode_role(a, worker_label):
    a('s_and_b32 s3, s2, 7')
    a(f's_lshr_b32 s{sH}, s2, 3')
    a(f's_mul_i32 s60, s{sH}, 6'); a('s_add_u32 s60, s60, s3'); a('s_sub_u32 s60, s60, 2')
    a('s_cmp_gt_u32 s3, 1'); a(f's_cbranch_scc1 {worker_label}')

def emit_chain(a, timing=False, kname='chain_kernel'):
    fail = 'chain_fail'; end = 'chain_end'
    st = Stamps(timing)
    a.label(kname)
    a(f's_cmp_ge_u32 s2, 256'); a(f's_cbranch_scc1 {end}')
    decode_role(a, end)
    emit_chain_body(a, fail, end, st)
    a.label(fail)
    a('v_mov_b32 v1, 0xdead'); a('v_mov_b32 v2, 124')
    a(f'buffer_store_dword v1, v2, s[{S_DBG}:{S_DBG+3}], 0 offen')
    a('s_waitcnt vmcnt(0)')
    a.label(end)
    a('s_endpgm')

def lds_idx(m, t, kb):
    if t == 1 and m == 0: return kb
    if t == 1 and m == 1 and kb < 2: return 10 + kb
    return None
def qk_home(m, t, kb):
    j = lds_idx(m, t, kb)
    if j is not None: return ('v', 40 + 8 * (j & 3))
    if m == 0: return ('a', 160 + kb * 8)
    order = [(kk, tt) for kk in range(10) for tt in range(2) if lds_idx(1, tt, kk) is None]
    i = order.index((kb, t))
    if i < 2: return ('a', 240 + i * 8)
    return ('v', 128 + (i - 2) * 8)
def wo_home(cg, t, eb): return ('a', ((cg * 2 + t) * 2 + eb) * 8)
def rr(home, n=8): return f'{home[0]}[{home[1]}:{home[1]+n-1}]'
def wl_reads(j):
    b = 40 + 8 * (j & 3)
    return [f'ds_read_b128 v[{b}:{b+3}], v15 offset:{j*2048}', f'ds_read_b128 v[{b+4}:{b+7}], v15 offset:{j*2048+1024}']

def interleave(a, mf, fill, start=0, per=1):
    fi = 0
    for i, m in enumerate(mf):
        emit(a, m if isinstance(m, list) else [m])
        if i >= start:
            for _ in range(per):
                if fi < len(fill):
                    g = fill[fi]; fi += 1
                    emit(a, g if isinstance(g, list) else [g])
    while fi < len(fill):
        g = fill[fi]; fi += 1
        emit(a, g if isinstance(g, list) else [g])

def half_add_ops(ra, rb):
    return [f'v_permlane32_swap_b32 v{ra+r}, v{rb+r}' for r in range(4)] + [f'v_add_f32 v{ra+r}, v{ra+r}, v{rb+r}' for r in range(4)]


import os
EXP = os.environ.get('EXP', '')
sTch = 30
sTag = 49; sFlip = 34; sFlipO = 34; sMf = 33; sHs = 36; sHs0 = 37; sHs1 = 38
ADAPT = os.environ.get('ADAPT', '1') == '1'
ADUP = int(os.environ.get('ADUP', 12))
HAB = int(os.environ.get('HAB', 0))
HDN = int(os.environ.get('HDN', 2))
sOwnP = 31
def zero(lo, hi): return [f'v_mov_b64 v[{r}:{r+1}], 0' for r in range(lo, hi, 2)]

def dma_w(a):
    a(f's_mov_b32 m0, s{sKVw}')
    a(f'buffer_load_dwordx4 v10, {W}, s{sKsrc} offen lds')
    a(f'buffer_load_dwordx4 v13, {W}, s{sKsrc} offen offset:1024 lds')
    a(f's_add_u32 m0, s{sKVw}, 8192')
    a(f'buffer_load_dwordx4 v2, {W}, s{sVsrc} offen lds')
    a(f'buffer_load_dwordx4 v2, {W}, s{sVsrc} offen offset:1024 lds')

def km_ops(land):
    return [f's_lshl_b32 s{sTmp3}, s{sW}, 10', f'v_add_u32 v{land+4}, s{sTmp3}, v6',
            f'ds_read_b64_tr_b16 v[{land}:{land+1}], v{land+4} offset:4096', f'ds_read_b64_tr_b16 v[{land+2}:{land+3}], v{land+4} offset:{4096+128}',
            's_waitcnt lgkmcnt(0)',
            f'buffer_store_dwordx4 v[{land}:{land+3}], v2, {W}, s{sKMo} offen sc1',
            f's_add_u32 s{sKMo}, s{sKMo}, {32*4096}']

def advance(a):
    if FUSED:
        a(f'v_readfirstlane_b32 s{sRdy}, v12'); a('v_mov_b32 v12, -1')
    a(f's_add_u32 s{sKsrc}, s{sKsrc}, {32*8192}'); a(f's_add_u32 s{sVsrc}, s{sVsrc}, {32*8192}');
    a(f's_xor_b32 s{sKVw}, s{sKVw}, 16384')
    a('v_xor_b32 v14, 16384, v14')
    a(f's_add_u32 s{sS}, s{sS}, 1')
    a(f's_add_u32 s{sVMo}, s{sVMo}, {32*2048}'); a(f's_add_u32 s{sKMo}, s{sKMo}, {32*4096}')
    a(f's_mov_b32 s{sTmp3}, s{sP1w}'); a(f's_mov_b32 s{sP1w}, s{sP1r}'); a(f's_mov_b32 s{sP1r}, s{sTmp3}')
    a(f's_add_u32 s{sMw}, s{sMw}, {L.MEMSZ}'); a(f's_xor_b32 s{sMf}, s{sMf}, {L.MEMSZ}')
    a(f's_bfe_u32 s{sTag}, s{sS}, {(1 << 16) | 1}'); a(f's_xor_b32 s{sFlip}, s{sTag}, 1')

def emit_main(a, st, fail, end):
    a.comment('======== MAIN ========')
    srd(a, S_T0, L.KA['Wq'], 640*4096*2)
    srd(a, S_T1, L.KA['Wk'], 640*4096*2)
    srd(a, S_T2, L.KA['Wo'], 640*4096*2)
    xcc_or(a)
    mem0_frags(a, 'load')
    a('v_lshrrev_b32 v36, 4, v0'); a('v_and_b32 v37, 15, v0'); a('v_lshlrev_b32 v37, 4, v37')
    a('v_lshlrev_b32 v10, 13, v36'); a('v_add_u32 v10, v10, v37')
    a('v_mul_u32_u24 v11, 1280, v36'); a('v_add_u32 v11, v11, v37')
    trbase(a, 12, False)
    trbase(a, 13, True)
    a(f's_lshl_b32 s28, s{sH}, 8')
    a(f's_mul_i32 s29, s{sH}, {128*1280}')
    a('s_waitcnt lgkmcnt(0)')
    chunks = []
    for m, s_ in ((0, S_T0), (1, S_T1)):
        for kb in range(10):
            d = []
            for t in range(2):
                j = lds_idx(m, t, kb)
                x = ('v', 20 + 8 * j) if j is not None else qk_home(m, t, kb)
                d.append(f'{x[0]}{x[1]}')
            chunks.append(dict(srd=s_, vofs=10, sbase=28, soff=64*kb*8192, istep=4*8192, vtr=12, rows=[0, 4, 32, 36], tcol=[0, 32], dests=d))
    for eb in range(2):
        for cg in range(5):
            d = [f'a{wo_home(cg, t, eb)[1]}' for t in range(2)]
            chunks.append(dict(srd=S_T2, vofs=11, sbase=29, soff=64*eb*1280 + cg*256, istep=4*1280, vtr=13, rows=[0, 16, 8, 24], tcol=[0, 128], dests=d))
    load_chunks(a, chunks, 14)
    if COARSE: a('s_memrealtime s[90:91]')
    a('s_barrier')
    a(f's_mul_i32 s{sTmp}, s{sW}, {12*2048}'); a(f's_add_u32 s{sTmp}, s{sTmp}, {WL}')
    a(f'v_add_u32 v15, s{sTmp}, v2')
    for i in range(12):
        a(f'ds_write_b128 v15, v[{20+8*i}:{23+8*i}] offset:{i*2048}')
        a(f'ds_write_b128 v15, v[{24+8*i}:{27+8*i}] offset:{i*2048+1024}')
    a('s_waitcnt lgkmcnt(0)')
    mem0_frags(a, 'write')
    a(f's_sub_u32 s{sTmp}, s{sW}, 2'); a(f's_mul_i32 s{sTmp}, s{sTmp}, 5120'); a(f'v_add_u32 v3, s{sTmp}, v4')
    a('v_and_b32 v36, 15, v0'); a('v_lshlrev_b32 v36, 5, v36'); a('v_lshrrev_b32 v37, 4, v0'); a('v_lshlrev_b32 v37, 3, v37'); a('v_add_u32 v36, v36, v37')
    a(f's_lshl_b32 s{sTmp}, s{sW}, 10'); a(f's_add_u32 s{sTmp}, s{sTmp}, {QKX}'); a(f'v_add_u32 v5, s{sTmp}, v36')
    a('v_lshrrev_b32 v36, 4, v0'); a('v_lshlrev_b32 v36, 3, v36'); a('v_bfe_u32 v37, v0, 2, 2'); a('v_add_u32 v36, v36, v37')
    a('v_lshlrev_b32 v36, 5, v36'); a('v_and_b32 v37, 3, v0'); a('v_lshlrev_b32 v37, 3, v37'); a('v_add_u32 v36, v36, v37')
    a(f'v_add_u32 v6, {QKX}, v36')
    a('v_lshrrev_b32 v36, 4, v0'); a('v_lshlrev_b32 v36, 13, v36'); a('v_and_b32 v37, 15, v0'); a('v_lshlrev_b32 v37, 4, v37'); a('v_add_u32 v7, v36, v37')
    a('v_bfe_u32 v36, v0, 2, 2'); a('v_lshlrev_b32 v36, 10, v36'); a('v_and_b32 v37, 3, v0'); a('v_lshlrev_b32 v37, 4, v37'); a('v_add_u32 v36, v36, v37')
    a('v_lshrrev_b32 v37, 4, v0'); a('v_lshlrev_b32 v37, 2, v37'); a('v_add_u32 v8, v36, v37')
    a('v_lshlrev_b32 v9, 3, v0')
    a(f's_lshr_b32 s{sTmp}, s{sW}, 1'); a(f's_lshl_b32 s{sTmp}, s{sTmp}, 10'); a(f's_and_b32 s{sTmp2}, s{sW}, 1'); a(f's_lshl_b32 s{sTmp2}, s{sTmp2}, 3')
    a(f's_add_u32 s{sTmp}, s{sTmp}, s{sTmp2}'); a(f's_add_u32 s{sTmp}, s{sTmp}, {OFR}'); a(f'v_add_u32 v11, s{sTmp}, v2')
    a('v_bfe_u32 v36, v0, 2, 1'); a('v_lshlrev_b32 v36, 4, v36'); a('v_bfe_u32 v37, v0, 3, 1'); a('v_lshlrev_b32 v37, 2, v37')
    a('v_add_u32 v36, v36, v37'); a('v_and_b32 v37, 3, v0'); a('v_add_u32 v36, v36, v37'); a('v_lshlrev_b32 v36, 13, v36')
    a('v_lshrrev_b32 v37, 4, v0'); a('v_lshlrev_b32 v37, 4, v37'); a('v_add_u32 v10, v36, v37')
    a('v_mov_b32 v12, -1')
    a('v_bfe_u32 v36, v0, 2, 2'); a('v_lshlrev_b32 v36, 1, v36'); a('v_and_b32 v37, 1, v0'); a('v_add_u32 v36, v36, v37')
    for q in range(4):
        a(f'v_mov_b32 v{16+q}, 0'); a(f'v_mov_b32 v37, 0x3F80')
        a(f'v_cmp_eq_u32 vcc, {2*q}, v36'); a(f'v_cndmask_b32 v{16+q}, v{16+q}, v37, vcc')
        a(f'v_mov_b32 v37, 0x3F800000')
        a(f'v_cmp_eq_u32 vcc, {2*q+1}, v36'); a(f'v_cndmask_b32 v{16+q}, v{16+q}, v37, vcc')
    a(f'v_add_u32 v13, {SEL}, v2')
    a('ds_write_b128 v13, v[16:19]')
    a('s_waitcnt lgkmcnt(0)')
    for q in range(4): a(f'v_mov_b32 v{16+q}, 0x3F803F80')
    a(f'v_add_u32 v14, {KVB}, v2')
    a('v_mov_b32 v121, 0'); a('v_mov_b32 v122, 0'); a(f'v_mov_b32 v124, s{sC}')
    a(f's_mov_b32 s{sOwn}, -1')
    a(f's_cmp_eq_u32 s{sW}, 0'); a(f's_cselect_b32 s{sOwn}, s{sH}, s{sOwn}')
    a(f's_add_u32 s{sTmp}, s{sH}, 32'); a(f's_cmp_lt_u32 s{sTmp}, 48'); a(f's_cselect_b32 s{sTmp}, s{sTmp}, -1')
    a(f's_cmp_eq_u32 s{sW}, 1'); a(f's_cselect_b32 s{sOwn}, s{sTmp}, s{sOwn}')
    a(f's_lshr_b32 s{sTmp}, s{sOwn}, 2'); a(f's_and_b32 s{sTmp}, s{sTmp}, 15'); a(f's_mul_i32 s{sTmp2}, s{sTmp}, 11'); a(f's_lshr_b32 s{sTmp2}, s{sTmp2}, 5')
    a(f's_mul_i32 s{sTmp3}, s{sTmp2}, 3'); a(f's_sub_u32 s{sTmp3}, s{sTmp}, s{sTmp3}')
    a(f's_lshl_b32 s{sOwnP}, s{sTmp3}, 12'); a(f's_lshl_b32 s{sTmp2}, s{sTmp2}, 8'); a(f's_add_u32 s{sOwnP}, s{sOwnP}, s{sTmp2}')
    a(f's_and_b32 s{sTmp}, s{sOwn}, 3'); a(f's_lshl_b32 s{sTmp}, s{sTmp}, 6'); a(f's_add_u32 s{sOwnP}, s{sOwnP}, s{sTmp}')
    a(f's_cmp_eq_u32 s{sOwn}, -1'); a(f's_cselect_b32 s{sOwnP}, 24576, s{sOwnP}')
    a(f's_mul_i32 s{sP1w}, s{sW}, {3*32768}'); a(f's_lshl_b32 s{sTmp}, s{sH}, 8')
    a(f's_add_u32 s{sP1w}, s{sP1w}, s{sTmp}'); a(f's_add_u32 s{sP1w}, s{sP1w}, {L.P1}')
    a(f's_add_u32 s{sP1r}, s{sP1w}, {L.P1SZ}')
    a('s_barrier')
    a(f's_lshl_b32 s{sKsrc}, s{sH}, 8'); a(f's_add_u32 s{sKsrc}, s{sKsrc}, {L.K}')
    a(f's_lshl_b32 s{sVsrc}, s{sH}, 13'); a(f's_add_u32 s{sVsrc}, s{sVsrc}, {L.VT}')
    a(f's_lshl_b32 s{sVMo}, s{sH}, 11'); a(f's_add_u32 s{sVMo}, s{sVMo}, {L.VM}'); a(f's_lshl_b32 s{sTmp}, s{sW}, 9'); a(f's_add_u32 s{sVMo}, s{sVMo}, s{sTmp}')
    a(f's_lshl_b32 s{sKMo}, s{sH}, 12'); a(f's_add_u32 s{sKMo}, s{sKMo}, {L.KM}')
    a(f's_lshl_b32 s{sTmp}, s{sW}, 10'); a(f's_add_u32 s{sKMo}, s{sKMo}, s{sTmp}')
    if FUSED:
        lp = a.newlabel('kvw'); lp2 = a.newlabel('kvw2')
        a('v_mov_b32 v36, 0')
        a.label(lp)
        a(f'buffer_load_dwordx4 v[40:43], v36, s[{S_DBG}:{S_DBG+3}], 0 offen sc1')
        a(f'buffer_load_dword v44, v36, s[{S_DBG}:{S_DBG+3}], 0 offen offset:16 sc1')
        spin_check(a, fail)
        a('s_waitcnt vmcnt(0)')
        a(f'v_readfirstlane_b32 s{sTmp}, v40'); a(f's_cmp_lt_u32 s{sTmp}, 64'); a(f's_cbranch_scc1 {lp}')
        a(f'v_readfirstlane_b32 s{sTmp}, v44'); a(f's_cmp_lt_u32 s{sTmp}, 64'); a(f's_cbranch_scc1 {lp}')
        a(f'v_readfirstlane_b32 s{sTmp}, v43'); a(f's_cmp_lt_u32 s{sTmp}, 1'); a(f's_cbranch_scc1 {lp}')
        a(f'v_readfirstlane_b32 s{sTmp}, v41'); a(f's_bcnt1_i32_b32 s{sTmp}, s{sTmp}'); a(f's_cmp_eq_u32 s{sTmp}, 1'); a(f's_cselect_b32 s{sFast}, 1, 0')
        a(f's_mov_b32 s{sTmp2}, {L.ctr(L.C_KV)}')
        a.label(lp2)
        a(f'buffer_load_dword v41, v36, {W}, s{sTmp2} offen sc1')
        spin_check(a, fail)
        a('s_waitcnt vmcnt(0)')
        a(f'v_readfirstlane_b32 s{sTmp}, v41'); a(f's_cmp_ge_u32 s{sTmp}, 64'); a(f's_cbranch_scc1 {lp2}_ok')
        a('s_sleep 3'); a(f's_branch {lp2}')
        a.label(f'{lp2}_ok')
        a(f's_mov_b32 s{sRdy}, 64')
    a('v_subrev_u32 v13, 960, v10')
    a(f's_lshr_b32 s{sTmp}, s{sW}, 1'); a(f's_lshl_b32 s{sTmp}, s{sTmp}, 16')
    a(f's_and_b32 s{sTmp2}, s{sW}, 1'); a(f's_lshl_b32 s{sTmp2}, s{sTmp2}, 7')
    a(f's_add_u32 s{sTmp}, s{sTmp}, s{sTmp2}'); a(f's_add_u32 s{sKsrc}, s{sKsrc}, s{sTmp}')
    a(f's_lshl_b32 s{sTmp}, s{sW}, 11'); a(f's_add_u32 s{sVsrc}, s{sVsrc}, s{sTmp}')
    a(f's_add_u32 s{sKVw}, s{sTmp}, {KVB}')
    dma_w(a)
    a(f's_add_u32 s{sKsrc}, s{sKsrc}, {32*8192}'); a(f's_add_u32 s{sVsrc}, s{sVsrc}, {32*8192}'); a(f's_xor_b32 s{sKVw}, s{sKVw}, 16384')
    if COARSE: a('s_memrealtime s[88:89]'); a('s_waitcnt lgkmcnt(0)')
    if FUSED: a('s_waitcnt vmcnt(0)')
    else: rendezvous(a, True, fail)
    a(f's_mov_b32 s{sS}, 0')
    a(f's_mov_b32 s{sMw}, {L.MEMSZ}'); a(f's_mov_b32 s{sMf}, {L.MEMSZ}'); a(f's_mov_b32 s{sTag}, 0'); a(f's_mov_b32 s{sFlip}, 1')
    emit(a, zero(20, 36))
    for j in range(4): emit(a, wl_reads(j))
    a('s_waitcnt lgkmcnt(0)')
    a('s_barrier')
    if st.on and not st.trace:
        a(f's_memtime s[{sT+14}:{sT+15}]'); a('s_waitcnt lgkmcnt(0)'); a(f's_mov_b32 s{sT+13}, s{sT+14}')
    if COARSE:
        a('s_memrealtime s[98:99]'); a('s_memtime s[92:93]'); a('s_waitcnt lgkmcnt(0)')
    a(f's_cmp_eq_u32 s{sFast}, 0'); a('s_cbranch_scc1 main_loop_safe')
    main_loop(a, True, st, fail)
    main_loop(a, False, st, fail)
    a.label('main_last')
    a(f's_lshl_b32 s{sKMo}, s{sH}, 12'); a(f's_add_u32 s{sKMo}, s{sKMo}, {L.KM + 63*32*4096}'); a(f's_lshl_b32 s{sTmp}, s{sW}, 10'); a(f's_add_u32 s{sKMo}, s{sKMo}, s{sTmp}')
    emit(a, km_ops(40))
    st.dump(a, 0)
    if COARSE:
        sk = a.newlabel('csk')
        a('s_memrealtime s[100:101]'); a('s_memtime s[94:95]'); a('s_waitcnt lgkmcnt(0)')
        sk0 = a.newlabel('csk0')
        a(f's_cmp_lg_u32 s{sW}, 0'); a(f's_cbranch_scc1 {sk0}')
        a('v_mov_b32 v36, 0'); a(f's_lshl_b32 s{sTmp}, s{sH}, 5'); a(f's_add_u32 s{sTmp}, s{sTmp}, {TRACE + 32768}')
        for i, r in enumerate((96, 90, 88, 98, 100)):
            a(f'v_mov_b32 v37, s{r}')
            a(f'buffer_store_dword v37, v36, {W}, s{sTmp} offen offset:{4*i}')
        a.label(sk0)
        a(f's_or_b32 s{sTmp}, s{sH}, s{sW}'); a(f's_cmp_lg_u32 s{sTmp}, 0'); a(f's_cbranch_scc1 {sk}')
        a('v_mov_b32 v36, 0')
        a('s_sub_u32 s98, s98, s96'); a('s_sub_u32 s100, s100, s96'); a('s_sub_u32 s94, s94, s92')
        a('s_sub_u32 s90, s90, s96'); a('s_sub_u32 s88, s88, s96')
        for q in range(4): a(f's_sub_u32 s{80+q}, s{80+q}, s96')
        for i, r in enumerate((98, 100, 94, 90, 88, 80, 81, 82, 83)):
            a(f'v_mov_b32 v37, s{r}')
            a(f'buffer_store_dword v37, v36, s[{S_DBG}:{S_DBG+3}], 0 offen offset:{128+4*i}')
        a('s_waitcnt vmcnt(0)')
        a.label(sk)
    a(f's_branch {end}')

def main_loop(a, fast, st, fail):
    sc = ('nt' if 'ntst' in EXP else '') if fast else 'sc1'
    tag = 'fast' if fast else 'safe'
    a.label(f'main_loop_{tag}')
    cold = []
    F = lambda kb: f'v[{72+4*kb}:{75+4*kb}]'
    if COARSE:
        nn = a.newlabel('cs')
        a(f's_and_b32 s{sTmp}, s{sS}, 15'); a(f's_cmp_lg_u32 s{sTmp}, 0'); a(f's_cbranch_scc1 {nn}')
        a('s_memrealtime s[86:87]'); a('s_waitcnt lgkmcnt(0)')
        a(f's_lshr_b32 s{sTmp}, s{sS}, 4')
        for q in range(4):
            a(f's_cmp_eq_u32 s{sTmp}, {q}'); a(f's_cselect_b32 s{80+q}, s86, s{80+q}')
        a.label(nn)
    if 'skel' in EXP:
        a(f's_cmp_ge_u32 s{sS}, 63'); a('s_cbranch_scc1 main_last')
        a(f's_sleep {int(os.environ.get("CSLEEP", 8))}')
        emit(a, zero(28, 40))
        st(a, 0)
        for qq in range(3):
            a(f'v_and_or_b32 v{28+4*qq}, v{28+4*qq}, -2, s{sTag}')
            a(f's_add_u32 s{sTmp}, s{sP1w}, {qq*32768}'); a(f'buffer_store_dwordx4 v[{28+4*qq}:{31+4*qq}], v7, {W}, s{sTmp} offen {sc}')
        a(f's_branch skel_{tag}')
    for kb in range(10):
        a(f'ds_read_b128 {F(kb)}, v4 offset:{kb*1024}')
    if FUSED:
        rok = a.newlabel('rok'); rl = a.newlabel('rl'); rs_ = a.newlabel('rs')
        a(f's_cmp_lt_u32 s{sRdy}, 64'); a(f's_cbranch_scc1 {rs_}')
        a.label(rok)
        def cold_rdy():
            a.label(rs_)
            a(f's_add_u32 s{sTmp}, s{sS}, 1'); a(f's_lshr_b32 s{sTmp}, s{sTmp}, 2'); a(f's_min_u32 s{sTmp}, s{sTmp}, 15'); a(f's_lshl_b32 s{sTmp}, s{sTmp}, 7'); a(f's_add_u32 s{sTmp}, s{sTmp}, {L.ctr(L.C_KV)}')
            a.label(rl)
            a(f'buffer_load_dword v36, v121, {W}, s{sTmp} offen sc1')
            spin_check(a, fail)
            a('s_waitcnt vmcnt(0)')
            a(f'v_readfirstlane_b32 s{sRdy}, v36')
            a(f's_cmp_lt_u32 s{sRdy}, 64'); a(f's_cbranch_scc1 {rl}')
            a(f's_branch {rok}')
        cold.append(cold_rdy)
    if 'nodma' not in EXP: dma_w(a)
    if 'ptv' in EXP:
        a(f'buffer_load_dwordx2 v[114:115], v9, {W}, s{sVMo} offen sc1')
    for kb in range(10):
        a(f's_waitcnt lgkmcnt({min(15, 9 - kb + 2 * max(0, kb))})')
        a(f'{SM} v[20:23], {F(kb)}, {rr(qk_home(0, 0, kb))}, v1')
        if kb >= 4: a(f's_waitcnt lgkmcnt({6 if kb < 9 else 4})')
        a(f'{SM} v[24:27], {F(kb)}, {rr(qk_home(0, 1, kb))}, v1')
        if kb + 4 < 12: emit(a, wl_reads(kb + 4))
    st(a, 0)
    mf = [f'{SM} v[{28+4*t}:{31+4*t}], {F(kb)}, {rr(qk_home(1, t, kb))}, v1' for kb in range(10) for t in range(2)]
    kx = [f'ds_read_b128 v[{40+4*i}:{43+4*i}], v14 offset:{i*1024}' for i in range(8)]
    mf[1] = ['s_waitcnt lgkmcnt(4)', mf[1]]
    mf[3] = ['s_waitcnt lgkmcnt(4)', mf[3]]
    fill = [kx[0:2], kx[2:4], ['v_add_f32 v20, v20, v22', 'v_add_f32 v21, v21, v23'], ['v_add_f32 v24, v24, v26', 'v_add_f32 v25, v25, v27'] + kx[4:5],
            ['v_cvt_pk_bf16_f32 v36, v20, v21', kx[5]], ['v_cvt_pk_bf16_f32 v37, v24, v25', kx[6]], [kx[7]], [],
            'ds_write2_b32 v5, v36, v36 offset0:0 offset1:1', 'ds_write2_b32 v5, v37, v37 offset0:128 offset1:129', 'v_add_u32 v39, 4096, v5', [],
            ['s_waitcnt lgkmcnt(0)', 's_barrier']]
    fill += [[f'ds_read_b64_tr_b16 v[{72+4*kp}:{73+4*kp}], v6 offset:{kp*1024}', f'ds_read_b64_tr_b16 v[{74+4*kp}:{75+4*kp}], v6 offset:{kp*1024+128}'] for kp in range(4)]
    interleave(a, mf, fill)
    st(a, 1)
    mf = []
    for kp in range(4):
        c1 = '0' if kp == 0 else 'v[20:23]'; c2 = '0' if kp == 0 else 'v[24:27]'
        mf.append((['s_waitcnt lgkmcnt(0)'] if kp == 0 else []) + [f'{MF32} v[20:23], v[{40+4*kp}:{43+4*kp}], v[{72+4*kp}:{75+4*kp}], {c1}'])
        mf.append(f'{MF32} v[24:27], v[{56+4*kp}:{59+4*kp}], v[{72+4*kp}:{75+4*kp}], {c2}')
    fill = [[f's_lshl_b32 s{sTmp}, s{sW}, 11'], ['v_add_f32 v28, v28, v30', 'v_add_f32 v29, v29, v31'], ['v_add_f32 v32, v32, v34', 'v_add_f32 v33, v33, v35'],
            ['v_cvt_pk_bf16_f32 v36, v28, v29', 'v_cvt_pk_bf16_f32 v37, v32, v33'],
            ['ds_write2_b32 v39, v36, v36 offset0:0 offset1:1', 'ds_write2_b32 v39, v37, v37 offset0:128 offset1:129'],
            [f'v_add_u32 v127, s{sTmp}, v14'], [], []]
    interleave(a, mf, fill)
    a('s_waitcnt lgkmcnt(0)')
    a('s_barrier')
    a(f's_cmp_ge_u32 s{sS}, 63'); a('s_cbranch_scc1 main_last')
    for kp in range(4):
        for rho in range(2):
            a(f'ds_read_b64_tr_b16 v[{88+4*kp+2*rho}:{89+4*kp+2*rho}], v6 offset:{4096+kp*1024+rho*128}')
    a('v_max3_f32 v126, v20, v21, v22'); a('v_max3_f32 v125, v23, v24, v25')
    a('ds_read_b128 v[104:107], v127 offset:8192'); a('ds_read_b128 v[108:111], v127 offset:9216')
    a(f'buffer_load_dwordx2 v[112:113], v9, {W}, s{sVMo} offen sc1')
    a('v_max3_f32 v126, v126, v26, v27'); a('v_max_f32 v126, v126, v125')
    a('v_mov_b32 v125, v126')
    if FUSED:
        a(f's_add_u32 s{sTmp}, s{sS}, 2'); a(f's_lshr_b32 s{sTmp}, s{sTmp}, 2'); a(f's_min_u32 s{sTmp}, s{sTmp}, 15'); a(f's_lshl_b32 s{sTmp}, s{sTmp}, 7'); a(f's_add_u32 s{sTmp}, s{sTmp}, {L.ctr(L.C_KV)}')
    else:
        a('s_nop 0')
    a('v_permlane32_swap_b32 v126, v125'); a('v_max_f32 v126, v126, v125')
    a('v_mov_b32 v125, v126')
    if FUSED: a(f'buffer_load_dword v12, v121, {W}, s{sTmp} offen sc1')
    a('v_permlane16_swap_b32 v126, v125'); a('v_max_f32 v126, v126, v125')
    a('v_mul_f32 v127, v124, v126'); a('v_sub_f32 v127, 0, v127')
    st(a, 2)
    for r in range(20, 28): a(f'v_fma_f32 v{r}, v{r}, v124, v127')
    mfs = []
    for kp in range(4):
        c0 = '0' if kp == 0 else 'v[28:31]'
        mfs.append([f's_waitcnt lgkmcnt({2 + 6 - 2*kp})', f'{MF32} v[28:31], v[{88+4*kp}:{91+4*kp}], v[{72+4*kp}:{75+4*kp}], {c0}'])
    fill = [[f'v_exp_f32 v{r}, v{r}', f'v_exp_f32 v{r+1}, v{r+1}'] for r in range(20, 28, 2)]
    interleave(a, mfs, fill)
    a(f'buffer_load_dwordx2 v[114:115], v9, {W}, s{sVMo} offen sc1')
    a('v_cvt_pk_bf16_f32 v116, v20, v21'); a('v_cvt_pk_bf16_f32 v117, v22, v23')
    a('v_cvt_pk_bf16_f32 v118, v24, v25'); a('v_cvt_pk_bf16_f32 v119, v26, v27')
    a('v_fma_f32 v28, v28, v124, v127'); a('v_fma_f32 v29, v29, v124, v127')
    st(a, 3)
    a('s_waitcnt lgkmcnt(0)')
    a(f'{MF32} v[32:35], v[104:107], v[116:119], 0')
    a('v_max_f32 v126, v28, v29')
    a(f'{MF32} v[36:39], v[108:111], v[116:119], 0')
    a(f'v_cmp_lt_f32 vcc, s{sThr}, v126')
    a(f'{MF32} v[20:23], v[16:19], v[116:119], 0')
    ok = a.newlabel('thr'); thc = a.newlabel('thc')
    a(f's_cbranch_vccnz {thc}')
    a.label(ok)
    def cold_thr():
        a.label(thc)
        a('v_max_f32 v126, 0, v126')
        a('v_mov_b32 v125, v126'); a('v_permlane32_swap_b32 v126, v125'); a('v_max_f32 v126, v126, v125')
        a('v_mov_b32 v125, v126'); a('v_permlane16_swap_b32 v126, v125'); a('v_max_f32 v126, v126, v125')
        for r in range(28, 30): a(f'v_sub_f32 v{r}, v{r}, v126')
        a('v_sub_f32 v126, 0, v126'); a('v_exp_f32 v126, v126')
        a('s_nop 7')
        for r in list(range(32, 40)) + list(range(20, 24)): a(f'v_mul_f32 v{r}, v{r}, v126')
        a('s_nop 1')
        a(f's_branch {ok}')
    cold.append(cold_thr)
    a('v_exp_f32 v28, v28'); a('v_exp_f32 v29, v29')
    a('v_cvt_pk_bf16_f32 v120, v28, v29'); a('v_cvt_pk_bf16_f32 v123, v28, v29')
    a(f'{MF16} v[20:23], v[16:17], v[120:121], v[20:23]')
    if 'nokm' not in EXP:
        a(f's_lshl_b32 s{sTmp3}, s{sW}, 10'); a(f'v_add_u32 v125, s{sTmp3}, v6')
        a('ds_read_b64_tr_b16 v[116:117], v125 offset:4096'); a(f'ds_read_b64_tr_b16 v[118:119], v125 offset:{4096+128}')
    emit(a, zero(72, 88))
    st(a, 4)
    vp = a.newlabel('vmp'); vok = a.newlabel('vmok')
    nyoung = 2 if FUSED else 1
    vc = a.newlabel('vmc')
    if 'novm' not in EXP:
        a('s_waitcnt vmcnt(1)')
        a('v_max_u32 v126, v112, v113')
        a('v_cmp_eq_u32 vcc, -1, v126'); a(f's_cbranch_vccnz {vc}')
    def cold_vm():
        a.label(vc)
        a('s_waitcnt vmcnt(0)')
        a('v_mov_b64 v[112:113], v[114:115]')
        a.label(vp)
        a('v_max_u32 v126, v112, v113')
        a('v_cmp_eq_u32 vcc, -1, v126'); a(f's_cbranch_vccz {vok}')
        a(f'buffer_load_dwordx2 v[112:113], v9, {W}, s{sVMo} offen sc1')
        spin_check(a, fail)
        a('s_waitcnt vmcnt(0)')
        a(f's_branch {vp}')
    cold.append(cold_vm)
    a.label(vok)
    st(a, 5)
    a(f'{MF16} v[32:35], v[112:113], v[120:121], v[32:35]')
    a(f'{MF16} v[36:39], v[112:113], v[122:123], v[36:39]')
    a('v_rcp_f32 v126, v20')
    a('v_mov_b32 v127, v126')
    for t, o in ((0, 32), (1, 36)):
        a(f'v_cndmask_b32 v{24+2*t}, v{o}, v{o+2}, {MH}')
        a(f'v_cndmask_b32 v{25+2*t}, v{o+1}, v{o+3}, {MH}')
        a(f'v_pk_mul_f32 v[{24+2*t}:{25+2*t}], v[{24+2*t}:{25+2*t}], v[126:127]')
        a(f'v_cvt_pk_bf16_f32 v{28+t}, v{24+2*t}, v{25+2*t}')
    a('ds_write_b64 v11, v[28:29]')
    if 'nokm' not in EXP:
        a('s_waitcnt lgkmcnt(1)')
        a(f'buffer_store_dwordx4 v[116:119], v2, {W}, s{sKMo} offen sc1')
    emit(a, zero(88, 98))
    a('s_waitcnt lgkmcnt(0)')
    a('s_barrier')
    a(f'v_add_u32 v127, {OFR}, v2')
    a('ds_read_b128 v[20:23], v127'); a('ds_read_b128 v[24:27], v127 offset:1024')
    emit(a, zero(98, 112))
    emit(a, zero(38, 40))
    st(a, 6)
    def epi(cg):
        ops = []
        for t in range(2):
            ac = 72 + 4*(cg*2+t); d = 28 + 4*(cg >> 1) + 2*(cg & 1) + t
            ops += [f'v_add_f32 v{ac}, v{ac}, v{ac+2}', f'v_add_f32 v{ac+1}, v{ac+1}, v{ac+3}', f'v_cvt_pk_bf16_f32 v{d}, v{ac}, v{ac+1}']
        if cg in (1, 3, 4):
            qq = cg >> 1; d = 28 + 4*qq
            ops += [f'v_and_or_b32 v{d}, v{d}, -2, s{sTag}', [f's_add_u32 s{sTmp}, s{sP1w}, {qq*32768}', f'buffer_store_dwordx4 v[{d}:{d+3}], v7, {W}, s{sTmp} offen {sc}']]
        return ops
    a('s_waitcnt lgkmcnt(0)')
    pend = []
    n = 0
    for cg in range(5):
        for eb in range(2):
            A = 'v[20:23]' if eb == 0 else 'v[24:27]'
            for t in range(2):
                ac = 72 + 4*(cg*2+t)
                a(f'{SM} v[{ac}:{ac+3}], {A}, {rr(wo_home(cg, t, eb))}, v1')
                n += 1
                k = 0
                while pend and pend[0][0] <= n and k < 2:
                    emit(a, [pend.pop(0)[1]]); k += 1
        pend += [(n + int(os.environ.get("EPD", 5)), op_) for op_ in epi(cg)]
    emit(a, [x[1] for x in pend])
    if 'skel' in EXP: a.label(f'skel_{tag}')
    st(a, 7)
    gat = a.newlabel('gat'); join = a.newlabel('join'); op = a.newlabel('ownp'); nown = a.newlabel('nown'); post = a.newlabel('post')
    a(f's_cmp_ge_u32 s{sW}, 2'); a(f's_cbranch_scc1 {gat}')
    a(f's_cmp_eq_u32 s{sOwn}, -1'); a(f's_cbranch_scc1 {nown}')
    a(f'v_add_u32 v127, {SEL}, v2'); a('ds_read_b128 v[36:39], v127')
    a(f's_and_b32 s{sTmp}, s{sS}, 1'); a(f's_mul_i32 s{sTmp}, s{sTmp}, {L.P1SZ}')
    a(f's_lshl_b32 s{sTmp2}, s{sOwn}, 13'); a(f's_add_u32 s{sTmp}, s{sTmp}, s{sTmp2}')
    a(f's_add_u32 s{sTmp}, s{sTmp}, {L.P1}'); a(f's_add_u32 s{sTmp2}, s{sTmp}, 4096')
    a(f's_add_u32 s{sPubX}, s{sOwnP}, s{sMw}'); a(f's_add_u32 s{sPubX}, s{sPubX}, {L.MEMX}')
    a(f's_add_u32 s{sPubF}, s{sOwnP}, s{sMf}'); a(f's_add_u32 s{sPubF}, s{sPubF}, {L.MEMF}')
    if OSLEEP: a(f's_sleep {OSLEEP}')
    a('s_waitcnt lgkmcnt(0)')
    OL = 'nt' if ('ntld' in EXP and fast) else 'sc1'
    def oissue(b):
        for m in range(8):
            so = sTmp if m < 4 else sTmp2
            a(f'buffer_load_dwordx4 v[{b+4*m}:{b+3+4*m}], v2, {W}, s{so} offen offset:{(m&3)*1024} {OL}')
    def oconsume(b, younger):
        for m in range(8):
            a(f's_waitcnt vmcnt({7-m+younger})')
            if 'fine' in EXP and m == 0: st(a, 2)
            if 'fine' in EXP and m == 7: st(a, 3)
            c = '0' if m == 0 else 'v[20:23]'
            a(f'{MF32} v[20:23], v[{b+4*m}:{b+3+4*m}], v[36:39], {c}')
            if m == 0: a(f'v_xor_b32 v28, s{sFlipO}, v{b}')
            else: a(f'v_bitop3_b32 v28, v28, v{b+4*m}, s{sFlipO} bitop3:0x60')
        a('v_and_b32 v28, 1, v28')
        a('v_cmp_eq_u32 vcc, 0, v28')
    if 'ab' in EXP:
        od = a.newlabel('od')
        oissue(40)
        a(f's_sleep {int(os.environ.get("STAG", 2))}')
        a.label(op)
        oissue(72)
        spin_check(a, fail)
        oconsume(40, 8)
        a(f's_cbranch_vccz {od}')
        oissue(40)
        oconsume(72, 8)
        a(f's_cbranch_vccnz {op}')
        a.label(od)
    else:
        opc = a.newlabel('opc')
        a.label(op)
        oissue(40)
        if 'fine' in EXP: st(a, 1)
        oconsume(40, 0)
        if 'fine' in EXP: a(f's_add_u32 s{sT+4}, s{sT+4}, 63')
        if 'noown' not in EXP: a(f's_cbranch_vccnz {opc}')
        def cold_own():
            a.label(opc); spin_check(a, fail); a(f's_branch {op}')
        cold.append(cold_own)
    a(f'v_cndmask_b32 v24, v20, v22, {MH}'); a(f'v_cndmask_b32 v25, v21, v23, {MH}')
    a('v_cvt_pk_bf16_f32 v24, v24, v25')
    if 'nop16' not in EXP:
        if 'atomx' in EXP: a('v_mov_b32 v29, v24')
        a('v_mov_b32 v25, v24'); a('v_permlane16_swap_b32 v24, v25')
        a('v_mov_b32 v26, v24'); a('v_mov_b32 v27, v25')
        a('v_permlane32_swap_b32 v24, v26'); a('v_permlane32_swap_b32 v25, v27')
        a('s_mov_b64 exec, 0xffff')
        if 'xfirst' in EXP: a(f'buffer_store_dwordx4 v[24:27], v8, {W}, s{sPubX} offen sc1')
        a(f'buffer_store_dwordx4 v[24:27], v8, {W}, s{sPubF} offen {sc}')
        if 'xsecond' in EXP: a(f'buffer_store_dwordx4 v[24:27], v8, {W}, s{sPubX} offen sc1')
        a('s_mov_b64 exec, -1')
    else:
        a(f'buffer_store_dword v24, v8, {W}, s{sPubF} offen {sc}')
    st(a, 8)
    a('s_barrier')
    XD = int(os.environ.get('XDELAY', 0))
    if XD: a(f's_sleep {XD}')
    if 'atomx' in EXP: a(f'buffer_atomic_and v29, v8, {W}, s{sPubX} offen')
    elif 'atomx2' in EXP: pass
    elif 'xfirst' in EXP or 'xsecond' in EXP: pass
    elif 'nop16' not in EXP:
        a('s_mov_b64 exec, 0xffff')
        a(f'buffer_store_dwordx4 v[24:27], v8, {W}, s{sPubX} offen sc1')
        a('s_mov_b64 exec, -1')
    elif 'nomemx' not in EXP: a(f'buffer_store_dword v24, v8, {W}, s{sPubX} offen sc1')
    a(f's_xor_b32 s{sTmp}, s{sMf}, {L.MEMSZ}'); a(f's_add_u32 s{sTmp}, s{sTmp}, s{sOwnP}'); a(f's_add_u32 s{sTmp}, s{sTmp}, {L.MEMF}')
    a('v_mov_b32 v28, -1')
    a(f'buffer_store_dword v28, v8, {W}, s{sTmp} offen {sc}')
    a(f's_branch {post}')
    a.label(nown)
    st(a, 8)
    a('s_barrier')
    a.label(post)
    advance(a)
    emit(a, zero(20, 36))
    for j in range(4): emit(a, wl_reads(j))
    if 'ab' in EXP: a('s_waitcnt vmcnt(2)')
    a(f's_branch {join}')
    a.label(gat)
    a(f's_add_u32 s{sM2}, s{sMf}, {L.MEMF}')
    advance(a)
    gather_pre(a, sM2)
    emit(a, zero(20, 36))
    for j in range(4): emit(a, wl_reads(j))
    a('s_barrier')
    if GSLEEP: a(f's_sleep {GSLEEP}')
    st(a, 10); st.val(a, 2, sSpin)
    LF = ('nt' if ('ntld' in EXP and fast) else 'sc1')
    if 'nogather' not in EXP:
        if 'ab' in EXP: gather2(a, fail, LF, int(os.environ.get('STAG', 2)))
        else: gather(a, fail, st, LF)
    st.val(a, 3, sSpin); st(a, 11)
    a.label(join)
    a('s_waitcnt lgkmcnt(0)')
    a('s_barrier')
    st(a, 9)
    a(f's_branch main_loop_{tag}')
    for c in cold: c()

def emit_helper(a, st, fail, end):
    a.comment('======== HELPER ========')
    a.label('chain_helper')
    srd(a, S_T1, L.KA['Wv'], 640*4096*2)
    a('v_lshrrev_b32 v36, 4, v0'); a('v_and_b32 v37, 15, v0'); a('v_lshlrev_b32 v37, 4, v37')
    a('v_lshlrev_b32 v10, 13, v36'); a('v_add_u32 v10, v10, v37')
    trbase(a, 12, False)
    a(f's_lshl_b32 s30, s{sH}, 8')
    a('s_waitcnt lgkmcnt(0)')
    chunks = []
    for kb in range(10):
        chunks.append(dict(srd=S_T1, vofs=10, sbase=30, soff=64*kb*8192, istep=4*8192, vtr=12, rows=[0, 4, 32, 36], tcol=[0, 32],
                           dests=[f'a{(kb*2)*8}', f'a{(kb*2+1)*8}']))
    load_chunks(a, chunks, 14)
    a('s_barrier')
    a('v_mov_b64 v[12:13], -1'); a('v_mov_b64 v[14:15], -1')
    a('v_lshlrev_b32 v9, 3, v0')
    a(f's_lshl_b32 s{sVMo}, s{sH}, 11'); a(f's_add_u32 s{sVMo}, s{sVMo}, {L.VM}')
    if not FUSED:
        def fill(base, total):
            per = total // 32
            n = per // 4096
            a(f's_mul_i32 s{sTmp}, s{sH}, {per}'); a(f's_lshl_b32 s{sTmp2}, s{sW}, 10'); a(f's_add_u32 s{sTmp}, s{sTmp}, s{sTmp2}'); a(f's_add_u32 s{sTmp}, s{sTmp}, {base}')
            for i in range(n):
                a(f'buffer_store_dwordx4 v[12:15], v2, {W}, s{sTmp} offen sc1')
                if i < n - 1: a(f's_add_u32 s{sTmp}, s{sTmp}, 4096')
        fill(L.VM, 64 * 32 * 2048)
        fill(L.P1, 2 * L.P1SZ)
        fill(L.MEMX, 64 * L.MEMSZ)
        fill(L.MEMF, 131072)
    mem0_frags(a)
    a(f's_sub_u32 s{sTmp}, s{sW}, 2'); a(f's_mul_i32 s{sTmp}, s{sTmp}, 5120'); a(f'v_add_u32 v3, s{sTmp}, v4')
    if COARSE:
        a('s_memrealtime s[90:91]'); a('s_waitcnt lgkmcnt(0)')
        a('v_mov_b32 v36, 0'); a(f's_lshl_b32 s{sTmp}, s{sH}, 5'); a(f's_add_u32 s{sTmp}, s{sTmp}, {TRACE + 32768 + 1024}')
        a('v_mov_b32 v37, s96'); a(f'buffer_store_dword v37, v36, {W}, s{sTmp} offen'); a('v_mov_b32 v37, s90'); a(f'buffer_store_dword v37, v36, {W}, s{sTmp} offen offset:4')
    rendezvous(a, False, fail)
    a(f's_lshl_b32 s{sTmp}, s{sW}, 9'); a(f's_add_u32 s{sVMo}, s{sVMo}, s{sTmp}')
    a(f's_mov_b32 s{sS}, 0')
    a(f's_mov_b32 s{sMr}, {L.MEMX + L.MEMSZ}')
    a(f's_mov_b32 s{sHs}, {int(os.environ.get("HS0", 140))}'); a(f's_mov_b32 s{sHs1}, 1')
    emit(a, zero(28, 36))
    a('s_barrier')
    if 'skel' in EXP: a(f's_branch {end}')
    a.label('helper_loop')
    st(a, 0)
    for kb in range(10):
        a(f'ds_read_b128 v[{72+4*kb}:{75+4*kb}], v4 offset:{kb*1024}')
    for kb in range(10):
        a(f's_waitcnt lgkmcnt({9-kb})')
        for t in range(2):
            acc = 28 + t * 4; b = (kb*2+t)*8
            if 'nov' in EXP and kb > 0: continue
            a(f'{SM} v[{acc}:{acc+3}], v[{72+4*kb}:{75+4*kb}], a[{b}:{b+7}], v1')
    a('v_add_f32 v28, v28, v30'); a('v_add_f32 v29, v29, v31'); a('v_cvt_pk_bf16_f32 v44, v28, v29')
    a('v_add_f32 v32, v32, v34'); a('v_add_f32 v33, v33, v35'); a('v_cvt_pk_bf16_f32 v45, v32, v33')
    a(f'buffer_store_dwordx2 v[44:45], v9, {W}, s{sVMo} offen sc1')
    if FUSED:
        np_ = a.newlabel('np')
        a(f's_or_b32 s{sTmp3}, s{sH}, s{sW}'); a(f's_cmp_lg_u32 s{sTmp3}, 0'); a(f's_cbranch_scc1 {np_}')
        a(f's_add_u32 s{sTmp3}, s{sS}, 1'); a(f'v_mov_b32 v46, s{sTmp3}'); a('v_mov_b32 v47, 0'); a(f's_mov_b32 s{sTmp3}, {L.PROG}')
        a('s_mov_b64 exec, 1')
        a(f'buffer_store_dword v46, v47, {W}, s{sTmp3} offen sc1')
        a('s_mov_b64 exec, -1')
        a.label(np_)
    st(a, 1)
    a(f's_add_u32 s{sVMo}, s{sVMo}, {32*2048}')
    a(f's_cmp_ge_u32 s{sS}, 63'); a(f's_cbranch_scc1 helper_done')
    emit(a, zero(28, 36))
    a('s_barrier')
    hj = a.newlabel('hj')
    a(f's_cmp_lt_u32 s{sW}, 2'); a(f's_cbranch_scc1 {hj}')
    gather_pre(a, sMr)
    if 'ptx' in EXP:
        for i in range(4):
            a(f'buffer_load_dwordx4 v[{40+4*i}:{43+4*i}], v2, {W}, s{sTmp} offen offset:{i*1024} sc1')
        a(f'buffer_load_dwordx4 v[56:59], v2, {W}, s{sTmp2} offen sc1')
    if ADAPT and not HAB:
        a(f's_cmp_gt_u32 s{sHs1}, 1')
        a(f's_cselect_b32 s{sTmp3}, {ADUP + 1}, 0')
        a(f's_add_u32 s{sHs}, s{sHs}, s{sTmp3}')
        a(f's_max_u32 s{sHs}, s{sHs}, 1'); a(f's_sub_u32 s{sHs}, s{sHs}, 1'); a(f's_min_u32 s{sHs}, s{sHs}, 600')
    if ADAPT:
        sl = a.newlabel('hsl'); se = a.newlabel('hse')
        a(f's_lshr_b32 s{sTmp3}, s{sHs}, 2')
        a.label(sl)
        a(f's_cmp_eq_u32 s{sTmp3}, 0'); a(f's_cbranch_scc1 {se}')
        a('s_sleep 1')
        a(f's_sub_u32 s{sTmp3}, s{sTmp3}, 1'); a(f's_branch {sl}')
        a.label(se)
        a(f's_mov_b32 s{sHs0}, s{sSpin}')
    elif HSLEEP: a(f's_sleep {HSLEEP}')
    st(a, 2)
    if ADAPT and HAB:
        gather2(a, fail, 'sc1', HAB, res=sHs0)
        a(f's_cmp_eq_u32 s{sHs0}, 0'); a(f's_cselect_b32 s{sTmp3}, {HDN}, 0'); a(f's_max_u32 s{sHs}, s{sHs}, {HDN}'); a(f's_sub_u32 s{sHs}, s{sHs}, s{sTmp3}')
        a(f's_cmp_ge_u32 s{sHs0}, 2'); a(f's_cselect_b32 s{sTmp3}, {ADUP}, 0'); a(f's_add_u32 s{sHs}, s{sHs}, s{sTmp3}'); a(f's_min_u32 s{sHs}, s{sHs}, 600')
    else:
        gather(a, fail)
    st(a, 3)
    if ADAPT and not HAB: a(f's_sub_u32 s{sHs1}, s{sSpin}, s{sHs0}')
    a.label(hj)
    a('s_waitcnt lgkmcnt(0)')
    a('s_barrier')
    a(f's_add_u32 s{sS}, s{sS}, 1')
    a(f's_add_u32 s{sMr}, s{sMr}, {L.MEMSZ}')
    a('s_branch helper_loop')
    a.label('helper_done')
    st.dump(a, 8192)
    a(f's_branch {end}')
```

```python
import sys
sys.path.insert(0, 'gen')
from build import *
import chain5 as chain
timing = '-t' in sys.argv
sel = 0
for x in sys.argv:
    if x.startswith('sel='): sel = int(x[4:])
def emit(a):
    chain.Stamps.sel = sel
    chain.Stamps.trace = 'trace' in sys.argv
    chain.Stamps.tstep = 20
    chain.emit_chain(a, timing=timing)
out = 'chain_test.s'
for x in sys.argv:
    if x.startswith('out='): out = x[4:]
assemble([('chain_kernel', emit, {})], [('chain_kernel', (256,1,1), (256,1,1), chain.LDS_BYTES)], out)
```
